```python
import torch

def _softmax(x, axis=-1):
    return torch.softmax(x, dim=axis)
def _gelu(x):
    return torch.nn.functional.gelu(x, approximate="tanh")
def _silu(x):
    return torch.nn.functional.silu(x)
def _sigmoid(x):
    return torch.sigmoid(x)
def _layernorm(x, axis=-1, eps=1e-5):
    m = x.mean(dim=axis, keepdim=True)
    v = x.var(dim=axis, keepdim=True, unbiased=False)
    return (x - m) / torch.sqrt(v + eps)
def _scatter_add(tgt, idx, src, axis=0):
    return tgt.clone().index_add_(axis, idx, src)
def _segment_sum(src, seg, n):
    out = torch.zeros((n,) + src.shape[1:], dtype=src.dtype)
    return out.index_add_(0, seg, src)
def _pad(x, pw):
    flat = tuple(v for pair in reversed(pw) for v in pair)
    return torch.nn.functional.pad(x, flat)

kernel_name = 'sequential_preLN__sliding_block__glu_gated_swiglu__prompt'

def setup_inputs():

    _w = (lambda a: (lambda t: t.to(torch.bfloat16) if t.is_floating_point() else t)(torch.as_tensor(a)))
    def _A_setup():
        B, S, D = 1, 2048, 512
        return {
            "x": _w((lambda *s: torch.randn(*s, dtype=torch.bfloat16) * 0.05)(B, S, D)),
            "wqkv": _w((lambda *s: torch.randn(*s, dtype=torch.bfloat16) * 0.05)(D, 3 * D)),
            "wo": _w((lambda *s: torch.randn(*s, dtype=torch.bfloat16) * 0.05)(D, D)),
        }
    _A_in = _A_setup()

    def _B_setup():
        B, S, D, F = 1, 2048, 512, 1792
        return {
            "x": _w((lambda *s: torch.randn(*s, dtype=torch.bfloat16) * 0.05)(B, S, D)),
            "w1": _w((lambda *s: torch.randn(*s, dtype=torch.bfloat16) * 0.8)(D, F) * (2.0 / D) ** 0.5),
            "w3": _w((lambda *s: torch.randn(*s, dtype=torch.bfloat16) * 0.8)(D, F) * (2.0 / D) ** 0.5),
            "w2": _w((lambda *s: torch.randn(*s, dtype=torch.bfloat16) * 0.8)(F, D) * (2.0 / F) ** 0.5),
        }
    _B_in = _B_setup()

    return {
        "A_x": _A_in["x"],
        "A_wqkv": _A_in["wqkv"],
        "A_wo": _A_in["wo"],
        "B_x": _B_in["x"],
        "B_w1": _B_in["w1"],
        "B_w3": _B_in["w3"],
        "B_w2": _B_in["w2"],
    }

def reference(A_x, A_wqkv, A_wo, B_x, B_w1, B_w3, B_w2):
    def _A_ref(x, wqkv, wo):
        B, S, D = x.shape
        H = 32; Dh = D // H; W = 256
        qkv = (lambda x, *d: x.permute(*d))((x @ wqkv).reshape(B, S, 3, H, Dh), 2, 0, 3, 1, 4)
        q, k, v = qkv[0], qkv[1], qkv[2]
        scores = torch.einsum("bhqd,bhkd->bhqk", q, k) * (Dh ** -0.5)
        idx = torch.arange(S)
        mask = (idx[:, None] - idx[None, :] >= 0) & (idx[:, None] - idx[None, :] < W)
        scores = torch.where(mask[None, None], scores, -1e9)
        p = _softmax(scores, axis=-1)
        o = torch.einsum("bhqk,bhkd->bhqd", p, v)
        return (lambda x, *d: x.permute(*d))(o, 0, 2, 1, 3).reshape(B, S, D) @ wo

    def _B_ref(x, w1, w3, w2):
        gate = torch.einsum("bsd,df->bsf", x, w1)
        up = torch.einsum("bsd,df->bsf", x, w3)
        h = _silu(gate) * up
        out = torch.einsum("bsf,fd->bsd", h, w2)
        return out

    x = A_x
    h = x + _A_ref(_layernorm(x, axis=-1), A_wqkv, A_wo)
    h2 = h + _B_ref(_layernorm(h, axis=-1), B_w1, B_w3, B_w2)
    return h2
```

```python
import re

_TOK = re.compile(r'^(v|a|s)(\d+)$')
_RNG = re.compile(r'^(v|a|s)\[(\d+):(\d+)\]$')


def regs_of(tok):
    tok = tok.strip()
    if tok.startswith('-'):
        tok = tok[1:]
    if tok.startswith('|') and tok.endswith('|'):
        tok = tok[1:-1]
    m = _TOK.match(tok)
    if m:
        return [(m.group(1), int(m.group(2)))]
    m = _RNG.match(tok)
    if m:
        return [(m.group(1), i) for i in range(int(m.group(2)), int(m.group(3)) + 1)]
    if tok in ('vcc', 'vcc_lo', 'vcc_hi'):
        return [('s', 'vcc')]
    if tok in ('exec', 'exec_lo', 'exec_hi'):
        return [('s', 'exec')]
    if tok == 'm0':
        return [('s', 'm0')]
    return []


def split_ops(s):
    out, depth, cur = [], 0, ''
    for ch in s:
        if ch == '[':
            depth += 1
        if ch == ']':
            depth -= 1
        if ch == ',' and depth == 0:
            out.append(cur.strip())
            cur = ''
        else:
            cur += ch
    if cur.strip():
        out.append(cur.strip())
    return out


TRANS = ('v_exp_', 'v_log_', 'v_rcp_', 'v_rsq_', 'v_sqrt_', 'v_sin_', 'v_cos_')


class Ins:
    __slots__ = ('text', 'name', 'kind', 'dst', 'src', 'states', 'passes', 'A', 'B', 'C', 'trans',
                 'mods', 'wide_store', 'stdata', 'ldsdma', 'perm')

    def __init__(self, text):
        self.text = text
        t = text.split(';')[0].strip()
        self.dst, self.src = set(), set()
        self.A = self.B = self.C = None
        self.states = 1
        self.passes = 0
        self.trans = False
        self.wide_store = False
        self.stdata = set()
        self.ldsdma = False
        self.perm = False
        if not t or t.endswith(':') or t.startswith('.'):
            self.kind = 'label' if t.endswith(':') else 'none'
            self.name = t
            self.states = 0
            return
        parts = t.split(None, 1)
        name = parts[0]
        self.name = name
        rest = parts[1] if len(parts) > 1 else ''
        ops = split_ops(rest)
        mods = ''
        if ops:
            last = ops[-1].split()
            ops[-1] = last[0]
            mods = ' '.join(last[1:])
        self.mods = mods
        R = [regs_of(o) for o in ops]
        if name.startswith('v_mfma'):
            self.kind = 'mfma'
            self.passes = 8 if '32x32' in name else 4
            self.dst = set(R[0])
            self.A, self.B, self.C = R[1], R[2], R[3]
            self.src = set(R[1]) | set(R[2]) | set(R[3])
        elif name.startswith('v_'):
            self.kind = 'valu'
            self.trans = name.startswith(TRANS)
            if name.startswith('v_nop'):
                pass
            elif name.startswith('v_permlane') and 'swap' in name:
                self.dst = set(R[0]) | set(R[1])
                self.src = set(R[0]) | set(R[1])
                self.perm = True
            elif name.startswith(('v_add_co', 'v_sub_co', 'v_addc_co', 'v_subb_co')):
                self.dst = set(R[0]) | set(R[1])
                for r in R[2:]:
                    self.src |= set(r)
            else:
                self.dst = set(R[0])
                for r in R[1:]:
                    self.src |= set(r)
                if name.startswith(('v_fmac', 'v_mac')):
                    self.src |= set(R[0])
                if 'dpp' in name or 'row_' in mods or 'quad_perm' in mods:
                    self.perm = True
        elif name.startswith(('buffer_', 'global_')):
            self.kind = 'vmem'
            is_store = 'store' in name
            lds = (' lds' in (' ' + mods)) or ('_lds_' in name)
            self.ldsdma = lds
            if is_store:
                for r in R:
                    self.src |= set(r)
                self.stdata = set(R[0]) if name.startswith('buffer_') else set(R[1])
                self.wide_store = name.endswith(('x3', 'x4'))
            elif lds:
                for r in R:
                    self.src |= set(r)
                self.src.add(('s', 'm0'))
            else:
                self.dst = set(R[0])
                for r in R[1:]:
                    self.src |= set(r)
        elif name.startswith('ds_'):
            self.kind = 'ds'
            if name.startswith(('ds_write', 'ds_store')):
                for r in R:
                    self.src |= set(r)
            else:
                self.dst = set(R[0])
                for r in R[1:]:
                    self.src |= set(r)
        elif name.startswith('s_'):
            self.kind = 'salu'
            if name == 's_nop':
                self.states = int(ops[0], 0) + 1
            elif name.startswith(('s_waitcnt', 's_barrier', 's_cbranch', 's_branch', 's_endpgm', 's_cmp',
                                  's_setprio', 's_sleep')):
                for r in R:
                    self.src |= set(r)
            else:
                if R:
                    self.dst = set(R[0])
                for r in R[1:]:
                    self.src |= set(r)
        else:
            raise ValueError('unknown instr ' + text)


def required(P, I):
    req = 0
    if P.kind == 'valu':
        pv = {r for r in P.dst if r[0] in 'va'}
        ps = {r for r in P.dst if r[0] == 's'}
        if I.kind == 'mfma' and pv & I.src:
            req = max(req, 2)
        if ps:
            if I.kind == 'vmem' and ps & I.src:
                req = max(req, 5)
            if I.kind == 'valu' and ps & I.src:
                req = max(req, 4 if I.name.startswith(('v_readlane', 'v_writelane')) else 2)
            if I.kind == 'mfma' and ('s', 'exec') in ps:
                req = max(req, 4)
        if I.kind == 'valu' and I.name.startswith(('v_readfirstlane', 'v_readlane')) and pv & I.src:
            req = max(req, 1)
        if P.trans and I.kind == 'valu' and not I.trans and pv & I.src:
            req = max(req, 1)
        if I.kind == 'valu' and I.perm and pv & I.src:
            req = max(req, 2)
    if P.kind == 'mfma':
        big = 12 if P.passes == 8 else 8
        if I.kind == 'mfma':
            if P.dst & (set(I.A) | set(I.B)):
                req = max(req, big)
            if P.dst & set(I.C):
                if set(I.C) == P.dst and I.passes == P.passes:
                    pass
                else:
                    req = max(req, 10 if P.passes == 8 else 6)
        elif I.kind in ('valu', 'vmem', 'ds'):
            if P.dst & (I.src | I.dst):
                req = max(req, big)
            if I.kind == 'valu' and set(P.C) & I.dst:
                req = max(req, 7 if P.passes == 8 else 3)
    if P.kind == 'vmem' and P.wide_store:
        if I.kind == 'valu' and P.stdata & I.dst:
            req = max(req, 2)
        elif P.stdata & I.dst:
            req = max(req, 1)
    if P.kind == 'salu' and ('s', 'm0') in P.dst and I.ldsdma:
        req = max(req, 1)
    return req


class Kernel:
    def __init__(self, name):
        self.name = name
        self.raw = []

    def __call__(self, s):
        for line in s.split('\n'):
            if line.strip():
                self.raw.append(line.strip())

    def label(self, l):
        self.raw.append(l + ':')

    def finalize(self):
        out = []
        for t in self.raw:
            I = Ins(t)
            if I.kind == 'label':
                out.append(I)
                if I.name.startswith('J_'):
                    out.append(Ins('s_nop 7'))
                    out.append(Ins('s_nop 7'))
                continue
            if I.kind == 'none':
                out.append(I)
                continue
            need = 0
            dist = 0
            for P in reversed(out):
                if dist >= 12:
                    break
                r = required(P, I)
                if r > dist:
                    need = max(need, r - dist)
                dist += P.states
            while need > 0:
                n = min(need, 8)
                out.append(Ins('s_nop %d' % (n - 1)))
                need -= n
            out.append(I)
        return [('    ' if i.kind not in ('label',) else '') + i.text for i in out]
```

```python
from asmlib import Kernel

WS_Q = 0x000000
WS_K = 0x200000
WS_VT = 0x400000
WS_O = 0x600000
WS_H = 0x800000
WS_HH = 0xA00000
WS_SIZE = 0x10000000


def vr(b, n):
    return 'v[%d:%d]' % (b, b + n - 1) if n > 1 else 'v%d' % b


def ar(b, n):
    return 'a[%d:%d]' % (b, b + n - 1) if n > 1 else 'a%d' % b


def sr(b, n):
    return 's[%d:%d]' % (b, b + n - 1) if n > 1 else 's%d' % b


def make_srd(k, dst, lo, hi, size):
    k('s_mov_b32 s%d, s%d' % (dst, lo))
    k('s_mov_b32 s%d, s%d' % (dst + 1, hi))
    k('s_mov_b32 s%d, 0x%x' % (dst + 2, size))
    k('s_mov_b32 s%d, 0x00020000' % (dst + 3))


def ln_stats(k, AF, ST, ONES, T, nload_after, NKS=16, pre=None):
    for i in range(4):
        k('v_mov_b32 v%d, 0x3f803f80' % (ONES + i))
    for ks in range(NKS):
        k('s_waitcnt vmcnt(%d)' % (nload_after + 2 * (NKS - 1 - ks)))
        for mf in range(2):
            a = vr(AF + (ks * 2 + mf) * 4, 4)
            c0 = '0' if ks == 0 else vr(ST + mf * 4, 4)
            c1 = '0' if ks == 0 else vr(ST + 8 + mf * 4, 4)
            k('v_mfma_f32_16x16x32_bf16 %s, %s, %s, %s' % (vr(ST + mf * 4, 4), vr(ONES, 4), a, c0))
            k('v_mfma_f32_16x16x32_bf16 %s, %s, %s, %s' % (vr(ST + 8 + mf * 4, 4), a, a, c1))
    for r in range(4):
        k('s_mov_b32 s%d, 0x%x' % (40 + 2 * r, (1 << r) | (1 << (20 + r))))
        k('s_mov_b32 s%d, 0x%x' % (41 + 2 * r, (1 << (8 + r)) | (1 << (28 + r))))
    res = []
    for mf in range(2):
        t, t2, m, v = T, T + 1, T + 2 + mf * 2, T + 3 + mf * 2
        k('v_mov_b32 v%d, 0' % t)
        for r in range(4):
            k('v_cndmask_b32_e64 v%d, v%d, v%d, s[%d:%d]' % (t, t, ST + 8 + mf * 4 + r, 40 + 2 * r, 41 + 2 * r))
        k('v_mov_b32 v%d, v%d' % (t2, t))
        k('v_permlane32_swap_b32 v%d, v%d' % (t, t2))
        k('v_add_f32 v%d, v%d, v%d' % (t, t, t2))
        k('v_mov_b32 v%d, v%d' % (t2, t))
        k('v_permlane16_swap_b32 v%d, v%d' % (t, t2))
        k('v_add_f32 v%d, v%d, v%d' % (t, t, t2))
        k('v_mul_f32 v%d, 0x3b000000, v%d' % (m, ST + mf * 4))
        k('v_mul_f32 v%d, 0x3b000000, v%d' % (v, t))
        k('v_fma_f32 v%d, -v%d, v%d, v%d' % (v, m, m, v))
        k('v_max_f32 v%d, 0, v%d' % (v, v))
        k('v_cvt_pk_bf16_f32 v%d, v%d, v%d' % (t, m, v))
        k('v_lshlrev_b32 v%d, 16, v%d' % (m, t))
        k('v_and_b32 v%d, 0xffff0000, v%d' % (v, t))
        k('v_add_f32 v%d, 0x3727c5ac, v%d' % (v, v))
        k('v_cvt_pk_bf16_f32 v%d, v%d, v%d' % (t, v, v))
        k('v_lshlrev_b32 v%d, 16, v%d' % (v, t))
        k('v_sqrt_f32 v%d, v%d' % (v, v))
        k('v_cvt_pk_bf16_f32 v%d, v%d, v%d' % (t, v, v))
        k('v_lshlrev_b32 v%d, 16, v%d' % (v, t))
        k('v_rcp_f32 v%d, v%d' % (v, v))
        k('v_mul_f32 v%d, v%d, v%d' % (m, m, v))
    for mf in range(2):
        k('v_mov_b32 v%d, v%d' % (ST + mf, T + 3 + mf * 2))
        k('v_mov_b32 v%d, v%d' % (ST + 2 + mf, T + 2 + mf * 2))


def norm_ops(AF, ST, T, ks):
    ops = []
    for mf in range(2):
        for r in range(4):
            a = AF + (ks * 2 + mf) * 4 + r
            t0, t1 = T + (r & 1) * 2, T + (r & 1) * 2 + 1
            ops.append('v_lshlrev_b32 v%d, 16, v%d' % (t0, a))
            ops.append('v_and_b32 v%d, 0xffff0000, v%d' % (t1, a))
            ops.append('v_fma_f32 v%d, v%d, v%d, -v%d' % (t0, t0, ST + mf, ST + 2 + mf))
            ops.append('v_fma_f32 v%d, v%d, v%d, -v%d' % (t1, t1, ST + mf, ST + 2 + mf))
            ops.append('v_cvt_pk_bf16_f32 v%d, v%d, v%d' % (a, t0, t1))
    return ops


def gen_k1():
    k = Kernel('k1')
    AF = 64
    BF = 16
    ST = 192
    ONES = 208
    T = 212
    vA, vB0, vB1, vB2, vRd0, vRd1, vSS, vSV = 8, 9, 10, 11, 12, 13, 14, 15
    k('s_cmp_ge_u32 s2, 256')
    k('s_cbranch_scc1 K1_done')
    k('s_load_dwordx4 s[4:7], s[0:1], 0')
    k('s_load_dwordx2 s[8:9], s[0:1], 72')
    k('''s_and_b32 s10, s2, 7
    s_lshr_b32 s11, s2, 3
    s_and_b32 s20, s10, 3
    s_lshl_b32 s20, s20, 2
    s_and_b32 s21, s11, 3
    s_add_u32 s20, s20, s21
    s_lshr_b32 s21, s10, 2
    s_lshl_b32 s21, s21, 3
    s_lshr_b32 s22, s11, 2
    s_add_u32 s21, s21, s22
    v_lshrrev_b32 v1, 6, v0
    v_readfirstlane_b32 s22, v1
    v_and_b32 v1, 63, v0
    v_and_b32 v2, 15, v1
    v_lshrrev_b32 v3, 4, v1''')
    k('''s_lshl_b32 s23, s20, 17
    s_lshl_b32 s24, s22, 15
    s_add_u32 s23, s23, s24
    s_mov_b32 s24, 16384
    v_lshlrev_b32 v4, 10, v2
    v_lshl_add_u32 v4, v3, 4, v4
    v_add_u32 v%d, s23, v4''' % vA)
    k('''v_lshrrev_b32 v4, 1, v2
    v_and_b32 v5, 4, v4
    v_lshlrev_b32 v5, 1, v5
    v_and_b32 v6, 3, v4
    v_or_b32 v5, v5, v6
    v_mul_u32_u24 v6, 0xc00, v5
    v_and_b32 v7, 1, v2
    v_lshl_add_u32 v6, v7, 4, v6
    v_lshl_add_u32 v%d, v3, 5, v6
    v_add_u32 v%d, 12352, v%d
    v_cmp_gt_u32 vcc, 2, v3
    v_mov_b32 v4, 128
    v_mov_b32 v5, 12224
    v_cndmask_b32 v4, v5, v4, vcc
    v_add_u32 v%d, v4, v%d''' % (vB0, vB2, vB0, vB1, vB0))
    k('''v_lshrrev_b32 v4, 1, v3
    v_mul_u32_u24 v4, 0xc00, v4
    v_and_b32 v5, 1, v3
    v_lshl_add_u32 v4, v5, 7, v4
    v_lshrrev_b32 v5, 2, v2
    v_lshl_add_u32 v4, v5, 5, v4
    v_and_b32 v5, 3, v2
    v_lshl_add_u32 v%d, v5, 3, v4
    v_add_u32 v%d, 49152, v%d''' % (vRd0, vRd1, vRd0))
    k('''s_lshr_b32 s25, s23, 5
    v_lshlrev_b32 v4, 5, v2
    v_add_u32 v4, s25, v4
    v_lshl_add_u32 v%d, v3, 3, v4
    v_and_b32 v5, 1, v3
    v_lshlrev_b32 v5, 1, v5
    v_lshrrev_b32 v6, 1, v3
    v_or_b32 v5, v5, v6
    v_lshl_add_u32 v%d, v5, 3, v4''' % (vSS, vSV))
    k('s_mul_i32 s26, s21, 192')
    k('s_mul_i32 s27, s22, 98304')
    k('s_add_u32 s26, s26, s27')
    k('s_mul_i32 s27, s22, 6144')
    k('s_mul_i32 s28, s21, 0x60000')
    k('s_waitcnt lgkmcnt(0)')
    make_srd(k, 12, 4, 5, 2048 * 512 * 2)
    make_srd(k, 16, 6, 7, 512 * 1536 * 2)
    make_srd(k, 32, 8, 9, WS_SIZE)
    for ks in range(16):
        for mf in range(2):
            k('buffer_load_dwordx4 %s, v%d, s[12:15], %s offen offset:%d' % (
                vr(AF + (ks * 2 + mf) * 4, 4), vA, 's24' if mf else '0', ks * 64))
    for s in range(4):
        for gi in range(2):
            k('s_add_u32 s29, s26, %d' % ((8 * s + gi) * 49152))
            for j in range(3):
                k('s_add_u32 m0, s27, %d' % ((8 * s + gi) * 3072 + j * 1024))
                k('buffer_load_dwordx4 v%d, s[16:19], s29 offen lds' % (vB0 + j))
    ln_stats(k, AF, ST, ONES, T, 24)

    def reads(ks):
        p = ks & 1
        out = []
        for nf in range(6):
            for kgl in range(2):
                out.append('ds_read_b64_tr_b16 %s, v%d offset:%d' % (
                    vr(BF + p * 24 + nf * 4 + kgl * 2, 2), vRd1 if ks >= 8 else vRd0,
                    (ks & 7) * 6144 + (kgl * 6 + nf) * 256))
        return out

    def variant(name, sw):
        k.label('J_K1_%s' % name)
        for o in norm_ops(AF, ST, T, 0):
            k(o)
        k('s_waitcnt vmcnt(18)')
        k('s_barrier')
        for o in reads(0):
            k(o)
        for ks in range(16):
            p = ks & 1
            nxt = ks + 1 < 16
            if nxt and (ks + 1) % 4 == 0:
                k('s_waitcnt vmcnt(%d)' % (18 - 6 * ((ks + 1) // 4)))
                k('s_barrier')
            k('s_waitcnt lgkmcnt(0)')
            rd = reads(ks + 1) if nxt else []
            no = norm_ops(AF, ST, T, ks + 1) if nxt else []
            i = 0
            for nf in range(6):
                for mf in range(2):
                    acc = ar((mf * 6 + nf) * 4, 4)
                    a = vr(AF + (ks * 2 + mf) * 4, 4)
                    b = vr(BF + p * 24 + nf * 4, 4)
                    c = '0' if ks == 0 else acc
                    if sw[nf]:
                        k('v_mfma_f32_16x16x32_bf16 %s, %s, %s, %s' % (acc, b, a, c))
                    else:
                        k('v_mfma_f32_16x16x32_bf16 %s, %s, %s, %s' % (acc, a, b, c))
                    if rd:
                        k(rd.pop(0))
                    for _ in range(4 if i % 3 else 2):
                        if no:
                            k(no.pop(0))
                    i += 1
            for o in rd + no:
                k(o)
        for nf in range(6):
            k('s_add_u32 s29, s28, %d' % (nf * 65536))
            for mf in range(2):
                t = T + mf * 4
                for r in range(4):
                    k('v_accvgpr_read_b32 v%d, a%d' % (t + r, (mf * 6 + nf) * 4 + r))
                k('v_cvt_pk_bf16_f32 v%d, v%d, v%d' % (t, t, t + 1))
                k('v_cvt_pk_bf16_f32 v%d, v%d, v%d' % (t + 1, t + 2, t + 3))
                k('buffer_store_dwordx2 %s, v%d, s[32:35], s29 offen offset:%d' % (
                    vr(t, 2), vSS if sw[nf] else vSV, mf * 512))
        k('s_endpgm')

    k('s_cmp_eq_u32 s21, 10')
    k('s_cbranch_scc1 J_K1_mix')
    k('s_cmp_gt_u32 s21, 10')
    k('s_cbranch_scc1 J_K1_v')
    variant('qk', [1] * 6)
    variant('mix', [1, 1, 1, 1, 0, 0])
    variant('v', [0] * 6)
    k.label('K1_done')
    k('s_endpgm')
    return k, dict(vgpr=220, agpr=48, lds=98304, grid=256)
```

```python
from asmlib import Kernel
from k1 import vr, ar, sr, make_srd, WS_Q, WS_K, WS_VT, WS_O, WS_SIZE
import struct


def f32hex(x):
    return '0x%08x' % struct.unpack('<I', struct.pack('<f', x))[0]


def gen_k2():
    k = Kernel('k2')
    S = 12
    O = 156
    vQ, vK, vV, vD, vSt, vNeg = 4, 5, 6, 7, 8, 9
    t0, t1 = 10, 11
    aK = 0
    aV0 = 36
    aQ = 72
    k('s_cmp_ge_u32 s2, 512')
    k('s_cbranch_scc1 K2_done')
    k('s_load_dwordx2 s[8:9], s[0:1], 72')
    k('''s_and_b32 s10, s2, 7
    s_lshr_b32 s11, s2, 3
    s_lshl_b32 s20, s10, 2
    s_and_b32 s21, s11, 3
    s_add_u32 s20, s20, s21
    s_lshr_b32 s21, s11, 2
    s_lshl_b32 s21, s21, 2
    v_lshrrev_b32 v1, 6, v0
    v_readfirstlane_b32 s22, v1
    v_and_b32 v1, 63, v0
    v_and_b32 v2, 31, v1
    v_lshrrev_b32 v3, 5, v1''')
    k('s_add_u32 s21, s21, s22')
    k('''s_lshl_b32 s23, s20, 16
    s_lshl_b32 s24, s21, 10
    s_add_u32 s23, s23, s24
    v_lshlrev_b32 v10, 5, v2
    v_lshl_add_u32 v10, v3, 4, v10
    v_add_u32 v%d, s23, v10
    v_add_u32 v%d, 0x%x, v%d
    v_and_b32 v10, 15, v1
    v_lshlrev_b32 v10, 5, v10
    v_lshl_add_u32 v10, v3, 4, v10
    v_add_u32 v10, s23, v10
    v_add_u32 v%d, 0x%x, v10''' % (vQ, vK, WS_K - 8192, vQ, vV, WS_VT - 8192))
    k('v_lshlrev_b32 v10, 2, v3')
    k('v_sub_u32 v%d, v2, v10' % vD)
    k('''s_lshl_b32 s25, s21, 5
    s_add_u32 s25, s25, s20
    s_lshl_b32 s25, s25, 10
    s_add_u32 s25, s25, 0x%x
    v_lshlrev_b32 v10, 4, v2
    v_lshl_add_u32 v10, v3, 3, v10
    v_add_u32 v%d, s25, v10''' % (WS_O, vSt))
    k('v_mov_b32 v%d, %s' % (vNeg, f32hex(-1e9)))
    k('v_mov_b32 v%d, 0x3f803f80' % t1)
    k('s_mov_b32 s26, 4096')
    k('s_mov_b32 s27, 8192')
    k('s_sub_i32 s28, 8, s21')
    k('s_max_i32 s28, s28, 0')
    k('s_waitcnt lgkmcnt(0)')
    make_srd(k, 12, 8, 9, WS_SIZE)

    def so(off):
        return ('0', 's26', 's27')[off // 4096], off % 4096

    k('buffer_load_dwordx4 %s, v%d, s[12:15], 0 offen' % (ar(aQ, 4), vQ))
    for T in range(9):
        s_, i_ = so(T * 1024)
        k('buffer_load_dwordx4 %s, v%d, s[12:15], %s offen offset:%d' % (ar(aK + T * 4, 4), vK, s_, i_))

    def vreg(idx):
        return aV0 + idx * 4 if idx < 9 else aK + (idx - 9) * 4

    def vloads(idxs):
        for idx in idxs:
            for r in range(4):
                k('v_accvgpr_write_b32 a%d, v%d' % (vreg(idx) + r, t1))
        k('s_mov_b32 exec_lo, 0x0000ffff')
        k('s_mov_b32 exec_hi, 0x0000ffff')
        for idx in idxs:
            s_, i_ = so(idx * 512)
            k('buffer_load_dwordx4 %s, v%d, s[12:15], %s offen offset:%d' % (ar(vreg(idx), 4), vV, s_, i_))
        k('s_mov_b64 exec, -1')

    vloads(range(9))
    for T in range(9):
        k('s_waitcnt vmcnt(%d)' % (9 + 8 - T))
        k('v_mfma_f32_32x32x16_bf16 %s, %s, %s, 0' % (vr(S + T * 16, 16), ar(aK + T * 4, 4), ar(aQ, 4)))
    vloads(range(9, 18))
    for i in range(16):
        kk = (i >> 2) * 8 + (i & 3)
        k('v_cmp_gt_i32 vcc, %d, v%d' % (kk, vD))
        k('v_cndmask_b32 v%d, v%d, v%d, vcc' % (S + i, vNeg, S + i))
    for i in range(16):
        kk = (i >> 2) * 8 + (i & 3)
        k('v_cmp_le_i32 vcc, %d, v%d' % (kk, vD))
        k('v_cndmask_b32 v%d, v%d, v%d, vcc' % (S + 128 + i, vNeg, S + 128 + i))
    k('s_cmp_eq_u32 s28, 0')
    k('s_cbranch_scc1 J_K2_nomask')
    for T in range(8):
        k('s_cmp_gt_u32 s28, %d' % T)
        k('s_cbranch_scc0 J_K2_nomask')
        for i in range(16):
            k('v_mov_b32 v%d, v%d' % (S + T * 16 + i, vNeg))
    k.label('J_K2_nomask')
    ch = [O, O + 1, O + 2, O + 3]
    regs = list(range(S, S + 144))
    for c in range(4):
        k('v_max3_f32 v%d, v%d, v%d, v%d' % (ch[c], regs[c * 36], regs[c * 36 + 1], regs[c * 36 + 2]))
    for j in range(3, 35, 2):
        for c in range(4):
            k('v_max3_f32 v%d, v%d, v%d, v%d' % (ch[c], ch[c], regs[c * 36 + j], regs[c * 36 + j + 1]))
    for c in range(4):
        k('v_max_f32 v%d, v%d, v%d' % (ch[c], ch[c], regs[c * 36 + 35]))
    k('v_max3_f32 v%d, v%d, v%d, v%d' % (t0, ch[0], ch[1], ch[2]))
    k('v_max_f32 v%d, v%d, v%d' % (t0, t0, ch[3]))
    k('v_mov_b32 v%d, v%d' % (t1, t0))
    k('v_permlane32_swap_b32 v%d, v%d' % (t0, t1))
    k('v_max_f32 v%d, v%d, v%d' % (t0, t0, t1))
    c_ = 0.25 * 1.4426950408889634
    k('s_mov_b32 s29, %s' % f32hex(c_))
    k('v_mul_f32 v%d, s29, v%d' % (t0, t0))
    first = True
    for T in range(9):
        b = S + T * 16
        for i in range(16):
            k('v_fma_f32 v%d, v%d, s29, -v%d' % (b + i, b + i, t0))
        for i in range(16):
            k('v_exp_f32 v%d, v%d' % (b + i, b + i))
        for u in range(2):
            for j in range(4):
                k('v_cvt_pk_bf16_f32 v%d, v%d, v%d' % (b + 8 * u + j, b + 8 * u + 2 * j, b + 8 * u + 2 * j + 1))
        for u in range(2):
            idx = 2 * T + u
            if idx == 0:
                k('s_waitcnt vmcnt(9)')
            if idx == 9:
                k('s_waitcnt vmcnt(0)')
            k('v_mfma_f32_32x32x16_bf16 %s, %s, %s, %s' % (
                vr(O, 16), ar(vreg(idx), 4), vr(b + 8 * u, 4), '0' if first else vr(O, 16)))
            first = False
    k('v_rcp_f32 v%d, v%d' % (t0, O + 8))
    for i in range(8):
        k('v_mul_f32 v%d, v%d, v%d' % (O + i, O + i, t0))
    for j in range(4):
        k('v_cvt_pk_bf16_f32 v%d, v%d, v%d' % (O + j, O + 2 * j, O + 2 * j + 1))
    k('buffer_store_dwordx2 %s, v%d, s[12:15], 0 offen' % (vr(O, 2), vSt))
    k('buffer_store_dwordx2 %s, v%d, s[12:15], 0 offen offset:512' % (vr(O + 2, 2), vSt))
    k.label('K2_done')
    k('s_endpgm')
    return k, dict(vgpr=172, agpr=76, lds=0, grid=512)
```

```python
from asmlib import Kernel
from k1 import vr, ar, sr, make_srd, WS_O, WS_H, WS_HH, WS_SIZE


def gen_gemm(name, KT, wsA, b_karg, bK, res_from_ws, out_to_ws):
    k = Kernel(name)
    NS = KT // 4
    NR = min(NS, 16)
    PF = NS if NS <= NR else NR - 1
    RS = NR * 2048
    AR = 24
    BFR = AR + NR * 8
    ACC = BFR + 16
    RES = ACC + 64
    T = RES + 8
    nv = T + 16
    vA0, vA1, vBd, vBr, vOut, vRes, vW, vR, vR2 = 8, 9, 10, 11, 12, 13, 14, 15, 16
    L = name.upper()
    k('s_cmp_ge_u32 s2, 256')
    k('s_cbranch_scc1 %s_done' % L)
    k('s_load_dwordx2 s[4:5], s[0:1], %d' % b_karg)
    k('s_load_dwordx2 s[6:7], s[0:1], 72')
    k('s_load_dwordx2 s[8:9], s[0:1], %d' % (72 if res_from_ws else 0))
    k('s_load_dwordx2 s[10:11], s[0:1], %d' % (72 if out_to_ws else 56))
    k('''s_and_b32 s20, s2, 7
    s_lshr_b32 s21, s2, 3
    s_lshl_b32 s20, s20, 2
    s_and_b32 s22, s21, 3
    s_add_u32 s20, s20, s22
    s_lshr_b32 s21, s21, 2
    v_lshrrev_b32 v1, 6, v0
    v_readfirstlane_b32 s22, v1
    v_and_b32 v1, 63, v0
    v_lshrrev_b32 v3, 4, v1
    v_and_b32 v2, 15, v1''')
    k('s_mul_i32 s23, s20, %d' % (2 * KT * 1024))
    k('s_mul_i32 s24, s22, %d' % (NS * 1024))
    k('s_add_u32 s23, s23, s24')
    k('s_add_u32 s23, s23, 0x%x' % wsA)
    k('v_lshlrev_b32 v4, 4, v1')
    k('v_add_u32 v%d, s23, v4' % vA0)
    k('v_add_u32 v%d, %d, v%d' % (vA1, KT * 1024, vA0))
    k('''v_lshrrev_b32 v4, 5, v1
    v_lshlrev_b32 v4, 2, v4
    v_bfe_u32 v5, v1, 2, 2
    v_add_u32 v4, v4, v5
    v_lshlrev_b32 v4, 10, v4
    v_and_b32 v5, 1, v3
    v_lshl_add_u32 v4, v5, 6, v4
    v_and_b32 v5, 3, v1
    v_lshl_add_u32 v4, v5, 4, v4
    s_lshl_b32 s24, s21, 7
    v_add_u32 v%d, s24, v4''' % vBd)
    k('s_mul_i32 s25, s22, %d' % (NS * 16 * 1024))
    k('s_mul_i32 s26, s22, %d' % RS)
    k('''v_lshrrev_b32 v4, 1, v3
    v_lshlrev_b32 v4, 10, v4
    v_lshrrev_b32 v5, 2, v2
    v_lshl_add_u32 v4, v5, 6, v4
    v_and_b32 v5, 1, v3
    v_lshl_add_u32 v4, v5, 5, v4
    v_and_b32 v5, 3, v2
    v_lshl_add_u32 v4, v5, 3, v4
    v_add_u32 v%d, s26, v4''' % vBr)
    k('v_lshlrev_b32 v4, 4, v1')
    k('v_add_u32 v%d, s26, v4' % vW)
    k('s_lshl_b32 s27, s22, 12')
    k('v_add_u32 v%d, s27, v4' % vR)
    k('v_add_u32 v%d, %d, v%d' % (vR2, 2 * RS, vR))
    k('''s_lshr_b32 s27, s22, 1
    s_lshl_b32 s27, s27, 5
    s_lshl_b32 s28, s20, 6
    s_add_u32 s27, s27, s28
    s_lshl_b32 s27, s27, 10
    s_and_b32 s28, s22, 1
    s_lshl_b32 s28, s28, 6
    s_add_u32 s27, s27, s28
    s_add_u32 s27, s27, s24
    v_and_b32 v4, 31, v1
    v_lshlrev_b32 v4, 10, v4
    v_lshrrev_b32 v5, 5, v1
    v_lshl_add_u32 v4, v5, 3, v4
    v_add_u32 v4, s27, v4''')
    k('v_add_u32 v%d, 0x%x, v4' % (vOut, WS_H if out_to_ws else 0))
    k('v_add_u32 v%d, 0x%x, v4' % (vRes, WS_H if res_from_ws else 0))
    k('s_waitcnt lgkmcnt(0)')
    make_srd(k, 12, 4, 5, bK * 512 * 2)
    make_srd(k, 16, 6, 7, WS_SIZE)
    make_srd(k, 32, 8, 9, WS_SIZE if res_from_ws else 2048 * 512 * 2)
    make_srd(k, 36, 10, 11, WS_SIZE if out_to_ws else 2048 * 512 * 2)
    for q in range(4):
        k('buffer_load_dwordx2 %s, v%d, s[32:35], 0 offen offset:%d' % (vr(RES + 2 * q, 2), vRes, q * 16))

    def loads(s):
        slot = s % NR
        k('s_mov_b32 s29, %d' % (s * 1024))
        for mi in range(2):
            k('buffer_load_dwordx4 %s, v%d, s[16:19], s29 offen' % (vr(AR + slot * 8 + mi * 4, 4), vA0 + mi))
        for h in range(2):
            k('s_add_u32 s30, s25, %d' % ((s * 16 + h * 8) * 1024))
            k('s_add_u32 m0, s26, %d' % (slot * 2048 + h * 1024))
            k('buffer_load_dwordx4 v%d, s[12:15], s30 offen lds' % vBd)

    def reads(s):
        slot = s % NR
        p = s & 1
        for nb in range(2):
            for sec in range(2):
                k('ds_read_b64_tr_b16 %s, v%d offset:%d' % (
                    vr(BFR + p * 8 + nb * 4 + sec * 2, 2), vBr, slot * 2048 + sec * 512 + nb * 256))

    issued = 0
    for s in range(PF):
        loads(s)
        issued += 1
    k('s_waitcnt vmcnt(%d)' % (4 * (issued - 1)))
    reads(0)
    for s in range(NS):
        p = s & 1
        if s + 1 < NS:
            k('s_waitcnt vmcnt(%d)' % (4 * (issued - 1 - (s + 1))))
            reads(s + 1)
            k('s_waitcnt lgkmcnt(4)')
        else:
            k('s_waitcnt lgkmcnt(0)')
        slot = s % NR
        for mi in range(2):
            for nb in range(2):
                acc = vr(ACC + (mi * 2 + nb) * 16, 16)
                k('v_mfma_f32_32x32x16_bf16 %s, %s, %s, %s' % (
                    acc, vr(BFR + p * 8 + nb * 4, 4), vr(AR + slot * 8 + mi * 4, 4), '0' if s == 0 else acc))
        if issued < NS:
            loads(issued)
            issued += 1
    for w in range(4):
        if w:
            k.label('J_%s_w%d' % (L, w))
        if w < 3:
            k('s_cmp_lg_u32 s22, %d' % w)
            k('s_cbranch_scc1 J_%s_w%d' % (L, w + 1))
        for t in range(4):
            if t == w:
                continue
            for q in range(4):
                k('ds_write_b128 v%d, %s offset:%d' % (vW, vr(ACC + t * 16 + q * 4, 4), (t * 4 + q) * 1024))
        k('s_waitcnt lgkmcnt(0)')
        k('s_barrier')
        own = ACC + w * 16
        others = [t for t in range(4) if t != w]
        for j, src in enumerate(others):
            for q in range(4):
                k('ds_read_b128 %s, v%d offset:%d' % (vr(ACC + others[j] * 16 + q * 4, 4), vR2 if src >= 2 else vR,
                                                      (src & 1) * RS + q * 1024))
        for j, src in enumerate(others):
            k('s_waitcnt lgkmcnt(%d)' % (8 - 4 * j))
            for i in range(16):
                k('v_add_f32 v%d, v%d, v%d' % (own + i, own + i, ACC + others[j] * 16 + i))
        k('s_waitcnt vmcnt(0)')
        for q in range(4):
            a = own + q * 4
            k('v_cvt_pk_bf16_f32 v%d, v%d, v%d' % (T + 4, a, a + 1))
            k('v_cvt_pk_bf16_f32 v%d, v%d, v%d' % (T + 5, a + 2, a + 3))
            for j in range(2):
                k('v_lshlrev_b32 v%d, 16, v%d' % (T, T + 4 + j))
                k('v_and_b32 v%d, 0xffff0000, v%d' % (T + 1, T + 4 + j))
                k('v_lshlrev_b32 v%d, 16, v%d' % (T + 2, RES + 2 * q + j))
                k('v_and_b32 v%d, 0xffff0000, v%d' % (T + 3, RES + 2 * q + j))
                k('v_add_f32 v%d, v%d, v%d' % (T, T, T + 2))
                k('v_add_f32 v%d, v%d, v%d' % (T + 1, T + 1, T + 3))
                k('v_cvt_pk_bf16_f32 v%d, v%d, v%d' % (T + 6 + 2 * (q & 1) + j, T, T + 1))
            k('buffer_store_dwordx2 %s, v%d, s[36:39], 0 offen offset:%d' % (vr(T + 6 + 2 * (q & 1), 2), vOut, q * 16))
        k('s_endpgm')
    k.label('%s_done' % L)
    k('s_endpgm')
    return k, dict(vgpr=nv, agpr=0, lds=4 * RS, grid=256)


def gen_k3():
    return gen_gemm('k3', 32, WS_O, 16, 512, False, True)


def gen_k5():
    return gen_gemm('k5', 112, WS_HH, 48, 1792, True, False)
```

```python
from asmlib import Kernel
from k1 import vr, ar, sr, make_srd, ln_stats, norm_ops, WS_H, WS_HH, WS_SIZE
from k2 import f32hex


def gen_k4():
    k = Kernel('k4')
    BF = 24
    AF = 80
    ST = 208
    ONES = 224
    T = 228
    vA, vSt = 8, 9
    vRd = 10
    vBd = 13
    STG = 28672
    k('s_cmp_ge_u32 s2, 256')
    k('s_cbranch_scc1 K4_done')
    k('s_load_dwordx4 s[4:7], s[0:1], 32')
    k('s_load_dwordx2 s[8:9], s[0:1], 72')
    k('''s_and_b32 s10, s2, 7
    s_lshr_b32 s11, s2, 3
    s_and_b32 s20, s10, 1
    s_lshl_b32 s20, s20, 3
    s_and_b32 s21, s11, 7
    s_add_u32 s20, s20, s21
    s_lshr_b32 s21, s10, 1
    s_lshl_b32 s21, s21, 2
    s_lshr_b32 s22, s11, 3
    s_add_u32 s21, s21, s22
    v_lshrrev_b32 v1, 6, v0
    v_readfirstlane_b32 s22, v1
    v_and_b32 v1, 63, v0
    v_and_b32 v2, 15, v1
    v_lshrrev_b32 v3, 4, v1''')
    k('''s_lshl_b32 s23, s20, 17
    s_lshl_b32 s24, s22, 15
    s_add_u32 s23, s23, s24
    s_add_u32 s23, s23, 0x%x
    s_mov_b32 s24, 16384
    v_lshlrev_b32 v4, 10, v2
    v_lshl_add_u32 v4, v3, 4, v4
    v_add_u32 v%d, s23, v4''' % (WS_H, vA))
    k('''v_lshrrev_b32 v4, 1, v2
    v_and_b32 v5, 4, v4
    v_lshlrev_b32 v5, 1, v5
    v_and_b32 v6, 3, v4
    v_or_b32 v5, v5, v6
    v_mul_u32_u24 v6, 0xe00, v5
    v_and_b32 v7, 1, v2
    v_lshl_add_u32 v6, v7, 4, v6
    v_lshl_add_u32 v6, v3, 5, v6''')

    def krow(gk):
        return (gk >> 1) * 16 + (gk & 1) * 4
    for tt in range(7):
        base = (4 * tt) // 7
        c0 = krow(base) * 3584 + (4 * tt - 7 * base) * 32
        c1 = krow(base + 1) * 3584 + (4 * tt - 7 * (base + 1)) * 32
        thr = 7 * (base + 1) - 4 * tt
        if thr <= 3:
            k('v_cmp_le_u32 vcc, %d, v3' % thr)
            k('v_mov_b32 v4, %d' % c0)
            k('v_mov_b32 v5, %d' % c1)
            k('v_cndmask_b32 v4, v4, v5, vcc')
            k('v_add_u32 v%d, v4, v6' % (vBd + tt))
        else:
            k('v_add_u32 v%d, %d, v6' % (vBd + tt, c0))
    k('''v_lshrrev_b32 v4, 1, v3
    v_mul_u32_u24 v4, 0xe00, v4
    v_and_b32 v5, 1, v3
    v_lshl_add_u32 v4, v5, 7, v4
    v_lshrrev_b32 v5, 2, v2
    v_lshl_add_u32 v4, v5, 5, v4
    v_and_b32 v5, 3, v2
    v_lshl_add_u32 v%d, v5, 3, v4
    v_add_u32 v%d, %d, v%d
    v_add_u32 v%d, %d, v%d''' % (vRd, vRd + 1, 2 * STG, vRd, vRd + 2, 4 * STG, vRd))
    k('''v_lshrrev_b32 v4, 1, v3
    v_lshlrev_b32 v4, 5, v4
    v_add_u32 v4, v4, v2
    v_lshlrev_b32 v4, 4, v4
    v_and_b32 v5, 1, v3
    v_lshl_add_u32 v%d, v5, 3, v4''' % vSt)
    k('''s_lshl_b32 s25, s20, 2
    s_add_u32 s25, s25, s22
    s_mul_i32 s25, s25, 112
    s_mul_i32 s26, s21, 7
    s_add_u32 s25, s25, s26
    s_lshl_b32 s25, s25, 10
    s_add_u32 s25, s25, 0x%x''' % WS_HH)
    k('''s_and_b32 s27, s22, 1
    s_mul_i32 s26, s27, %d
    s_mul_i32 s28, s21, 224
    s_add_u32 s26, s26, s28
    s_mul_i32 s27, s27, 7168
    s_lshr_b32 s28, s22, 1
    s_mul_i32 s28, s28, 14336
    s_add_u32 s27, s27, s28''' % (32 * 3584))
    k('s_waitcnt lgkmcnt(0)')
    k('s_cmp_lt_u32 s22, 2')
    k('s_cselect_b32 s16, s4, s6')
    k('s_cselect_b32 s17, s5, s7')
    k('s_mov_b32 s18, 0x%x' % (512 * 1792 * 2))
    k('s_mov_b32 s19, 0x00020000')
    make_srd(k, 32, 8, 9, WS_SIZE)
    for ks in range(16):
        for mf in range(2):
            k('buffer_load_dwordx4 %s, v%d, s[32:35], %s offen offset:%d' % (
                vr(AF + (ks * 2 + mf) * 4, 4), vA, 's24' if mf else '0', ks * 64))

    def dma(st):
        k('s_add_u32 s29, s26, %d' % (st * 64 * 3584))
        for tt in range(7):
            k('s_add_u32 m0, s27, %d' % ((st % 5) * STG + tt * 1024))
            k('buffer_load_dwordx4 v%d, s[16:19], s29 offen lds' % (vBd + tt))

    for st in range(4):
        dma(st)
    ln_stats(k, AF, ST, ONES, T, 28)

    def reads(hs):
        ks, mx = hs >> 1, hs & 1
        slot = (ks >> 1) % 5
        kl = ks & 1
        out = []
        for nf in range(7):
            for kgl in range(2):
                out.append('ds_read_b64_tr_b16 %s, v%d offset:%d' % (
                    vr(BF + mx * 28 + nf * 4 + kgl * 2, 2), vRd + slot // 2,
                    (slot & 1) * STG + mx * 14336 + (kl * 4 + kgl) * 1792 + nf * 256))
        return out

    def bar(st):
        k('s_waitcnt vmcnt(%d)' % (21 if st <= 4 else 7 * (7 - st)))
        k('s_barrier')
        if st + 4 < 8:
            dma(st + 4)

    for o in norm_ops(AF, ST, T, 0):
        k(o)
    bar(0)
    for o in reads(0):
        k(o)
    no = []
    for hs in range(32):
        ks, mx = hs >> 1, hs & 1
        k('s_waitcnt lgkmcnt(0)')
        if mx == 1 and (ks & 1) == 1 and ks + 1 < 16:
            bar((ks + 1) >> 1)
        rd = reads(hs + 1) if hs + 1 < 32 else []
        if mx == 0 and ks + 1 < 16:
            no = norm_ops(AF, ST, T, ks + 1)
        i = 0
        for nf in range(7):
            for mf in range(2):
                acc = ar((mf * 14 + mx * 7 + nf) * 4, 4)
                a = vr(AF + (ks * 2 + mf) * 4, 4)
                b = vr(BF + mx * 28 + nf * 4, 4)
                k('v_mfma_f32_16x16x32_bf16 %s, %s, %s, %s' % (acc, b, a, '0' if ks == 0 else acc))
                if rd:
                    k(rd.pop(0))
                for _ in range(2 if i % 2 else 1):
                    if no:
                        k(no.pop(0))
                i += 1
        for o in rd:
            k(o)
        if mx == 1:
            for o in no:
                k(o)
            no = []
    k('s_mov_b32 s30, %s' % f32hex(-1.4426950408889634))
    G, U, E = BF, BF + 8, BF + 16
    n = 0
    for nf in range(7):
        k('s_add_u32 s29, s25, %d' % (nf * 1024))
        for mf in range(2):
            o = (n & 1) * 4
            o2 = (n & 3) * 2
            n += 1
            for r in range(4):
                k('v_accvgpr_read_b32 v%d, a%d' % (G + o + r, (mf * 14 + nf) * 4 + r))
            for r in range(4):
                k('v_mul_f32 v%d, s30, v%d' % (E + o + r, G + o + r))
            for r in range(4):
                k('v_exp_f32 v%d, v%d' % (E + o + r, E + o + r))
            for r in range(4):
                k('v_accvgpr_read_b32 v%d, a%d' % (U + o + r, (mf * 14 + 7 + nf) * 4 + r))
            for r in range(4):
                k('v_add_f32 v%d, 1.0, v%d' % (E + o + r, E + o + r))
            for r in range(4):
                k('v_rcp_f32 v%d, v%d' % (E + o + r, E + o + r))
            for r in range(4):
                k('v_mul_f32 v%d, v%d, v%d' % (G + o + r, G + o + r, U + o + r))
            for r in range(4):
                k('v_mul_f32 v%d, v%d, v%d' % (G + o + r, G + o + r, E + o + r))
            k('v_cvt_pk_bf16_f32 v%d, v%d, v%d' % (T + o2, G + o, G + o + 1))
            k('v_cvt_pk_bf16_f32 v%d, v%d, v%d' % (T + o2 + 1, G + o + 2, G + o + 3))
            k('buffer_store_dwordx2 %s, v%d, s[32:35], s29 offen offset:%d' % (vr(T + o2, 2), vSt, mf * 256))
    k.label('K4_done')
    k('s_endpgm')
    return k, dict(vgpr=240, agpr=112, lds=5 * STG, grid=256)
```

```python
import sys, os, importlib
sys.path.insert(0, os.path.dirname(__file__))
from k1 import gen_k1

NAME = 'sequential_preLN__sliding_block__glu_gated_swiglu__prompt'
HEAD = open('cdna_kernels/%s.s.ref' % NAME).read().split('; Override launch geometry')[0]


def build(gens, out):
    ks = [(lbl, g()) for lbl, g in gens]
    s = HEAD
    for lbl, (k, m) in ks:
        s += '; @launch kernel=%s grid=(%d,1,1) block=(%d,1,1) lds=%d\n' % (lbl, m['grid'], m.get('block', 256), m['lds'])
    s += '.amdgcn_target "amdgcn-amd-amdhsa--gfx950"\n.text\n'
    for lbl, (k, m) in ks:
        s += '.globl %s\n.p2align 8\n.type %s,@function\n%s:\n' % (lbl, lbl, lbl)
        s += '\n'.join(k.finalize()) + '\n'
    s += '.section .rodata,"a"\n'
    for lbl, (k, m) in ks:
        acc = (m['vgpr'] + 3) // 4 * 4
        s += '.p2align 6\n.amdhsa_kernel %s\n' % lbl
        s += '  .amdhsa_next_free_vgpr %d\n' % (acc + m['agpr'])
        s += '  .amdhsa_next_free_sgpr 102\n'
        s += '  .amdhsa_accum_offset %d\n' % acc
        s += '  .amdhsa_group_segment_fixed_size 0\n  .amdhsa_kernarg_size 80\n  .amdhsa_user_sgpr_count 2\n'
        s += '  .amdhsa_user_sgpr_kernarg_segment_ptr 1\n  .amdhsa_system_sgpr_workgroup_id_x 1\n.end_amdhsa_kernel\n'
    open(out, 'w').write(s)
    print('wrote', out, len(s), 'bytes')


if __name__ == '__main__':
    gens = [('k1_kernel', gen_k1)]
    try:
        from k2 import gen_k2
        gens.append(('k2_kernel', gen_k2))
        from k35 import gen_k3, gen_k5
        gens.append(('k3_kernel', gen_k3))
        from k4 import gen_k4
        gens.append(('k4_kernel', gen_k4))
        gens.append(('k5_kernel', gen_k5))
    except ImportError as e:
        print('partial build:', e)
    build(gens, sys.argv[1] if len(sys.argv) > 1 else 'cdna_kernels/%s.s' % NAME)
```

```python
import re

_TOK = re.compile(r'^(v|a|s)(\d+)$')
_RNG = re.compile(r'^(v|a|s)\[(\d+):(\d+)\]$')


def regs_of(tok):
    tok = tok.strip()
    if tok.startswith('-'):
        tok = tok[1:]
    if tok.startswith('|') and tok.endswith('|'):
        tok = tok[1:-1]
    m = _TOK.match(tok)
    if m:
        return [(m.group(1), int(m.group(2)))]
    m = _RNG.match(tok)
    if m:
        return [(m.group(1), i) for i in range(int(m.group(2)), int(m.group(3)) + 1)]
    if tok in ('vcc', 'vcc_lo', 'vcc_hi'):
        return [('s', 'vcc')]
    if tok in ('exec', 'exec_lo', 'exec_hi'):
        return [('s', 'exec')]
    if tok == 'm0':
        return [('s', 'm0')]
    return []


def split_ops(s):
    out, depth, cur = [], 0, ''
    for ch in s:
        if ch == '[':
            depth += 1
        if ch == ']':
            depth -= 1
        if ch == ',' and depth == 0:
            out.append(cur.strip())
            cur = ''
        else:
            cur += ch
    if cur.strip():
        out.append(cur.strip())
    return out


TRANS = ('v_exp_', 'v_log_', 'v_rcp_', 'v_rsq_', 'v_sqrt_', 'v_sin_', 'v_cos_')


class Ins:
    __slots__ = ('text', 'name', 'kind', 'dst', 'src', 'states', 'passes', 'A', 'B', 'C', 'trans',
                 'mods', 'wide_store', 'stdata', 'ldsdma', 'perm')

    def __init__(self, text):
        self.text = text
        t = text.split(';')[0].strip()
        self.dst, self.src = set(), set()
        self.A = self.B = self.C = None
        self.states = 1
        self.passes = 0
        self.trans = False
        self.wide_store = False
        self.stdata = set()
        self.ldsdma = False
        self.perm = False
        if not t or t.endswith(':') or t.startswith('.'):
            self.kind = 'label' if t.endswith(':') else 'none'
            self.name = t
            self.states = 0
            return
        parts = t.split(None, 1)
        name = parts[0]
        self.name = name
        rest = parts[1] if len(parts) > 1 else ''
        ops = split_ops(rest)
        mods = ''
        if ops:
            last = ops[-1].split()
            ops[-1] = last[0]
            mods = ' '.join(last[1:])
        self.mods = mods
        R = [regs_of(o) for o in ops]
        if name.startswith('v_mfma'):
            self.kind = 'mfma'
            self.passes = 8 if '32x32' in name else 4
            self.dst = set(R[0])
            self.A, self.B, self.C = R[1], R[2], R[3]
            self.src = set(R[1]) | set(R[2]) | set(R[3])
        elif name.startswith('v_'):
            self.kind = 'valu'
            self.trans = name.startswith(TRANS)
            if name.startswith('v_nop'):
                pass
            elif name.startswith('v_permlane') and 'swap' in name:
                self.dst = set(R[0]) | set(R[1])
                self.src = set(R[0]) | set(R[1])
                self.perm = True
            elif name.startswith(('v_add_co', 'v_sub_co', 'v_addc_co', 'v_subb_co')):
                self.dst = set(R[0]) | set(R[1])
                for r in R[2:]:
                    self.src |= set(r)
            else:
                self.dst = set(R[0])
                for r in R[1:]:
                    self.src |= set(r)
                if name.startswith(('v_fmac', 'v_mac')):
                    self.src |= set(R[0])
                if 'dpp' in name or 'row_' in mods or 'quad_perm' in mods:
                    self.perm = True
        elif name.startswith(('buffer_', 'global_')):
            self.kind = 'vmem'
            is_store = 'store' in name
            lds = (' lds' in (' ' + mods)) or ('_lds_' in name)
            self.ldsdma = lds
            if is_store:
                for r in R:
                    self.src |= set(r)
                self.stdata = set(R[0]) if name.startswith('buffer_') else set(R[1])
                self.wide_store = name.endswith(('x3', 'x4'))
            elif lds:
                for r in R:
                    self.src |= set(r)
                self.src.add(('s', 'm0'))
            else:
                self.dst = set(R[0])
                for r in R[1:]:
                    self.src |= set(r)
        elif name.startswith('ds_'):
            self.kind = 'ds'
            if name.startswith(('ds_write', 'ds_store')):
                for r in R:
                    self.src |= set(r)
            else:
                self.dst = set(R[0])
                for r in R[1:]:
                    self.src |= set(r)
        elif name.startswith('s_'):
            self.kind = 'salu'
            if name == 's_nop':
                self.states = int(ops[0], 0) + 1
            elif name.startswith(('s_waitcnt', 's_barrier', 's_cbranch', 's_branch', 's_endpgm', 's_cmp',
                                  's_setprio', 's_sleep')):
                for r in R:
                    self.src |= set(r)
            else:
                if R:
                    self.dst = set(R[0])
                for r in R[1:]:
                    self.src |= set(r)
        else:
            raise ValueError('unknown instr ' + text)


def required(P, I):
    req = 0
    if P.kind == 'valu':
        pv = {r for r in P.dst if r[0] in 'va'}
        ps = {r for r in P.dst if r[0] == 's'}
        if I.kind == 'mfma' and pv & I.src:
            req = max(req, 2)
        if ps:
            if I.kind == 'vmem' and ps & I.src:
                req = max(req, 5)
            if I.kind == 'valu' and ps & I.src:
                req = max(req, 4 if I.name.startswith(('v_readlane', 'v_writelane')) else 2)
            if I.kind == 'mfma' and ('s', 'exec') in ps:
                req = max(req, 4)
        if I.kind == 'valu' and I.name.startswith(('v_readfirstlane', 'v_readlane')) and pv & I.src:
            req = max(req, 1)
        if P.trans and I.kind == 'valu' and not I.trans and pv & I.src:
            req = max(req, 1)
        if I.kind == 'valu' and I.perm and pv & I.src:
            req = max(req, 2)
    if P.kind == 'mfma':
        big = 12 if P.passes == 8 else 8
        if I.kind == 'mfma':
            if P.dst & (set(I.A) | set(I.B)):
                req = max(req, big)
            if P.dst & set(I.C):
                if set(I.C) == P.dst and I.passes == P.passes:
                    pass
                else:
                    req = max(req, 10 if P.passes == 8 else 6)
        elif I.kind in ('valu', 'vmem', 'ds'):
            if P.dst & (I.src | I.dst):
                req = max(req, big)
            if I.kind == 'valu' and set(P.C) & I.dst:
                req = max(req, 7 if P.passes == 8 else 3)
    if P.kind == 'vmem' and P.wide_store:
        if I.kind == 'valu' and P.stdata & I.dst:
            req = max(req, 2)
        elif P.stdata & I.dst:
            req = max(req, 1)
    if P.kind == 'salu' and ('s', 'm0') in P.dst and I.ldsdma:
        req = max(req, 1)
    return req


import os
PROF = int(os.environ.get('PROF', '0'))
PROF_BASE = 0x2000000


class Kernel:
    def __init__(self, name):
        self.name = name
        self.raw = []

    def ts(self, i, real=False):
        if PROF:
            self.raw.append('%s s[%d:%d]' % ('s_memrealtime' if real else 's_memtime', 64 + 2 * i, 65 + 2 * i))

    def prof_end(self, srd, kidx, wave_s, n):
        if not PROF:
            return
        self('s_waitcnt vmcnt(0)')
        self.ts(n - 2)
        self.ts(n - 1, True)
        self('s_waitcnt lgkmcnt(0)')
        self('s_lshl_b32 s99, s2, 2')
        self('s_add_u32 s99, s99, s%d' % wave_s)
        self('s_lshl_b32 s99, s99, 7')
        self('s_add_u32 s99, s99, 0x%x' % (PROF_BASE + kidx * 0x40000))
        self('v_mov_b32 v0, 0')
        for i in range(n):
            self('v_mov_b32 v2, s%d' % (64 + 2 * i))
            self('v_mov_b32 v3, s%d' % (65 + 2 * i))
            self('buffer_store_dwordx2 v[2:3], v0, s[%d:%d], s99 offen offset:%d' % (srd, srd + 3, 8 * i))
            self('s_nop 1')

    def __call__(self, s):
        for line in s.split('\n'):
            if line.strip():
                self.raw.append(line.strip())

    def label(self, l):
        self.raw.append(l + ':')

    def finalize(self):
        out = []
        for t in self.raw:
            I = Ins(t)
            if I.kind == 'label':
                out.append(I)
                if I.name.startswith('J_'):
                    out.append(Ins('s_nop 7'))
                    out.append(Ins('s_nop 7'))
                continue
            if I.kind == 'none':
                out.append(I)
                continue
            need = 0
            dist = 0
            for P in reversed(out):
                if dist >= 12:
                    break
                r = required(P, I)
                if r > dist:
                    need = max(need, r - dist)
                dist += P.states
            while need > 0:
                n = min(need, 8)
                out.append(Ins('s_nop %d' % (n - 1)))
                need -= n
            out.append(I)
        return [('    ' if i.kind not in ('label',) else '') + i.text for i in out]
```

```python
from asmlib import Kernel

WS_Q = 0x000000
WS_K = 0x200000
WS_VT = 0x400000
WS_O = 0x600000
WS_H = 0x800000
WS_HH = 0xA00000
WS_HF = 0x1200000
WS_SIZE = 0x10000000


def vr(b, n):
    return 'v[%d:%d]' % (b, b + n - 1) if n > 1 else 'v%d' % b


def ar(b, n):
    return 'a[%d:%d]' % (b, b + n - 1) if n > 1 else 'a%d' % b


def sr(b, n):
    return 's[%d:%d]' % (b, b + n - 1) if n > 1 else 's%d' % b


def make_srd(k, dst, lo, hi, size):
    k('s_mov_b32 s%d, s%d' % (dst, lo))
    k('s_mov_b32 s%d, s%d' % (dst + 1, hi))
    k('s_mov_b32 s%d, 0x%x' % (dst + 2, size))
    k('s_mov_b32 s%d, 0x00020000' % (dst + 3))


def ln_stats(k, AF, ST, ONES, T, nload_after, NKS=16, pre=None):
    for i in range(4):
        k('v_mov_b32 v%d, 0x3f803f80' % (ONES + i))
    for ks in range(NKS):
        k('s_waitcnt vmcnt(%d)' % (nload_after + 2 * (NKS - 1 - ks)))
        for mf in range(2):
            a = vr(AF + (ks * 2 + mf) * 4, 4)
            c0 = '0' if ks == 0 else vr(ST + mf * 4, 4)
            c1 = '0' if ks == 0 else vr(ST + 8 + mf * 4, 4)
            k('v_mfma_f32_16x16x32_bf16 %s, %s, %s, %s' % (vr(ST + mf * 4, 4), vr(ONES, 4), a, c0))
            k('v_mfma_f32_16x16x32_bf16 %s, %s, %s, %s' % (vr(ST + 8 + mf * 4, 4), a, a, c1))
    ln_stats_fin(k, ST, T)


def ln_stats_fin(k, ST, T):
    for r in range(4):
        k('s_mov_b32 s%d, 0x%x' % (40 + 2 * r, (1 << r) | (1 << (20 + r))))
        k('s_mov_b32 s%d, 0x%x' % (41 + 2 * r, (1 << (8 + r)) | (1 << (28 + r))))
    res = []
    for mf in range(2):
        t, t2, m, v = T, T + 1, T + 2 + mf * 2, T + 3 + mf * 2
        k('v_mov_b32 v%d, 0' % t)
        for r in range(4):
            k('v_cndmask_b32_e64 v%d, v%d, v%d, s[%d:%d]' % (t, t, ST + 8 + mf * 4 + r, 40 + 2 * r, 41 + 2 * r))
        k('v_mov_b32 v%d, v%d' % (t2, t))
        k('v_permlane32_swap_b32 v%d, v%d' % (t, t2))
        k('v_add_f32 v%d, v%d, v%d' % (t, t, t2))
        k('v_mov_b32 v%d, v%d' % (t2, t))
        k('v_permlane16_swap_b32 v%d, v%d' % (t, t2))
        k('v_add_f32 v%d, v%d, v%d' % (t, t, t2))
        k('v_mul_f32 v%d, 0x3b000000, v%d' % (m, ST + mf * 4))
        k('v_mul_f32 v%d, 0x3b000000, v%d' % (v, t))
        k('v_fma_f32 v%d, -v%d, v%d, v%d' % (v, m, m, v))
        k('v_max_f32 v%d, 0, v%d' % (v, v))
        k('v_cvt_pk_bf16_f32 v%d, v%d, v%d' % (t, m, v))
        k('v_lshlrev_b32 v%d, 16, v%d' % (m, t))
        k('v_and_b32 v%d, 0xffff0000, v%d' % (v, t))
        k('v_add_f32 v%d, 0x3727c5ac, v%d' % (v, v))
        k('v_cvt_pk_bf16_f32 v%d, v%d, v%d' % (t, v, v))
        k('v_lshlrev_b32 v%d, 16, v%d' % (v, t))
        k('v_sqrt_f32 v%d, v%d' % (v, v))
        k('v_cvt_pk_bf16_f32 v%d, v%d, v%d' % (t, v, v))
        k('v_lshlrev_b32 v%d, 16, v%d' % (v, t))
        k('v_rcp_f32 v%d, v%d' % (v, v))
        k('v_mul_f32 v%d, v%d, v%d' % (m, m, v))
    for mf in range(2):
        k('v_mov_b32 v%d, v%d' % (ST + mf, T + 3 + mf * 2))
        k('v_mov_b32 v%d, v%d' % (ST + 2 + mf, T + 2 + mf * 2))


def norm_ops(AF, ST, T, ks):
    ops = []
    for mf in range(2):
        for r in range(4):
            a = AF + (ks * 2 + mf) * 4 + r
            t0, t1 = T + (r & 1) * 2, T + (r & 1) * 2 + 1
            ops.append('v_lshlrev_b32 v%d, 16, v%d' % (t0, a))
            ops.append('v_and_b32 v%d, 0xffff0000, v%d' % (t1, a))
            ops.append('v_fma_f32 v%d, v%d, v%d, -v%d' % (t0, t0, ST + mf, ST + 2 + mf))
            ops.append('v_fma_f32 v%d, v%d, v%d, -v%d' % (t1, t1, ST + mf, ST + 2 + mf))
            ops.append('v_cvt_pk_bf16_f32 v%d, v%d, v%d' % (a, t0, t1))
    return ops


def gen_k1():
    k = Kernel('k1')
    AF = 64
    BF = 16
    ST = 192
    ONES = 208
    T = 212
    TT = 220
    vA, vBd, vRd, vSS, vSV = 8, 9, 10, 14, 15
    k('s_cmp_ge_u32 s2, 256')
    k('s_cbranch_scc1 K1_done')
    k.ts(0, True)
    k.ts(1)
    k('s_load_dwordx4 s[4:7], s[0:1], 0')
    k('s_load_dwordx2 s[8:9], s[0:1], 72')
    k('''s_and_b32 s10, s2, 7
    s_lshr_b32 s11, s2, 3
    s_and_b32 s20, s10, 3
    s_lshl_b32 s20, s20, 2
    s_and_b32 s21, s11, 3
    s_add_u32 s20, s20, s21
    s_lshr_b32 s21, s10, 2
    s_lshl_b32 s21, s21, 3
    s_lshr_b32 s22, s11, 2
    s_add_u32 s21, s21, s22
    v_lshrrev_b32 v1, 6, v0
    v_readfirstlane_b32 s22, v1
    v_and_b32 v1, 63, v0
    v_and_b32 v2, 15, v1
    v_lshrrev_b32 v3, 4, v1''')
    k('''s_lshl_b32 s23, s20, 17
    s_lshl_b32 s24, s22, 15
    s_add_u32 s23, s23, s24
    s_mov_b32 s24, 16384
    v_lshrrev_b32 v4, 2, v2
    v_lshlrev_b32 v4, 12, v4
    v_lshl_add_u32 v4, v3, 6, v4
    v_and_b32 v5, 3, v1
    v_lshl_add_u32 v4, v5, 4, v4
    v_add_u32 v%d, s23, v4''' % vA)
    k('''v_lshrrev_b32 v4, 2, v1
    v_mul_u32_u24 v4, 0xc00, v4
    s_and_b32 s25, s22, 1
    s_lshl_b32 s25, s25, 1
    v_and_b32 v5, 3, v1
    v_xor_b32 v5, s25, v5
    v_lshl_add_u32 v%d, v5, 4, v4''' % vBd)
    k('''v_lshlrev_b32 v4, 5, v3
    v_lshrrev_b32 v5, 2, v2
    v_add_u32 v4, v4, v5
    v_lshlrev_b32 v4, 6, v4
    v_and_b32 v5, 3, v2
    v_lshl_add_u32 v4, v5, 3, v4
    v_and_b32 v5, 1, v3
    v_lshl_add_u32 v%d, v5, 5, v4
    v_xor_b32 v5, 1, v5
    v_lshl_add_u32 v%d, v5, 5, v4
    v_add_u32 v%d, 49152, v%d
    v_add_u32 v%d, 49152, v%d''' % (vRd, vRd + 1, vRd + 2, vRd, vRd + 3, vRd + 1))
    k('''s_lshr_b32 s25, s23, 5
    v_lshlrev_b32 v4, 5, v2
    v_add_u32 v4, s25, v4
    v_lshl_add_u32 v%d, v3, 3, v4
    v_and_b32 v5, 1, v3
    v_lshlrev_b32 v5, 1, v5
    v_lshrrev_b32 v6, 1, v3
    v_or_b32 v5, v5, v6
    v_lshl_add_u32 v%d, v5, 3, v4''' % (vSS, vSV))
    k('s_mul_i32 s26, s21, 192')
    k('s_mul_i32 s27, s22, 98304')
    k('s_add_u32 s26, s26, s27')
    k('s_lshl_b32 s27, s22, 11')
    k('s_mul_i32 s28, s21, 0x60000')
    k('s_waitcnt lgkmcnt(0)')
    make_srd(k, 12, 4, 5, 2048 * 512 * 2)
    make_srd(k, 16, 6, 7, 512 * 1536 * 2)
    make_srd(k, 32, 8, 9, WS_SIZE)

    def areg(kb, mf, j):
        return AF + ((kb * 4 + j) * 2 + mf) * 4

    for kb in range(4):
        for mf in range(2):
            for j in range(4):
                k('buffer_load_dwordx4 %s, v%d, s[12:15], %s offen offset:%d' % (
                    vr(areg(kb, mf, j), 4), vA, 's24' if mf else '0', j * 1024 + kb * 256))
    k.ts(2)
    for i in range(4):
        k('v_mov_b32 v%d, 0x3f803f80' % (ONES + i))
    DP = ' row_mask:0xf bank_mask:0xf'
    for q in range(8):
        kb, mf = q >> 1, q & 1
        for j in range(3):
            k('s_add_u32 s29, s26, %d' % ((kb * 128 + mf * 16) * 3072 + j * 64))
            k('s_add_u32 m0, s27, %d' % (kb * 24576 + j * 8192 + mf * 1024))
            k('buffer_load_dwordx4 v%d, s[16:19], s29 offen lds' % vBd)
        k('s_waitcnt vmcnt(%d)' % (3 * (q + 1) + 4 * (7 - q)))
        for par, mask in ((0, 0x55555555), (1, 0xaaaaaaaa)):
            k('s_mov_b32 vcc_lo, 0x%x' % mask)
            k('s_mov_b32 vcc_hi, 0x%x' % mask)
            for j in (par, par + 2):
                for d in range(4):
                    k('v_cndmask_b32_dpp v%d, v%d, v%d, vcc quad_perm:[1,0,3,2]%s' % (
                        TT + j * 4 + d, areg(kb, mf, j ^ 1) + d, areg(kb, mf, j) + d, DP))
        for par, mask in ((0, 0x33333333), (1, 0xcccccccc)):
            k('s_mov_b32 vcc_lo, 0x%x' % mask)
            k('s_mov_b32 vcc_hi, 0x%x' % mask)
            for j in (par * 2, par * 2 + 1):
                for d in range(4):
                    k('v_cndmask_b32_dpp v%d, v%d, v%d, vcc quad_perm:[2,3,0,1]%s' % (
                        areg(kb, mf, j) + d, TT + (j ^ 2) * 4 + d, TT + j * 4 + d, DP))
        for j in range(4):
            a = vr(areg(kb, mf, j), 4)
            first = kb == 0 and j == 0
            c0 = '0' if first else vr(ST + mf * 4, 4)
            c1 = '0' if first else vr(ST + 8 + mf * 4, 4)
            k('v_mfma_f32_16x16x32_bf16 %s, %s, %s, %s' % (vr(ST + mf * 4, 4), vr(ONES, 4), a, c0))
            k('v_mfma_f32_16x16x32_bf16 %s, %s, %s, %s' % (vr(ST + 8 + mf * 4, 4), a, a, c1))
    ln_stats_fin(k, ST, T)
    k.ts(3)

    def reads(ks):
        p = ks & 1
        kb, j_ = ks >> 2, ks & 3
        out = []
        for nf in range(6):
            for kgl in range(2):
                out.append('ds_read_b64_tr_b16 %s, v%d offset:%d' % (
                    vr(BF + p * 24 + nf * 4 + kgl * 2, 2), vRd + (kb >> 1) * 2 + (nf & 1),
                    (kb & 1) * 24576 + (nf >> 1) * 8192 + (j_ * 8 + kgl * 4) * 64))
        return out

    def variant(name, sw):
        k.label('J_K1_%s' % name)
        for o in norm_ops(AF, ST, T, 0):
            k(o)
        k('s_waitcnt vmcnt(18)')
        k('s_barrier')
        k.ts(4)
        for o in reads(0):
            k(o)
        for ks in range(16):
            p = ks & 1
            nxt = ks + 1 < 16
            if nxt and (ks + 1) % 4 == 0:
                k('s_waitcnt vmcnt(%d)' % (18 - 6 * ((ks + 1) // 4)))
                k('s_barrier')
            k('s_waitcnt lgkmcnt(0)')
            rd = reads(ks + 1) if nxt else []
            no = norm_ops(AF, ST, T, ks + 1) if nxt else []
            i = 0
            for nf in range(6):
                for mf in range(2):
                    acc = ar((mf * 6 + nf) * 4, 4)
                    a = vr(AF + (ks * 2 + mf) * 4, 4)
                    b = vr(BF + p * 24 + nf * 4, 4)
                    c = '0' if ks == 0 else acc
                    if sw[nf]:
                        k('v_mfma_f32_16x16x32_bf16 %s, %s, %s, %s' % (acc, b, a, c))
                    else:
                        k('v_mfma_f32_16x16x32_bf16 %s, %s, %s, %s' % (acc, a, b, c))
                    for _ in range(2):
                        if rd:
                            k(rd.pop(0))
                    for _ in range(4 if i % 3 else 2):
                        if no:
                            k(no.pop(0))
                    i += 1
            for o in rd + no:
                k(o)
        k.ts(5)
        for nf in range(6):
            k('s_add_u32 s29, s28, %d' % (nf * 65536))
            for mf in range(2):
                t = T + mf * 4
                for r in range(4):
                    k('v_accvgpr_read_b32 v%d, a%d' % (t + r, (mf * 6 + nf) * 4 + r))
                k('v_cvt_pk_bf16_f32 v%d, v%d, v%d' % (t, t, t + 1))
                k('v_cvt_pk_bf16_f32 v%d, v%d, v%d' % (t + 1, t + 2, t + 3))
                k('buffer_store_dwordx2 %s, v%d, s[32:35], s29 offen offset:%d' % (
                    vr(t, 2), vSS if sw[nf] else vSV, mf * 512))
        k.ts(6)
        k.prof_end(32, 0, 22, 9)
        k('s_endpgm')

    k('s_cmp_eq_u32 s21, 10')
    k('s_cbranch_scc1 J_K1_mix')
    k('s_cmp_gt_u32 s21, 10')
    k('s_cbranch_scc1 J_K1_v')
    variant('qk', [1] * 6)
    variant('mix', [1, 1, 1, 1, 0, 0])
    variant('v', [0] * 6)
    k.label('K1_done')
    k('s_endpgm')
    return k, dict(vgpr=236, agpr=48, lds=98304, grid=256)
```

```python
from asmlib import Kernel
from k1 import vr, ar, sr, make_srd, WS_Q, WS_K, WS_VT, WS_O, WS_SIZE
import struct


def f32hex(x):
    return '0x%08x' % struct.unpack('<I', struct.pack('<f', x))[0]


def gen_k2():
    k = Kernel('k2')
    S = 12
    O = 156
    vQ, vK, vV, vD, vSt, vNeg = 4, 5, 6, 7, 8, 9
    t0, t1 = 10, 11
    aK = 0
    aV0 = 36
    aQ = 72
    k('s_cmp_ge_u32 s2, 512')
    k('s_cbranch_scc1 K2_done')
    k.ts(0, True)
    k.ts(1)
    k('s_load_dwordx2 s[8:9], s[0:1], 72')
    k('''s_and_b32 s10, s2, 7
    s_lshr_b32 s11, s2, 3
    s_lshl_b32 s20, s10, 2
    s_and_b32 s21, s11, 3
    s_add_u32 s20, s20, s21
    s_lshr_b32 s21, s11, 2
    s_lshl_b32 s21, s21, 2
    v_lshrrev_b32 v1, 6, v0
    v_readfirstlane_b32 s22, v1
    v_and_b32 v1, 63, v0
    v_and_b32 v2, 31, v1
    v_lshrrev_b32 v3, 5, v1''')
    k('s_add_u32 s21, s21, s22')
    k('''s_lshl_b32 s23, s20, 16
    s_lshl_b32 s24, s21, 10
    s_add_u32 s23, s23, s24
    v_lshlrev_b32 v10, 5, v2
    v_lshl_add_u32 v10, v3, 4, v10
    v_add_u32 v%d, s23, v10
    v_add_u32 v%d, 0x%x, v%d
    v_and_b32 v10, 15, v1
    v_lshlrev_b32 v10, 5, v10
    v_lshl_add_u32 v10, v3, 4, v10
    v_add_u32 v10, s23, v10
    v_add_u32 v%d, 0x%x, v10''' % (vQ, vK, WS_K - 8192, vQ, vV, WS_VT - 8192))
    k('v_lshlrev_b32 v10, 2, v3')
    k('v_sub_u32 v%d, v2, v10' % vD)
    k('''s_lshl_b32 s25, s21, 5
    s_add_u32 s25, s25, s20
    s_lshl_b32 s25, s25, 10
    s_add_u32 s25, s25, 0x%x
    v_lshlrev_b32 v10, 4, v2
    v_lshl_add_u32 v10, v3, 3, v10
    v_add_u32 v%d, s25, v10''' % (WS_O, vSt))
    k('v_mov_b32 v%d, %s' % (vNeg, f32hex(-1e9)))
    k('v_mov_b32 v%d, 0x3f803f80' % t1)
    k('s_mov_b32 s26, 4096')
    k('s_mov_b32 s27, 8192')
    k('s_sub_i32 s28, 8, s21')
    k('s_max_i32 s28, s28, 0')
    k('s_waitcnt lgkmcnt(0)')
    make_srd(k, 12, 8, 9, WS_SIZE)

    def so(off):
        return ('0', 's26', 's27')[off // 4096], off % 4096

    k('buffer_load_dwordx4 %s, v%d, s[12:15], 0 offen' % (ar(aQ, 4), vQ))
    for T in range(9):
        s_, i_ = so(T * 1024)
        k('buffer_load_dwordx4 %s, v%d, s[12:15], %s offen offset:%d' % (ar(aK + T * 4, 4), vK, s_, i_))

    def vreg(idx):
        return aV0 + idx * 4 if idx < 9 else aK + (idx - 9) * 4

    def vloads(idxs):
        for idx in idxs:
            for r in range(4):
                k('v_accvgpr_write_b32 a%d, v%d' % (vreg(idx) + r, t1))
        k('s_mov_b32 exec_lo, 0x0000ffff')
        k('s_mov_b32 exec_hi, 0x0000ffff')
        for idx in idxs:
            s_, i_ = so(idx * 512)
            k('buffer_load_dwordx4 %s, v%d, s[12:15], %s offen offset:%d' % (ar(vreg(idx), 4), vV, s_, i_))
        k('s_mov_b64 exec, -1')

    vloads(range(9))
    k.ts(2)
    for T in range(9):
        k('s_waitcnt vmcnt(%d)' % (9 + 8 - T))
        k('v_mfma_f32_32x32x16_bf16 %s, %s, %s, 0' % (vr(S + T * 16, 16), ar(aK + T * 4, 4), ar(aQ, 4)))
    k.ts(3)
    vloads(range(9, 18))
    for i in range(16):
        kk = (i >> 2) * 8 + (i & 3)
        k('v_cmp_gt_i32 vcc, %d, v%d' % (kk, vD))
        k('v_cndmask_b32 v%d, v%d, v%d, vcc' % (S + i, vNeg, S + i))
    for i in range(16):
        kk = (i >> 2) * 8 + (i & 3)
        k('v_cmp_le_i32 vcc, %d, v%d' % (kk, vD))
        k('v_cndmask_b32 v%d, v%d, v%d, vcc' % (S + 128 + i, vNeg, S + 128 + i))
    k('s_cmp_eq_u32 s28, 0')
    k('s_cbranch_scc1 J_K2_nomask')
    for T in range(8):
        k('s_cmp_gt_u32 s28, %d' % T)
        k('s_cbranch_scc0 J_K2_nomask')
        for i in range(16):
            k('v_mov_b32 v%d, v%d' % (S + T * 16 + i, vNeg))
    k.label('J_K2_nomask')
    ch = [O, O + 1, O + 2, O + 3]
    regs = list(range(S, S + 144))
    for c in range(4):
        k('v_max3_f32 v%d, v%d, v%d, v%d' % (ch[c], regs[c * 36], regs[c * 36 + 1], regs[c * 36 + 2]))
    for j in range(3, 35, 2):
        for c in range(4):
            k('v_max3_f32 v%d, v%d, v%d, v%d' % (ch[c], ch[c], regs[c * 36 + j], regs[c * 36 + j + 1]))
    for c in range(4):
        k('v_max_f32 v%d, v%d, v%d' % (ch[c], ch[c], regs[c * 36 + 35]))
    k('v_max3_f32 v%d, v%d, v%d, v%d' % (t0, ch[0], ch[1], ch[2]))
    k('v_max_f32 v%d, v%d, v%d' % (t0, t0, ch[3]))
    k('v_mov_b32 v%d, v%d' % (t1, t0))
    k('v_permlane32_swap_b32 v%d, v%d' % (t0, t1))
    k('v_max_f32 v%d, v%d, v%d' % (t0, t0, t1))
    k.ts(4)
    c_ = 0.25 * 1.4426950408889634
    k('s_mov_b32 s29, %s' % f32hex(c_))
    k('v_mul_f32 v%d, s29, v%d' % (t0, t0))
    first = True
    for T in range(9):
        b = S + T * 16
        for i in range(16):
            k('v_fma_f32 v%d, v%d, s29, -v%d' % (b + i, b + i, t0))
        for i in range(16):
            k('v_exp_f32 v%d, v%d' % (b + i, b + i))
        for u in range(2):
            for j in range(4):
                k('v_cvt_pk_bf16_f32 v%d, v%d, v%d' % (b + 8 * u + j, b + 8 * u + 2 * j, b + 8 * u + 2 * j + 1))
        for u in range(2):
            idx = 2 * T + u
            if idx == 0:
                k('s_waitcnt vmcnt(9)')
            if idx == 9:
                k('s_waitcnt vmcnt(0)')
            k('v_mfma_f32_32x32x16_bf16 %s, %s, %s, %s' % (
                vr(O, 16), ar(vreg(idx), 4), vr(b + 8 * u, 4), '0' if first else vr(O, 16)))
            first = False
    k.ts(5)
    k('v_rcp_f32 v%d, v%d' % (t0, O + 8))
    for i in range(8):
        k('v_mul_f32 v%d, v%d, v%d' % (O + i, O + i, t0))
    for j in range(4):
        k('v_cvt_pk_bf16_f32 v%d, v%d, v%d' % (O + j, O + 2 * j, O + 2 * j + 1))
    k('buffer_store_dwordx2 %s, v%d, s[12:15], 0 offen' % (vr(O, 2), vSt))
    k('buffer_store_dwordx2 %s, v%d, s[12:15], 0 offen offset:512' % (vr(O + 2, 2), vSt))
    k.ts(6)
    k.prof_end(12, 1, 22, 9)
    k.label('K2_done')
    k('s_endpgm')
    return k, dict(vgpr=172, agpr=76, lds=0, grid=512)
```

```python
from asmlib import Kernel
from k1 import vr, ar, sr, make_srd, WS_O, WS_H, WS_HF, WS_HH, WS_SIZE


def gen_gemm(name, KT, wsA, b_karg, bK, res_from_ws, out_to_ws):
    k = Kernel(name)
    NS = KT // 4
    NR = min(NS, 16)
    PF = NS if NS <= NR else NR - 1
    RS = NR * 2048
    AR = 28 if out_to_ws else 24
    BFR = AR + NR * 8
    ACC = BFR + 16
    RES = ACC + 64
    T = RES + 8
    nv = T + 16
    vA0, vA1, vBd, vBr, vOut, vRes = 8, 9, 10, 11, 12, 13
    vW = 14
    vR = 18
    vFw, vFr, vFo = 22, 23, 24
    SCR = 4 * RS
    L = name.upper()
    k('s_cmp_ge_u32 s2, 256')
    k('s_cbranch_scc1 %s_done' % L)
    k.ts(0, True)
    k.ts(1)
    k('s_load_dwordx2 s[4:5], s[0:1], %d' % b_karg)
    k('s_load_dwordx2 s[6:7], s[0:1], 72')
    k('s_load_dwordx2 s[8:9], s[0:1], %d' % (72 if res_from_ws else 0))
    k('s_load_dwordx2 s[10:11], s[0:1], %d' % (72 if out_to_ws else 56))
    k('''s_and_b32 s20, s2, 7
    s_lshr_b32 s21, s2, 3
    s_lshl_b32 s20, s20, 2
    s_and_b32 s22, s21, 3
    s_add_u32 s20, s20, s22
    s_lshr_b32 s21, s21, 2
    v_lshrrev_b32 v1, 6, v0
    v_readfirstlane_b32 s22, v1
    v_and_b32 v1, 63, v0
    v_lshrrev_b32 v3, 4, v1
    v_and_b32 v2, 15, v1''')
    k('s_mul_i32 s23, s20, %d' % (2 * KT * 1024))
    k('s_mul_i32 s24, s22, %d' % (NS * 1024))
    k('s_add_u32 s23, s23, s24')
    k('s_add_u32 s23, s23, 0x%x' % wsA)
    k('v_lshlrev_b32 v4, 4, v1')
    k('v_add_u32 v%d, s23, v4' % vA0)
    k('v_add_u32 v%d, %d, v%d' % (vA1, KT * 1024, vA0))
    k('''v_lshrrev_b32 v4, 5, v1
    v_lshlrev_b32 v4, 2, v4
    v_bfe_u32 v5, v1, 2, 2
    v_add_u32 v4, v4, v5
    v_lshlrev_b32 v4, 10, v4
    v_and_b32 v5, 1, v3
    v_lshl_add_u32 v4, v5, 6, v4
    v_and_b32 v5, 3, v1
    v_lshl_add_u32 v4, v5, 4, v4
    s_lshl_b32 s24, s21, 7
    v_add_u32 v%d, s24, v4''' % vBd)
    k('s_mul_i32 s25, s22, %d' % (NS * 16 * 1024))
    k('s_mul_i32 s26, s22, %d' % RS)
    k('''v_lshrrev_b32 v4, 1, v3
    v_lshlrev_b32 v4, 10, v4
    v_lshrrev_b32 v5, 2, v2
    v_lshl_add_u32 v4, v5, 6, v4
    v_and_b32 v5, 1, v3
    v_lshl_add_u32 v4, v5, 5, v4
    v_and_b32 v5, 3, v2
    v_lshl_add_u32 v4, v5, 3, v4
    v_add_u32 v%d, s26, v4''' % vBr)
    k('v_and_b32 v4, 31, v1')
    k('v_lshlrev_b32 v5, 8, v4')
    k('v_add_u32 v5, s26, v5')
    k('v_and_b32 v4, 7, v4')
    k('v_lshrrev_b32 v6, 5, v1')
    k('v_xor_b32 v4, v4, v6')
    for q in range(4):
        k('v_xor_b32 v6, %d, v4' % (q * 2))
        k('v_lshl_add_u32 v%d, v6, 4, v5' % (vW + q))
    k('s_lshl_b32 s27, s22, 12')
    k('v_lshrrev_b32 v4, 3, v1')
    k('v_lshlrev_b32 v5, 8, v4')
    k('v_add_u32 v5, s27, v5')
    k('v_and_b32 v6, 7, v1')
    k('v_lshlrev_b32 v6, 1, v6')
    k('v_xor_b32 v6, v6, v4')
    k('v_lshl_add_u32 v%d, v6, 4, v5' % vR)
    k('v_xor_b32 v6, 1, v6')
    k('v_lshl_add_u32 v%d, v6, 4, v5' % (vR + 1))
    k('v_add_u32 v%d, %d, v%d' % (vR + 2, 2 * RS, vR))
    k('v_add_u32 v%d, %d, v%d' % (vR + 3, 2 * RS, vR + 1))
    k('''s_lshl_b32 s27, s22, 4
    s_lshl_b32 s28, s20, 6
    s_add_u32 s27, s27, s28
    s_lshl_b32 s27, s27, 10
    s_add_u32 s27, s27, s24
    v_lshlrev_b32 v5, 10, v4
    v_and_b32 v6, 7, v1
    v_lshl_add_u32 v5, v6, 4, v5
    v_add_u32 v4, s27, v5''')
    k('v_add_u32 v%d, 0x%x, v4' % (vOut, WS_H if out_to_ws else 0))
    k('v_add_u32 v%d, 0x%x, v4' % (vRes, WS_H if res_from_ws else 0))
    k('s_mov_b32 s31, 8192')
    if out_to_ws:
        k('''s_lshl_b32 s27, s22, 11
        v_lshrrev_b32 v4, 3, v1
        v_and_b32 v5, 3, v1
        v_lshl_add_u32 v4, v5, 4, v4
        v_lshlrev_b32 v4, 4, v4
        v_bfe_u32 v5, v1, 2, 1
        v_lshl_add_u32 v4, v5, 10, v4
        v_add_u32 v4, s27, v4''')
        k('v_add_u32 v%d, %d, v4' % (vFw, SCR))
        k('v_lshlrev_b32 v4, 4, v1')
        k('v_add_u32 v5, s27, v4')
        k('v_add_u32 v%d, %d, v5' % (vFr, SCR))
        k('''s_lshl_b32 s27, s20, 2
        s_add_u32 s27, s27, s22
        s_lshl_b32 s27, s27, 4
        s_lshl_b32 s28, s21, 1
        s_add_u32 s27, s27, s28
        s_lshl_b32 s27, s27, 10''')
        k('s_add_u32 s27, s27, 0x%x' % WS_HF)
        k('v_add_u32 v%d, s27, v4' % vFo)
    k('s_waitcnt lgkmcnt(0)')
    make_srd(k, 12, 4, 5, bK * 512 * 2)
    make_srd(k, 16, 6, 7, WS_SIZE)
    make_srd(k, 32, 8, 9, WS_SIZE if res_from_ws else 2048 * 512 * 2)
    make_srd(k, 36, 10, 11, WS_SIZE if out_to_ws else 2048 * 512 * 2)
    for j in range(2):
        k('buffer_load_dwordx4 %s, v%d, s[32:35], %s offen' % (vr(RES + 4 * j, 4), vRes, 's31' if j else '0'))

    def loads(s):
        slot = s % NR
        k('s_mov_b32 s29, %d' % (s * 1024))
        for mi in range(2):
            k('buffer_load_dwordx4 %s, v%d, s[16:19], s29 offen' % (vr(AR + slot * 8 + mi * 4, 4), vA0 + mi))
        for h in range(2):
            k('s_add_u32 s30, s25, %d' % ((s * 16 + h * 8) * 1024))
            k('s_add_u32 m0, s26, %d' % (slot * 2048 + h * 1024))
            k('buffer_load_dwordx4 v%d, s[12:15], s30 offen lds' % vBd)

    def reads(s):
        slot = s % NR
        p = s & 1
        for nb in range(2):
            for sec in range(2):
                k('ds_read_b64_tr_b16 %s, v%d offset:%d' % (
                    vr(BFR + p * 8 + nb * 4 + sec * 2, 2), vBr, slot * 2048 + sec * 512 + nb * 256))

    issued = 0
    for s in range(PF):
        loads(s)
        issued += 1
    k.ts(2)
    k('s_waitcnt vmcnt(%d)' % (4 * (issued - 1)))
    k.ts(3)
    k('s_waitcnt lgkmcnt(0)')
    reads(0)
    for s in range(NS):
        p = s & 1
        if s + 1 < NS:
            k('s_waitcnt vmcnt(%d)' % (4 * (issued - 1 - (s + 1))))
            reads(s + 1)
            k('s_waitcnt lgkmcnt(4)')
        else:
            k('s_waitcnt lgkmcnt(0)')
        slot = s % NR
        for mi in range(2):
            for nb in range(2):
                acc = vr(ACC + (mi * 2 + nb) * 16, 16)
                k('v_mfma_f32_32x32x16_bf16 %s, %s, %s, %s' % (
                    acc, vr(BFR + p * 8 + nb * 4, 4), vr(AR + slot * 8 + mi * 4, 4), '0' if s == 0 else acc))
        if issued < NS:
            loads(issued)
            issued += 1
    k.ts(4)
    for t in range(4):
        for q in range(4):
            k('ds_write_b128 v%d, %s offset:%d' % (vW + q, vr(ACC + t * 16 + q * 4, 4), (t >> 1) * 8192 + (t & 1) * 128))
    k('s_waitcnt lgkmcnt(0)')
    k('s_barrier')
    k.ts(5)
    k('s_waitcnt lgkmcnt(0)')
    for j in range(2):
        for src in range(4):
            for e in range(2):
                k('ds_read_b128 %s, v%d offset:%d' % (vr(ACC + (j * 4 + src) * 8 + e * 4, 4), vR + e + (2 if src >= 2 else 0),
                                                      (src & 1) * RS + j * 2048))
    for j in range(2):
        b = ACC + j * 32
        k('s_waitcnt lgkmcnt(%d)' % (12 - 8 * j))
        for i in range(8):
            k('v_add_f32 v%d, v%d, v%d' % (b + i, b + i, b + 8 + i))
        k('s_waitcnt lgkmcnt(%d)' % (8 - 8 * j))
        for i in range(8):
            k('v_add_f32 v%d, v%d, v%d' % (b + 16 + i, b + 16 + i, b + 24 + i))
        for i in range(8):
            k('v_add_f32 v%d, v%d, v%d' % (b + i, b + i, b + 16 + i))
        if j == 0:
            k('s_waitcnt vmcnt(0)')
        for i in range(4):
            k('v_cvt_pk_bf16_f32 v%d, v%d, v%d' % (T + 4, b + 2 * i, b + 2 * i + 1))
            k('v_lshlrev_b32 v%d, 16, v%d' % (T, T + 4))
            k('v_and_b32 v%d, 0xffff0000, v%d' % (T + 1, T + 4))
            k('v_lshlrev_b32 v%d, 16, v%d' % (T + 2, RES + 4 * j + i))
            k('v_and_b32 v%d, 0xffff0000, v%d' % (T + 3, RES + 4 * j + i))
            k('v_add_f32 v%d, v%d, v%d' % (T, T, T + 2))
            k('v_add_f32 v%d, v%d, v%d' % (T + 1, T + 1, T + 3))
            k('v_cvt_pk_bf16_f32 v%d, v%d, v%d' % (T + 8 + 4 * j + i, T, T + 1))
        k('buffer_store_dwordx4 %s, v%d, s[36:39], %s offen' % (vr(T + 8 + 4 * j, 4), vOut, 's31' if j else '0'))
        if out_to_ws:
            k('ds_write_b128 v%d, %s offset:%d' % (vFw, vr(T + 8 + 4 * j, 4), j * 128))
    if out_to_ws:
        k('s_waitcnt lgkmcnt(0)')
        for j in range(2):
            k('ds_read_b128 %s, v%d offset:%d' % (vr(ACC + 4 * j, 4), vFr, j * 1024))
        for j in range(2):
            k('s_waitcnt lgkmcnt(%d)' % (1 - j))
            k('buffer_store_dwordx4 %s, v%d, s[36:39], 0 offen offset:%d' % (vr(ACC + 4 * j, 4), vFo, j * 1024))
    k.ts(6)
    k.prof_end(16, 2 if name == 'k3' else 4, 22, 9)
    k.label('%s_done' % L)
    k('s_endpgm')
    return k, dict(vgpr=nv, agpr=0, lds=4 * RS + (8192 if out_to_ws else 0), grid=256)


def gen_k3():
    return gen_gemm('k3', 32, WS_O, 16, 512, False, True)


def gen_k5():
    return gen_gemm('k5', 112, WS_HH, 48, 1792, True, False)
```

```python
from asmlib import Kernel
from k1 import vr, ar, sr, make_srd, ln_stats, norm_ops, WS_H, WS_HF, WS_HH, WS_SIZE
from k2 import f32hex


import os
EXP = os.environ.get('K4EXP', '')


def gen_k4():
    k = Kernel('k4')
    BF = 24
    AF = 80
    ST = 208
    ONES = 224
    T = 228
    vA, vSt = 8, 9
    vRd = 10
    vBd = 16
    STG = 32768
    k('s_cmp_ge_u32 s2, 256')
    k('s_cbranch_scc1 K4_done')
    k.ts(0, True)
    k.ts(1)
    k('s_load_dwordx4 s[4:7], s[0:1], 32')
    k('s_load_dwordx2 s[8:9], s[0:1], 72')
    k('''s_and_b32 s10, s2, 7
    s_lshr_b32 s11, s2, 3
    s_and_b32 s20, s10, 1
    s_lshl_b32 s20, s20, 3
    s_and_b32 s21, s11, 7
    s_add_u32 s20, s20, s21
    s_lshr_b32 s21, s10, 1
    s_lshl_b32 s21, s21, 2
    s_lshr_b32 s22, s11, 3
    s_add_u32 s21, s21, s22
    v_lshrrev_b32 v1, 6, v0
    v_readfirstlane_b32 s22, v1
    v_and_b32 v1, 63, v0
    v_and_b32 v2, 15, v1
    v_lshrrev_b32 v3, 4, v1''')
    k('''s_lshl_b32 s23, s20, 17
    s_lshl_b32 s24, s22, 15
    s_add_u32 s23, s23, s24
    s_add_u32 s23, s23, 0x%x
    v_lshlrev_b32 v4, 4, v1
    v_add_u32 v%d, s23, v4''' % (WS_HF, vA))
    for i in range(1, 8):
        k('s_mov_b32 s%d, %d' % (47 + i, i * 4096))
    k('''v_lshrrev_b32 v4, 2, v1
    v_mul_u32_u24 v4, 0xe00, v4
    v_lshrrev_b32 v5, 5, v1
    v_lshlrev_b32 v5, 1, v5
    v_and_b32 v6, 3, v1
    v_xor_b32 v5, v5, v6
    v_lshl_add_u32 v%d, v5, 4, v4''' % vBd)
    k('''v_lshlrev_b32 v4, 3, v3
    v_lshrrev_b32 v5, 2, v2
    v_add_u32 v4, v4, v5
    v_lshlrev_b32 v4, 6, v4
    v_and_b32 v5, 3, v2
    v_lshl_add_u32 v4, v5, 3, v4
    s_and_b32 s27, s21, 1
    v_and_b32 v5, 1, v3
    v_xor_b32 v5, s27, v5
    v_lshl_add_u32 v%d, v5, 5, v4
    v_xor_b32 v5, 1, v5
    v_lshl_add_u32 v4, v5, 5, v4
    s_lshl_b32 s27, s27, 12
    v_add_u32 v%d, s27, v4''' % (vRd, vRd + 1))
    for r in range(1, 3):
        for par in range(2):
            k('v_add_u32 v%d, %d, v%d' % (vRd + 2 * r + par, 2 * r * STG, vRd + par))
    k('''v_lshrrev_b32 v4, 1, v3
    v_lshlrev_b32 v4, 5, v4
    v_add_u32 v4, v4, v2
    v_lshlrev_b32 v4, 4, v4
    v_and_b32 v5, 1, v3
    v_lshl_add_u32 v%d, v5, 3, v4''' % vSt)
    k('''s_lshl_b32 s25, s20, 2
    s_add_u32 s25, s25, s22
    s_mul_i32 s25, s25, 112
    s_mul_i32 s26, s21, 7
    s_add_u32 s25, s25, s26
    s_lshl_b32 s25, s25, 10
    s_add_u32 s25, s25, 0x%x''' % WS_HH)
    k('''s_and_b32 s27, s22, 1
    s_mul_i32 s26, s27, %d
    s_mul_i32 s28, s21, 224
    s_add_u32 s26, s26, s28
    s_and_b32 s28, s21, 1
    s_lshl_b32 s28, s28, 5
    s_sub_u32 s26, s26, s28
    s_lshl_b32 s27, s27, 11
    s_lshr_b32 s28, s22, 1
    s_lshl_b32 s28, s28, 14
    s_add_u32 s27, s27, s28''' % (32 * 3584))
    k('s_waitcnt lgkmcnt(0)')
    k('s_cmp_lt_u32 s22, 2')
    k('s_cselect_b32 s16, s4, s6')
    k('s_cselect_b32 s17, s5, s7')
    k('s_mov_b32 s18, 0x%x' % (512 * 1792 * 2))
    k('s_mov_b32 s19, 0x00020000')
    make_srd(k, 32, 8, 9, WS_SIZE)
    for ks in range(16):
        for mf in range(2):
            o_ = (mf * 16 + ks) * 1024
            k('buffer_load_dwordx4 %s, v%d, s[32:35], %s offen offset:%d' % (
                vr(AF + (ks * 2 + mf) * 4, 4), vA, ('s%d' % (47 + o_ // 4096)) if o_ >= 4096 else '0', o_ % 4096))

    def dma(st):
        for rg in range(2):
            for j in range(4):
                k('s_add_u32 s29, s26, %d' % ((st * 64 + rg * 16) * 3584 + j * 64))
                k('s_add_u32 m0, s27, %d' % ((st % 5) * STG + j * 4096 + rg * 1024))
                k('buffer_load_dwordx4 v%d, s[16:19], s29 offen lds' % vBd)

    for st in range(4):
        dma(st)
    k.ts(2)
    ln_stats(k, AF, ST, ONES, T, 32)
    k.ts(3)

    def reads(hs):
        ks, mx = hs >> 1, hs & 1
        slot = (ks >> 1) % 5
        kl = ks & 1
        out = []
        for nf in range(7):
            for kgl in range(2):
                out.append('ds_read_b64_tr_b16 %s, v%d offset:%d' % (
                    vr(BF + mx * 28 + nf * 4 + kgl * 2, 2), vRd + (slot // 2) * 2 + (nf & 1),
                    (slot & 1) * STG + mx * 16384 + (nf >> 1) * 4096 + (kl * 32 + kgl * 4) * 64))
        return out

    def bar(st):
        k('s_waitcnt vmcnt(%d)' % (24 if st <= 4 else 8 * (7 - st)))
        k('s_barrier')
        if st + 4 < 8:
            dma(st + 4)

    for o in norm_ops(AF, ST, T, 0):
        k(o)
    bar(0)
    k.ts(4)
    for o in reads(0):
        k(o)
    no = []
    for hs in range(32):
        ks, mx = hs >> 1, hs & 1
        k('s_waitcnt lgkmcnt(0)')
        if mx == 1 and (ks & 1) == 1 and ks + 1 < 16:
            bar((ks + 1) >> 1)
        rd = reads(hs + 1) if hs + 1 < 32 else []
        if mx == 0 and ks + 1 < 16:
            no = norm_ops(AF, ST, T, ks + 1)
        if 'n' in EXP:
            no = []
        if 'r' in EXP:
            rd = []
        i = 0
        for nf in range(7):
            for mf in range(2):
                acc = ar((mf * 14 + mx * 7 + nf) * 4, 4)
                a = vr(AF + (ks * 2 + mf) * 4, 4)
                b = vr(BF + mx * 28 + nf * 4, 4)
                k('v_mfma_f32_16x16x32_bf16 %s, %s, %s, %s' % (acc, b, a, '0' if ks == 0 else acc))
                for _ in range(2):
                    if rd:
                        k(rd.pop(0))
                for _ in range(2 if i % 2 else 1):
                    if no:
                        k(no.pop(0))
                i += 1
        for o in rd:
            k(o)
        if mx == 1:
            for o in no:
                k(o)
            no = []
    k.ts(5)
    k('s_mov_b32 s30, %s' % f32hex(-1.4426950408889634))
    G, U, E = BF, BF + 8, BF + 16
    n = 0
    for nf in range(7):
        k('s_add_u32 s29, s25, %d' % (nf * 1024))
        for mf in range(2):
            o = (n & 1) * 4
            o2 = (n & 3) * 2
            n += 1
            for r in range(4):
                k('v_accvgpr_read_b32 v%d, a%d' % (G + o + r, (mf * 14 + nf) * 4 + r))
            for r in range(4):
                k('v_mul_f32 v%d, s30, v%d' % (E + o + r, G + o + r))
            for r in range(4):
                k('v_exp_f32 v%d, v%d' % (E + o + r, E + o + r))
            for r in range(4):
                k('v_accvgpr_read_b32 v%d, a%d' % (U + o + r, (mf * 14 + 7 + nf) * 4 + r))
            for r in range(4):
                k('v_add_f32 v%d, 1.0, v%d' % (E + o + r, E + o + r))
            for r in range(4):
                k('v_rcp_f32 v%d, v%d' % (E + o + r, E + o + r))
            for r in range(4):
                k('v_mul_f32 v%d, v%d, v%d' % (G + o + r, G + o + r, U + o + r))
            for r in range(4):
                k('v_mul_f32 v%d, v%d, v%d' % (G + o + r, G + o + r, E + o + r))
            k('v_cvt_pk_bf16_f32 v%d, v%d, v%d' % (T + o2, G + o, G + o + 1))
            k('v_cvt_pk_bf16_f32 v%d, v%d, v%d' % (T + o2 + 1, G + o + 2, G + o + 3))
            k('buffer_store_dwordx2 %s, v%d, s[32:35], s29 offen offset:%d' % (vr(T + o2, 2), vSt, mf * 256))
    k.ts(6)
    k.prof_end(32, 3, 22, 9)
    k.label('K4_done')
    k('s_endpgm')
    return k, dict(vgpr=240, agpr=112, lds=5 * STG, grid=256)
```

```python
from asmlib import Kernel

WS_Q = 0x000000
WS_K = 0x200000
WS_VT = 0x400000
WS_O = 0x600000
WS_H = 0x800000
WS_HH = 0xA00000
WS_HF = 0x1200000
WS_CS = 0x1400000
WS_ST = 0x1410000
WS_SIZE = 0x10000000


def vr(b, n):
    return 'v[%d:%d]' % (b, b + n - 1) if n > 1 else 'v%d' % b


def ar(b, n):
    return 'a[%d:%d]' % (b, b + n - 1) if n > 1 else 'a%d' % b


def sr(b, n):
    return 's[%d:%d]' % (b, b + n - 1) if n > 1 else 's%d' % b


def make_srd(k, dst, lo, hi, size):
    k('s_mov_b32 s%d, s%d' % (dst, lo))
    k('s_mov_b32 s%d, s%d' % (dst + 1, hi))
    k('s_mov_b32 s%d, 0x%x' % (dst + 2, size))
    k('s_mov_b32 s%d, 0x00020000' % (dst + 3))


def ln_stats(k, AF, ST, ONES, T, nload_after, NKS=16, pre=None):
    for i in range(4):
        k('v_mov_b32 v%d, 0x3f803f80' % (ONES + i))
    for ks in range(NKS):
        k('s_waitcnt vmcnt(%d)' % (nload_after + 2 * (NKS - 1 - ks)))
        for mf in range(2):
            a = vr(AF + (ks * 2 + mf) * 4, 4)
            c0 = '0' if ks == 0 else vr(ST + mf * 4, 4)
            c1 = '0' if ks == 0 else vr(ST + 8 + mf * 4, 4)
            k('v_mfma_f32_16x16x32_bf16 %s, %s, %s, %s' % (vr(ST + mf * 4, 4), vr(ONES, 4), a, c0))
            k('v_mfma_f32_16x16x32_bf16 %s, %s, %s, %s' % (vr(ST + 8 + mf * 4, 4), a, a, c1))
    ln_stats_fin(k, ST, T)


def ln_stats_fin(k, ST, T):
    for r in range(4):
        k('s_mov_b32 s%d, 0x%x' % (40 + 2 * r, (1 << r) | (1 << (20 + r))))
        k('s_mov_b32 s%d, 0x%x' % (41 + 2 * r, (1 << (8 + r)) | (1 << (28 + r))))
    res = []
    for mf in range(2):
        t, t2, m, v = T, T + 1, T + 2 + mf * 2, T + 3 + mf * 2
        k('v_mov_b32 v%d, 0' % t)
        for r in range(4):
            k('v_cndmask_b32_e64 v%d, v%d, v%d, s[%d:%d]' % (t, t, ST + 8 + mf * 4 + r, 40 + 2 * r, 41 + 2 * r))
        k('v_mov_b32 v%d, v%d' % (t2, t))
        k('v_permlane32_swap_b32 v%d, v%d' % (t, t2))
        k('v_add_f32 v%d, v%d, v%d' % (t, t, t2))
        k('v_mov_b32 v%d, v%d' % (t2, t))
        k('v_permlane16_swap_b32 v%d, v%d' % (t, t2))
        k('v_add_f32 v%d, v%d, v%d' % (t, t, t2))
        k('v_mul_f32 v%d, 0x3b000000, v%d' % (m, ST + mf * 4))
        k('v_mul_f32 v%d, 0x3b000000, v%d' % (v, t))
        k('v_fma_f32 v%d, -v%d, v%d, v%d' % (v, m, m, v))
        k('v_max_f32 v%d, 0, v%d' % (v, v))
        k('v_cvt_pk_bf16_f32 v%d, v%d, v%d' % (t, m, v))
        k('v_lshlrev_b32 v%d, 16, v%d' % (m, t))
        k('v_and_b32 v%d, 0xffff0000, v%d' % (v, t))
        k('v_add_f32 v%d, 0x3727c5ac, v%d' % (v, v))
        k('v_cvt_pk_bf16_f32 v%d, v%d, v%d' % (t, v, v))
        k('v_lshlrev_b32 v%d, 16, v%d' % (v, t))
        k('v_sqrt_f32 v%d, v%d' % (v, v))
        k('v_cvt_pk_bf16_f32 v%d, v%d, v%d' % (t, v, v))
        k('v_lshlrev_b32 v%d, 16, v%d' % (v, t))
        k('v_rcp_f32 v%d, v%d' % (v, v))
        k('v_mul_f32 v%d, v%d, v%d' % (m, m, v))
    for mf in range(2):
        k('v_mov_b32 v%d, v%d' % (ST + mf, T + 3 + mf * 2))
        k('v_mov_b32 v%d, v%d' % (ST + 2 + mf, T + 2 + mf * 2))


def norm_ops(AF, ST, T, ks):
    ops = []
    for mf in range(2):
        for r in range(4):
            a = AF + (ks * 2 + mf) * 4 + r
            t0, t1 = T + (r & 1) * 2, T + (r & 1) * 2 + 1
            ops.append('v_lshlrev_b32 v%d, 16, v%d' % (t0, a))
            ops.append('v_and_b32 v%d, 0xffff0000, v%d' % (t1, a))
            ops.append('v_fma_f32 v%d, v%d, v%d, -v%d' % (t0, t0, ST + mf, ST + 2 + mf))
            ops.append('v_fma_f32 v%d, v%d, v%d, -v%d' % (t1, t1, ST + mf, ST + 2 + mf))
            ops.append('v_cvt_pk_bf16_f32 v%d, v%d, v%d' % (a, t0, t1))
    return ops


PF_SZ = {16: 0x80000, 32: 0x1c0000, 40: 0x1c0000, 48: 0x1c0000}


def pf_setup(k, sb, kargs):
    for i, ka in enumerate(kargs):
        k('s_load_dwordx2 s[%d:%d], s[0:1], %d' % (sb + 2 * i, sb + 2 * i + 1, ka))


def pf_sel(k, sW, sb, kargs):
    d = sb + 8
    k('s_mov_b32 s%d, s%d' % (d, sb))
    k('s_mov_b32 s%d, s%d' % (d + 1, sb + 1))
    k('s_mov_b32 s%d, 0x%x' % (d + 2, PF_SZ[kargs[0]]))
    k('s_mov_b32 s%d, 0x00020000' % (d + 3))
    k('s_mov_b32 s%d, s%d' % (d + 4, sW))
    lim = 0
    for i in range(1, len(kargs)):
        lim += PF_SZ[kargs[i - 1]] >> 13
        src = sb + 2 * i
        k('s_sub_u32 s%d, s%d, %d' % (d + 5, sW, lim))
        k('s_cmp_ge_u32 s%d, %d' % (sW, lim))
        k('s_cselect_b32 s%d, s%d, s%d' % (d, src, d))
        k('s_cselect_b32 s%d, s%d, s%d' % (d + 1, src + 1, d + 1))
        k('s_cselect_b32 s%d, 0x%x, s%d' % (d + 2, PF_SZ[kargs[i]], d + 2))
        k('s_cselect_b32 s%d, s%d, s%d' % (d + 4, d + 5, d + 4))
    k('s_lshl_b32 s%d, s%d, 13' % (d + 4, d + 4))


import os
PF1 = [int(x) for x in os.environ.get('PF1', '16,32').split(',') if x]
PF2 = [int(x) for x in os.environ.get('PF2', '40,48').split(',') if x]


def gen_k1():
    k = Kernel('k1')
    AF = 64
    BF = 16
    ST = 192
    ONES = 208
    T = 212
    TT = 220
    vA, vBd, vRd, vSS, vSV = 8, 9, 10, 14, 15
    vPf = 236
    k('s_cmp_ge_u32 s2, 256')
    k('s_cbranch_scc1 K1_done')
    k.ts(0, True)
    k.ts(1)
    k('s_load_dwordx4 s[4:7], s[0:1], 0')
    k('s_load_dwordx2 s[8:9], s[0:1], 72')
    pf_setup(k, 48, PF1)
    k('''s_and_b32 s10, s2, 7
    s_lshr_b32 s11, s2, 3
    s_and_b32 s20, s10, 3
    s_lshl_b32 s20, s20, 2
    s_and_b32 s21, s11, 3
    s_add_u32 s20, s20, s21
    s_lshr_b32 s21, s10, 2
    s_lshl_b32 s21, s21, 3
    s_lshr_b32 s22, s11, 2
    s_add_u32 s21, s21, s22
    v_lshrrev_b32 v1, 6, v0
    v_readfirstlane_b32 s22, v1
    v_and_b32 v1, 63, v0
    v_and_b32 v2, 15, v1
    v_lshrrev_b32 v3, 4, v1''')
    k('''s_lshl_b32 s23, s20, 17
    s_lshl_b32 s24, s22, 15
    s_add_u32 s23, s23, s24
    s_mov_b32 s24, 16384
    v_lshrrev_b32 v4, 2, v2
    v_lshlrev_b32 v4, 12, v4
    v_lshl_add_u32 v4, v3, 6, v4
    v_and_b32 v5, 3, v1
    v_lshl_add_u32 v4, v5, 4, v4
    v_add_u32 v%d, s23, v4''' % vA)
    k('''v_lshrrev_b32 v4, 2, v1
    v_mul_u32_u24 v4, 0xc00, v4
    s_and_b32 s25, s22, 1
    s_lshl_b32 s25, s25, 1
    v_and_b32 v5, 3, v1
    v_xor_b32 v5, s25, v5
    v_lshl_add_u32 v%d, v5, 4, v4''' % vBd)
    k('''v_lshlrev_b32 v4, 5, v3
    v_lshrrev_b32 v5, 2, v2
    v_add_u32 v4, v4, v5
    v_lshlrev_b32 v4, 6, v4
    v_and_b32 v5, 3, v2
    v_lshl_add_u32 v4, v5, 3, v4
    v_and_b32 v5, 1, v3
    v_lshl_add_u32 v%d, v5, 5, v4
    v_xor_b32 v5, 1, v5
    v_lshl_add_u32 v%d, v5, 5, v4
    v_add_u32 v%d, 49152, v%d
    v_add_u32 v%d, 49152, v%d''' % (vRd, vRd + 1, vRd + 2, vRd, vRd + 3, vRd + 1))
    k('''s_lshr_b32 s25, s23, 5
    v_lshlrev_b32 v4, 5, v2
    v_add_u32 v4, s25, v4
    v_lshl_add_u32 v%d, v3, 3, v4
    v_and_b32 v5, 1, v3
    v_lshlrev_b32 v5, 1, v5
    v_lshrrev_b32 v6, 1, v3
    v_or_b32 v5, v5, v6
    v_lshl_add_u32 v%d, v5, 3, v4''' % (vSS, vSV))
    k('s_mul_i32 s26, s21, 192')
    k('s_mul_i32 s27, s22, 98304')
    k('s_add_u32 s26, s26, s27')
    k('s_lshl_b32 s27, s22, 11')
    k('s_mul_i32 s28, s21, 0x60000')
    k('s_waitcnt lgkmcnt(0)')
    make_srd(k, 12, 4, 5, 2048 * 512 * 2)
    make_srd(k, 16, 6, 7, 512 * 1536 * 2)
    make_srd(k, 32, 8, 9, WS_SIZE)
    k('s_lshl_b32 s30, s22, 8')
    k('s_add_u32 s30, s30, s2')
    if PF1:
        pf_sel(k, 30, 48, PF1)
    k('v_lshlrev_b32 v%d, 7, v1' % vPf)

    def areg(kb, mf, j):
        return AF + ((kb * 4 + j) * 2 + mf) * 4

    for kb in range(4):
        for mf in range(2):
            for j in range(4):
                k('buffer_load_dwordx4 %s, v%d, s[12:15], %s offen offset:%d' % (
                    vr(areg(kb, mf, j), 4), vA, 's24' if mf else '0', j * 1024 + kb * 256))
    k.ts(2)
    for i in range(4):
        k('v_mov_b32 v%d, 0x3f803f80' % (ONES + i))
    DP = ' row_mask:0xf bank_mask:0xf'
    for q in range(8):
        kb, mf = q >> 1, q & 1
        for j in range(3):
            k('s_add_u32 s29, s26, %d' % ((kb * 128 + mf * 16) * 3072 + j * 64))
            k('s_add_u32 m0, s27, %d' % (kb * 24576 + j * 8192 + mf * 1024))
            k('buffer_load_dwordx4 v%d, s[16:19], s29 offen lds' % vBd)
        k('s_waitcnt vmcnt(%d)' % (3 * (q + 1) + 4 * (7 - q)))
        for par, mask in ((0, 0x55555555), (1, 0xaaaaaaaa)):
            k('s_mov_b32 vcc_lo, 0x%x' % mask)
            k('s_mov_b32 vcc_hi, 0x%x' % mask)
            for j in (par, par + 2):
                for d in range(4):
                    k('v_cndmask_b32_dpp v%d, v%d, v%d, vcc quad_perm:[1,0,3,2]%s' % (
                        TT + j * 4 + d, areg(kb, mf, j ^ 1) + d, areg(kb, mf, j) + d, DP))
        for par, mask in ((0, 0x33333333), (1, 0xcccccccc)):
            k('s_mov_b32 vcc_lo, 0x%x' % mask)
            k('s_mov_b32 vcc_hi, 0x%x' % mask)
            for j in (par * 2, par * 2 + 1):
                for d in range(4):
                    k('v_cndmask_b32_dpp v%d, v%d, v%d, vcc quad_perm:[2,3,0,1]%s' % (
                        areg(kb, mf, j) + d, TT + (j ^ 2) * 4 + d, TT + j * 4 + d, DP))
        for j in range(4):
            a = vr(areg(kb, mf, j), 4)
            first = kb == 0 and j == 0
            c0 = '0' if first else vr(ST + mf * 4, 4)
            c1 = '0' if first else vr(ST + 8 + mf * 4, 4)
            k('v_mfma_f32_16x16x32_bf16 %s, %s, %s, %s' % (vr(ST + mf * 4, 4), vr(ONES, 4), a, c0))
            k('v_mfma_f32_16x16x32_bf16 %s, %s, %s, %s' % (vr(ST + 8 + mf * 4, 4), a, a, c1))
    ln_stats_fin(k, ST, T)
    k.ts(3)

    def reads(ks):
        p = ks & 1
        kb, j_ = ks >> 2, ks & 3
        out = []
        for nf in range(6):
            for kgl in range(2):
                out.append('ds_read_b64_tr_b16 %s, v%d offset:%d' % (
                    vr(BF + p * 24 + nf * 4 + kgl * 2, 2), vRd + (kb >> 1) * 2 + (nf & 1),
                    (kb & 1) * 24576 + (nf >> 1) * 8192 + (j_ * 8 + kgl * 4) * 64))
        return out

    def variant(name, sw):
        k.label('J_K1_%s' % name)
        for o in norm_ops(AF, ST, T, 0):
            k(o)
        k('s_waitcnt vmcnt(18)')
        k('s_barrier')
        k.ts(4)
        for o in reads(0):
            k(o)
        for ks in range(16):
            p = ks & 1
            nxt = ks + 1 < 16
            if nxt and (ks + 1) % 4 == 0:
                k('s_waitcnt vmcnt(%d)' % (18 - 6 * ((ks + 1) // 4)))
                k('s_barrier')
                if ks == 11 and PF1:
                    k('buffer_load_dword v%d, v%d, s[56:59], s60 offen' % (vPf + 1, vPf))
            k('s_waitcnt lgkmcnt(0)')
            rd = reads(ks + 1) if nxt else []
            no = norm_ops(AF, ST, T, ks + 1) if nxt else []
            i = 0
            for nf in range(6):
                for mf in range(2):
                    acc = ar((mf * 6 + nf) * 4, 4)
                    a = vr(AF + (ks * 2 + mf) * 4, 4)
                    b = vr(BF + p * 24 + nf * 4, 4)
                    c = '0' if ks == 0 else acc
                    if sw[nf]:
                        k('v_mfma_f32_16x16x32_bf16 %s, %s, %s, %s' % (acc, b, a, c))
                    else:
                        k('v_mfma_f32_16x16x32_bf16 %s, %s, %s, %s' % (acc, a, b, c))
                    for _ in range(2):
                        if rd:
                            k(rd.pop(0))
                    for _ in range(4 if i % 3 else 2):
                        if no:
                            k(no.pop(0))
                    i += 1
            for o in rd + no:
                k(o)
        k.ts(5)
        for nf in range(6):
            k('s_add_u32 s29, s28, %d' % (nf * 65536))
            for mf in range(2):
                t = T + mf * 4
                for r in range(4):
                    k('v_accvgpr_read_b32 v%d, a%d' % (t + r, (mf * 6 + nf) * 4 + r))
                k('v_cvt_pk_bf16_f32 v%d, v%d, v%d' % (t, t, t + 1))
                k('v_cvt_pk_bf16_f32 v%d, v%d, v%d' % (t + 1, t + 2, t + 3))
                k('buffer_store_dwordx2 %s, v%d, s[32:35], s29 offen offset:%d' % (
                    vr(t, 2), vSS if sw[nf] else vSV, mf * 512))
        k.ts(6)
        k.prof_end(32, 0, 22, 9)
        k('s_endpgm')

    k('s_cmp_eq_u32 s21, 10')
    k('s_cbranch_scc1 J_K1_mix')
    k('s_cmp_gt_u32 s21, 10')
    k('s_cbranch_scc1 J_K1_v')
    variant('qk', [1] * 6)
    variant('mix', [1, 1, 1, 1, 0, 0])
    variant('v', [0] * 6)
    k.label('K1_done')
    k('s_endpgm')
    return k, dict(vgpr=238, agpr=48, lds=98304, grid=256)
```

```python
from asmlib import Kernel
from k1 import vr, ar, sr, make_srd, WS_Q, WS_K, WS_VT, WS_O, WS_SIZE, pf_setup, pf_sel, PF2
import struct


def f32hex(x):
    return '0x%08x' % struct.unpack('<I', struct.pack('<f', x))[0]


def gen_k2():
    k = Kernel('k2')
    S = 12
    O = 156
    vQ, vK, vV, vD, vSt, vNeg = 4, 5, 6, 7, 8, 9
    t0, t1 = 10, 11
    vPf = 172
    npf = 1 if PF2 else 0
    aK = 0
    aV0 = 36
    aQ = 72
    k('s_cmp_ge_u32 s2, 512')
    k('s_cbranch_scc1 K2_done')
    k.ts(0, True)
    k.ts(1)
    k('s_load_dwordx2 s[8:9], s[0:1], 72')
    pf_setup(k, 48, PF2)
    k('''s_and_b32 s10, s2, 7
    s_lshr_b32 s11, s2, 3
    s_lshl_b32 s20, s10, 2
    s_and_b32 s21, s11, 3
    s_add_u32 s20, s20, s21
    s_lshr_b32 s21, s11, 2
    s_lshl_b32 s21, s21, 2
    v_lshrrev_b32 v1, 6, v0
    v_readfirstlane_b32 s22, v1
    v_and_b32 v1, 63, v0
    v_and_b32 v2, 31, v1
    v_lshrrev_b32 v3, 5, v1''')
    k('s_add_u32 s21, s21, s22')
    k('''s_lshl_b32 s23, s20, 16
    s_lshl_b32 s24, s21, 10
    s_add_u32 s23, s23, s24
    v_lshlrev_b32 v10, 5, v2
    v_lshl_add_u32 v10, v3, 4, v10
    v_add_u32 v%d, s23, v10
    v_add_u32 v%d, 0x%x, v%d
    v_and_b32 v10, 15, v1
    v_lshlrev_b32 v10, 5, v10
    v_lshl_add_u32 v10, v3, 4, v10
    v_add_u32 v10, s23, v10
    v_add_u32 v%d, 0x%x, v10''' % (vQ, vK, WS_K - 8192, vQ, vV, WS_VT - 8192))
    k('v_lshlrev_b32 v10, 2, v3')
    k('v_sub_u32 v%d, v2, v10' % vD)
    k('''s_lshl_b32 s25, s21, 5
    s_add_u32 s25, s25, s20
    s_lshl_b32 s25, s25, 10
    s_add_u32 s25, s25, 0x%x
    v_lshlrev_b32 v10, 4, v2
    v_lshl_add_u32 v10, v3, 3, v10
    v_add_u32 v%d, s25, v10''' % (WS_O, vSt))
    k('v_mov_b32 v%d, %s' % (vNeg, f32hex(-1e9)))
    k('v_mov_b32 v%d, 0x3f803f80' % t1)
    k('s_mov_b32 s26, 4096')
    k('s_mov_b32 s27, 8192')
    k('s_sub_i32 s28, 8, s21')
    k('s_max_i32 s28, s28, 0')
    k('s_waitcnt lgkmcnt(0)')
    make_srd(k, 12, 8, 9, WS_SIZE)
    k('s_lshl_b32 s30, s22, 9')
    k('s_add_u32 s30, s30, s2')
    if PF2:
        pf_sel(k, 30, 48, PF2)
    k('v_lshlrev_b32 v%d, 7, v1' % vPf)

    def so(off):
        return ('0', 's26', 's27')[off // 4096], off % 4096

    k('buffer_load_dwordx4 %s, v%d, s[12:15], 0 offen' % (ar(aQ, 4), vQ))
    for T in range(9):
        s_, i_ = so(T * 1024)
        k('buffer_load_dwordx4 %s, v%d, s[12:15], %s offen offset:%d' % (ar(aK + T * 4, 4), vK, s_, i_))

    def vreg(idx):
        return aV0 + idx * 4 if idx < 9 else aK + (idx - 9) * 4

    def vloads(idxs):
        for idx in idxs:
            for r in range(4):
                k('v_accvgpr_write_b32 a%d, v%d' % (vreg(idx) + r, t1))
        k('s_mov_b32 exec_lo, 0x0000ffff')
        k('s_mov_b32 exec_hi, 0x0000ffff')
        for idx in idxs:
            s_, i_ = so(idx * 512)
            k('buffer_load_dwordx4 %s, v%d, s[12:15], %s offen offset:%d' % (ar(vreg(idx), 4), vV, s_, i_))
        k('s_mov_b64 exec, -1')

    vloads(range(9))
    k.ts(2)
    for T in range(9):
        k('s_waitcnt vmcnt(%d)' % (9 + 8 - T))
        k('v_mfma_f32_32x32x16_bf16 %s, %s, %s, 0' % (vr(S + T * 16, 16), ar(aK + T * 4, 4), ar(aQ, 4)))
    k.ts(3)
    vloads(range(9, 18))
    if PF2:
        k('buffer_load_dword v%d, v%d, s[56:59], s60 offen' % (vPf + 1, vPf))
    for i in range(16):
        kk = (i >> 2) * 8 + (i & 3)
        k('v_cmp_gt_i32 vcc, %d, v%d' % (kk, vD))
        k('v_cndmask_b32 v%d, v%d, v%d, vcc' % (S + i, vNeg, S + i))
    for i in range(16):
        kk = (i >> 2) * 8 + (i & 3)
        k('v_cmp_le_i32 vcc, %d, v%d' % (kk, vD))
        k('v_cndmask_b32 v%d, v%d, v%d, vcc' % (S + 128 + i, vNeg, S + 128 + i))
    k('s_cmp_eq_u32 s28, 0')
    k('s_cbranch_scc1 J_K2_nomask')
    for T in range(8):
        k('s_cmp_gt_u32 s28, %d' % T)
        k('s_cbranch_scc0 J_K2_nomask')
        for i in range(16):
            k('v_mov_b32 v%d, v%d' % (S + T * 16 + i, vNeg))
    k.label('J_K2_nomask')
    ch = [O, O + 1, O + 2, O + 3]
    regs = list(range(S, S + 144))
    for c in range(4):
        k('v_max3_f32 v%d, v%d, v%d, v%d' % (ch[c], regs[c * 36], regs[c * 36 + 1], regs[c * 36 + 2]))
    for j in range(3, 35, 2):
        for c in range(4):
            k('v_max3_f32 v%d, v%d, v%d, v%d' % (ch[c], ch[c], regs[c * 36 + j], regs[c * 36 + j + 1]))
    for c in range(4):
        k('v_max_f32 v%d, v%d, v%d' % (ch[c], ch[c], regs[c * 36 + 35]))
    k('v_max3_f32 v%d, v%d, v%d, v%d' % (t0, ch[0], ch[1], ch[2]))
    k('v_max_f32 v%d, v%d, v%d' % (t0, t0, ch[3]))
    k('v_mov_b32 v%d, v%d' % (t1, t0))
    k('v_permlane32_swap_b32 v%d, v%d' % (t0, t1))
    k('v_max_f32 v%d, v%d, v%d' % (t0, t0, t1))
    k.ts(4)
    c_ = 0.25 * 1.4426950408889634
    k('s_mov_b32 s29, %s' % f32hex(c_))
    k('v_mul_f32 v%d, s29, v%d' % (t0, t0))
    first = True
    for T in range(9):
        b = S + T * 16
        for i in range(16):
            k('v_fma_f32 v%d, v%d, s29, -v%d' % (b + i, b + i, t0))
        for i in range(16):
            k('v_exp_f32 v%d, v%d' % (b + i, b + i))
        for u in range(2):
            for j in range(4):
                k('v_cvt_pk_bf16_f32 v%d, v%d, v%d' % (b + 8 * u + j, b + 8 * u + 2 * j, b + 8 * u + 2 * j + 1))
        for u in range(2):
            idx = 2 * T + u
            if idx == 0:
                k('s_waitcnt vmcnt(%d)' % (9 + npf))
            if idx == 9:
                k('s_waitcnt vmcnt(%d)' % npf)
            k('v_mfma_f32_32x32x16_bf16 %s, %s, %s, %s' % (
                vr(O, 16), ar(vreg(idx), 4), vr(b + 8 * u, 4), '0' if first else vr(O, 16)))
            first = False
    k.ts(5)
    k('v_rcp_f32 v%d, v%d' % (t0, O + 8))
    for i in range(8):
        k('v_mul_f32 v%d, v%d, v%d' % (O + i, O + i, t0))
    for j in range(4):
        k('v_cvt_pk_bf16_f32 v%d, v%d, v%d' % (O + j, O + 2 * j, O + 2 * j + 1))
    k('buffer_store_dwordx2 %s, v%d, s[12:15], 0 offen' % (vr(O, 2), vSt))
    k('buffer_store_dwordx2 %s, v%d, s[12:15], 0 offen offset:512' % (vr(O + 2, 2), vSt))
    k.ts(6)
    k.prof_end(12, 1, 22, 9)
    k.label('K2_done')
    k('s_endpgm')
    return k, dict(vgpr=174, agpr=76, lds=0, grid=512)
```

```python
import re

_TOK = re.compile(r'^(v|a|s)(\d+)$')
_RNG = re.compile(r'^(v|a|s)\[(\d+):(\d+)\]$')


def regs_of(tok):
    tok = tok.strip()
    if tok.startswith('-'):
        tok = tok[1:]
    if tok.startswith('|') and tok.endswith('|'):
        tok = tok[1:-1]
    m = _TOK.match(tok)
    if m:
        return [(m.group(1), int(m.group(2)))]
    m = _RNG.match(tok)
    if m:
        return [(m.group(1), i) for i in range(int(m.group(2)), int(m.group(3)) + 1)]
    if tok in ('vcc', 'vcc_lo', 'vcc_hi'):
        return [('s', 'vcc')]
    if tok in ('exec', 'exec_lo', 'exec_hi'):
        return [('s', 'exec')]
    if tok == 'm0':
        return [('s', 'm0')]
    return []


def split_ops(s):
    out, depth, cur = [], 0, ''
    for ch in s:
        if ch == '[':
            depth += 1
        if ch == ']':
            depth -= 1
        if ch == ',' and depth == 0:
            out.append(cur.strip())
            cur = ''
        else:
            cur += ch
    if cur.strip():
        out.append(cur.strip())
    return out


TRANS = ('v_exp_', 'v_log_', 'v_rcp_', 'v_rsq_', 'v_sqrt_', 'v_sin_', 'v_cos_')


class Ins:
    __slots__ = ('text', 'name', 'kind', 'dst', 'src', 'states', 'passes', 'A', 'B', 'C', 'trans',
                 'mods', 'wide_store', 'stdata', 'ldsdma', 'perm')

    def __init__(self, text):
        self.text = text
        t = text.split(';')[0].strip()
        self.dst, self.src = set(), set()
        self.A = self.B = self.C = None
        self.states = 1
        self.passes = 0
        self.trans = False
        self.wide_store = False
        self.stdata = set()
        self.ldsdma = False
        self.perm = False
        if not t or t.endswith(':') or t.startswith('.'):
            self.kind = 'label' if t.endswith(':') else 'none'
            self.name = t
            self.states = 0
            return
        parts = t.split(None, 1)
        name = parts[0]
        self.name = name
        rest = parts[1] if len(parts) > 1 else ''
        ops = split_ops(rest)
        mods = ''
        if ops:
            last = ops[-1].split()
            ops[-1] = last[0]
            mods = ' '.join(last[1:])
        self.mods = mods
        R = [regs_of(o) for o in ops]
        if name.startswith('v_mfma'):
            self.kind = 'mfma'
            self.passes = 8 if '32x32' in name else 4
            self.dst = set(R[0])
            self.A, self.B, self.C = R[1], R[2], R[3]
            self.src = set(R[1]) | set(R[2]) | set(R[3])
        elif name.startswith('v_'):
            self.kind = 'valu'
            self.trans = name.startswith(TRANS)
            if name.startswith('v_nop'):
                pass
            elif name.startswith('v_permlane') and 'swap' in name:
                self.dst = set(R[0]) | set(R[1])
                self.src = set(R[0]) | set(R[1])
                self.perm = True
            elif name.startswith(('v_add_co', 'v_sub_co', 'v_addc_co', 'v_subb_co')):
                self.dst = set(R[0]) | set(R[1])
                for r in R[2:]:
                    self.src |= set(r)
            else:
                self.dst = set(R[0])
                for r in R[1:]:
                    self.src |= set(r)
                if name.startswith(('v_fmac', 'v_mac')):
                    self.src |= set(R[0])
                if 'dpp' in name or 'row_' in mods or 'quad_perm' in mods:
                    self.perm = True
        elif name.startswith(('buffer_', 'global_')):
            self.kind = 'vmem'
            is_store = 'store' in name
            lds = (' lds' in (' ' + mods)) or ('_lds_' in name)
            self.ldsdma = lds
            if is_store:
                for r in R:
                    self.src |= set(r)
                self.stdata = set(R[0]) if name.startswith('buffer_') else set(R[1])
                self.wide_store = name.endswith(('x3', 'x4'))
            elif lds:
                for r in R:
                    self.src |= set(r)
                self.src.add(('s', 'm0'))
            else:
                self.dst = set(R[0])
                for r in R[1:]:
                    self.src |= set(r)
        elif name.startswith('ds_'):
            self.kind = 'ds'
            if name.startswith(('ds_write', 'ds_store')):
                for r in R:
                    self.src |= set(r)
            else:
                self.dst = set(R[0])
                for r in R[1:]:
                    self.src |= set(r)
        elif name.startswith('s_'):
            self.kind = 'salu'
            if name == 's_nop':
                self.states = int(ops[0], 0) + 1
            elif name.startswith(('s_waitcnt', 's_barrier', 's_cbranch', 's_branch', 's_endpgm', 's_cmp',
                                  's_setprio', 's_sleep')):
                for r in R:
                    self.src |= set(r)
            else:
                if R:
                    self.dst = set(R[0])
                for r in R[1:]:
                    self.src |= set(r)
        else:
            raise ValueError('unknown instr ' + text)


def required(P, I):
    req = 0
    if P.kind == 'valu':
        pv = {r for r in P.dst if r[0] in 'va'}
        ps = {r for r in P.dst if r[0] == 's'}
        if I.kind == 'mfma' and pv & I.src:
            req = max(req, 2)
        if ps:
            if I.kind == 'vmem' and ps & I.src:
                req = max(req, 5)
            if I.kind == 'valu' and ps & I.src:
                req = max(req, 4 if I.name.startswith(('v_readlane', 'v_writelane')) else 2)
            if I.kind == 'mfma' and ('s', 'exec') in ps:
                req = max(req, 4)
        if I.kind == 'valu' and I.name.startswith(('v_readfirstlane', 'v_readlane')) and pv & I.src:
            req = max(req, 1)
        if P.trans and I.kind == 'valu' and not I.trans and pv & I.src:
            req = max(req, 1)
        if I.kind == 'valu' and I.perm and pv & I.src:
            req = max(req, 2)
    if P.kind == 'valu' and P.name.startswith('v_dot'):
        if I.name == P.name:
            ops = split_ops(I.text.split(';')[0].strip().split(None, 1)[1])
            ab = set(regs_of(ops[1])) | set(regs_of(ops[2]))
            if P.dst & ab:
                req = max(req, 3)
        elif P.dst & (I.src | I.dst):
            req = max(req, 3)
    if P.kind == 'mfma':
        big = 12 if P.passes == 8 else 8
        if I.kind == 'mfma':
            if P.dst & (set(I.A) | set(I.B)):
                req = max(req, big)
            if P.dst & set(I.C):
                if set(I.C) == P.dst and I.passes == P.passes:
                    pass
                else:
                    req = max(req, 10 if P.passes == 8 else 6)
        elif I.kind in ('valu', 'vmem', 'ds'):
            if P.dst & (I.src | I.dst):
                req = max(req, big)
            if I.kind == 'valu' and set(P.C) & I.dst:
                req = max(req, 7 if P.passes == 8 else 3)
    if P.kind == 'vmem' and P.wide_store:
        if I.kind == 'valu' and P.stdata & I.dst:
            req = max(req, 2)
        elif P.stdata & I.dst:
            req = max(req, 1)
    if P.kind == 'salu' and ('s', 'm0') in P.dst and I.ldsdma:
        req = max(req, 1)
    return req


import os
PROF = int(os.environ.get('PROF', '0'))
PROF_BASE = 0x2000000


class Kernel:
    def __init__(self, name):
        self.name = name
        self.raw = []

    def ts(self, i, real=False):
        if PROF:
            self.raw.append('%s s[%d:%d]' % ('s_memrealtime' if real else 's_memtime', 64 + 2 * i, 65 + 2 * i))

    def prof_end(self, srd, kidx, wave_s, n):
        if not PROF:
            return
        self('s_waitcnt vmcnt(0)')
        self.ts(n - 2)
        self.ts(n - 1, True)
        self('s_waitcnt lgkmcnt(0)')
        self('s_lshl_b32 s99, s2, 2')
        self('s_add_u32 s99, s99, s%d' % wave_s)
        self('s_lshl_b32 s99, s99, 7')
        self('s_add_u32 s99, s99, 0x%x' % (PROF_BASE + kidx * 0x40000))
        self('v_mov_b32 v0, 0')
        for i in range(n):
            self('v_mov_b32 v2, s%d' % (64 + 2 * i))
            self('v_mov_b32 v3, s%d' % (65 + 2 * i))
            self('buffer_store_dwordx2 v[2:3], v0, s[%d:%d], s99 offen offset:%d' % (srd, srd + 3, 8 * i))
            self('s_nop 1')

    def __call__(self, s):
        for line in s.split('\n'):
            if line.strip():
                self.raw.append(line.strip())

    def label(self, l):
        self.raw.append(l + ':')

    def finalize(self):
        out = []
        for t in self.raw:
            I = Ins(t)
            if I.kind == 'label':
                out.append(I)
                if I.name.startswith('J_'):
                    out.append(Ins('s_nop 7'))
                    out.append(Ins('s_nop 7'))
                continue
            if I.kind == 'none':
                out.append(I)
                continue
            need = 0
            dist = 0
            for P in reversed(out):
                if dist >= 12:
                    break
                r = required(P, I)
                if r > dist:
                    need = max(need, r - dist)
                dist += P.states
            while need > 0:
                n = min(need, 8)
                out.append(Ins('s_nop %d' % (n - 1)))
                need -= n
            out.append(I)
        return [('    ' if i.kind not in ('label',) else '') + i.text for i in out]
```

```python
from asmlib import Kernel
from k1 import vr, ar, sr, make_srd, WS_Q, WS_K, WS_VT, WS_O, WS_SIZE, pf_setup, pf_sel, PF2
import struct, os
L2PF = int(os.environ.get('L2PF', '1'))


def f32hex(x):
    return '0x%08x' % struct.unpack('<I', struct.pack('<f', x))[0]


def gen_k2():
    k = Kernel('k2')
    S = 12
    O = 156
    vQ, vK, vV, vD, vSt, vNeg = 4, 5, 6, 7, 8, 9
    t0, t1 = 10, 11
    vPf = 172
    npf = 1 if PF2 else 0
    aK = 0
    aV0 = 36
    aQ = 72
    def mk(i):
        return 32 + 2 * i if i < 8 else 82 + 2 * (i - 8)
    k('s_cmp_ge_u32 s2, 512')
    k('s_cbranch_scc1 K2_done')
    k.ts(0, True)
    k.ts(1)
    k('s_load_dwordx2 s[8:9], s[0:1], 72')
    pf_setup(k, 48, [32, 40, 48] if L2PF else PF2)
    k('''s_and_b32 s10, s2, 7
    s_lshr_b32 s11, s2, 3
    s_lshl_b32 s20, s10, 2
    s_and_b32 s21, s11, 3
    s_add_u32 s20, s20, s21
    s_lshr_b32 s21, s11, 2
    s_lshl_b32 s21, s21, 2
    v_lshrrev_b32 v1, 6, v0
    v_readfirstlane_b32 s22, v1
    v_and_b32 v1, 63, v0
    v_and_b32 v2, 31, v1
    v_lshrrev_b32 v3, 5, v1''')
    k('s_add_u32 s21, s21, s22')
    k('''s_lshl_b32 s23, s20, 16
    s_lshl_b32 s24, s21, 10
    s_add_u32 s23, s23, s24
    v_lshlrev_b32 v10, 5, v2
    v_lshl_add_u32 v10, v3, 4, v10
    v_add_u32 v%d, s23, v10
    v_add_u32 v%d, 0x%x, v%d
    v_and_b32 v10, 15, v1
    v_lshlrev_b32 v10, 5, v10
    v_lshl_add_u32 v10, v3, 4, v10
    v_add_u32 v10, s23, v10
    v_add_u32 v%d, 0x%x, v10''' % (vQ, vK, WS_K - 8192, vQ, vV, WS_VT - 8192))
    k('v_lshlrev_b32 v10, 2, v3')
    k('v_sub_u32 v%d, v2, v10' % vD)
    k('''s_lshl_b32 s25, s21, 5
    s_add_u32 s25, s25, s20
    s_lshl_b32 s25, s25, 10
    s_add_u32 s25, s25, 0x%x
    v_lshlrev_b32 v10, 4, v2
    v_lshl_add_u32 v10, v3, 3, v10
    v_add_u32 v%d, s25, v10''' % (WS_O, vSt))
    k('v_mov_b32 v%d, %s' % (vNeg, f32hex(-1e9)))
    k('v_mov_b32 v%d, 0x3f803f80' % t1)
    k('s_mov_b32 s26, 4096')
    k('s_mov_b32 s27, 8192')
    k('s_sub_i32 s28, 8, s21')
    k('s_max_i32 s28, s28, 0')
    k('s_waitcnt lgkmcnt(0)')
    make_srd(k, 12, 8, 9, WS_SIZE)
    if L2PF:
        k('''s_lshl_b32 s30, s11, 2
        s_add_u32 s30, s30, s22
        s_and_b32 s31, s30, 63
        s_mul_i32 s31, s31, %d
        s_lshr_b32 s60, s10, 1
        s_mul_i32 s60, s60, 896
        s_add_u32 s31, s31, s60
        s_sub_u32 s60, s30, 128
        s_lshl_b32 s60, s60, 3
        s_add_u32 s60, s60, s10
        s_lshl_b32 s60, s60, 13
        s_cmp_lt_u32 s30, 64
        s_cselect_b32 s56, s48, s50
        s_cselect_b32 s57, s49, s51
        s_cmp_lt_u32 s30, 128
        s_cselect_b32 s56, s56, s52
        s_cselect_b32 s57, s57, s53
        s_cselect_b32 s60, s31, s60
        s_cselect_b64 s[62:63], -1, 0
        s_mov_b32 s58, 0x1c0000
        s_mov_b32 s59, 0x00020000
        v_lshrrev_b32 v10, 3, v1
        v_mul_u32_u24 v10, 0xe00, v10
        v_and_b32 v%d, 7, v1
        v_min_u32 v%d, 6, v%d
        v_lshl_add_u32 v10, v%d, 7, v10
        v_lshlrev_b32 v%d, 7, v1
        v_cndmask_b32_e64 v%d, v%d, v10, s[62:63]''' % (8 * 3584, vPf, vPf, vPf, vPf, vPf, vPf, vPf))
    else:
        k('s_lshl_b32 s30, s22, 9')
        k('s_add_u32 s30, s30, s2')
        if PF2:
            pf_sel(k, 30, 48, PF2)
        k('v_lshlrev_b32 v%d, 7, v1' % vPf)
    for i in range(16):
        kk = (i >> 2) * 8 + (i & 3)
        m = 0
        for l in range(64):
            if kk > (l & 31) - (l >> 5) * 4:
                m |= 1 << l
        k('s_mov_b32 s%d, 0x%x' % (mk(i), m & 0xffffffff))
        k('s_mov_b32 s%d, 0x%x' % (mk(i) + 1, m >> 32))

    def so(off):
        return ('0', 's26', 's27')[off // 4096], off % 4096

    k('buffer_load_dwordx4 %s, v%d, s[12:15], 0 offen' % (ar(aQ, 4), vQ))
    for T in range(9):
        s_, i_ = so(T * 1024)
        k('buffer_load_dwordx4 %s, v%d, s[12:15], %s offen offset:%d' % (ar(aK + T * 4, 4), vK, s_, i_))

    def vreg(idx):
        return aV0 + idx * 4 if idx < 9 else aK + (idx - 9) * 4

    def vloads(idxs):
        for idx in idxs:
            for r in range(4):
                k('v_accvgpr_write_b32 a%d, v%d' % (vreg(idx) + r, t1))
        k('s_mov_b32 exec_lo, 0x0000ffff')
        k('s_mov_b32 exec_hi, 0x0000ffff')
        for idx in idxs:
            s_, i_ = so(idx * 512)
            k('buffer_load_dwordx4 %s, v%d, s[12:15], %s offen offset:%d' % (ar(vreg(idx), 4), vV, s_, i_))
        k('s_mov_b64 exec, -1')

    vloads(range(9))
    k.ts(2)
    for T in range(9):
        k('s_waitcnt vmcnt(%d)' % (9 + 8 - T))
        k('v_mfma_f32_32x32x16_bf16 %s, %s, %s, 0' % (vr(S + T * 16, 16), ar(aK + T * 4, 4), ar(aQ, 4)))
    k.ts(3)
    vloads(range(9, 18))
    if PF2:
        k('buffer_load_dword v%d, v%d, s[56:59], s60 offen' % (vPf + 1, vPf))
    for i in range(16):
        k('v_cndmask_b32_e64 v%d, v%d, v%d, s[%d:%d]' % (S + i, vNeg, S + i, mk(i), mk(i) + 1))
    for i in range(16):
        k('v_cndmask_b32_e64 v%d, v%d, v%d, s[%d:%d]' % (S + 128 + i, S + 128 + i, vNeg, mk(i), mk(i) + 1))
    k('s_cmp_eq_u32 s28, 0')
    k('s_cbranch_scc1 J_K2_nomask')
    for T in range(8):
        k('s_cmp_gt_u32 s28, %d' % T)
        k('s_cbranch_scc0 J_K2_nomask')
        for i in range(16):
            k('v_mov_b32 v%d, v%d' % (S + T * 16 + i, vNeg))
    k.label('J_K2_nomask')
    ch = [O, O + 1, O + 2, O + 3]
    regs = list(range(S, S + 144))
    for c in range(4):
        k('v_max3_f32 v%d, v%d, v%d, v%d' % (ch[c], regs[c * 36], regs[c * 36 + 1], regs[c * 36 + 2]))
    for j in range(3, 35, 2):
        for c in range(4):
            k('v_max3_f32 v%d, v%d, v%d, v%d' % (ch[c], ch[c], regs[c * 36 + j], regs[c * 36 + j + 1]))
    for c in range(4):
        k('v_max_f32 v%d, v%d, v%d' % (ch[c], ch[c], regs[c * 36 + 35]))
    k('v_max3_f32 v%d, v%d, v%d, v%d' % (t0, ch[0], ch[1], ch[2]))
    k('v_max_f32 v%d, v%d, v%d' % (t0, t0, ch[3]))
    k('v_mov_b32 v%d, v%d' % (t1, t0))
    k('v_permlane32_swap_b32 v%d, v%d' % (t0, t1))
    k('v_max_f32 v%d, v%d, v%d' % (t0, t0, t1))
    k.ts(4)
    c_ = 0.25 * 1.4426950408889634
    k('s_mov_b32 s29, %s' % f32hex(c_))
    k('v_mul_f32 v%d, s29, v%d' % (t0, t0))
    first = True
    for T in range(9):
        b = S + T * 16
        for i in range(16):
            k('v_fma_f32 v%d, v%d, s29, -v%d' % (b + i, b + i, t0))
        for i in range(16):
            k('v_exp_f32 v%d, v%d' % (b + i, b + i))
        for u in range(2):
            for j in range(4):
                k('v_cvt_pk_bf16_f32 v%d, v%d, v%d' % (b + 8 * u + j, b + 8 * u + 2 * j, b + 8 * u + 2 * j + 1))
        for u in range(2):
            idx = 2 * T + u
            if idx == 0:
                k('s_waitcnt vmcnt(%d)' % (9 + npf))
            if idx == 9:
                k('s_waitcnt vmcnt(%d)' % npf)
            k('v_mfma_f32_32x32x16_bf16 %s, %s, %s, %s' % (
                vr(O, 16), ar(vreg(idx), 4), vr(b + 8 * u, 4), '0' if first else vr(O, 16)))
            first = False
    k.ts(5)
    k('v_rcp_f32 v%d, v%d' % (t0, O + 8))
    for i in range(8):
        k('v_mul_f32 v%d, v%d, v%d' % (O + i, O + i, t0))
    for j in range(4):
        k('v_cvt_pk_bf16_f32 v%d, v%d, v%d' % (O + j, O + 2 * j, O + 2 * j + 1))
    k('buffer_store_dwordx2 %s, v%d, s[12:15], 0 offen' % (vr(O, 2), vSt))
    k('buffer_store_dwordx2 %s, v%d, s[12:15], 0 offen offset:512' % (vr(O + 2, 2), vSt))
    k.ts(6)
    k.prof_end(12, 1, 22, 9)
    k.label('K2_done')
    k('s_endpgm')
    return k, dict(vgpr=174, agpr=76, lds=0, grid=512)
```

```python
from asmlib import Kernel
from k1 import vr, ar, sr, make_srd, WS_O, WS_H, WS_HF, WS_HH, WS_CS, WS_ST, WS_SIZE


import os
COOP = os.environ.get('COOP', '')


def gen_gemm(name, KT, wsA, b_karg, bK, res_from_ws, out_to_ws):
    k = Kernel(name)
    NS = KT // 4
    NR = min(NS, 16)
    PF = NS if NS <= NR else NR - 1
    RS = NR * 2048
    AR = 28 if out_to_ws else 24
    BFR = AR + NR * 8
    ACC = BFR + 16
    RES = ACC + 64
    T = RES + 8
    nv = T + 16
    vA0, vA1, vBd, vBr, vOut, vRes = 8, 9, 10, 11, 12, 13
    vW = 14
    vR = 18
    vFw, vFr, vFo = 22, 23, 24
    vSt = 25
    SCR = 4 * RS
    L = name.upper()
    k('s_cmp_ge_u32 s2, 256')
    k('s_cbranch_scc1 %s' % ('J_K3_extra' if out_to_ws else L + '_done'))
    k.ts(0, True)
    k.ts(1)
    k('s_load_dwordx2 s[4:5], s[0:1], %d' % b_karg)
    k('s_load_dwordx2 s[6:7], s[0:1], 72')
    k('s_load_dwordx2 s[8:9], s[0:1], %d' % (72 if res_from_ws else 0))
    k('s_load_dwordx2 s[10:11], s[0:1], %d' % (72 if out_to_ws else 56))
    k('''s_and_b32 s20, s2, 7
    s_lshr_b32 s21, s2, 3
    s_lshl_b32 s20, s20, 2
    s_and_b32 s22, s21, 3
    s_add_u32 s20, s20, s22
    s_lshr_b32 s21, s21, 2
    v_lshrrev_b32 v1, 6, v0
    v_readfirstlane_b32 s22, v1
    v_and_b32 v1, 63, v0
    v_lshrrev_b32 v3, 4, v1
    v_and_b32 v2, 15, v1''')
    k('s_mul_i32 s23, s20, %d' % (2 * KT * 1024))
    k('s_mul_i32 s24, s22, %d' % (NS * 1024))
    k('s_add_u32 s23, s23, s24')
    k('s_add_u32 s23, s23, 0x%x' % wsA)
    k('v_lshlrev_b32 v4, 4, v1')
    k('v_add_u32 v%d, s23, v4' % vA0)
    k('v_add_u32 v%d, %d, v%d' % (vA1, KT * 1024, vA0))
    k('''v_lshrrev_b32 v4, 5, v1
    v_lshlrev_b32 v4, 2, v4
    v_bfe_u32 v5, v1, 2, 2
    v_add_u32 v4, v4, v5
    v_lshlrev_b32 v4, 10, v4
    v_and_b32 v5, 1, v3
    v_lshl_add_u32 v4, v5, 6, v4
    v_and_b32 v5, 3, v1
    v_lshl_add_u32 v4, v5, 4, v4
    s_lshl_b32 s24, s21, 7
    v_add_u32 v%d, s24, v4''' % vBd)
    k('s_mul_i32 s25, s22, %d' % (NS * 16 * 1024))
    k('s_mul_i32 s26, s22, %d' % RS)
    k('''v_lshrrev_b32 v4, 1, v3
    v_lshlrev_b32 v4, 10, v4
    v_lshrrev_b32 v5, 2, v2
    v_lshl_add_u32 v4, v5, 6, v4
    v_and_b32 v5, 1, v3
    v_lshl_add_u32 v4, v5, 5, v4
    v_and_b32 v5, 3, v2
    v_lshl_add_u32 v4, v5, 3, v4
    v_add_u32 v%d, s26, v4''' % vBr)
    k('v_and_b32 v4, 31, v1')
    k('v_lshlrev_b32 v5, 8, v4')
    k('v_add_u32 v5, s26, v5')
    k('v_and_b32 v4, 7, v4')
    k('v_lshrrev_b32 v6, 5, v1')
    k('v_xor_b32 v4, v4, v6')
    for q in range(4):
        k('v_xor_b32 v6, %d, v4' % (q * 2))
        k('v_lshl_add_u32 v%d, v6, 4, v5' % (vW + q))
    k('s_lshl_b32 s27, s22, 12')
    k('v_lshrrev_b32 v4, 3, v1')
    k('v_lshlrev_b32 v5, 8, v4')
    k('v_add_u32 v5, s27, v5')
    k('v_and_b32 v6, 7, v1')
    k('v_lshlrev_b32 v6, 1, v6')
    k('v_xor_b32 v6, v6, v4')
    k('v_lshl_add_u32 v%d, v6, 4, v5' % vR)
    k('v_xor_b32 v6, 1, v6')
    k('v_lshl_add_u32 v%d, v6, 4, v5' % (vR + 1))
    k('v_add_u32 v%d, %d, v%d' % (vR + 2, 2 * RS, vR))
    k('v_add_u32 v%d, %d, v%d' % (vR + 3, 2 * RS, vR + 1))
    k('''s_lshl_b32 s27, s22, 4
    s_lshl_b32 s28, s20, 6
    s_add_u32 s27, s27, s28
    s_lshl_b32 s27, s27, 10
    s_add_u32 s27, s27, s24
    v_lshlrev_b32 v5, 10, v4
    v_and_b32 v6, 7, v1
    v_lshl_add_u32 v5, v6, 4, v5
    v_add_u32 v4, s27, v5''')
    k('v_add_u32 v%d, 0x%x, v4' % (vOut, WS_H if out_to_ws else 0))
    k('v_add_u32 v%d, 0x%x, v4' % (vRes, WS_H if res_from_ws else 0))
    k('s_mov_b32 s31, 8192')
    if out_to_ws:
        k('''s_lshl_b32 s27, s22, 11
        v_lshrrev_b32 v4, 3, v1
        v_and_b32 v5, 3, v1
        v_lshl_add_u32 v4, v5, 4, v4
        v_lshlrev_b32 v4, 4, v4
        v_bfe_u32 v5, v1, 2, 1
        v_lshl_add_u32 v4, v5, 10, v4
        v_add_u32 v4, s27, v4''')
        k('v_add_u32 v%d, %d, v4' % (vFw, SCR))
        k('v_lshlrev_b32 v4, 4, v1')
        k('v_add_u32 v5, s27, v4')
        k('v_add_u32 v%d, %d, v5' % (vFr, SCR))
        k('''s_lshl_b32 s27, s20, 2
        s_add_u32 s27, s27, s22
        s_lshl_b32 s27, s27, 4
        s_lshl_b32 s28, s21, 1
        s_add_u32 s27, s27, s28
        s_lshl_b32 s27, s27, 10''')
        k('s_add_u32 s27, s27, 0x%x' % WS_HF)
        k('v_add_u32 v%d, s27, v4' % vFo)
        k('''s_lshl_b32 s27, s20, 2
        s_add_u32 s27, s27, s22
        s_lshl_b32 s27, s27, 10
        s_lshl_b32 s28, s21, 3
        s_add_u32 s27, s27, s28
        v_lshrrev_b32 v4, 3, v1
        v_lshlrev_b32 v4, 6, v4''')
        k('s_add_u32 s27, s27, 0x%x' % WS_ST)
        k('v_add_u32 v%d, s27, v4' % vSt)
        k('s_mov_b32 s40, 0x3f803f80')
        k('s_mov_b32 s42, 0x01010101')
        k('s_mov_b32 s43, 0x01010101')
    k('s_waitcnt lgkmcnt(0)')
    make_srd(k, 12, 4, 5, bK * 512 * 2)
    make_srd(k, 16, 6, 7, WS_SIZE)
    make_srd(k, 32, 8, 9, WS_SIZE if res_from_ws else 2048 * 512 * 2)
    make_srd(k, 36, 10, 11, WS_SIZE if out_to_ws else 2048 * 512 * 2)
    if COOP:
        k('s_lshr_b32 s40, s2, 3')
        k('s_lshl_b32 s40, s40, 2')
        k('s_add_u32 s40, s40, s22')
        k('s_lshl_b32 s40, s40, 13')
        k('v_lshlrev_b32 v4, 7, v1')
        if 'a' in COOP:
            k('s_and_b32 s41, s2, 7')
            k('s_mul_i32 s41, s41, %d' % (8 * KT * 1024))
            k('s_add_u32 s41, s41, 0x%x' % wsA)
            k('s_min_u32 s42, s40, %d' % (KT * 8192 - 8192))
            k('s_add_u32 s41, s41, s42')
            k('buffer_load_dword v%d, v4, s[16:19], s41 offen' % (T + 15))
        if 'b' in COOP:
            k('buffer_load_dword v%d, v4, s[12:15], s40 offen' % (T + 14))
            if bK > 1024:
                k('s_add_u32 s40, s40, 0x100000')
                k('buffer_load_dword v%d, v4, s[12:15], s40 offen' % (T + 13))
    for j in range(2):
        k('buffer_load_dwordx4 %s, v%d, s[32:35], %s offen' % (vr(RES + 4 * j, 4), vRes, 's31' if j else '0'))

    def loads(s):
        slot = s % NR
        k('s_mov_b32 s29, %d' % (s * 1024))
        for mi in range(2):
            k('buffer_load_dwordx4 %s, v%d, s[16:19], s29 offen' % (vr(AR + slot * 8 + mi * 4, 4), vA0 + mi))
        for h in range(2):
            k('s_add_u32 s30, s25, %d' % ((s * 16 + h * 8) * 1024))
            k('s_add_u32 m0, s26, %d' % (slot * 2048 + h * 1024))
            k('buffer_load_dwordx4 v%d, s[12:15], s30 offen lds' % vBd)

    def reads(s):
        slot = s % NR
        p = s & 1
        for nb in range(2):
            for sec in range(2):
                k('ds_read_b64_tr_b16 %s, v%d offset:%d' % (
                    vr(BFR + p * 8 + nb * 4 + sec * 2, 2), vBr, slot * 2048 + sec * 512 + nb * 256))

    issued = 0
    for s in range(PF):
        loads(s)
        issued += 1
    k.ts(2)
    k('s_waitcnt vmcnt(%d)' % (4 * (issued - 1)))
    k.ts(3)
    k('s_waitcnt lgkmcnt(0)')
    reads(0)
    for s in range(NS):
        p = s & 1
        if s + 1 < NS:
            k('s_waitcnt vmcnt(%d)' % (4 * (issued - 1 - (s + 1))))
            reads(s + 1)
            k('s_waitcnt lgkmcnt(4)')
        else:
            k('s_waitcnt lgkmcnt(0)')
        slot = s % NR
        for mi in range(2):
            for nb in range(2):
                acc = vr(ACC + (mi * 2 + nb) * 16, 16)
                k('v_mfma_f32_32x32x16_bf16 %s, %s, %s, %s' % (
                    acc, vr(BFR + p * 8 + nb * 4, 4), vr(AR + slot * 8 + mi * 4, 4), '0' if s == 0 else acc))
        if issued < NS:
            loads(issued)
            issued += 1
    k.ts(4)
    for t in range(4):
        for q in range(4):
            k('ds_write_b128 v%d, %s offset:%d' % (vW + q, vr(ACC + t * 16 + q * 4, 4), (t >> 1) * 8192 + (t & 1) * 128))
    k('s_waitcnt lgkmcnt(0)')
    k('s_barrier')
    k.ts(5)
    k('s_waitcnt lgkmcnt(0)')
    for j in range(2):
        for src in range(4):
            for e in range(2):
                k('ds_read_b128 %s, v%d offset:%d' % (vr(ACC + (j * 4 + src) * 8 + e * 4, 4), vR + e + (2 if src >= 2 else 0),
                                                      (src & 1) * RS + j * 2048))
    for j in range(2):
        b = ACC + j * 32
        k('s_waitcnt lgkmcnt(%d)' % (12 - 8 * j))
        for i in range(8):
            k('v_add_f32 v%d, v%d, v%d' % (b + i, b + i, b + 8 + i))
        k('s_waitcnt lgkmcnt(%d)' % (8 - 8 * j))
        for i in range(8):
            k('v_add_f32 v%d, v%d, v%d' % (b + 16 + i, b + 16 + i, b + 24 + i))
        for i in range(8):
            k('v_add_f32 v%d, v%d, v%d' % (b + i, b + i, b + 16 + i))
        if j == 0:
            k('s_waitcnt vmcnt(0)')
        for i in range(4):
            k('v_cvt_pk_bf16_f32 v%d, v%d, v%d' % (T + 4, b + 2 * i, b + 2 * i + 1))
            k('v_lshlrev_b32 v%d, 16, v%d' % (T, T + 4))
            k('v_and_b32 v%d, 0xffff0000, v%d' % (T + 1, T + 4))
            k('v_lshlrev_b32 v%d, 16, v%d' % (T + 2, RES + 4 * j + i))
            k('v_and_b32 v%d, 0xffff0000, v%d' % (T + 3, RES + 4 * j + i))
            k('v_add_f32 v%d, v%d, v%d' % (T, T, T + 2))
            k('v_add_f32 v%d, v%d, v%d' % (T + 1, T + 1, T + 3))
            k('v_cvt_pk_bf16_f32 v%d, v%d, v%d' % (T + 8 + 4 * j + i, T, T + 1))
        k('buffer_store_dwordx4 %s, v%d, s[36:39], %s offen' % (vr(T + 8 + 4 * j, 4), vOut, 's31' if j else '0'))
        if out_to_ws:
            k('ds_write_b128 v%d, %s offset:%d' % (vFw, vr(T + 8 + 4 * j, 4), j * 128))
            for i in range(4):
                d = T + 8 + 4 * j + i
                k('v_dot2_f32_bf16 v%d, v%d, s40, %s' % (BFR + 2 * j, d, 'v%d' % (BFR + 2 * j) if i else '0'))
                k('v_dot2_f32_bf16 v%d, v%d, v%d, %s' % (BFR + 2 * j + 1, d, d, 'v%d' % (BFR + 2 * j + 1) if i else '0'))
    if out_to_ws:
        k('s_waitcnt lgkmcnt(0)')
        for j in range(2):
            k('ds_read_b128 %s, v%d offset:%d' % (vr(ACC + 4 * j, 4), vFr, j * 1024))
        DP = ' row_mask:0xf bank_mask:0xf'
        for m in ('quad_perm:[1,0,3,2]', 'quad_perm:[2,3,0,1]', 'row_half_mirror'):
            for i in range(4):
                k('v_add_f32_dpp v%d, v%d, v%d %s%s' % (BFR + i, BFR + i, BFR + i, m, DP))
        k('s_mov_b64 exec, s[42:43]')
        for j in range(2):
            k('buffer_store_dwordx2 %s, v%d, s[36:39], 0 offen offset:%d' % (vr(BFR + 2 * j, 2), vSt, j * 512))
        k('s_mov_b64 exec, -1')
        for j in range(2):
            k('s_waitcnt lgkmcnt(%d)' % (1 - j))
            k('buffer_store_dwordx4 %s, v%d, s[36:39], 0 offen offset:%d' % (vr(ACC + 4 * j, 4), vFo, j * 1024))
    k.ts(6)
    k.prof_end(16, 2 if name == 'k3' else 4, 22, 9)
    k.label('%s_done' % L)
    k('s_endpgm')
    if out_to_ws:
        colsum_extra(k)
    return k, dict(vgpr=nv, agpr=0, lds=4 * RS + (8192 if out_to_ws else 0), grid=312 if out_to_ws else 256)


def colsum_extra(k):
    k.label('J_K3_extra')
    k('s_cmp_ge_u32 s2, 312')
    k('s_cbranch_scc1 K3_done2')
    k('s_load_dwordx4 s[4:7], s[0:1], 32')
    k('s_load_dwordx2 s[8:9], s[0:1], 72')
    k('''s_sub_u32 s20, s2, 256
    s_sub_u32 s21, s2, 284
    s_cmp_ge_u32 s20, 28
    s_cselect_b32 s20, s21, s20
    s_cselect_b32 s23, 7168, 0
    v_lshrrev_b32 v1, 6, v0
    v_readfirstlane_b32 s22, v1
    v_and_b32 v1, 63, v0
    v_lshrrev_b32 v2, 1, v1
    v_mul_u32_u24 v2, 0xe00, v2
    v_and_b32 v3, 1, v1
    v_lshl_add_u32 v2, v3, 4, v2
    s_lshl_b32 s24, s20, 7
    s_lshl_b32 s25, s22, 5
    s_add_u32 s24, s24, s25
    v_add_u32 v2, s24, v2
    s_lshl_b32 s24, s24, 1
    s_add_u32 s24, s24, s23
    s_add_u32 s24, s24, 0x%x
    v_lshlrev_b32 v3, 5, v3
    v_add_u32 v3, s24, v3
    s_mov_b32 s26, 0x00003f80
    s_mov_b32 s27, 0x3f800000''' % WS_CS)
    k('s_waitcnt lgkmcnt(0)')
    k('s_cmp_eq_u32 s23, 0')
    k('s_cselect_b32 s12, s4, s6')
    k('s_cselect_b32 s13, s5, s7')
    k('s_mov_b32 s14, 0x%x' % (512 * 1792 * 2))
    k('s_mov_b32 s15, 0x00020000')
    make_srd(k, 16, 8, 9, WS_SIZE)
    for p in range(16):
        k('s_mov_b32 s28, %d' % (p * 32 * 3584))
        k('buffer_load_dwordx4 %s, v2, s[12:15], s28 offen' % vr(16 + p * 4, 4))
    for i in range(8):
        k('v_mov_b32 v%d, 0' % (8 + i))
    for p in range(16):
        k('s_waitcnt vmcnt(%d)' % (15 - p))
        for d in range(4):
            for h in range(2):
                k('v_dot2_f32_bf16 v%d, v%d, s%d, v%d' % (8 + d * 2 + h, 16 + p * 4 + d, 26 + h, 8 + d * 2 + h))
    DP = ' row_mask:0xf bank_mask:0xf'
    for m in ('quad_perm:[2,3,0,1]', 'row_ror:4', 'row_ror:8'):
        for i in range(8):
            k('v_add_f32_dpp v%d, v%d, v%d %s%s' % (8 + i, 8 + i, 8 + i, m, DP))
    for sw in ('v_permlane16_swap_b32', 'v_permlane32_swap_b32'):
        for i in range(8):
            k('v_mov_b32 v%d, v%d' % (16 + i, 8 + i))
        for i in range(8):
            k('%s v%d, v%d' % (sw, 8 + i, 16 + i))
        for i in range(8):
            k('v_add_f32 v%d, v%d, v%d' % (8 + i, 8 + i, 16 + i))
    k('s_mov_b64 exec, 3')
    k('buffer_store_dwordx4 v[8:11], v3, s[16:19], 0 offen')
    k('buffer_store_dwordx4 v[12:15], v3, s[16:19], 0 offen offset:16')
    k.label('K3_done2')
    k('s_endpgm')


def gen_k3():
    return gen_gemm('k3', 32, WS_O, 16, 512, False, True)


def gen_k5():
    return gen_gemm('k5', 112, WS_HH, 48, 1792, True, False)
```

```python
from asmlib import Kernel
from k1 import vr, ar, sr, make_srd, WS_H, WS_HF, WS_HH, WS_CS, WS_ST, WS_SIZE
from k2 import f32hex


import os
EXP = os.environ.get('K4EXP', '')


def stats_fin(k, SS, T, vM, vC, vI):
    for mf in range(2):
        for q in range(2):
            a = SS + mf * 4 + q
            k('v_add_f32 v%d, v%d, v%d' % (a, a, a + 2))
            k('v_mov_b32 v%d, v%d' % (a + 2, a))
            k('v_permlane32_swap_b32 v%d, v%d' % (a, a + 2))
            k('v_add_f32 v%d, v%d, v%d' % (a, a, a + 2))
            k('v_mov_b32 v%d, v%d' % (a + 2, a))
            k('v_permlane16_swap_b32 v%d, v%d' % (a, a + 2))
            k('v_add_f32 v%d, v%d, v%d' % (a, a, a + 2))
    for mf in range(2):
        t, m, v = T, vM + mf, vI + mf
        k('v_mul_f32 v%d, 0x3b000000, v%d' % (m, SS + mf * 4))
        k('v_mul_f32 v%d, 0x3b000000, v%d' % (v, SS + mf * 4 + 1))
        k('v_fma_f32 v%d, -v%d, v%d, v%d' % (v, m, m, v))
        k('v_max_f32 v%d, 0, v%d' % (v, v))
        k('v_cvt_pk_bf16_f32 v%d, v%d, v%d' % (t, m, v))
        k('v_lshlrev_b32 v%d, 16, v%d' % (m, t))
        k('v_and_b32 v%d, 0xffff0000, v%d' % (v, t))
        k('v_add_f32 v%d, 0x3727c5ac, v%d' % (v, v))
        k('v_cvt_pk_bf16_f32 v%d, v%d, v%d' % (t, v, v))
        k('v_lshlrev_b32 v%d, 16, v%d' % (v, t))
        k('v_sqrt_f32 v%d, v%d' % (v, v))
        k('v_cvt_pk_bf16_f32 v%d, v%d, v%d' % (t, v, v))
        k('v_lshlrev_b32 v%d, 16, v%d' % (v, t))
        k('v_rcp_f32 v%d, v%d' % (t, v))
        k('v_mul_f32 v%d, %s, v%d' % (vC + mf, f32hex(-1.4426950408889634), t))
        k('v_mul_f32 v%d, v%d, v%d' % (v, v, v))


def gen_k4():
    k = Kernel('k4')
    SS = 18
    vM, vC, vI = 26, 28, 30
    AF = 32
    BF = 48
    ACC = 104
    T = 216
    E = 224
    CS = BF
    vA, vSt = 8, 9
    vRd = 10
    vRa = 14
    vBd = 16
    vCs = 17
    SLOT = 24576
    PFX = os.environ.get('PFX', '')
    RAMP0 = int(os.environ.get('RAMP0', '3'))
    RAMP = int(os.environ.get('RAMP', '2'))
    NSL = 6
    CSB = NSL * SLOT
    k('s_cmp_ge_u32 s2, 256')
    k('s_cbranch_scc1 K4_done')
    k.ts(0, True)
    k.ts(1)
    k('s_load_dwordx4 s[4:7], s[0:1], 32')
    k('s_load_dwordx2 s[8:9], s[0:1], 72')
    k('''s_and_b32 s10, s2, 7
    s_lshr_b32 s11, s2, 3
    s_and_b32 s20, s10, 1
    s_lshl_b32 s20, s20, 3
    s_and_b32 s21, s11, 7
    s_add_u32 s20, s20, s21
    s_lshr_b32 s21, s10, 1
    s_lshl_b32 s21, s21, 2
    s_lshr_b32 s22, s11, 3
    s_add_u32 s21, s21, s22
    v_lshrrev_b32 v1, 6, v0
    v_readfirstlane_b32 s22, v1
    v_and_b32 v1, 63, v0
    v_and_b32 v2, 15, v1
    v_lshrrev_b32 v3, 4, v1''')
    k('s_cmp_lt_u32 s22, 4')
    k('s_cbranch_scc1 J_K4_comp')
    k('s_and_b32 s22, s22, 3')
    k('''s_lshl_b32 s23, s20, 17
    s_lshl_b32 s24, s22, 15
    s_add_u32 s23, s23, s24
    s_add_u32 s23, s23, 0x%x
    v_lshlrev_b32 v4, 4, v1
    v_add_u32 v%d, s23, v4''' % (WS_HF, vA))
    for i in range(1, 8):
        k('s_mov_b32 s%d, %d' % (47 + i, i * 4096))
    k('''s_mul_i32 s30, s21, 448
    s_lshr_b32 s31, s22, 1
    s_mul_i32 s24, s31, 7168
    s_add_u32 s30, s30, s24
    s_add_u32 s30, s30, 0x%x
    v_add_u32 v%d, s30, v4
    s_mul_i32 s31, s31, 448''' % (WS_CS, vCs))
    k('''v_lshrrev_b32 v4, 2, v1
    v_mul_u32_u24 v4, 0xe00, v4
    v_lshrrev_b32 v5, 5, v1
    v_lshlrev_b32 v5, 1, v5
    v_and_b32 v6, 3, v1
    v_xor_b32 v5, v5, v6
    v_lshl_add_u32 v%d, v5, 4, v4''' % vBd)
    k('''s_and_b32 s27, s22, 1
    s_mul_i32 s26, s27, %d
    s_mul_i32 s28, s21, 224
    s_add_u32 s26, s26, s28
    s_and_b32 s28, s21, 1
    s_lshl_b32 s28, s28, 5
    s_sub_u32 s26, s26, s28
    s_lshl_b32 s27, s27, 10
    s_lshr_b32 s28, s22, 1
    s_lshl_b32 s28, s28, 13
    s_add_u32 s27, s27, s28
    s_lshl_b32 s28, s22, 11''' % (16 * 3584))
    k('s_waitcnt lgkmcnt(0)')
    k('s_cmp_lt_u32 s22, 2')
    k('s_cselect_b32 s16, s4, s6')
    k('s_cselect_b32 s17, s5, s7')
    k('s_mov_b32 s18, 0x%x' % (512 * 1792 * 2))
    k('s_mov_b32 s19, 0x00020000')
    make_srd(k, 32, 8, 9, WS_SIZE)

    def stage(ks):
        sl = (ks % NSL) * SLOT
        if 'D' in EXP and ks >= NSL:
            return
        for mf in range(2):
            o_ = (mf * 16 + ks) * 1024
            if 'B' in EXP:
                o_ = 0
            k('s_add_u32 m0, s28, %d' % (sl + 16384 + mf * 1024 - o_ % 4096))
            k('buffer_load_dwordx4 v%d, s[32:35], %s offen offset:%d lds' % (
                vA, ('s%d' % (47 + o_ // 4096)) if o_ >= 4096 else '0', o_ % 4096))
        for j in range(4):
            k('s_add_u32 s29, s26, %d' % ((0 if 'A' in EXP else ks * 32 * 3584) + j * 64))
            k('s_add_u32 m0, s27, %d' % (sl + j * 2048))
            k('buffer_load_dwordx4 v%d, s[16:19], s29 offen lds' % vBd)

    cnt = [0]
    last = {}

    def stage2(ks):
        stage(ks)
        cnt[0] += 6
        last[ks] = cnt[0]

    def csload():
        k('s_mov_b32 exec_lo, 0x0fffffff')
        k('s_mov_b32 exec_hi, 0')
        k('s_add_u32 m0, s31, %d' % CSB)
        k('buffer_load_dwordx4 v%d, s[32:35], 0 offen lds' % vCs)
        k('s_mov_b64 exec, -1')
        cnt[0] += 1

    issued = 0
    for ks in range(RAMP0):
        stage2(ks)
        issued += 1
    for ks in range(16):
        if 'D' in EXP:
            k('s_waitcnt vmcnt(0)')
        else:
            k('s_waitcnt vmcnt(%d)' % (cnt[0] - last[ks]))
        k('s_barrier')
        for _ in range(RAMP):
            if issued < 16 and issued <= ks + NSL - 1:
                stage2(issued)
                issued += 1
        if ks == 4:
            csload()
    k('s_endpgm')

    k.label('J_K4_comp')
    k('''v_lshlrev_b32 v4, 3, v3
    v_lshrrev_b32 v5, 2, v2
    v_add_u32 v4, v4, v5
    v_lshlrev_b32 v4, 6, v4
    v_and_b32 v5, 3, v2
    v_lshl_add_u32 v4, v5, 3, v4
    s_and_b32 s30, s21, 1
    v_and_b32 v5, 1, v3
    v_xor_b32 v5, s30, v5
    v_lshl_add_u32 v%d, v5, 5, v4
    v_xor_b32 v5, 1, v5
    v_lshl_add_u32 v4, v5, 5, v4
    s_lshl_b32 s30, s30, 11
    v_add_u32 v%d, s30, v4''' % (vRd, vRd + 1))
    for par in range(2):
        k('v_add_u32 v%d, %d, v%d' % (vRd + 2 + par, 3 * SLOT, vRd + par))
    k('s_lshl_b32 s28, s22, 11')
    k('s_add_u32 s28, s28, 16384')
    k('v_lshlrev_b32 v4, 4, v1')
    k('v_add_u32 v%d, s28, v4' % vRa)
    k('v_add_u32 v%d, %d, v%d' % (vRa + 1, 3 * SLOT, vRa))
    k('''v_lshrrev_b32 v4, 1, v3
    v_lshlrev_b32 v4, 5, v4
    v_add_u32 v4, v4, v2
    v_lshlrev_b32 v4, 4, v4
    v_and_b32 v5, 1, v3
    v_lshl_add_u32 v%d, v5, 3, v4''' % vSt)
    k('''s_lshl_b32 s25, s20, 2
    s_add_u32 s25, s25, s22
    s_mul_i32 s25, s25, 112
    s_mul_i32 s30, s21, 7
    s_add_u32 s25, s25, s30
    s_lshl_b32 s25, s25, 10
    s_add_u32 s25, s25, 0x%x''' % WS_HH)
    k('v_lshlrev_b32 v4, 4, v3')
    k('v_add_u32 v%d, 0x%x, v4' % (vCs, CSB))
    k('''s_lshl_b32 s30, s20, 2
    s_add_u32 s30, s30, s22
    s_lshl_b32 s30, s30, 11
    s_add_u32 s30, s30, 0x%x
    v_lshl_add_u32 v4, v2, 6, v4
    v_add_u32 v4, s30, v4''' % WS_ST)
    k('s_waitcnt lgkmcnt(0)')
    make_srd(k, 32, 8, 9, WS_SIZE)
    for mf in range(2):
        k('buffer_load_dwordx4 %s, v4, s[32:35], 0 offen offset:%d' % (vr(SS + mf * 4, 4), mf * 1024))
    if PFX:
        k('s_cmp_lt_u32 s22, 2')
        k('s_cselect_b32 s16, s4, s6')
        k('s_cselect_b32 s17, s5, s7')
        k('s_mov_b32 s18, 0x%x' % (512 * 1792 * 2))
        k('s_mov_b32 s19, 0x00020000')
        k('''s_lshl_b32 s30, s11, 1
        s_and_b32 s31, s22, 1
        s_add_u32 s30, s30, s31
        s_mul_i32 s30, s30, %d
        s_lshr_b32 s31, s10, 1
        s_mul_i32 s31, s31, 896
        s_add_u32 s30, s30, s31
        v_lshrrev_b32 v5, 3, v1
        v_mul_u32_u24 v5, 0xe00, v5
        v_and_b32 v6, 7, v1
        v_min_u32 v6, 6, v6
        v_lshl_add_u32 v5, v6, 7, v5''' % (8 * 3584))
        k('''s_and_b32 s31, s10, 1
        s_lshl_b32 s31, s31, 7
        s_lshl_b32 s29, s11, 2
        s_add_u32 s31, s31, s29
        s_add_u32 s31, s31, s22
        s_lshl_b32 s31, s31, 13
        s_add_u32 s31, s31, 0x%x
        v_lshlrev_b32 v6, 7, v1''' % WS_HF)
        if 'b' in PFX:
            k('buffer_load_dword v%d, v5, s[16:19], s30 offen' % (E + 0))
            if '2' in PFX:
                k('buffer_load_dword v%d, v5, s[16:19], s30 offen offset:64' % (E + 1))
        if 'a' in PFX:
            k('buffer_load_dword v%d, v6, s[32:35], s31 offen' % (E + 2))
            if '2' in PFX:
                k('buffer_load_dword v%d, v6, s[32:35], s31 offen offset:64' % (E + 3))
    k.ts(2)

    def areg(ks, mf):
        return AF + ((ks & 1) * 2 + mf) * 4

    def reads(hs):
        ks, mx = hs >> 1, hs & 1
        slot = ks % NSL
        out = []
        if mx == 0:
            for mf in range(2):
                out.append('ds_read_b128 %s, v%d offset:%d' % (vr(areg(ks, mf), 4), vRa + slot // 3, (slot % 3) * SLOT + mf * 1024))
        for nf in range(7):
            for kgl in range(2):
                out.append('ds_read_b64_tr_b16 %s, v%d offset:%d' % (
                    vr(BF + mx * 28 + nf * 4 + kgl * 2, 2), vRd + (slot // 3) * 2 + (nf & 1),
                    (slot % 3) * SLOT + mx * 8192 + (nf >> 1) * 2048 + kgl * 256))
        return out

    k('s_waitcnt vmcnt(%d)' % ((('a' in PFX) + ('b' in PFX)) * (2 if '2' in PFX else 1)))
    stats_fin(k, SS, T, vM, vC, vI)
    k('s_barrier')
    k.ts(3)
    for o in reads(0):
        k(o)
    for hs in range(32):
        ks, mx = hs >> 1, hs & 1
        k('s_waitcnt lgkmcnt(0)')
        if hs == 0:
            k.ts(4)
        if mx == 1 and ks + 1 < 16:
            k('s_barrier')
        rd = reads(hs + 1) if hs + 1 < 32 else []
        if 'R' in EXP:
            rd = rd[:2]
        no = []
        i = 0
        for nf in range(7):
            for mf in range(2):
                acc = vr(ACC + (mf * 14 + mx * 7 + nf) * 4, 4)
                a = vr(areg(ks, mf), 4)
                b = vr(BF + mx * 28 + nf * 4, 4)
                if 'M' not in EXP or ks == 0:
                    k('v_mfma_f32_16x16x32_bf16 %s, %s, %s, %s' % (acc, b, a, '0' if ks == 0 else acc))
                for _ in range(2):
                    if rd:
                        k(rd.pop(0))
                if no:
                    k(no.pop(0))
                i += 1
        for o in rd + no:
            k(o)
        if hs == 31:
            pass
    k.ts(5)
    k('s_waitcnt vmcnt(0)')
    for mx in range(2):
        for nf in range(7):
            k('ds_read_b128 %s, v%d offset:%d' % (vr(CS + (mx * 7 + nf) * 4, 4), vCs, mx * 448 + nf * 64))
    k('s_waitcnt lgkmcnt(0)')
    n = 0
    for nf in range(7):
        k('s_add_u32 s29, s25, %d' % (nf * 1024))
        for mf in range(2):
            e = E + (n & 3) * 8
            n += 1
            G = ACC + (mf * 14 + nf) * 4
            U = ACC + (mf * 14 + 7 + nf) * 4
            sel = 'op_sel:[0,%d,0] op_sel_hi:[1,%d,1]' % (mf, mf)
            sel2 = 'op_sel:[0,%d] op_sel_hi:[1,%d]' % (mf, mf)
            sel3 = 'op_sel:[0,%d,%d] op_sel_hi:[1,%d,%d]' % (mf, mf, mf, mf)
            for h in range(2):
                k('v_pk_fma_f32 %s, %s, %s, %s %s neg_lo:[0,1,0] neg_hi:[0,1,0]' % (
                    vr(G + 2 * h, 2), vr(CS + nf * 4 + 2 * h, 2), vr(vM, 2), vr(G + 2 * h, 2), sel))
            for h in range(2):
                k('v_pk_mul_f32 %s, %s, %s %s' % (vr(e + 2 * h, 2), vr(G + 2 * h, 2), vr(vC, 2), sel2))
            for r in range(4):
                k('v_exp_f32 v%d, v%d' % (e + r, e + r))
            for h in range(2):
                k('v_pk_fma_f32 %s, %s, %s, %s %s neg_lo:[0,1,0] neg_hi:[0,1,0]' % (
                    vr(U + 2 * h, 2), vr(CS + (7 + nf) * 4 + 2 * h, 2), vr(vM, 2), vr(U + 2 * h, 2), sel))
            for h in range(2):
                k('v_pk_fma_f32 %s, %s, %s, %s %s' % (vr(e + 2 * h, 2), vr(e + 2 * h, 2), vr(vI, 2), vr(vI, 2), sel3))
            for r in range(4):
                k('v_rcp_f32 v%d, v%d' % (e + r, e + r))
            for h in range(2):
                k('v_pk_mul_f32 %s, %s, %s' % (vr(G + 2 * h, 2), vr(G + 2 * h, 2), vr(U + 2 * h, 2)))
            for h in range(2):
                k('v_pk_mul_f32 %s, %s, %s' % (vr(G + 2 * h, 2), vr(G + 2 * h, 2), vr(e + 2 * h, 2)))
            k('v_cvt_pk_bf16_f32 v%d, v%d, v%d' % (e + 4, G, G + 1))
            k('v_cvt_pk_bf16_f32 v%d, v%d, v%d' % (e + 5, G + 2, G + 3))
            k('buffer_store_dwordx2 %s, v%d, s[32:35], s29 offen offset:%d' % (vr(e + 4, 2), vSt, mf * 256))
    k.ts(6)
    k.prof_end(32, 3, 22, 9)
    k.label('K4_done')
    k('s_endpgm')
    return k, dict(vgpr=256, agpr=0, lds=CSB + 1024, grid=256, block=512)
```

```python
from asmlib import Kernel

WS_Q = 0x000000
WS_K = 0x200000
WS_VT = 0x400000
WS_O = 0x600000
WS_H = 0x800000
WS_HH = 0xA00000
WS_HF = 0x1200000
WS_CS = 0x1400000
WS_ST = 0x1410000
WS_SIZE = 0x10000000


def vr(b, n):
    return 'v[%d:%d]' % (b, b + n - 1) if n > 1 else 'v%d' % b


def ar(b, n):
    return 'a[%d:%d]' % (b, b + n - 1) if n > 1 else 'a%d' % b


def sr(b, n):
    return 's[%d:%d]' % (b, b + n - 1) if n > 1 else 's%d' % b


def make_srd(k, dst, lo, hi, size):
    k('s_mov_b32 s%d, s%d' % (dst, lo))
    k('s_mov_b32 s%d, s%d' % (dst + 1, hi))
    k('s_mov_b32 s%d, 0x%x' % (dst + 2, size))
    k('s_mov_b32 s%d, 0x00020000' % (dst + 3))


def ln_stats(k, AF, ST, ONES, T, nload_after, NKS=16, pre=None):
    for i in range(4):
        k('v_mov_b32 v%d, 0x3f803f80' % (ONES + i))
    for ks in range(NKS):
        k('s_waitcnt vmcnt(%d)' % (nload_after + 2 * (NKS - 1 - ks)))
        for mf in range(2):
            a = vr(AF + (ks * 2 + mf) * 4, 4)
            c0 = '0' if ks == 0 else vr(ST + mf * 4, 4)
            c1 = '0' if ks == 0 else vr(ST + 8 + mf * 4, 4)
            k('v_mfma_f32_16x16x32_bf16 %s, %s, %s, %s' % (vr(ST + mf * 4, 4), vr(ONES, 4), a, c0))
            k('v_mfma_f32_16x16x32_bf16 %s, %s, %s, %s' % (vr(ST + 8 + mf * 4, 4), a, a, c1))
    ln_stats_fin(k, ST, T)


def ln_stats_fin(k, ST, T):
    for r in range(4):
        k('s_mov_b32 s%d, 0x%x' % (40 + 2 * r, (1 << r) | (1 << (20 + r))))
        k('s_mov_b32 s%d, 0x%x' % (41 + 2 * r, (1 << (8 + r)) | (1 << (28 + r))))
    res = []
    for mf in range(2):
        t, t2, m, v = T, T + 1, T + 2 + mf * 2, T + 3 + mf * 2
        k('v_mov_b32 v%d, 0' % t)
        for r in range(4):
            k('v_cndmask_b32_e64 v%d, v%d, v%d, s[%d:%d]' % (t, t, ST + 8 + mf * 4 + r, 40 + 2 * r, 41 + 2 * r))
        k('v_mov_b32 v%d, v%d' % (t2, t))
        k('v_permlane32_swap_b32 v%d, v%d' % (t, t2))
        k('v_add_f32 v%d, v%d, v%d' % (t, t, t2))
        k('v_mov_b32 v%d, v%d' % (t2, t))
        k('v_permlane16_swap_b32 v%d, v%d' % (t, t2))
        k('v_add_f32 v%d, v%d, v%d' % (t, t, t2))
        k('v_mul_f32 v%d, 0x3b000000, v%d' % (m, ST + mf * 4))
        k('v_mul_f32 v%d, 0x3b000000, v%d' % (v, t))
        k('v_fma_f32 v%d, -v%d, v%d, v%d' % (v, m, m, v))
        k('v_max_f32 v%d, 0, v%d' % (v, v))
        k('v_cvt_pk_bf16_f32 v%d, v%d, v%d' % (t, m, v))
        k('v_lshlrev_b32 v%d, 16, v%d' % (m, t))
        k('v_and_b32 v%d, 0xffff0000, v%d' % (v, t))
        k('v_add_f32 v%d, 0x3727c5ac, v%d' % (v, v))
        k('v_cvt_pk_bf16_f32 v%d, v%d, v%d' % (t, v, v))
        k('v_lshlrev_b32 v%d, 16, v%d' % (v, t))
        k('v_sqrt_f32 v%d, v%d' % (v, v))
        k('v_cvt_pk_bf16_f32 v%d, v%d, v%d' % (t, v, v))
        k('v_lshlrev_b32 v%d, 16, v%d' % (v, t))
        k('v_rcp_f32 v%d, v%d' % (v, v))
        k('v_mul_f32 v%d, v%d, v%d' % (m, m, v))
    for mf in range(2):
        k('v_mov_b32 v%d, v%d' % (ST + mf, T + 3 + mf * 2))
        k('v_mov_b32 v%d, v%d' % (ST + 2 + mf, T + 2 + mf * 2))


def norm_ops(AF, ST, T, ks):
    ops = []
    for mf in range(2):
        for r in range(4):
            a = AF + (ks * 2 + mf) * 4 + r
            t0, t1 = T + (r & 1) * 2, T + (r & 1) * 2 + 1
            ops.append('v_lshlrev_b32 v%d, 16, v%d' % (t0, a))
            ops.append('v_and_b32 v%d, 0xffff0000, v%d' % (t1, a))
            ops.append('v_fma_f32 v%d, v%d, v%d, -v%d' % (t0, t0, ST + mf, ST + 2 + mf))
            ops.append('v_fma_f32 v%d, v%d, v%d, -v%d' % (t1, t1, ST + mf, ST + 2 + mf))
            ops.append('v_cvt_pk_bf16_f32 v%d, v%d, v%d' % (a, t0, t1))
    return ops


PF_SZ = {16: 0x80000, 32: 0x1c0000, 40: 0x1c0000, 48: 0x1c0000}


def pf_setup(k, sb, kargs):
    for i, ka in enumerate(kargs):
        k('s_load_dwordx2 s[%d:%d], s[0:1], %d' % (sb + 2 * i, sb + 2 * i + 1, ka))


def pf_sel(k, sW, sb, kargs):
    d = sb + 8
    k('s_mov_b32 s%d, s%d' % (d, sb))
    k('s_mov_b32 s%d, s%d' % (d + 1, sb + 1))
    k('s_mov_b32 s%d, 0x%x' % (d + 2, PF_SZ[kargs[0]]))
    k('s_mov_b32 s%d, 0x00020000' % (d + 3))
    k('s_mov_b32 s%d, s%d' % (d + 4, sW))
    lim = 0
    for i in range(1, len(kargs)):
        lim += PF_SZ[kargs[i - 1]] >> 13
        src = sb + 2 * i
        k('s_sub_u32 s%d, s%d, %d' % (d + 5, sW, lim))
        k('s_cmp_ge_u32 s%d, %d' % (sW, lim))
        k('s_cselect_b32 s%d, s%d, s%d' % (d, src, d))
        k('s_cselect_b32 s%d, s%d, s%d' % (d + 1, src + 1, d + 1))
        k('s_cselect_b32 s%d, 0x%x, s%d' % (d + 2, PF_SZ[kargs[i]], d + 2))
        k('s_cselect_b32 s%d, s%d, s%d' % (d + 4, d + 5, d + 4))
    k('s_lshl_b32 s%d, s%d, 13' % (d + 4, d + 4))


import os
PF1 = [int(x) for x in os.environ.get('PF1', '16,32').split(',') if x]
PF2 = [int(x) for x in os.environ.get('PF2', '40,48').split(',') if x]


def stats_fin2(k, ST, T, vM, vR):
    for r in range(4):
        k('s_mov_b32 s%d, 0x%x' % (40 + 2 * r, (1 << r) | (1 << (20 + r))))
        k('s_mov_b32 s%d, 0x%x' % (41 + 2 * r, (1 << (8 + r)) | (1 << (28 + r))))
    for mf in range(2):
        t, t2, m, v = T + mf * 2, T + mf * 2 + 1, vM + mf, vR + mf
        k('v_mov_b32 v%d, 0' % t)
        for r in range(4):
            k('v_cndmask_b32_e64 v%d, v%d, v%d, s[%d:%d]' % (t, t, ST + 8 + mf * 4 + r, 40 + 2 * r, 41 + 2 * r))
        k('v_mov_b32 v%d, v%d' % (t2, t))
        k('v_permlane32_swap_b32 v%d, v%d' % (t, t2))
        k('v_add_f32 v%d, v%d, v%d' % (t, t, t2))
        k('v_mov_b32 v%d, v%d' % (t2, t))
        k('v_permlane16_swap_b32 v%d, v%d' % (t, t2))
        k('v_add_f32 v%d, v%d, v%d' % (t, t, t2))
        k('v_mul_f32 v%d, 0x3b000000, v%d' % (m, ST + mf * 4))
        k('v_mul_f32 v%d, 0x3b000000, v%d' % (v, t))
        k('v_fma_f32 v%d, -v%d, v%d, v%d' % (v, m, m, v))
        k('v_max_f32 v%d, 0, v%d' % (v, v))
        k('v_cvt_pk_bf16_f32 v%d, v%d, v%d' % (t, m, v))
        k('v_lshlrev_b32 v%d, 16, v%d' % (m, t))
        k('v_and_b32 v%d, 0xffff0000, v%d' % (v, t))
        k('v_add_f32 v%d, 0x3727c5ac, v%d' % (v, v))
        k('v_cvt_pk_bf16_f32 v%d, v%d, v%d' % (t, v, v))
        k('v_lshlrev_b32 v%d, 16, v%d' % (v, t))
        k('v_sqrt_f32 v%d, v%d' % (v, v))
        k('v_cvt_pk_bf16_f32 v%d, v%d, v%d' % (t, v, v))
        k('v_lshlrev_b32 v%d, 16, v%d' % (v, t))
        k('v_rcp_f32 v%d, v%d' % (v, v))


def gen_k1():
    k = Kernel('k1')
    SLOT = 28672
    NSL = 5
    AOFF = 12288
    CX = NSL * SLOT
    SX = CX + 1024
    R0 = int(os.environ.get('K1R0', '3'))
    R1 = int(os.environ.get('K1R1', '1'))
    PFS = int(os.environ.get('K1PFS', '5'))
    TS2 = int(os.environ.get('K1TS', '0'))
    NOC = int(os.environ.get('K1NOC', '0'))
    NOCS = int(os.environ.get('K1NOCS', '0'))
    vSS, vSV = 8, 9
    vRd, vRa = 10, 16
    ONES = 22
    ST = 26
    T = 42
    vM, vR = 50, 52
    AF = 54
    BF = 70
    ACC = 118
    CS = 166
    M4 = 190
    vCa, vCb, vSw, vSr = 206, 207, 208, 209
    k('s_cmp_ge_u32 s2, 256')
    k('s_cbranch_scc1 K1_done')
    k.ts(0, True)
    k.ts(1)
    k('s_load_dwordx4 s[4:7], s[0:1], 0')
    k('s_load_dwordx2 s[8:9], s[0:1], 72')
    pf_setup(k, 48, PF1)
    k('''s_and_b32 s10, s2, 7
    s_lshr_b32 s11, s2, 3
    s_and_b32 s20, s10, 3
    s_lshl_b32 s20, s20, 2
    s_and_b32 s21, s11, 3
    s_add_u32 s20, s20, s21
    s_lshr_b32 s21, s10, 2
    s_lshl_b32 s21, s21, 3
    s_lshr_b32 s22, s11, 2
    s_add_u32 s21, s21, s22
    v_lshrrev_b32 v1, 6, v0
    v_readfirstlane_b32 s22, v1
    v_and_b32 v1, 63, v0
    v_and_b32 v2, 15, v1
    v_lshrrev_b32 v3, 4, v1''')
    k('''v_lshlrev_b32 v4, 3, v3
    v_lshrrev_b32 v5, 2, v2
    v_add_u32 v4, v4, v5
    v_lshlrev_b32 v4, 6, v4
    v_and_b32 v5, 3, v2
    v_lshl_add_u32 v7, v5, 3, v4
    v_and_b32 v6, 1, v3''')
    for i in range(4):
        k('v_mov_b32 v%d, 0x3f803f80' % (ONES + i))
    ROT = int(os.environ.get('K1ROT', '1'))
    if ROT:
        k('s_mul_i32 s47, s10, %d' % ROT)
    else:
        k('s_mov_b32 s47, 0')
    k('s_cmp_lt_u32 s22, 4')
    k('s_cbranch_scc1 J_K1_comp')
    vA, vBd, vPf = 8, 9, 30
    vLr = 10
    LB = 32
    LC = 44
    k('s_and_b32 s22, s22, 3')
    k('''v_lshrrev_b32 v4, 3, v1
    v_and_b32 v5, 7, v1
    v_xor_b32 v5, v5, v4
    v_lshlrev_b32 v4, 10, v4
    v_lshl_add_u32 v%d, v5, 4, v4
    s_lshl_b32 s24, s20, 17
    s_lshl_b32 s23, s22, 15
    s_add_u32 s24, s24, s23
    s_add_u32 s25, s24, 8192
    s_add_u32 s26, s24, 16384
    s_add_u32 s27, s24, 24576
    s_lshl_b32 s28, s22, 12
    s_add_u32 s28, s28, %d''' % (vA, AOFF))
    k('''v_lshrrev_b32 v4, 2, v1
    v_mul_u32_u24 v4, 0xc00, v4
    v_lshrrev_b32 v5, 5, v1
    v_lshlrev_b32 v5, 1, v5
    v_and_b32 v%d, 3, v1
    v_xor_b32 v5, v5, v%d
    v_lshl_add_u32 v%d, v5, 4, v4''' % (vBd, vBd, vBd))
    k('s_mul_i32 s29, s22, 3')
    k('s_mul_i32 s23, s21, 192')
    for t in range(3):
        k('''s_add_u32 s36, s29, %d
        s_and_b32 s37, s36, 1
        s_lshr_b32 s36, s36, 1
        s_mul_i32 s37, s37, %d
        s_cmp_ge_u32 s36, 3
        s_cselect_b32 s38, %d, 0
        s_lshl_b32 s36, s36, 6
        s_add_u32 s37, s37, s38
        s_add_u32 s37, s37, s36
        s_add_u32 s%d, s37, s23''' % (t, 16 * 3072, 32 * 3072 - 192, 44 + t))
    k('s_mul_i32 s29, s22, 3072')
    k('s_and_b32 s36, s22, 1')
    k('s_mul_i32 s36, s36, 3')
    k('s_lshr_b32 s37, s22, 1')
    k('s_mul_i32 s37, s37, 3')
    for t in range(3):
        k('''s_add_u32 s38, s36, %d
        s_and_b32 s39, s38, 1
        s_lshr_b32 s38, s38, 1
        s_add_u32 s38, s38, s37
        s_lshl_b32 s38, s38, 11
        v_xor_b32 v4, s39, v6
        v_lshl_add_u32 v4, v4, 5, v7
        v_add_u32 v%d, s38, v4
        v_add_u32 v%d, %d, v%d
        v_add_u32 v%d, %d, v%d''' % (t, vLr + t, vLr + 3 + t, 2 * SLOT, vLr + t, vLr + 6 + t, 4 * SLOT, vLr + t))
    k('''s_lshl_b32 s38, s37, 7
    s_lshl_b32 s39, s36, 6
    s_add_u32 s38, s38, s39
    s_add_u32 s38, s38, %d
    v_lshlrev_b32 v4, 2, v2
    v_add_u32 v20, s38, v4''' % CX)
    k('s_waitcnt lgkmcnt(0)')
    make_srd(k, 12, 4, 5, 2048 * 512 * 2)
    make_srd(k, 16, 6, 7, 512 * 1536 * 2)
    k('s_lshl_b32 s30, s22, 8')
    k('s_add_u32 s30, s30, s2')
    if PF1:
        pf_sel(k, 30, 48, PF1)
    k('v_lshlrev_b32 v%d, 7, v1' % vPf)

    cnt = [0]
    last = {}

    def stage(s):
        sl = (s % NSL) * SLOT
        k('s_add_u32 s36, s47, %d' % s)
        k('s_and_b32 s36, s36, 7')
        k('s_lshl_b32 s37, s36, 7')
        k('s_mul_i32 s38, s36, %d' % (64 * 3072))
        for t in range(4):
            k('s_add_u32 s31, s%d, s37' % (24 + t))
            k('s_add_u32 m0, s28, %d' % (sl + t * 1024))
            k('buffer_load_dwordx4 v%d, s[12:15], s31 offen lds' % vA)
        for t in range(3):
            k('s_add_u32 s31, s%d, s38' % (44 + t))
            k('s_add_u32 m0, s29, %d' % (sl + t * 1024))
            k('buffer_load_dwordx4 v%d, s[16:19], s31 offen lds' % vBd)
        cnt[0] += 7
        last[s] = cnt[0]

    issued = 0
    LS = int(os.environ.get('K1LS', '0'))
    for s in range(R0):
        if s and LS:
            k('s_sleep %d' % LS)
        stage(s)
        issued += 1
    for s in range(8):
        k('s_waitcnt vmcnt(%d)' % (cnt[0] - last[s]))
        k('s_barrier')
        slot = s % NSL
        for t in range(3):
            for kgl in range(2):
                if NOCS: continue
                k('ds_read_b64_tr_b16 %s, v%d offset:%d' % (
                    vr(LB + t * 4 + kgl * 2, 2), vLr + (slot // 2) * 3 + t, (slot % 2) * SLOT + kgl * 256))
        for _ in range(R1):
            if issued < 8 and issued <= s + NSL - 1:
                stage(issued)
                issued += 1
        if s == PFS and PF1:
            k('buffer_load_dword v%d, v%d, s[56:59], s60 offen' % (vPf + 1, vPf))
            cnt[0] += 1
        k('s_waitcnt lgkmcnt(0)')
        for t in range(3):
            k('v_mfma_f32_16x16x32_bf16 %s, %s, %s, %s' % (
                vr(LC + t * 4, 4), vr(ONES, 4), vr(LB + t * 4, 4), '0' if s == 0 else vr(LC + t * 4, 4)))
    for t in range(3):
        k('ds_write_b32 v20, v%d offset:%d' % (LC + t * 4, t * 64))
    k('s_waitcnt lgkmcnt(0)')
    k('s_barrier')
    k('s_endpgm')

    k.label('J_K1_comp')
    k('''v_lshl_add_u32 v%d, v6, 5, v7
    v_xor_b32 v5, 1, v6
    v_lshl_add_u32 v%d, v5, 5, v7''' % (vRd, vRd + 1))
    k('''s_lshl_b32 s23, s22, 12
    s_add_u32 s23, s23, %d
    v_and_b32 v4, 7, v2
    v_xor_b32 v4, v4, v3
    v_lshlrev_b32 v4, 4, v4
    v_lshl_add_u32 v4, v2, 7, v4
    v_add_u32 v%d, s23, v4
    v_xor_b32 v4, 64, v4
    v_add_u32 v%d, s23, v4''' % (AOFF, vRa, vRa + 1))
    for rg in (1, 2):
        for p in range(2):
            k('v_add_u32 v%d, %d, v%d' % (vRd + rg * 2 + p, rg * 2 * SLOT, vRd + p))
            k('v_add_u32 v%d, %d, v%d' % (vRa + rg * 2 + p, rg * 2 * SLOT, vRa + p))
    k('''s_lshl_b32 s25, s20, 12
    s_lshl_b32 s24, s22, 10
    s_add_u32 s25, s25, s24
    v_lshlrev_b32 v4, 5, v2
    v_add_u32 v4, s25, v4
    v_lshl_add_u32 v%d, v3, 3, v4
    v_lshlrev_b32 v5, 1, v6
    v_lshrrev_b32 v6, 1, v3
    v_or_b32 v5, v5, v6
    v_lshl_add_u32 v%d, v5, 3, v4''' % (vSS, vSV))
    k('s_mul_i32 s28, s21, 0x60000')
    k('''v_lshlrev_b32 v4, 4, v3
    v_lshlrev_b32 v5, 2, v2
    v_add_u32 v%d, %d, v4
    v_add_u32 v%d, %d, v5
    s_lshl_b32 s24, s22, 8
    s_add_u32 s24, s24, %d
    v_add_u32 v%d, s24, v5
    v_add_u32 v%d, s24, v4''' % (vCa, CX, vCb, CX, SX, vSw, vSr))
    k('''s_lshl_b32 s24, s11, 2
    s_add_u32 s24, s24, s22
    s_and_b32 s25, s10, 3
    s_lshl_b32 s25, s25, 19
    s_and_b32 s26, s24, 15
    s_lshl_b32 s26, s26, 15
    s_add_u32 s25, s25, s26
    s_lshr_b32 s30, s24, 4
    s_add_u32 s27, s30, s47
    s_and_b32 s27, s27, 7
    s_lshl_b32 s26, s27, 7
    s_add_u32 s25, s25, s26
    s_lshl_b32 s27, s27, 4
    s_and_b32 s26, s24, 15
    s_add_u32 s26, s26, s27
    s_mul_i32 s26, s26, 12288
    s_lshr_b32 s27, s10, 2
    s_mul_i32 s27, s27, 1536
    s_add_u32 s26, s26, s27
    v_and_b32 v4, 31, v1
    v_lshlrev_b32 v4, 10, v4
    v_min_u32 v5, 11, v2
    v_lshlrev_b32 v5, 7, v5
    v_mul_u32_u24 v6, 0xc00, v3
    v_add_u32 v5, v5, v6''')
    k('s_waitcnt lgkmcnt(0)')
    make_srd(k, 12, 4, 5, 2048 * 512 * 2)
    make_srd(k, 16, 6, 7, 512 * 1536 * 2)
    if int(os.environ.get('K1L2', '1')):
        S0 = int(os.environ.get('K1S0', '3'))
        D = int(os.environ.get('K1D', '6'))
        k('s_cmp_lt_u32 s30, %d' % S0)
        k('s_cbranch_scc1 K1_nopf')
        if D:
            k.label('K1_dl')
            k('s_cmp_le_u32 s30, %d' % S0)
            k('s_cbranch_scc1 K1_dx')
            k('s_sleep %d' % D)
            k('s_sub_u32 s30, s30, 1')
            k('s_branch K1_dl')
            k.label('K1_dx')
        if int(os.environ.get('K1L2', '1')) == 2:
            k('buffer_load_dword v210, v6, s[16:19], s26 offen')
        else:
            k('buffer_load_dword v210, v5, s[16:19], s26 offen')
            k('buffer_load_dword v211, v4, s[12:15], s25 offen')
        k.label('K1_nopf')
    make_srd(k, 32, 8, 9, WS_SIZE)
    if not TS2: k.ts(2)

    def reads(ks):
        p = ks & 1
        slot = (ks >> 1) % NSL
        out = []
        for mf in range(2):
            out.append('ds_read_b128 %s, v%d offset:%d' % (
                vr(AF + (p * 2 + mf) * 4, 4), vRa + (slot // 2) * 2 + p, (slot % 2) * SLOT + mf * 2048))
        for nf in range(6):
            for kgl in range(2):
                out.append('ds_read_b64_tr_b16 %s, v%d offset:%d' % (
                    vr(BF + p * 24 + nf * 4 + kgl * 2, 2), vRd + (slot // 2) * 2 + (nf & 1),
                    (slot % 2) * SLOT + (p * 3 + (nf >> 1)) * 2048 + kgl * 256))
        return out

    class Lst:
        def __init__(self):
            self.l = []

        def __call__(self, x):
            self.l.append(x)

    def variant(name, sw):
        k.label('J_K1_%s' % name)
        k('s_barrier')
        k.ts(2 if TS2 else 3)
        for o in reads(0):
            k(o)

        def stats(ks):
            p = ks & 1
            st = []
            for mf in range(2):
                a = vr(AF + (p * 2 + mf) * 4, 4)
                c0 = '0' if ks == 0 else vr(ST + mf * 4, 4)
                c1 = '0' if ks == 0 else vr(ST + 8 + mf * 4, 4)
                st.append('v_mfma_f32_16x16x32_bf16 %s, %s, %s, %s' % (vr(ST + mf * 4, 4), vr(ONES, 4), a, c0))
                st.append('v_mfma_f32_16x16x32_bf16 %s, %s, %s, %s' % (vr(ST + 8 + mf * 4, 4), a, a, c1))
            return st

        for ks in range(16):
            p = ks & 1
            nxt = ks + 1 < 16
            k('s_waitcnt lgkmcnt(0)')
            if ks == 0 and not TS2:
                k.ts(4)
            if p == 1:
                k('s_barrier')
                if TS2 and ks in (3, 7, 11):
                    k.ts(3 + ks // 4)
            per = 2
            if nxt:
                rd = reads(ks + 1)
            else:
                rd = []
                for nf in range(6):
                    for par in range(2):
                        d = (CS if par == 0 else BF)
                        if sw[nf]:
                            rd.append('ds_read_b128 %s, v%d offset:%d' % (vr(d + nf * 4, 4), vCa, par * 384 + nf * 64))
                        else:
                            rd.append('ds_read_b32 v%d, v%d offset:%d' % (d + nf * 4, vCb, par * 384 + nf * 64))
                L = Lst()
                stats_fin2(L, ST, T, vM, vR)
                n = (len(L.l) - 8) // 2
                fin = L.l[:8]
                for i in range(n):
                    fin += [L.l[8 + i], L.l[8 + n + i]]
                rd = fin[:8] + rd[:4] + fin[8:20] + rd[4:8] + fin[20:32] + rd[8:] + fin[32:]
                per = 6
            ml = []
            for nf in range(6):
                for mf in range(2):
                    acc = vr(ACC + (mf * 6 + nf) * 4, 4)
                    a = vr(AF + (p * 2 + mf) * 4, 4)
                    b = vr(BF + p * 24 + nf * 4, 4)
                    c = '0' if ks == 0 else acc
                    if sw[nf]:
                        ml.append('v_mfma_f32_16x16x32_bf16 %s, %s, %s, %s' % (acc, b, a, c))
                    else:
                        ml.append('v_mfma_f32_16x16x32_bf16 %s, %s, %s, %s' % (acc, a, b, c))
            if ks < 15:
                ml = stats(ks) + ml
            if ks == 14:
                ml = ml + ['s_waitcnt lgkmcnt(12)'] + stats(15)
            for m in ml:
                k(m)
                for _ in range(per):
                    if rd:
                        k(rd.pop(0))
            for o in rd:
                k(o)
        k.ts(6 if TS2 else 5)
        if not all(sw):
            for mf in range(2):
                k('ds_write_b32 v%d, v%d offset:%d' % (vSw, vM + mf, mf * 128))
                k('ds_write_b32 v%d, v%d offset:%d' % (vSw, vR + mf, mf * 128 + 64))
            k('s_waitcnt lgkmcnt(0)')
            for mf in range(2):
                for q in range(2):
                    k('ds_read_b128 %s, v%d offset:%d' % (vr(M4 + (mf * 2 + q) * 4, 4), vSr, mf * 128 + q * 64))
        k('s_waitcnt lgkmcnt(0)')
        for nf in range(6):
            if sw[nf]:
                for h in range(2):
                    k('v_pk_add_f32 %s, %s, %s' % (vr(CS + nf * 4 + 2 * h, 2), vr(CS + nf * 4 + 2 * h, 2), vr(BF + nf * 4 + 2 * h, 2)))
            else:
                k('v_add_f32 v%d, v%d, v%d' % (CS + nf * 4, CS + nf * 4, BF + nf * 4))
        for nf in range(6):
            k('s_add_u32 s29, s28, %d' % (nf * 65536))
            for mf in range(2):
                G = ACC + (mf * 6 + nf) * 4
                t = T + mf * 2
                for h in range(2):
                    if sw[nf]:
                        k('v_pk_fma_f32 %s, %s, %s, %s op_sel:[0,%d,0] op_sel_hi:[1,%d,1] neg_lo:[0,1,0] neg_hi:[0,1,0]' % (
                            vr(G + 2 * h, 2), vr(CS + nf * 4 + 2 * h, 2), vr(vM, 2), vr(G + 2 * h, 2), mf, mf))
                    else:
                        k('v_pk_fma_f32 %s, %s, %s, %s op_sel:[0,0,0] op_sel_hi:[1,0,1] neg_lo:[0,1,0] neg_hi:[0,1,0]' % (
                            vr(G + 2 * h, 2), vr(M4 + mf * 8 + 2 * h, 2), vr(CS + nf * 4, 2), vr(G + 2 * h, 2)))
                for h in range(2):
                    if sw[nf]:
                        k('v_pk_mul_f32 %s, %s, %s op_sel:[0,%d] op_sel_hi:[1,%d]' % (
                            vr(G + 2 * h, 2), vr(G + 2 * h, 2), vr(vR, 2), mf, mf))
                    else:
                        k('v_pk_mul_f32 %s, %s, %s' % (vr(G + 2 * h, 2), vr(G + 2 * h, 2), vr(M4 + mf * 8 + 4 + 2 * h, 2)))
                k('v_cvt_pk_bf16_f32 v%d, v%d, v%d' % (G, G, G + 1))
                k('v_cvt_pk_bf16_f32 v%d, v%d, v%d' % (G + 1, G + 2, G + 3))
                k('buffer_store_dwordx2 %s, v%d, s[32:35], s29 offen offset:%d' % (
                    vr(G, 2), vSS if sw[nf] else vSV, mf * 512))
        if not TS2: k.ts(6)
        k.prof_end(32, 0, 22, 9)
        k('s_endpgm')

    k('s_cmp_eq_u32 s21, 10')
    k('s_cbranch_scc1 J_K1_mix')
    k('s_cmp_gt_u32 s21, 10')
    k('s_cbranch_scc1 J_K1_v')
    variant('qk', [1] * 6)
    variant('mix', [1, 1, 1, 1, 0, 0])
    variant('v', [0] * 6)
    k.label('K1_done')
    k('s_endpgm')
    return k, dict(vgpr=212, agpr=0, lds=SX + 1024, grid=256, block=512)
```

```python
from asmlib import Kernel

WS_Q = 0x000000
WS_K = 0x200000
WS_VT = 0x400000
WS_O = 0x600000
WS_H = 0x800000
WS_HH = 0xA00000
WS_HF = 0x1200000
WS_CS = 0x1400000
WS_ST = 0x1410000
WS_CS2 = 0x1440000
WS_FL = 0x1500000
WS_SIZE = 0x10000000


def vr(b, n):
    return 'v[%d:%d]' % (b, b + n - 1) if n > 1 else 'v%d' % b


def ar(b, n):
    return 'a[%d:%d]' % (b, b + n - 1) if n > 1 else 'a%d' % b


def sr(b, n):
    return 's[%d:%d]' % (b, b + n - 1) if n > 1 else 's%d' % b


def make_srd(k, dst, lo, hi, size):
    k('s_mov_b32 s%d, s%d' % (dst, lo))
    k('s_mov_b32 s%d, s%d' % (dst + 1, hi))
    k('s_mov_b32 s%d, 0x%x' % (dst + 2, size))
    k('s_mov_b32 s%d, 0x00020000' % (dst + 3))


def ln_stats(k, AF, ST, ONES, T, nload_after, NKS=16, pre=None):
    for i in range(4):
        k('v_mov_b32 v%d, 0x3f803f80' % (ONES + i))
    for ks in range(NKS):
        k('s_waitcnt vmcnt(%d)' % (nload_after + 2 * (NKS - 1 - ks)))
        for mf in range(2):
            a = vr(AF + (ks * 2 + mf) * 4, 4)
            c0 = '0' if ks == 0 else vr(ST + mf * 4, 4)
            c1 = '0' if ks == 0 else vr(ST + 8 + mf * 4, 4)
            k('v_mfma_f32_16x16x32_bf16 %s, %s, %s, %s' % (vr(ST + mf * 4, 4), vr(ONES, 4), a, c0))
            k('v_mfma_f32_16x16x32_bf16 %s, %s, %s, %s' % (vr(ST + 8 + mf * 4, 4), a, a, c1))
    ln_stats_fin(k, ST, T)


def ln_stats_fin(k, ST, T):
    for r in range(4):
        k('s_mov_b32 s%d, 0x%x' % (40 + 2 * r, (1 << r) | (1 << (20 + r))))
        k('s_mov_b32 s%d, 0x%x' % (41 + 2 * r, (1 << (8 + r)) | (1 << (28 + r))))
    res = []
    for mf in range(2):
        t, t2, m, v = T, T + 1, T + 2 + mf * 2, T + 3 + mf * 2
        k('v_mov_b32 v%d, 0' % t)
        for r in range(4):
            k('v_cndmask_b32_e64 v%d, v%d, v%d, s[%d:%d]' % (t, t, ST + 8 + mf * 4 + r, 40 + 2 * r, 41 + 2 * r))
        k('v_mov_b32 v%d, v%d' % (t2, t))
        k('v_permlane32_swap_b32 v%d, v%d' % (t, t2))
        k('v_add_f32 v%d, v%d, v%d' % (t, t, t2))
        k('v_mov_b32 v%d, v%d' % (t2, t))
        k('v_permlane16_swap_b32 v%d, v%d' % (t, t2))
        k('v_add_f32 v%d, v%d, v%d' % (t, t, t2))
        k('v_mul_f32 v%d, 0x3b000000, v%d' % (m, ST + mf * 4))
        k('v_mul_f32 v%d, 0x3b000000, v%d' % (v, t))
        k('v_fma_f32 v%d, -v%d, v%d, v%d' % (v, m, m, v))
        k('v_max_f32 v%d, 0, v%d' % (v, v))
        k('v_cvt_pk_bf16_f32 v%d, v%d, v%d' % (t, m, v))
        k('v_lshlrev_b32 v%d, 16, v%d' % (m, t))
        k('v_and_b32 v%d, 0xffff0000, v%d' % (v, t))
        k('v_add_f32 v%d, 0x3727c5ac, v%d' % (v, v))
        k('v_cvt_pk_bf16_f32 v%d, v%d, v%d' % (t, v, v))
        k('v_lshlrev_b32 v%d, 16, v%d' % (v, t))
        k('v_sqrt_f32 v%d, v%d' % (v, v))
        k('v_cvt_pk_bf16_f32 v%d, v%d, v%d' % (t, v, v))
        k('v_lshlrev_b32 v%d, 16, v%d' % (v, t))
        k('v_rcp_f32 v%d, v%d' % (v, v))
        k('v_mul_f32 v%d, v%d, v%d' % (m, m, v))
    for mf in range(2):
        k('v_mov_b32 v%d, v%d' % (ST + mf, T + 3 + mf * 2))
        k('v_mov_b32 v%d, v%d' % (ST + 2 + mf, T + 2 + mf * 2))


def norm_ops(AF, ST, T, ks):
    ops = []
    for mf in range(2):
        for r in range(4):
            a = AF + (ks * 2 + mf) * 4 + r
            t0, t1 = T + (r & 1) * 2, T + (r & 1) * 2 + 1
            ops.append('v_lshlrev_b32 v%d, 16, v%d' % (t0, a))
            ops.append('v_and_b32 v%d, 0xffff0000, v%d' % (t1, a))
            ops.append('v_fma_f32 v%d, v%d, v%d, -v%d' % (t0, t0, ST + mf, ST + 2 + mf))
            ops.append('v_fma_f32 v%d, v%d, v%d, -v%d' % (t1, t1, ST + mf, ST + 2 + mf))
            ops.append('v_cvt_pk_bf16_f32 v%d, v%d, v%d' % (a, t0, t1))
    return ops


PF_SZ = {16: 0x80000, 32: 0x1c0000, 40: 0x1c0000, 48: 0x1c0000}


def pf_setup(k, sb, kargs):
    for i, ka in enumerate(kargs):
        k('s_load_dwordx2 s[%d:%d], s[0:1], %d' % (sb + 2 * i, sb + 2 * i + 1, ka))


def pf_sel(k, sW, sb, kargs):
    d = sb + 8
    k('s_mov_b32 s%d, s%d' % (d, sb))
    k('s_mov_b32 s%d, s%d' % (d + 1, sb + 1))
    k('s_mov_b32 s%d, 0x%x' % (d + 2, PF_SZ[kargs[0]]))
    k('s_mov_b32 s%d, 0x00020000' % (d + 3))
    k('s_mov_b32 s%d, s%d' % (d + 4, sW))
    lim = 0
    for i in range(1, len(kargs)):
        lim += PF_SZ[kargs[i - 1]] >> 13
        src = sb + 2 * i
        k('s_sub_u32 s%d, s%d, %d' % (d + 5, sW, lim))
        k('s_cmp_ge_u32 s%d, %d' % (sW, lim))
        k('s_cselect_b32 s%d, s%d, s%d' % (d, src, d))
        k('s_cselect_b32 s%d, s%d, s%d' % (d + 1, src + 1, d + 1))
        k('s_cselect_b32 s%d, 0x%x, s%d' % (d + 2, PF_SZ[kargs[i]], d + 2))
        k('s_cselect_b32 s%d, s%d, s%d' % (d + 4, d + 5, d + 4))
    k('s_lshl_b32 s%d, s%d, 13' % (d + 4, d + 4))


import os
PF1 = [int(x) for x in os.environ.get('PF1', '16,32').split(',') if x]
PF2 = [int(x) for x in os.environ.get('PF2', '40,48').split(',') if x]


def stats_fin2(k, ST, T, vM, vR):
    for r in range(4):
        k('s_mov_b32 s%d, 0x%x' % (40 + 2 * r, (1 << r) | (1 << (20 + r))))
        k('s_mov_b32 s%d, 0x%x' % (41 + 2 * r, (1 << (8 + r)) | (1 << (28 + r))))
    for mf in range(2):
        t, t2, m, v = T + mf * 2, T + mf * 2 + 1, vM + mf, vR + mf
        k('v_mov_b32 v%d, 0' % t)
        for r in range(4):
            k('v_cndmask_b32_e64 v%d, v%d, v%d, s[%d:%d]' % (t, t, ST + 8 + mf * 4 + r, 40 + 2 * r, 41 + 2 * r))
        k('v_mov_b32 v%d, v%d' % (t2, t))
        k('v_permlane32_swap_b32 v%d, v%d' % (t, t2))
        k('v_add_f32 v%d, v%d, v%d' % (t, t, t2))
        k('v_mov_b32 v%d, v%d' % (t2, t))
        k('v_permlane16_swap_b32 v%d, v%d' % (t, t2))
        k('v_add_f32 v%d, v%d, v%d' % (t, t, t2))
        k('v_mul_f32 v%d, 0x3b000000, v%d' % (m, ST + mf * 4))
        k('v_mul_f32 v%d, 0x3b000000, v%d' % (v, t))
        k('v_fma_f32 v%d, -v%d, v%d, v%d' % (v, m, m, v))
        k('v_max_f32 v%d, 0, v%d' % (v, v))
        k('v_cvt_pk_bf16_f32 v%d, v%d, v%d' % (t, m, v))
        k('v_lshlrev_b32 v%d, 16, v%d' % (m, t))
        k('v_and_b32 v%d, 0xffff0000, v%d' % (v, t))
        k('v_add_f32 v%d, 0x3727c5ac, v%d' % (v, v))
        k('v_cvt_pk_bf16_f32 v%d, v%d, v%d' % (t, v, v))
        k('v_lshlrev_b32 v%d, 16, v%d' % (v, t))
        k('v_sqrt_f32 v%d, v%d' % (v, v))
        k('v_cvt_pk_bf16_f32 v%d, v%d, v%d' % (t, v, v))
        k('v_lshlrev_b32 v%d, 16, v%d' % (v, t))
        k('v_rcp_f32 v%d, v%d' % (v, v))


def gen_k1():
    k = Kernel('k1')
    SLOT = 28672
    NSL = 5
    AOFF = 12288
    CX = NSL * SLOT
    SX = CX + 1024
    R0 = int(os.environ.get('K1R0', '3'))
    R1 = int(os.environ.get('K1R1', '1'))
    PFS = int(os.environ.get('K1PFS', '5'))
    TS2 = int(os.environ.get('K1TS', '0'))
    NOC = int(os.environ.get('K1NOC', '0'))
    NOCS = int(os.environ.get('K1NOCS', '0'))
    vSS, vSV = 8, 9
    vRd, vRa = 10, 16
    ONES = 22
    ST = 26
    T = 42
    vM, vR = 50, 52
    AF = 54
    BF = 70
    ACC = 118
    CS = 166
    M4 = 190
    vCa, vCb, vSw, vSr = 206, 207, 208, 209
    k('s_cmp_ge_u32 s2, 256')
    k('s_cbranch_scc1 K1_done')
    k.ts(0, True)
    k.ts(1)
    k('s_load_dwordx4 s[4:7], s[0:1], 0')
    k('s_load_dwordx2 s[8:9], s[0:1], 72')
    FUSED = int(os.environ.get('FUSED', '1'))
    CSS = int(os.environ.get('K1CS', '4'))
    W2S = int(os.environ.get('K1W2', '5'))
    if FUSED:
        k('s_load_dwordx2 s[48:49], s[0:1], 16')
        k('s_load_dwordx2 s[50:51], s[0:1], 48')
        k('s_load_dwordx4 s[52:55], s[0:1], 32')
    else:
        pf_setup(k, 48, PF1)
    k('''s_and_b32 s10, s2, 7
    s_lshr_b32 s11, s2, 3
    s_and_b32 s20, s10, 3
    s_lshl_b32 s20, s20, 2
    s_and_b32 s21, s11, 3
    s_add_u32 s20, s20, s21
    s_lshr_b32 s21, s10, 2
    s_lshl_b32 s21, s21, 3
    s_lshr_b32 s22, s11, 2
    s_add_u32 s21, s21, s22
    v_lshrrev_b32 v1, 6, v0
    v_readfirstlane_b32 s22, v1
    v_and_b32 v1, 63, v0
    v_and_b32 v2, 15, v1
    v_lshrrev_b32 v3, 4, v1''')
    k('''v_lshlrev_b32 v4, 3, v3
    v_lshrrev_b32 v5, 2, v2
    v_add_u32 v4, v4, v5
    v_lshlrev_b32 v4, 6, v4
    v_and_b32 v5, 3, v2
    v_lshl_add_u32 v7, v5, 3, v4
    v_and_b32 v6, 1, v3''')
    for i in range(4):
        k('v_mov_b32 v%d, 0x3f803f80' % (ONES + i))
    ROT = int(os.environ.get('K1ROT', '1'))
    if ROT:
        k('s_mul_i32 s47, s10, %d' % ROT)
    else:
        k('s_mov_b32 s47, 0')
    k('s_cmp_lt_u32 s22, 4')
    k('s_cbranch_scc1 J_K1_comp')
    vA, vBd, vPf = 8, 9, 30
    vLr = 10
    LB = 32
    LC = 44
    k('s_and_b32 s22, s22, 3')
    k('''v_lshrrev_b32 v4, 3, v1
    v_and_b32 v5, 7, v1
    v_xor_b32 v5, v5, v4
    v_lshlrev_b32 v4, 10, v4
    v_lshl_add_u32 v%d, v5, 4, v4
    s_lshl_b32 s24, s20, 17
    s_lshl_b32 s23, s22, 15
    s_add_u32 s24, s24, s23
    s_add_u32 s25, s24, 8192
    s_add_u32 s26, s24, 16384
    s_add_u32 s27, s24, 24576
    s_lshl_b32 s28, s22, 12
    s_add_u32 s28, s28, %d''' % (vA, AOFF))
    k('''v_lshrrev_b32 v4, 2, v1
    v_mul_u32_u24 v4, 0xc00, v4
    v_lshrrev_b32 v5, 5, v1
    v_lshlrev_b32 v5, 1, v5
    v_and_b32 v%d, 3, v1
    v_xor_b32 v5, v5, v%d
    v_lshl_add_u32 v%d, v5, 4, v4''' % (vBd, vBd, vBd))
    k('s_mul_i32 s29, s22, 3')
    k('s_mul_i32 s23, s21, 192')
    for t in range(3):
        k('''s_add_u32 s36, s29, %d
        s_and_b32 s37, s36, 1
        s_lshr_b32 s36, s36, 1
        s_mul_i32 s37, s37, %d
        s_cmp_ge_u32 s36, 3
        s_cselect_b32 s38, %d, 0
        s_lshl_b32 s36, s36, 6
        s_add_u32 s37, s37, s38
        s_add_u32 s37, s37, s36
        s_add_u32 s%d, s37, s23''' % (t, 16 * 3072, 32 * 3072 - 192, 44 + t))
    k('s_mul_i32 s29, s22, 3072')
    k('s_and_b32 s36, s22, 1')
    k('s_mul_i32 s36, s36, 3')
    k('s_lshr_b32 s37, s22, 1')
    k('s_mul_i32 s37, s37, 3')
    for t in range(3):
        k('''s_add_u32 s38, s36, %d
        s_and_b32 s39, s38, 1
        s_lshr_b32 s38, s38, 1
        s_add_u32 s38, s38, s37
        s_lshl_b32 s38, s38, 11
        v_xor_b32 v4, s39, v6
        v_lshl_add_u32 v4, v4, 5, v7
        v_add_u32 v%d, s38, v4
        v_add_u32 v%d, %d, v%d
        v_add_u32 v%d, %d, v%d''' % (t, vLr + t, vLr + 3 + t, 2 * SLOT, vLr + t, vLr + 6 + t, 4 * SLOT, vLr + t))
    k('''s_lshl_b32 s38, s37, 7
    s_lshl_b32 s39, s36, 6
    s_add_u32 s38, s38, s39
    s_add_u32 s38, s38, %d
    v_lshlrev_b32 v4, 2, v2
    v_add_u32 v20, s38, v4''' % CX)
    k('s_waitcnt lgkmcnt(0)')
    make_srd(k, 12, 4, 5, 2048 * 512 * 2)
    make_srd(k, 16, 6, 7, 512 * 1536 * 2)
    CD = 64
    CA = 80
    if FUSED:
        make_srd(k, 32, 8, 9, WS_SIZE)
        k('''s_lshl_b32 s30, s2, 2
        s_add_u32 s30, s30, s22
        s_lshl_b32 s36, s30, 7
        s_add_u32 s36, s36, 0x%x
        v_lshlrev_b32 v4, 1, v1
        v_mov_b32 v5, 0
        buffer_store_short v5, v4, s[32:35], s36 offen
        s_lshr_b32 s36, s30, 4
        s_and_b32 s37, s30, 15
        s_cmp_ge_u32 s36, 28
        s_cselect_b32 s56, s54, s52
        s_cselect_b32 s57, s55, s53
        s_cselect_b32 s38, 28, 0
        s_cselect_b32 s39, 7168, 0
        s_sub_u32 s36, s36, s38
        s_mov_b32 s58, 0x1c0000
        s_mov_b32 s59, 0x00020000
        s_mul_i32 s60, s37, %d
        s_lshl_b32 s38, s36, 7
        s_add_u32 s60, s60, s38
        s_mul_i32 s61, s37, 14336
        s_add_u32 s61, s61, s39
        s_lshl_b32 s38, s36, 8
        s_add_u32 s61, s61, s38
        s_add_u32 s61, s61, 0x%x
        s_mov_b32 s62, %d
        v_lshrrev_b32 v4, 3, v1
        v_mul_u32_u24 v4, 0xe00, v4
        v_and_b32 v5, 7, v1
        v_lshl_add_u32 v%d, v5, 4, v4
        v_lshlrev_b32 v%d, 5, v5
        v_min_u32 v4, 13, v1
        v_lshlrev_b32 v%d, 7, v4
        s_mul_i32 s63, s30, 1792
        s_mov_b32 s52, s50
        s_mov_b32 s53, s51
        s_mov_b32 s54, 0x1c0000
        s_mov_b32 s55, 0x00020000
        s_cmp_lt_u32 s30, 896
        s_cbranch_scc1 K1_cs1
        s_mov_b32 s56, s48
        s_mov_b32 s57, s49
        s_mov_b32 s58, 0x80000
        s_sub_u32 s60, s30, 896
        s_lshl_b32 s60, s60, 12
        s_mov_b32 s62, 1024
        v_lshlrev_b32 v%d, 4, v1''' % (WS_FL, 32 * 3584, WS_CS2, 8 * 3584, vPf, vPf + 1, vPf - 1, vPf))
        k.label('K1_cs1')
    else:
        k('s_lshl_b32 s30, s22, 8')
        k('s_add_u32 s30, s30, s2')
        if PF1:
            pf_sel(k, 30, 48, PF1)
        k('v_lshlrev_b32 v%d, 7, v1' % vPf)

    cnt = [1 if FUSED else 0]
    last = {}

    def stage(s):
        sl = (s % NSL) * SLOT
        k('s_add_u32 s36, s47, %d' % s)
        k('s_and_b32 s36, s36, 7')
        k('s_lshl_b32 s37, s36, 7')
        k('s_mul_i32 s38, s36, %d' % (64 * 3072))
        for t in range(4):
            k('s_add_u32 s31, s%d, s37' % (24 + t))
            k('s_add_u32 m0, s28, %d' % (sl + t * 1024))
            k('buffer_load_dwordx4 v%d, s[12:15], s31 offen lds' % vA)
        for t in range(3):
            k('s_add_u32 s31, s%d, s38' % (44 + t))
            k('s_add_u32 m0, s29, %d' % (sl + t * 1024))
            k('buffer_load_dwordx4 v%d, s[16:19], s31 offen lds' % vBd)
        cnt[0] += 7
        last[s] = cnt[0]

    issued = 0
    LS = int(os.environ.get('K1LS', '0'))
    for s in range(R0):
        if s and LS:
            k('s_sleep %d' % LS)
        stage(s)
        issued += 1
    for s in range(8):
        k('s_waitcnt vmcnt(%d)' % (cnt[0] - last[s]))
        k('s_barrier')
        slot = s % NSL
        for t in range(3):
            for kgl in range(2):
                if NOCS: continue
                k('ds_read_b64_tr_b16 %s, v%d offset:%d' % (
                    vr(LB + t * 4 + kgl * 2, 2), vLr + (slot // 2) * 3 + t, (slot % 2) * SLOT + kgl * 256))
        for _ in range(R1):
            if issued < 8 and issued <= s + NSL - 1:
                stage(issued)
                issued += 1
        if s == PFS and PF1 and not FUSED:
            k('buffer_load_dword v%d, v%d, s[56:59], s60 offen' % (vPf + 1, vPf))
            cnt[0] += 1
        if FUSED and s == CSS:
            for i in range(4):
                k('buffer_load_dwordx4 %s, v%d, s[56:59], s60 offen' % (vr(CD + 4 * i, 4), vPf))
                if i < 3:
                    k('s_add_u32 s60, s60, s62')
            cnt[0] += 4
        if FUSED and s == W2S:
            k('buffer_load_dword v%d, v%d, s[52:55], s63 offen' % (CA + 15, vPf - 1))
            cnt[0] += 1
        k('s_waitcnt lgkmcnt(0)')
        for t in range(3):
            k('v_mfma_f32_16x16x32_bf16 %s, %s, %s, %s' % (
                vr(LC + t * 4, 4), vr(ONES, 4), vr(LB + t * 4, 4), '0' if s == 0 else vr(LC + t * 4, 4)))
    for t in range(3):
        k('ds_write_b32 v20, v%d offset:%d' % (LC + t * 4, t * 64))
    k('s_waitcnt lgkmcnt(0)')
    k('s_barrier')
    if FUSED:
        k('s_cmp_ge_u32 s30, 896')
        k('s_cbranch_scc1 K1_done')
        k('s_mov_b32 s36, 0x00003f80')
        k('s_mov_b32 s37, 0x3f800000')
        k('s_waitcnt vmcnt(0)')
        for i in range(4):
            for r in range(4):
                for h in range(2):
                    a = CA + 2 * r + h
                    k('v_dot2_f32_bf16 v%d, v%d, s%d, %s' % (a, CD + 4 * i + r, 36 + h, 'v%d' % a if i else '0'))
        for r in range(8):
            k('v_add_f32_dpp v%d, v%d, v%d row_ror:8 row_mask:0xf bank_mask:0xf' % (CA + r, CA + r, CA + r))
        for pl in ('v_permlane16_swap_b32', 'v_permlane32_swap_b32'):
            for r in range(8):
                k('v_mov_b32 v%d, v%d' % (CA + 8 + r, CA + r))
            for r in range(8):
                k('%s v%d, v%d' % (pl, CA + r, CA + 8 + r))
            for r in range(8):
                k('v_add_f32 v%d, v%d, v%d' % (CA + r, CA + r, CA + 8 + r))
        k('s_mov_b64 exec, 0xff')
        for h in range(2):
            k('buffer_store_dwordx4 %s, v%d, s[32:35], s61 offen offset:%d' % (vr(CA + 4 * h, 4), vPf + 1, 16 * h))
    k('s_endpgm')

    k.label('J_K1_comp')
    k('''v_lshl_add_u32 v%d, v6, 5, v7
    v_xor_b32 v5, 1, v6
    v_lshl_add_u32 v%d, v5, 5, v7''' % (vRd, vRd + 1))
    k('''s_lshl_b32 s23, s22, 12
    s_add_u32 s23, s23, %d
    v_and_b32 v4, 7, v2
    v_xor_b32 v4, v4, v3
    v_lshlrev_b32 v4, 4, v4
    v_lshl_add_u32 v4, v2, 7, v4
    v_add_u32 v%d, s23, v4
    v_xor_b32 v4, 64, v4
    v_add_u32 v%d, s23, v4''' % (AOFF, vRa, vRa + 1))
    for rg in (1, 2):
        for p in range(2):
            k('v_add_u32 v%d, %d, v%d' % (vRd + rg * 2 + p, rg * 2 * SLOT, vRd + p))
            k('v_add_u32 v%d, %d, v%d' % (vRa + rg * 2 + p, rg * 2 * SLOT, vRa + p))
    k('''s_lshl_b32 s25, s20, 12
    s_lshl_b32 s24, s22, 10
    s_add_u32 s25, s25, s24
    v_lshlrev_b32 v4, 5, v2
    v_add_u32 v4, s25, v4
    v_lshl_add_u32 v%d, v3, 3, v4
    v_lshlrev_b32 v5, 1, v6
    v_lshrrev_b32 v6, 1, v3
    v_or_b32 v5, v5, v6
    v_lshl_add_u32 v%d, v5, 3, v4''' % (vSS, vSV))
    k('s_mul_i32 s28, s21, 0x60000')
    k('''v_lshlrev_b32 v4, 4, v3
    v_lshlrev_b32 v5, 2, v2
    v_add_u32 v%d, %d, v4
    v_add_u32 v%d, %d, v5
    s_lshl_b32 s24, s22, 8
    s_add_u32 s24, s24, %d
    v_add_u32 v%d, s24, v5
    v_add_u32 v%d, s24, v4''' % (vCa, CX, vCb, CX, SX, vSw, vSr))
    k('''s_lshl_b32 s24, s11, 2
    s_add_u32 s24, s24, s22
    s_and_b32 s25, s10, 3
    s_lshl_b32 s25, s25, 19
    s_and_b32 s26, s24, 15
    s_lshl_b32 s26, s26, 15
    s_add_u32 s25, s25, s26
    s_lshr_b32 s30, s24, 4
    s_add_u32 s27, s30, s47
    s_and_b32 s27, s27, 7
    s_lshl_b32 s26, s27, 7
    s_add_u32 s25, s25, s26
    s_lshl_b32 s27, s27, 4
    s_and_b32 s26, s24, 15
    s_add_u32 s26, s26, s27
    s_mul_i32 s26, s26, 12288
    s_lshr_b32 s27, s10, 2
    s_mul_i32 s27, s27, 1536
    s_add_u32 s26, s26, s27
    v_and_b32 v4, 31, v1
    v_lshlrev_b32 v4, 10, v4
    v_min_u32 v5, 11, v2
    v_lshlrev_b32 v5, 7, v5
    v_mul_u32_u24 v6, 0xc00, v3
    v_add_u32 v5, v5, v6''')
    k('s_waitcnt lgkmcnt(0)')
    make_srd(k, 12, 4, 5, 2048 * 512 * 2)
    make_srd(k, 16, 6, 7, 512 * 1536 * 2)
    if int(os.environ.get('K1L2', '1')):
        S0 = int(os.environ.get('K1S0', '3'))
        D = int(os.environ.get('K1D', '6'))
        k('s_cmp_lt_u32 s30, %d' % S0)
        k('s_cbranch_scc1 K1_nopf')
        if D:
            k.label('K1_dl')
            k('s_cmp_le_u32 s30, %d' % S0)
            k('s_cbranch_scc1 K1_dx')
            k('s_sleep %d' % D)
            k('s_sub_u32 s30, s30, 1')
            k('s_branch K1_dl')
            k.label('K1_dx')
        if int(os.environ.get('K1L2', '1')) == 2:
            k('buffer_load_dword v210, v6, s[16:19], s26 offen')
        else:
            k('buffer_load_dword v210, v5, s[16:19], s26 offen')
            k('buffer_load_dword v211, v4, s[12:15], s25 offen')
        k.label('K1_nopf')
    make_srd(k, 32, 8, 9, WS_SIZE)
    if not TS2: k.ts(2)

    def reads(ks):
        p = ks & 1
        slot = (ks >> 1) % NSL
        out = []
        for mf in range(2):
            out.append('ds_read_b128 %s, v%d offset:%d' % (
                vr(AF + (p * 2 + mf) * 4, 4), vRa + (slot // 2) * 2 + p, (slot % 2) * SLOT + mf * 2048))
        for nf in range(6):
            for kgl in range(2):
                out.append('ds_read_b64_tr_b16 %s, v%d offset:%d' % (
                    vr(BF + p * 24 + nf * 4 + kgl * 2, 2), vRd + (slot // 2) * 2 + (nf & 1),
                    (slot % 2) * SLOT + (p * 3 + (nf >> 1)) * 2048 + kgl * 256))
        return out

    class Lst:
        def __init__(self):
            self.l = []

        def __call__(self, x):
            self.l.append(x)

    def variant(name, sw):
        k.label('J_K1_%s' % name)
        k('s_barrier')
        k.ts(2 if TS2 else 3)
        for o in reads(0):
            k(o)

        def stats(ks):
            p = ks & 1
            st = []
            for mf in range(2):
                a = vr(AF + (p * 2 + mf) * 4, 4)
                c0 = '0' if ks == 0 else vr(ST + mf * 4, 4)
                c1 = '0' if ks == 0 else vr(ST + 8 + mf * 4, 4)
                st.append('v_mfma_f32_16x16x32_bf16 %s, %s, %s, %s' % (vr(ST + mf * 4, 4), vr(ONES, 4), a, c0))
                st.append('v_mfma_f32_16x16x32_bf16 %s, %s, %s, %s' % (vr(ST + 8 + mf * 4, 4), a, a, c1))
            return st

        for ks in range(16):
            p = ks & 1
            nxt = ks + 1 < 16
            k('s_waitcnt lgkmcnt(0)')
            if ks == 0 and not TS2:
                k.ts(4)
            if p == 1:
                k('s_barrier')
                if TS2 and ks in (3, 7, 11):
                    k.ts(3 + ks // 4)
            per = 2
            if nxt:
                rd = reads(ks + 1)
            else:
                rd = []
                for nf in range(6):
                    for par in range(2):
                        d = (CS if par == 0 else BF)
                        if sw[nf]:
                            rd.append('ds_read_b128 %s, v%d offset:%d' % (vr(d + nf * 4, 4), vCa, par * 384 + nf * 64))
                        else:
                            rd.append('ds_read_b32 v%d, v%d offset:%d' % (d + nf * 4, vCb, par * 384 + nf * 64))
                L = Lst()
                stats_fin2(L, ST, T, vM, vR)
                n = (len(L.l) - 8) // 2
                fin = L.l[:8]
                for i in range(n):
                    fin += [L.l[8 + i], L.l[8 + n + i]]
                rd = fin[:8] + rd[:4] + fin[8:20] + rd[4:8] + fin[20:32] + rd[8:] + fin[32:]
                per = 6
            ml = []
            for nf in range(6):
                for mf in range(2):
                    acc = vr(ACC + (mf * 6 + nf) * 4, 4)
                    a = vr(AF + (p * 2 + mf) * 4, 4)
                    b = vr(BF + p * 24 + nf * 4, 4)
                    c = '0' if ks == 0 else acc
                    if sw[nf]:
                        ml.append('v_mfma_f32_16x16x32_bf16 %s, %s, %s, %s' % (acc, b, a, c))
                    else:
                        ml.append('v_mfma_f32_16x16x32_bf16 %s, %s, %s, %s' % (acc, a, b, c))
            if ks < 15:
                ml = stats(ks) + ml
            if ks == 14:
                ml = ml + ['s_waitcnt lgkmcnt(12)'] + stats(15)
            for m in ml:
                k(m)
                for _ in range(per):
                    if rd:
                        k(rd.pop(0))
            for o in rd:
                k(o)
        k.ts(6 if TS2 else 5)
        if not all(sw):
            for mf in range(2):
                k('ds_write_b32 v%d, v%d offset:%d' % (vSw, vM + mf, mf * 128))
                k('ds_write_b32 v%d, v%d offset:%d' % (vSw, vR + mf, mf * 128 + 64))
            k('s_waitcnt lgkmcnt(0)')
            for mf in range(2):
                for q in range(2):
                    k('ds_read_b128 %s, v%d offset:%d' % (vr(M4 + (mf * 2 + q) * 4, 4), vSr, mf * 128 + q * 64))
        k('s_waitcnt lgkmcnt(0)')
        for nf in range(6):
            if sw[nf]:
                for h in range(2):
                    k('v_pk_add_f32 %s, %s, %s' % (vr(CS + nf * 4 + 2 * h, 2), vr(CS + nf * 4 + 2 * h, 2), vr(BF + nf * 4 + 2 * h, 2)))
            else:
                k('v_add_f32 v%d, v%d, v%d' % (CS + nf * 4, CS + nf * 4, BF + nf * 4))
        for nf in range(6):
            k('s_add_u32 s29, s28, %d' % (nf * 65536))
            for mf in range(2):
                G = ACC + (mf * 6 + nf) * 4
                t = T + mf * 2
                for h in range(2):
                    if sw[nf]:
                        k('v_pk_fma_f32 %s, %s, %s, %s op_sel:[0,%d,0] op_sel_hi:[1,%d,1] neg_lo:[0,1,0] neg_hi:[0,1,0]' % (
                            vr(G + 2 * h, 2), vr(CS + nf * 4 + 2 * h, 2), vr(vM, 2), vr(G + 2 * h, 2), mf, mf))
                    else:
                        k('v_pk_fma_f32 %s, %s, %s, %s op_sel:[0,0,0] op_sel_hi:[1,0,1] neg_lo:[0,1,0] neg_hi:[0,1,0]' % (
                            vr(G + 2 * h, 2), vr(M4 + mf * 8 + 2 * h, 2), vr(CS + nf * 4, 2), vr(G + 2 * h, 2)))
                for h in range(2):
                    if sw[nf]:
                        k('v_pk_mul_f32 %s, %s, %s op_sel:[0,%d] op_sel_hi:[1,%d]' % (
                            vr(G + 2 * h, 2), vr(G + 2 * h, 2), vr(vR, 2), mf, mf))
                    else:
                        k('v_pk_mul_f32 %s, %s, %s' % (vr(G + 2 * h, 2), vr(G + 2 * h, 2), vr(M4 + mf * 8 + 4 + 2 * h, 2)))
                k('v_cvt_pk_bf16_f32 v%d, v%d, v%d' % (G, G, G + 1))
                k('v_cvt_pk_bf16_f32 v%d, v%d, v%d' % (G + 1, G + 2, G + 3))
                k('buffer_store_dwordx2 %s, v%d, s[32:35], s29 offen offset:%d' % (
                    vr(G, 2), vSS if sw[nf] else vSV, mf * 512))
        if not TS2: k.ts(6)
        k.prof_end(32, 0, 22, 9)
        k('s_endpgm')

    k('s_cmp_eq_u32 s21, 10')
    k('s_cbranch_scc1 J_K1_mix')
    k('s_cmp_gt_u32 s21, 10')
    k('s_cbranch_scc1 J_K1_v')
    variant('qk', [1] * 6)
    variant('mix', [1, 1, 1, 1, 0, 0])
    variant('v', [0] * 6)
    k.label('K1_done')
    k('s_endpgm')
    return k, dict(vgpr=212, agpr=0, lds=SX + 1024, grid=256, block=512)
```

```python
from asmlib import Kernel
from k1 import vr, ar, sr, make_srd, WS_Q, WS_K, WS_VT, WS_O, WS_SIZE, pf_setup, pf_sel, PF2
import struct, os
L2PF = int(os.environ.get('L2PF', '1'))


def f32hex(x):
    return '0x%08x' % struct.unpack('<I', struct.pack('<f', x))[0]


def gen_k2():
    k = Kernel('k2')
    S = 12
    O = 156
    vQ, vK, vV, vD, vSt, vNeg = 4, 5, 6, 7, 8, 9
    t0, t1 = 10, 11
    vPf = 172
    npf = 1 if PF2 else 0
    aK = 0
    aV0 = 36
    aQ = 72
    def mk(i):
        return 32 + 2 * i if i < 8 else 82 + 2 * (i - 8)
    k('s_cmp_ge_u32 s2, 512')
    k('s_cbranch_scc1 K2_done')
    k.ts(0, True)
    k.ts(1)
    k('s_load_dwordx2 s[8:9], s[0:1], 72')
    pf_setup(k, 48, [32, 40, 48] if L2PF else PF2)
    k('''s_and_b32 s10, s2, 7
    s_lshr_b32 s11, s2, 3
    s_lshl_b32 s20, s10, 2
    s_and_b32 s21, s11, 3
    s_add_u32 s20, s20, s21
    s_lshr_b32 s21, s11, 2
    s_lshl_b32 s21, s21, 2
    v_lshrrev_b32 v1, 6, v0
    v_readfirstlane_b32 s22, v1
    v_and_b32 v1, 63, v0
    v_and_b32 v2, 31, v1
    v_lshrrev_b32 v3, 5, v1''')
    k('s_add_u32 s21, s21, s22')
    k('''s_lshl_b32 s23, s20, 16
    s_lshl_b32 s24, s21, 10
    s_add_u32 s23, s23, s24
    v_lshlrev_b32 v10, 5, v2
    v_lshl_add_u32 v10, v3, 4, v10
    v_add_u32 v%d, s23, v10
    v_add_u32 v%d, 0x%x, v%d
    v_and_b32 v10, 15, v1
    v_lshlrev_b32 v10, 5, v10
    v_lshl_add_u32 v10, v3, 4, v10
    v_add_u32 v10, s23, v10
    v_add_u32 v%d, 0x%x, v10''' % (vQ, vK, WS_K - 8192, vQ, vV, WS_VT - 8192))
    k('v_lshlrev_b32 v10, 2, v3')
    k('v_sub_u32 v%d, v2, v10' % vD)
    k('''s_lshl_b32 s25, s21, 5
    s_add_u32 s25, s25, s20
    s_lshl_b32 s25, s25, 10
    s_add_u32 s25, s25, 0x%x
    v_lshlrev_b32 v10, 4, v2
    v_lshl_add_u32 v10, v3, 3, v10
    v_add_u32 v%d, s25, v10''' % (WS_O, vSt))
    k('v_mov_b32 v%d, %s' % (vNeg, f32hex(-1e9)))
    k('v_mov_b32 v%d, 0x3f803f80' % t1)
    k('s_mov_b32 s26, 4096')
    k('s_mov_b32 s27, 8192')
    k('s_sub_i32 s28, 8, s21')
    k('s_max_i32 s28, s28, 0')
    k('s_waitcnt lgkmcnt(0)')
    make_srd(k, 12, 8, 9, WS_SIZE)
    if L2PF == 2:
        k('''s_lshl_b32 s30, s11, 2
        s_add_u32 s30, s30, s22
        s_sub_u32 s31, s30, 112
        s_sub_u32 s60, s30, 224
        s_lshl_b32 s60, s60, 3
        s_add_u32 s60, s60, s10
        s_cmp_lt_u32 s30, 112
        s_cselect_b32 s56, s48, s50
        s_cselect_b32 s57, s49, s51
        s_cselect_b32 s31, s30, s31
        s_cmp_lt_u32 s30, 224
        s_cselect_b32 s56, s56, s52
        s_cselect_b32 s57, s57, s53
        s_cselect_b32 s60, s31, s60
        s_lshl_b32 s60, s60, 13
        s_mov_b32 s58, 0x1c0000
        s_mov_b32 s59, 0x00020000
        v_lshlrev_b32 v%d, 7, v1''' % vPf)
    elif L2PF:
        k('''s_lshl_b32 s30, s11, 2
        s_add_u32 s30, s30, s22
        s_and_b32 s31, s30, 63
        s_mul_i32 s31, s31, %d
        s_lshr_b32 s60, s10, 1
        s_mul_i32 s60, s60, 896
        s_add_u32 s31, s31, s60
        s_sub_u32 s60, s30, 128
        s_lshl_b32 s60, s60, 3
        s_add_u32 s60, s60, s10
        s_lshl_b32 s60, s60, 13
        s_cmp_lt_u32 s30, 64
        s_cselect_b32 s56, s48, s50
        s_cselect_b32 s57, s49, s51
        s_cmp_lt_u32 s30, 128
        s_cselect_b32 s56, s56, s52
        s_cselect_b32 s57, s57, s53
        s_cselect_b32 s60, s31, s60
        s_cselect_b64 s[62:63], -1, 0
        s_mov_b32 s58, 0x1c0000
        s_mov_b32 s59, 0x00020000
        v_lshrrev_b32 v10, 3, v1
        v_mul_u32_u24 v10, 0xe00, v10
        v_and_b32 v%d, 7, v1
        v_min_u32 v%d, 6, v%d
        v_lshl_add_u32 v10, v%d, 7, v10
        v_lshlrev_b32 v%d, 7, v1
        v_cndmask_b32_e64 v%d, v%d, v10, s[62:63]''' % (8 * 3584, vPf, vPf, vPf, vPf, vPf, vPf, vPf))
    else:
        k('s_lshl_b32 s30, s22, 9')
        k('s_add_u32 s30, s30, s2')
        if PF2:
            pf_sel(k, 30, 48, PF2)
        k('v_lshlrev_b32 v%d, 7, v1' % vPf)
    for i in range(16):
        kk = (i >> 2) * 8 + (i & 3)
        m = 0
        for l in range(64):
            if kk > (l & 31) - (l >> 5) * 4:
                m |= 1 << l
        k('s_mov_b32 s%d, 0x%x' % (mk(i), m & 0xffffffff))
        k('s_mov_b32 s%d, 0x%x' % (mk(i) + 1, m >> 32))

    def so(off):
        return ('0', 's26', 's27')[off // 4096], off % 4096

    k('buffer_load_dwordx4 %s, v%d, s[12:15], 0 offen' % (ar(aQ, 4), vQ))
    for T in range(9):
        s_, i_ = so(T * 1024)
        k('buffer_load_dwordx4 %s, v%d, s[12:15], %s offen offset:%d' % (ar(aK + T * 4, 4), vK, s_, i_))

    def vreg(idx):
        return aV0 + idx * 4 if idx < 9 else aK + (idx - 9) * 4

    def vloads(idxs):
        for idx in idxs:
            for r in range(4):
                k('v_accvgpr_write_b32 a%d, v%d' % (vreg(idx) + r, t1))
        k('s_mov_b32 exec_lo, 0x0000ffff')
        k('s_mov_b32 exec_hi, 0x0000ffff')
        for idx in idxs:
            s_, i_ = so(idx * 512)
            k('buffer_load_dwordx4 %s, v%d, s[12:15], %s offen offset:%d' % (ar(vreg(idx), 4), vV, s_, i_))
        k('s_mov_b64 exec, -1')

    vloads(range(9))
    k.ts(2)
    for T in range(9):
        k('s_waitcnt vmcnt(%d)' % (9 + 8 - T))
        k('v_mfma_f32_32x32x16_bf16 %s, %s, %s, 0' % (vr(S + T * 16, 16), ar(aK + T * 4, 4), ar(aQ, 4)))
    k.ts(3)
    vloads(range(9, 18))
    if PF2:
        k('buffer_load_dword v%d, v%d, s[56:59], s60 offen' % (vPf + 1, vPf))
    for i in range(16):
        k('v_cndmask_b32_e64 v%d, v%d, v%d, s[%d:%d]' % (S + i, vNeg, S + i, mk(i), mk(i) + 1))
    for i in range(16):
        k('v_cndmask_b32_e64 v%d, v%d, v%d, s[%d:%d]' % (S + 128 + i, S + 128 + i, vNeg, mk(i), mk(i) + 1))
    k('s_cmp_eq_u32 s28, 0')
    k('s_cbranch_scc1 J_K2_nomask')
    for T in range(8):
        k('s_cmp_gt_u32 s28, %d' % T)
        k('s_cbranch_scc0 J_K2_nomask')
        for i in range(16):
            k('v_mov_b32 v%d, v%d' % (S + T * 16 + i, vNeg))
    k.label('J_K2_nomask')
    ch = [O, O + 1, O + 2, O + 3]
    regs = list(range(S, S + 144))
    for c in range(4):
        k('v_max3_f32 v%d, v%d, v%d, v%d' % (ch[c], regs[c * 36], regs[c * 36 + 1], regs[c * 36 + 2]))
    for j in range(3, 35, 2):
        for c in range(4):
            k('v_max3_f32 v%d, v%d, v%d, v%d' % (ch[c], ch[c], regs[c * 36 + j], regs[c * 36 + j + 1]))
    for c in range(4):
        k('v_max_f32 v%d, v%d, v%d' % (ch[c], ch[c], regs[c * 36 + 35]))
    k('v_max3_f32 v%d, v%d, v%d, v%d' % (t0, ch[0], ch[1], ch[2]))
    k('v_max_f32 v%d, v%d, v%d' % (t0, t0, ch[3]))
    k('v_mov_b32 v%d, v%d' % (t1, t0))
    k('v_permlane32_swap_b32 v%d, v%d' % (t0, t1))
    k('v_max_f32 v%d, v%d, v%d' % (t0, t0, t1))
    k.ts(4)
    c_ = 0.25 * 1.4426950408889634
    k('s_mov_b32 s29, %s' % f32hex(c_))
    k('v_mul_f32 v%d, s29, v%d' % (t0, t0))
    first = True
    for T in range(9):
        b = S + T * 16
        for i in range(16):
            k('v_fma_f32 v%d, v%d, s29, -v%d' % (b + i, b + i, t0))
        for i in range(16):
            k('v_exp_f32 v%d, v%d' % (b + i, b + i))
        for u in range(2):
            for j in range(4):
                k('v_cvt_pk_bf16_f32 v%d, v%d, v%d' % (b + 8 * u + j, b + 8 * u + 2 * j, b + 8 * u + 2 * j + 1))
        for u in range(2):
            idx = 2 * T + u
            if idx == 0:
                k('s_waitcnt vmcnt(%d)' % (9 + npf))
            if idx == 9:
                k('s_waitcnt vmcnt(%d)' % npf)
            k('v_mfma_f32_32x32x16_bf16 %s, %s, %s, %s' % (
                vr(O, 16), ar(vreg(idx), 4), vr(b + 8 * u, 4), '0' if first else vr(O, 16)))
            first = False
    k.ts(5)
    k('v_rcp_f32 v%d, v%d' % (t0, O + 8))
    for i in range(8):
        k('v_mul_f32 v%d, v%d, v%d' % (O + i, O + i, t0))
    for j in range(4):
        k('v_cvt_pk_bf16_f32 v%d, v%d, v%d' % (O + j, O + 2 * j, O + 2 * j + 1))
    k('buffer_store_dwordx2 %s, v%d, s[12:15], 0 offen' % (vr(O, 2), vSt))
    k('buffer_store_dwordx2 %s, v%d, s[12:15], 0 offen offset:512' % (vr(O + 2, 2), vSt))
    k.ts(6)
    k.prof_end(12, 1, 22, 9)
    k.label('K2_done')
    k('s_endpgm')
    return k, dict(vgpr=174, agpr=76, lds=0, grid=512)
```

```python
from asmlib import Kernel
from k1 import vr, ar, sr, make_srd, WS_O, WS_H, WS_HF, WS_HH, WS_CS, WS_ST, WS_SIZE


import os
COOP = os.environ.get('COOP', '')
RMAP = int(os.environ.get('RMAP', '0'))
K3PF = os.environ.get('K3PF', '')


def gen_gemm(name, KT, wsA, b_karg, bK, res_from_ws, out_to_ws):
    k = Kernel(name)
    NS = KT // 4
    NR = min(NS, 16)
    PF = NS if NS <= NR else NR - 1
    RS = NR * 2048
    AR = 28 if out_to_ws else 24
    BFR = AR + NR * 8
    ACC = BFR + 16
    RES = ACC + 64
    T = RES + 8
    nv = T + 16
    vA0, vA1, vBd, vBr, vOut, vRes = 8, 9, 10, 11, 12, 13
    vW = 14
    vR = 18
    vFw, vFr, vFo = 22, 23, 24
    vSt = 25
    SCR = 4 * RS
    L = name.upper()
    k('s_cmp_ge_u32 s2, 256')
    k('s_cbranch_scc1 %s' % ('J_K3_extra' if out_to_ws else L + '_done'))
    k.ts(0, True)
    k.ts(1)
    k('s_load_dwordx2 s[4:5], s[0:1], %d' % b_karg)
    k('s_load_dwordx2 s[6:7], s[0:1], 72')
    k('s_load_dwordx2 s[8:9], s[0:1], %d' % (72 if res_from_ws else 0))
    k('s_load_dwordx2 s[10:11], s[0:1], %d' % (72 if out_to_ws else 56))
    if RMAP:
        k('''s_and_b32 s20, s2, 1
        s_lshl_b32 s20, s20, 2
        s_bfe_u32 s21, s2, 0x20001
        s_add_u32 s20, s20, s21''')
    else:
        k('s_and_b32 s20, s2, 7')
    k('''s_lshr_b32 s21, s2, 3
    s_lshl_b32 s20, s20, 2
    s_and_b32 s22, s21, 3
    s_add_u32 s20, s20, s22
    s_lshr_b32 s21, s21, 2
    v_lshrrev_b32 v1, 6, v0
    v_readfirstlane_b32 s22, v1
    v_and_b32 v1, 63, v0
    v_lshrrev_b32 v3, 4, v1
    v_and_b32 v2, 15, v1''')
    k('s_mul_i32 s23, s20, %d' % (2 * KT * 1024))
    k('s_mul_i32 s24, s22, %d' % (NS * 1024))
    k('s_add_u32 s23, s23, s24')
    k('s_add_u32 s23, s23, 0x%x' % wsA)
    k('v_lshlrev_b32 v4, 4, v1')
    k('v_add_u32 v%d, s23, v4' % vA0)
    k('v_add_u32 v%d, %d, v%d' % (vA1, KT * 1024, vA0))
    k('''v_lshrrev_b32 v4, 5, v1
    v_lshlrev_b32 v4, 2, v4
    v_bfe_u32 v5, v1, 2, 2
    v_add_u32 v4, v4, v5
    v_lshlrev_b32 v4, 10, v4
    v_and_b32 v5, 1, v3
    v_lshl_add_u32 v4, v5, 6, v4
    v_and_b32 v5, 3, v1
    v_lshl_add_u32 v4, v5, 4, v4
    s_lshl_b32 s24, s21, 7
    v_add_u32 v%d, s24, v4''' % vBd)
    k('s_mul_i32 s25, s22, %d' % (NS * 16 * 1024))
    k('s_mul_i32 s26, s22, %d' % RS)
    k('''v_lshrrev_b32 v4, 1, v3
    v_lshlrev_b32 v4, 10, v4
    v_lshrrev_b32 v5, 2, v2
    v_lshl_add_u32 v4, v5, 6, v4
    v_and_b32 v5, 1, v3
    v_lshl_add_u32 v4, v5, 5, v4
    v_and_b32 v5, 3, v2
    v_lshl_add_u32 v4, v5, 3, v4
    v_add_u32 v%d, s26, v4''' % vBr)
    k('v_and_b32 v4, 31, v1')
    k('v_lshlrev_b32 v5, 8, v4')
    k('v_add_u32 v5, s26, v5')
    k('v_and_b32 v4, 7, v4')
    k('v_lshrrev_b32 v6, 5, v1')
    k('v_xor_b32 v4, v4, v6')
    for q in range(4):
        k('v_xor_b32 v6, %d, v4' % (q * 2))
        k('v_lshl_add_u32 v%d, v6, 4, v5' % (vW + q))
    k('s_lshl_b32 s27, s22, 12')
    k('v_lshrrev_b32 v4, 3, v1')
    k('v_lshlrev_b32 v5, 8, v4')
    k('v_add_u32 v5, s27, v5')
    k('v_and_b32 v6, 7, v1')
    k('v_lshlrev_b32 v6, 1, v6')
    k('v_xor_b32 v6, v6, v4')
    k('v_lshl_add_u32 v%d, v6, 4, v5' % vR)
    k('v_xor_b32 v6, 1, v6')
    k('v_lshl_add_u32 v%d, v6, 4, v5' % (vR + 1))
    k('v_add_u32 v%d, %d, v%d' % (vR + 2, 2 * RS, vR))
    k('v_add_u32 v%d, %d, v%d' % (vR + 3, 2 * RS, vR + 1))
    k('''s_lshl_b32 s27, s22, 4
    s_lshl_b32 s28, s20, 6
    s_add_u32 s27, s27, s28
    s_lshl_b32 s27, s27, 10
    s_add_u32 s27, s27, s24
    v_lshlrev_b32 v5, 10, v4
    v_and_b32 v6, 7, v1
    v_lshl_add_u32 v5, v6, 4, v5
    v_add_u32 v4, s27, v5''')
    k('v_add_u32 v%d, 0x%x, v4' % (vOut, WS_H if out_to_ws else 0))
    k('v_add_u32 v%d, 0x%x, v4' % (vRes, WS_H if res_from_ws else 0))
    k('s_mov_b32 s31, 8192')
    if out_to_ws:
        k('''s_lshl_b32 s27, s22, 11
        v_lshrrev_b32 v4, 3, v1
        v_and_b32 v5, 3, v1
        v_lshl_add_u32 v4, v5, 4, v4
        v_lshlrev_b32 v4, 4, v4
        v_bfe_u32 v5, v1, 2, 1
        v_lshl_add_u32 v4, v5, 10, v4
        v_add_u32 v4, s27, v4''')
        k('v_add_u32 v%d, %d, v4' % (vFw, SCR))
        k('v_lshlrev_b32 v4, 4, v1')
        k('v_add_u32 v5, s27, v4')
        k('v_add_u32 v%d, %d, v5' % (vFr, SCR))
        k('''s_lshl_b32 s27, s20, 2
        s_add_u32 s27, s27, s22
        s_lshl_b32 s27, s27, 4
        s_lshl_b32 s28, s21, 1
        s_add_u32 s27, s27, s28
        s_lshl_b32 s27, s27, 10''')
        k('s_add_u32 s27, s27, 0x%x' % WS_HF)
        k('v_add_u32 v%d, s27, v4' % vFo)
        k('''s_lshl_b32 s27, s20, 2
        s_add_u32 s27, s27, s22
        s_lshl_b32 s27, s27, 10
        s_lshl_b32 s28, s21, 3
        s_add_u32 s27, s27, s28
        v_lshrrev_b32 v4, 3, v1
        v_lshlrev_b32 v4, 6, v4''')
        k('s_add_u32 s27, s27, 0x%x' % WS_ST)
        k('v_add_u32 v%d, s27, v4' % vSt)
        k('s_mov_b32 s40, 0x3f803f80')
        k('s_mov_b32 s42, 0x01010101')
        k('s_mov_b32 s43, 0x01010101')
    k('s_waitcnt lgkmcnt(0)')
    make_srd(k, 12, 4, 5, bK * 512 * 2)
    make_srd(k, 16, 6, 7, WS_SIZE)
    make_srd(k, 32, 8, 9, WS_SIZE if res_from_ws else 2048 * 512 * 2)
    make_srd(k, 36, 10, 11, WS_SIZE if out_to_ws else 2048 * 512 * 2)
    if COOP:
        k('s_lshr_b32 s40, s2, 3')
        k('s_lshl_b32 s40, s40, 2')
        k('s_add_u32 s40, s40, s22')
        k('s_lshl_b32 s40, s40, 13')
        k('v_lshlrev_b32 v4, 7, v1')
        if 'a' in COOP:
            k('s_and_b32 s41, s2, 7')
            k('s_mul_i32 s41, s41, %d' % (8 * KT * 1024))
            k('s_add_u32 s41, s41, 0x%x' % wsA)
            k('s_min_u32 s42, s40, %d' % (KT * 8192 - 8192))
            k('s_add_u32 s41, s41, s42')
            k('buffer_load_dword v%d, v4, s[16:19], s41 offen' % (T + 15))
        if 'b' in COOP:
            k('buffer_load_dword v%d, v4, s[12:15], s40 offen' % (T + 14))
            if bK > 1024:
                k('s_add_u32 s40, s40, 0x100000')
                k('buffer_load_dword v%d, v4, s[12:15], s40 offen' % (T + 13))
    for j in range(2):
        k('buffer_load_dwordx4 %s, v%d, s[32:35], %s offen' % (vr(RES + 4 * j, 4), vRes, 's31' if j else '0'))

    def loads(s):
        slot = s % NR
        k('s_mov_b32 s29, %d' % (s * 1024))
        for mi in range(2):
            k('buffer_load_dwordx4 %s, v%d, s[16:19], s29 offen' % (vr(AR + slot * 8 + mi * 4, 4), vA0 + mi))
        for h in range(2):
            k('s_add_u32 s30, s25, %d' % ((s * 16 + h * 8) * 1024))
            k('s_add_u32 m0, s26, %d' % (slot * 2048 + h * 1024))
            k('buffer_load_dwordx4 v%d, s[12:15], s30 offen lds' % vBd)

    def reads(s):
        slot = s % NR
        p = s & 1
        for nb in range(2):
            for sec in range(2):
                k('ds_read_b64_tr_b16 %s, v%d offset:%d' % (
                    vr(BFR + p * 8 + nb * 4 + sec * 2, 2), vBr, slot * 2048 + sec * 512 + nb * 256))

    issued = 0
    for s in range(PF):
        loads(s)
        issued += 1
    k.ts(2)
    k('s_waitcnt vmcnt(%d)' % (4 * (issued - 1)))
    k.ts(3)
    k('s_waitcnt lgkmcnt(0)')
    reads(0)
    for s in range(NS):
        p = s & 1
        if s + 1 < NS:
            k('s_waitcnt vmcnt(%d)' % (4 * (issued - 1 - (s + 1))))
            reads(s + 1)
            k('s_waitcnt lgkmcnt(4)')
        else:
            k('s_waitcnt lgkmcnt(0)')
        slot = s % NR
        for mi in range(2):
            for nb in range(2):
                acc = vr(ACC + (mi * 2 + nb) * 16, 16)
                k('v_mfma_f32_32x32x16_bf16 %s, %s, %s, %s' % (
                    acc, vr(BFR + p * 8 + nb * 4, 4), vr(AR + slot * 8 + mi * 4, 4), '0' if s == 0 else acc))
        if issued < NS:
            loads(issued)
            issued += 1
    k.ts(4)
    if out_to_ws and K3PF:
        k('s_load_dwordx2 s[44:45], s[0:1], 48')
        k('''s_lshr_b32 s48, s2, 3
        s_lshl_b32 s48, s48, 2
        s_add_u32 s48, s48, s22
        s_mul_i32 s48, s48, 14336
        s_add_u32 s49, s48, 8192
        v_lshlrev_b32 v4, 7, v1''')
        k('s_mov_b32 s46, 0x%x' % (512 * 1792 * 2))
        k('s_mov_b32 s47, 0x00020000')
        k('s_waitcnt lgkmcnt(0)')
        k('buffer_load_dword v5, v4, s[44:47], s48 offen')
        if 'h' not in K3PF:
            k('s_mov_b32 exec_hi, 0x0000ffff')
            k('buffer_load_dword v6, v4, s[44:47], s49 offen')
            k('s_mov_b64 exec, -1')
    for t in range(4):
        for q in range(4):
            k('ds_write_b128 v%d, %s offset:%d' % (vW + q, vr(ACC + t * 16 + q * 4, 4), (t >> 1) * 8192 + (t & 1) * 128))
    k('s_waitcnt lgkmcnt(0)')
    k('s_barrier')
    k.ts(5)
    k('s_waitcnt lgkmcnt(0)')
    for j in range(2):
        for src in range(4):
            for e in range(2):
                k('ds_read_b128 %s, v%d offset:%d' % (vr(ACC + (j * 4 + src) * 8 + e * 4, 4), vR + e + (2 if src >= 2 else 0),
                                                      (src & 1) * RS + j * 2048))
    for j in range(2):
        b = ACC + j * 32
        k('s_waitcnt lgkmcnt(%d)' % (12 - 8 * j))
        for i in range(8):
            k('v_add_f32 v%d, v%d, v%d' % (b + i, b + i, b + 8 + i))
        k('s_waitcnt lgkmcnt(%d)' % (8 - 8 * j))
        for i in range(8):
            k('v_add_f32 v%d, v%d, v%d' % (b + 16 + i, b + 16 + i, b + 24 + i))
        for i in range(8):
            k('v_add_f32 v%d, v%d, v%d' % (b + i, b + i, b + 16 + i))
        if j == 0:
            k('s_waitcnt vmcnt(0)')
        for i in range(4):
            k('v_cvt_pk_bf16_f32 v%d, v%d, v%d' % (T + 4, b + 2 * i, b + 2 * i + 1))
            k('v_lshlrev_b32 v%d, 16, v%d' % (T, T + 4))
            k('v_and_b32 v%d, 0xffff0000, v%d' % (T + 1, T + 4))
            k('v_lshlrev_b32 v%d, 16, v%d' % (T + 2, RES + 4 * j + i))
            k('v_and_b32 v%d, 0xffff0000, v%d' % (T + 3, RES + 4 * j + i))
            k('v_add_f32 v%d, v%d, v%d' % (T, T, T + 2))
            k('v_add_f32 v%d, v%d, v%d' % (T + 1, T + 1, T + 3))
            k('v_cvt_pk_bf16_f32 v%d, v%d, v%d' % (T + 8 + 4 * j + i, T, T + 1))
        k('buffer_store_dwordx4 %s, v%d, s[36:39], %s offen' % (vr(T + 8 + 4 * j, 4), vOut, 's31' if j else '0'))
        if out_to_ws:
            k('ds_write_b128 v%d, %s offset:%d' % (vFw, vr(T + 8 + 4 * j, 4), j * 128))
            for i in range(4):
                d = T + 8 + 4 * j + i
                k('v_dot2_f32_bf16 v%d, v%d, s40, %s' % (BFR + 2 * j, d, 'v%d' % (BFR + 2 * j) if i else '0'))
                k('v_dot2_f32_bf16 v%d, v%d, v%d, %s' % (BFR + 2 * j + 1, d, d, 'v%d' % (BFR + 2 * j + 1) if i else '0'))
    if out_to_ws:
        k('s_waitcnt lgkmcnt(0)')
        for j in range(2):
            k('ds_read_b128 %s, v%d offset:%d' % (vr(ACC + 4 * j, 4), vFr, j * 1024))
        DP = ' row_mask:0xf bank_mask:0xf'
        for m in ('quad_perm:[1,0,3,2]', 'quad_perm:[2,3,0,1]', 'row_half_mirror'):
            for i in range(4):
                k('v_add_f32_dpp v%d, v%d, v%d %s%s' % (BFR + i, BFR + i, BFR + i, m, DP))
        k('s_mov_b64 exec, s[42:43]')
        for j in range(2):
            k('buffer_store_dwordx2 %s, v%d, s[36:39], 0 offen offset:%d' % (vr(BFR + 2 * j, 2), vSt, j * 512))
        k('s_mov_b64 exec, -1')
        for j in range(2):
            k('s_waitcnt lgkmcnt(%d)' % (1 - j))
            k('buffer_store_dwordx4 %s, v%d, s[36:39], 0 offen offset:%d' % (vr(ACC + 4 * j, 4), vFo, j * 1024))
    k.ts(6)
    k.prof_end(16, 2 if name == 'k3' else 4, 22, 9)
    k.label('%s_done' % L)
    k('s_endpgm')
    if out_to_ws:
        colsum_extra(k)
    return k, dict(vgpr=nv, agpr=0, lds=4 * RS + (8192 if out_to_ws else 0), grid=312 if out_to_ws else 256)


def colsum_extra(k):
    k.label('J_K3_extra')
    k('s_cmp_ge_u32 s2, 312')
    k('s_cbranch_scc1 K3_done2')
    k('s_load_dwordx4 s[4:7], s[0:1], 32')
    k('s_load_dwordx2 s[8:9], s[0:1], 72')
    k('''s_sub_u32 s20, s2, 256
    s_sub_u32 s21, s2, 284
    s_cmp_ge_u32 s20, 28
    s_cselect_b32 s20, s21, s20
    s_cselect_b32 s23, 7168, 0
    v_lshrrev_b32 v1, 6, v0
    v_readfirstlane_b32 s22, v1
    v_and_b32 v1, 63, v0
    v_lshrrev_b32 v2, 1, v1
    v_mul_u32_u24 v2, 0xe00, v2
    v_and_b32 v3, 1, v1
    v_lshl_add_u32 v2, v3, 4, v2
    s_lshl_b32 s24, s20, 7
    s_lshl_b32 s25, s22, 5
    s_add_u32 s24, s24, s25
    v_add_u32 v2, s24, v2
    s_lshl_b32 s24, s24, 1
    s_add_u32 s24, s24, s23
    s_add_u32 s24, s24, 0x%x
    v_lshlrev_b32 v3, 5, v3
    v_add_u32 v3, s24, v3
    s_mov_b32 s26, 0x00003f80
    s_mov_b32 s27, 0x3f800000''' % WS_CS)
    k('s_waitcnt lgkmcnt(0)')
    k('s_cmp_eq_u32 s23, 0')
    k('s_cselect_b32 s12, s4, s6')
    k('s_cselect_b32 s13, s5, s7')
    k('s_mov_b32 s14, 0x%x' % (512 * 1792 * 2))
    k('s_mov_b32 s15, 0x00020000')
    make_srd(k, 16, 8, 9, WS_SIZE)
    for p in range(16):
        k('s_mov_b32 s28, %d' % (p * 32 * 3584))
        k('buffer_load_dwordx4 %s, v2, s[12:15], s28 offen' % vr(16 + p * 4, 4))
    for i in range(8):
        k('v_mov_b32 v%d, 0' % (8 + i))
    for p in range(16):
        k('s_waitcnt vmcnt(%d)' % (15 - p))
        for d in range(4):
            for h in range(2):
                k('v_dot2_f32_bf16 v%d, v%d, s%d, v%d' % (8 + d * 2 + h, 16 + p * 4 + d, 26 + h, 8 + d * 2 + h))
    DP = ' row_mask:0xf bank_mask:0xf'
    for m in ('quad_perm:[2,3,0,1]', 'row_ror:4', 'row_ror:8'):
        for i in range(8):
            k('v_add_f32_dpp v%d, v%d, v%d %s%s' % (8 + i, 8 + i, 8 + i, m, DP))
    for sw in ('v_permlane16_swap_b32', 'v_permlane32_swap_b32'):
        for i in range(8):
            k('v_mov_b32 v%d, v%d' % (16 + i, 8 + i))
        for i in range(8):
            k('%s v%d, v%d' % (sw, 8 + i, 16 + i))
        for i in range(8):
            k('v_add_f32 v%d, v%d, v%d' % (8 + i, 8 + i, 16 + i))
    k('s_mov_b64 exec, 3')
    k('buffer_store_dwordx4 v[8:11], v3, s[16:19], 0 offen')
    k('buffer_store_dwordx4 v[12:15], v3, s[16:19], 0 offen offset:16')
    k.label('K3_done2')
    k('s_endpgm')


def gen_k3():
    return gen_gemm('k3', 32, WS_O, 16, 512, False, True)


def gen_k5():
    return gen_gemm('k5', 112, WS_HH, 48, 1792, True, False)
```

```python
from asmlib import Kernel
from k1 import vr, ar, sr, make_srd, WS_H, WS_HF, WS_HH, WS_CS, WS_ST, WS_SIZE
from k2 import f32hex


import os
EXP = os.environ.get('K4EXP', '')


def stats_fin(k, SS, T, vM, vC, vI):
    for mf in range(2):
        for q in range(2):
            a = SS + mf * 4 + q
            k('v_add_f32 v%d, v%d, v%d' % (a, a, a + 2))
            k('v_mov_b32 v%d, v%d' % (a + 2, a))
            k('v_permlane32_swap_b32 v%d, v%d' % (a, a + 2))
            k('v_add_f32 v%d, v%d, v%d' % (a, a, a + 2))
            k('v_mov_b32 v%d, v%d' % (a + 2, a))
            k('v_permlane16_swap_b32 v%d, v%d' % (a, a + 2))
            k('v_add_f32 v%d, v%d, v%d' % (a, a, a + 2))
    for mf in range(2):
        t, m, v = T, vM + mf, vI + mf
        k('v_mul_f32 v%d, 0x3b000000, v%d' % (m, SS + mf * 4))
        k('v_mul_f32 v%d, 0x3b000000, v%d' % (v, SS + mf * 4 + 1))
        k('v_fma_f32 v%d, -v%d, v%d, v%d' % (v, m, m, v))
        k('v_max_f32 v%d, 0, v%d' % (v, v))
        k('v_cvt_pk_bf16_f32 v%d, v%d, v%d' % (t, m, v))
        k('v_lshlrev_b32 v%d, 16, v%d' % (m, t))
        k('v_and_b32 v%d, 0xffff0000, v%d' % (v, t))
        k('v_add_f32 v%d, 0x3727c5ac, v%d' % (v, v))
        k('v_cvt_pk_bf16_f32 v%d, v%d, v%d' % (t, v, v))
        k('v_lshlrev_b32 v%d, 16, v%d' % (v, t))
        k('v_sqrt_f32 v%d, v%d' % (v, v))
        k('v_cvt_pk_bf16_f32 v%d, v%d, v%d' % (t, v, v))
        k('v_lshlrev_b32 v%d, 16, v%d' % (v, t))
        k('v_rcp_f32 v%d, v%d' % (t, v))
        k('v_mul_f32 v%d, %s, v%d' % (vC + mf, f32hex(-1.4426950408889634), t))
        k('v_mul_f32 v%d, v%d, v%d' % (v, v, v))


def gen_k4():
    k = Kernel('k4')
    SS = 18
    vM, vC, vI = 26, 28, 30
    AF = 32
    BF = 48
    ACC = 104
    T = 216
    E = 224
    CS = BF
    vA, vSt = 8, 9
    vRd = 10
    vRa = 14
    vBd = 16
    vCs = 17
    SLOT = 24576
    PFX = os.environ.get('PFX', '')
    RAMP0 = int(os.environ.get('RAMP0', '3'))
    RAMP = int(os.environ.get('RAMP', '2'))
    NSL = 6
    CSB = NSL * SLOT
    k('s_cmp_ge_u32 s2, 256')
    k('s_cbranch_scc1 K4_done')
    k.ts(0, True)
    k.ts(1)
    k('s_load_dwordx4 s[4:7], s[0:1], 32')
    k('s_load_dwordx2 s[8:9], s[0:1], 72')
    k('s_load_dwordx2 s[12:13], s[0:1], 48')
    K4MAP = int(os.environ.get('K4MAP', '0'))
    if K4MAP == 0:
        k('''s_and_b32 s10, s2, 7
        s_lshr_b32 s11, s2, 3
        s_and_b32 s20, s10, 1
        s_lshl_b32 s20, s20, 3
        s_and_b32 s21, s11, 7
        s_add_u32 s20, s20, s21
        s_lshr_b32 s21, s10, 1
        s_lshl_b32 s21, s21, 2
        s_lshr_b32 s22, s11, 3
        s_add_u32 s21, s21, s22''')
    elif K4MAP == 1:
        k('''s_and_b32 s10, s2, 7
        s_lshr_b32 s11, s2, 3
        s_lshl_b32 s20, s10, 1
        s_and_b32 s21, s11, 1
        s_add_u32 s20, s20, s21
        s_lshr_b32 s21, s11, 1''')
    elif K4MAP == 2:
        k('''s_and_b32 s10, s2, 7
        s_lshr_b32 s11, s2, 3
        s_lshr_b32 s20, s10, 1
        s_lshl_b32 s20, s20, 2
        s_and_b32 s21, s11, 3
        s_add_u32 s20, s20, s21
        s_and_b32 s21, s10, 1
        s_lshl_b32 s21, s21, 3
        s_lshr_b32 s22, s11, 2
        s_add_u32 s21, s21, s22''')
    k('''v_lshrrev_b32 v1, 6, v0
    v_readfirstlane_b32 s22, v1
    v_and_b32 v1, 63, v0
    v_and_b32 v2, 15, v1
    v_lshrrev_b32 v3, 4, v1''')
    k('s_cmp_lt_u32 s22, 4')
    k('s_cbranch_scc1 J_K4_comp')
    k('s_and_b32 s22, s22, 3')
    k('''s_lshl_b32 s23, s20, 17
    s_lshl_b32 s24, s22, 15
    s_add_u32 s23, s23, s24
    s_add_u32 s23, s23, 0x%x
    v_lshlrev_b32 v4, 4, v1
    v_add_u32 v%d, s23, v4''' % (WS_HF, vA))
    for i in range(1, 8):
        k('s_mov_b32 s%d, %d' % (47 + i, i * 4096))
    k('''s_mul_i32 s30, s21, 448
    s_lshr_b32 s31, s22, 1
    s_mul_i32 s24, s31, 7168
    s_add_u32 s30, s30, s24
    s_add_u32 s30, s30, 0x%x
    v_add_u32 v%d, s30, v4
    s_mul_i32 s31, s31, 448''' % (WS_CS, vCs))
    k('''v_lshrrev_b32 v4, 2, v1
    v_mul_u32_u24 v4, 0xe00, v4
    v_lshrrev_b32 v5, 5, v1
    v_lshlrev_b32 v5, 1, v5
    v_and_b32 v6, 3, v1
    v_xor_b32 v5, v5, v6
    v_lshl_add_u32 v%d, v5, 4, v4''' % vBd)
    k('''s_and_b32 s27, s22, 1
    s_mul_i32 s26, s27, %d
    s_mul_i32 s28, s21, 224
    s_add_u32 s26, s26, s28
    s_and_b32 s28, s21, 1
    s_lshl_b32 s28, s28, 5
    s_sub_u32 s26, s26, s28
    s_lshl_b32 s27, s27, 10
    s_lshr_b32 s28, s22, 1
    s_lshl_b32 s28, s28, 13
    s_add_u32 s27, s27, s28
    s_lshl_b32 s28, s22, 11''' % (16 * 3584))
    k('s_waitcnt lgkmcnt(0)')
    k('s_cmp_lt_u32 s22, 2')
    k('s_cselect_b32 s16, s4, s6')
    k('s_cselect_b32 s17, s5, s7')
    k('s_mov_b32 s18, 0x%x' % (512 * 1792 * 2))
    k('s_mov_b32 s19, 0x00020000')
    make_srd(k, 32, 8, 9, WS_SIZE)
    make_srd(k, 36, 12, 13, 512 * 1792 * 2)
    W2PF = int(os.environ.get('W2PF', '-1'))
    k('''s_lshl_b32 s40, s11, 2
    s_add_u32 s40, s40, s22
    s_mul_i32 s40, s40, 14336
    s_add_u32 s41, s40, 8192
    v_lshlrev_b32 v20, 7, v1''')

    def w2pf():
        if not os.environ.get('W2H', ''):
            k('buffer_load_dword v21, v20, s[36:39], s40 offen')
            cnt[0] += 1
        cnt[0] -= 1
        k('s_mov_b32 exec_hi, 0x0000ffff')
        k('buffer_load_dword v22, v20, s[36:39], s41 offen')
        k('s_mov_b64 exec, -1')
        cnt[0] += 2

    def stage(ks):
        sl = (ks % NSL) * SLOT
        if 'D' in EXP and ks >= NSL:
            return
        for mf in range(2):
            o_ = (mf * 16 + ks) * 1024
            if 'B' in EXP:
                o_ = 0
            k('s_add_u32 m0, s28, %d' % (sl + 16384 + mf * 1024 - o_ % 4096))
            k('buffer_load_dwordx4 v%d, s[32:35], %s offen offset:%d lds' % (
                vA, ('s%d' % (47 + o_ // 4096)) if o_ >= 4096 else '0', o_ % 4096))
        for j in range(4):
            k('s_add_u32 s29, s26, %d' % ((0 if 'A' in EXP else ks * 32 * 3584) + j * 64))
            k('s_add_u32 m0, s27, %d' % (sl + j * 2048))
            k('buffer_load_dwordx4 v%d, s[16:19], s29 offen lds' % vBd)

    cnt = [0]
    last = {}

    def stage2(ks):
        stage(ks)
        cnt[0] += 6
        last[ks] = cnt[0]

    def csload():
        k('s_mov_b32 exec_lo, 0x0fffffff')
        k('s_mov_b32 exec_hi, 0')
        k('s_add_u32 m0, s31, %d' % CSB)
        k('buffer_load_dwordx4 v%d, s[32:35], 0 offen lds' % vCs)
        k('s_mov_b64 exec, -1')
        cnt[0] += 1

    issued = 0
    for ks in range(RAMP0):
        stage2(ks)
        issued += 1
    for ks in range(16):
        if 'D' in EXP:
            k('s_waitcnt vmcnt(0)')
        else:
            k('s_waitcnt vmcnt(%d)' % (cnt[0] - last[ks]))
        k('s_barrier')
        for _ in range(RAMP):
            if issued < 16 and issued <= ks + NSL - 1:
                stage2(issued)
                issued += 1
        if ks == 4:
            csload()
        if ks == W2PF:
            w2pf()
    k('s_endpgm')

    k.label('J_K4_comp')
    k('''v_lshlrev_b32 v4, 3, v3
    v_lshrrev_b32 v5, 2, v2
    v_add_u32 v4, v4, v5
    v_lshlrev_b32 v4, 6, v4
    v_and_b32 v5, 3, v2
    v_lshl_add_u32 v4, v5, 3, v4
    s_and_b32 s30, s21, 1
    v_and_b32 v5, 1, v3
    v_xor_b32 v5, s30, v5
    v_lshl_add_u32 v%d, v5, 5, v4
    v_xor_b32 v5, 1, v5
    v_lshl_add_u32 v4, v5, 5, v4
    s_lshl_b32 s30, s30, 11
    v_add_u32 v%d, s30, v4''' % (vRd, vRd + 1))
    for par in range(2):
        k('v_add_u32 v%d, %d, v%d' % (vRd + 2 + par, 3 * SLOT, vRd + par))
    k('s_lshl_b32 s28, s22, 11')
    k('s_add_u32 s28, s28, 16384')
    k('v_lshlrev_b32 v4, 4, v1')
    k('v_add_u32 v%d, s28, v4' % vRa)
    k('v_add_u32 v%d, %d, v%d' % (vRa + 1, 3 * SLOT, vRa))
    k('''v_lshrrev_b32 v4, 1, v3
    v_lshlrev_b32 v4, 5, v4
    v_add_u32 v4, v4, v2
    v_lshlrev_b32 v4, 4, v4
    v_and_b32 v5, 1, v3
    v_lshl_add_u32 v%d, v5, 3, v4''' % vSt)
    k('''s_lshl_b32 s25, s20, 2
    s_add_u32 s25, s25, s22
    s_mul_i32 s25, s25, 112
    s_mul_i32 s30, s21, 7
    s_add_u32 s25, s25, s30
    s_lshl_b32 s25, s25, 10
    s_add_u32 s25, s25, 0x%x''' % WS_HH)
    k('v_lshlrev_b32 v4, 4, v3')
    k('v_add_u32 v%d, 0x%x, v4' % (vCs, CSB))
    k('''s_lshl_b32 s30, s20, 2
    s_add_u32 s30, s30, s22
    s_lshl_b32 s30, s30, 11
    s_add_u32 s30, s30, 0x%x
    v_lshl_add_u32 v4, v2, 6, v4
    v_add_u32 v4, s30, v4''' % WS_ST)
    k('s_waitcnt lgkmcnt(0)')
    make_srd(k, 32, 8, 9, WS_SIZE)
    for mf in range(2):
        k('buffer_load_dwordx4 %s, v4, s[32:35], 0 offen offset:%d' % (vr(SS + mf * 4, 4), mf * 1024))
    if PFX:
        k('s_cmp_lt_u32 s22, 2')
        k('s_cselect_b32 s16, s4, s6')
        k('s_cselect_b32 s17, s5, s7')
        k('s_mov_b32 s18, 0x%x' % (512 * 1792 * 2))
        k('s_mov_b32 s19, 0x00020000')
        k('''s_lshl_b32 s30, s11, 1
        s_and_b32 s31, s22, 1
        s_add_u32 s30, s30, s31
        s_mul_i32 s30, s30, %d
        s_lshr_b32 s31, s10, 1
        s_mul_i32 s31, s31, 896
        s_add_u32 s30, s30, s31
        v_lshrrev_b32 v5, 3, v1
        v_mul_u32_u24 v5, 0xe00, v5
        v_and_b32 v6, 7, v1
        v_min_u32 v6, 6, v6
        v_lshl_add_u32 v5, v6, 7, v5''' % (8 * 3584))
        k('''s_and_b32 s31, s10, 1
        s_lshl_b32 s31, s31, 7
        s_lshl_b32 s29, s11, 2
        s_add_u32 s31, s31, s29
        s_add_u32 s31, s31, s22
        s_lshl_b32 s31, s31, 13
        s_add_u32 s31, s31, 0x%x
        v_lshlrev_b32 v6, 7, v1''' % WS_HF)
        if 'b' in PFX:
            k('buffer_load_dword v%d, v5, s[16:19], s30 offen' % (E + 0))
            if '2' in PFX:
                k('buffer_load_dword v%d, v5, s[16:19], s30 offen offset:64' % (E + 1))
        if 'a' in PFX:
            k('buffer_load_dword v%d, v6, s[32:35], s31 offen' % (E + 2))
            if '2' in PFX:
                k('buffer_load_dword v%d, v6, s[32:35], s31 offen offset:64' % (E + 3))
    k.ts(2)

    def areg(ks, mf):
        return AF + ((ks & 1) * 2 + mf) * 4

    def reads(hs):
        ks, mx = hs >> 1, hs & 1
        slot = ks % NSL
        out = []
        if mx == 0:
            for mf in range(2):
                out.append('ds_read_b128 %s, v%d offset:%d' % (vr(areg(ks, mf), 4), vRa + slot // 3, (slot % 3) * SLOT + mf * 1024))
        for nf in range(7):
            for kgl in range(2):
                out.append('ds_read_b64_tr_b16 %s, v%d offset:%d' % (
                    vr(BF + mx * 28 + nf * 4 + kgl * 2, 2), vRd + (slot // 3) * 2 + (nf & 1),
                    (slot % 3) * SLOT + mx * 8192 + (nf >> 1) * 2048 + kgl * 256))
        return out

    k('s_waitcnt vmcnt(%d)' % ((('a' in PFX) + ('b' in PFX)) * (2 if '2' in PFX else 1)))
    stats_fin(k, SS, T, vM, vC, vI)
    k('s_barrier')
    k.ts(3)
    for o in reads(0):
        k(o)
    for hs in range(32):
        ks, mx = hs >> 1, hs & 1
        k('s_waitcnt lgkmcnt(0)')
        if hs == 0:
            k.ts(4)
        if mx == 1 and ks + 1 < 16:
            k('s_barrier')
        rd = reads(hs + 1) if hs + 1 < 32 else []
        if 'R' in EXP:
            rd = rd[:2]
        no = []
        i = 0
        for nf in range(7):
            for mf in range(2):
                acc = vr(ACC + (mf * 14 + mx * 7 + nf) * 4, 4)
                a = vr(areg(ks, mf), 4)
                b = vr(BF + mx * 28 + nf * 4, 4)
                if 'M' not in EXP or ks == 0:
                    k('v_mfma_f32_16x16x32_bf16 %s, %s, %s, %s' % (acc, b, a, '0' if ks == 0 else acc))
                for _ in range(2):
                    if rd:
                        k(rd.pop(0))
                if no:
                    k(no.pop(0))
                i += 1
        for o in rd + no:
            k(o)
        if hs == 31:
            pass
    k.ts(5)
    k('s_waitcnt vmcnt(0)')
    for mx in range(2):
        for nf in range(7):
            k('ds_read_b128 %s, v%d offset:%d' % (vr(CS + (mx * 7 + nf) * 4, 4), vCs, mx * 448 + nf * 64))
    k('s_waitcnt lgkmcnt(0)')
    n = 0
    for nf in range(7):
        k('s_add_u32 s29, s25, %d' % (nf * 1024))
        for mf in range(2):
            e = E + (n & 3) * 8
            n += 1
            G = ACC + (mf * 14 + nf) * 4
            U = ACC + (mf * 14 + 7 + nf) * 4
            sel = 'op_sel:[0,%d,0] op_sel_hi:[1,%d,1]' % (mf, mf)
            sel2 = 'op_sel:[0,%d] op_sel_hi:[1,%d]' % (mf, mf)
            sel3 = 'op_sel:[0,%d,%d] op_sel_hi:[1,%d,%d]' % (mf, mf, mf, mf)
            for h in range(2):
                k('v_pk_fma_f32 %s, %s, %s, %s %s neg_lo:[0,1,0] neg_hi:[0,1,0]' % (
                    vr(G + 2 * h, 2), vr(CS + nf * 4 + 2 * h, 2), vr(vM, 2), vr(G + 2 * h, 2), sel))
            for h in range(2):
                k('v_pk_mul_f32 %s, %s, %s %s' % (vr(e + 2 * h, 2), vr(G + 2 * h, 2), vr(vC, 2), sel2))
            for r in range(4):
                k('v_exp_f32 v%d, v%d' % (e + r, e + r))
            for h in range(2):
                k('v_pk_fma_f32 %s, %s, %s, %s %s neg_lo:[0,1,0] neg_hi:[0,1,0]' % (
                    vr(U + 2 * h, 2), vr(CS + (7 + nf) * 4 + 2 * h, 2), vr(vM, 2), vr(U + 2 * h, 2), sel))
            for h in range(2):
                k('v_pk_fma_f32 %s, %s, %s, %s %s' % (vr(e + 2 * h, 2), vr(e + 2 * h, 2), vr(vI, 2), vr(vI, 2), sel3))
            for r in range(4):
                k('v_rcp_f32 v%d, v%d' % (e + r, e + r))
            for h in range(2):
                k('v_pk_mul_f32 %s, %s, %s' % (vr(G + 2 * h, 2), vr(G + 2 * h, 2), vr(U + 2 * h, 2)))
            for h in range(2):
                k('v_pk_mul_f32 %s, %s, %s' % (vr(G + 2 * h, 2), vr(G + 2 * h, 2), vr(e + 2 * h, 2)))
            k('v_cvt_pk_bf16_f32 v%d, v%d, v%d' % (e + 4, G, G + 1))
            k('v_cvt_pk_bf16_f32 v%d, v%d, v%d' % (e + 5, G + 2, G + 3))
            k('buffer_store_dwordx2 %s, v%d, s[32:35], s29 offen offset:%d' % (vr(e + 4, 2), vSt, mf * 256))
    k.ts(6)
    k.prof_end(32, 3, 22, 9)
    k.label('K4_done')
    k('s_endpgm')
    return k, dict(vgpr=256, agpr=0, lds=CSB + 1024, grid=256, block=512)
```

```python
from asmlib import Kernel, PROF, PROF_BASE
from k1 import vr, sr, make_srd, WS_Q, WS_K, WS_VT, WS_O, WS_H, WS_HF, WS_HH, WS_ST, WS_CS2, WS_FL, WS_SIZE
from k4 import stats_fin
import struct, os


def f32hex(x):
    return '0x%08x' % struct.unpack('<I', struct.pack('<f', x))[0]


SLOT = 24576
NSL = 6
CSB = NSL * SLOT
DEC = CSB + 1024
LDS_SIZE = DEC + 256
F2, F3, F4 = 128, 384, 512
GST = 15 * 8 * 1024 + 768
POLL_LIMIT = int(os.environ.get('POLL_LIMIT', '0x20000'), 0)
PATIENCE = 48
WSZ = 512 * 1792 * 2
ENV = os.environ.get


class Q:
    def __init__(self, k):
        self.k = k
        self.n = 0
        self.at = {}

    def issue(self, text, tag=None):
        self.k(text)
        self.n += 1
        if tag is not None:
            self.at[tag] = self.n

    def wait(self, *tags):
        m = max(self.at[t] for t in tags)
        self.k('s_waitcnt vmcnt(%d)' % min(63, self.n - m))


def poll(k, L, soff, nd, vt=4):
    k('s_mov_b32 s30, 0')
    k('s_mov_b64 exec, 1')
    k.label(L)
    k('buffer_load_dwordx%d %s, off, s[4:7], s%d sc1' % (nd, vr(vt, nd), soff))
    k('s_add_u32 s30, s30, 1')
    k('s_waitcnt vmcnt(0)')
    k('v_and_b32 v%d, v%d, v%d' % (vt, vt, vt + 1))
    if nd == 4:
        k('v_and_b32 v%d, v%d, v%d' % (vt + 2, vt + 2, vt + 3))
        k('v_and_b32 v%d, v%d, v%d' % (vt, vt, vt + 2))
    k('v_readfirstlane_b32 s31, v%d' % vt)
    k('s_cmp_eq_u32 s31, 0x01010101')
    k('s_cbranch_scc1 %s_x' % L)
    k('s_cmp_lt_u32 s30, 0x%x' % POLL_LIMIT)
    k('s_cbranch_scc1 %s' % L)
    k.label(L + '_x')
    k('s_mov_b64 exec, -1')


def setflag(k, soff, vt):
    k('v_mov_b32 v%d, 1' % vt)
    k('s_waitcnt vmcnt(0)')
    k('s_mov_b64 exec, 1')
    k('buffer_store_byte v%d, off, s[4:7], s%d' % (vt, soff))
    k('s_mov_b64 exec, -1')


def lanes(k):
    k('v_and_b32 v1, 63, v0')
    k('v_and_b32 v2, 15, v1')
    k('v_lshrrev_b32 v3, 4, v1')


def gemm_bd(k, vBd, t0, t1, snt):
    k('''v_lshrrev_b32 v%d, 5, v1
    v_lshlrev_b32 v%d, 2, v%d
    v_bfe_u32 v%d, v1, 2, 2
    v_add_u32 v%d, v%d, v%d
    v_lshlrev_b32 v%d, 10, v%d
    v_bfe_u32 v%d, v1, 4, 1
    v_lshl_add_u32 v%d, v%d, 6, v%d
    v_and_b32 v%d, 3, v1
    v_lshl_add_u32 v%d, v%d, 4, v%d
    v_add_u32 v%d, s%d, v%d''' % (t0, t0, t0, t1, t0, t0, t1, t0, t0, t1, t0, t1, t0, t1, t0, t1, t0, vBd, snt, t0))


def wo_dma(k, vBd, t0, t1, q=None):
    k('s_lshr_b32 s10, s2, 5')
    k('s_lshl_b32 s10, s10, 7')
    gemm_bd(k, vBd, t0, t1, 10)
    k('s_lshl_b32 s10, s3, 17')
    k('s_lshl_b32 s11, s3, 14')
    for i in range(16):
        k('s_add_u32 s30, s10, %d' % (i * 8192))
        k('s_add_u32 m0, s11, %d' % (i * 1024))
        k('buffer_load_dwordx4 v%d, s[12:15], s30 offen lds' % vBd)


def p4_bsetup(k, vBd, t0, t1, sB, sM):
    k('''v_lshrrev_b32 v%d, 2, v1
    v_mul_u32_u24 v%d, 0xe00, v%d
    v_lshrrev_b32 v%d, 5, v1
    v_lshlrev_b32 v%d, 1, v%d
    v_and_b32 v%d, 3, v1
    v_xor_b32 v%d, v%d, v%d
    v_lshl_add_u32 v%d, v%d, 4, v%d''' % (t0, t0, t0, t1, t1, t1, vBd, t1, t1, vBd, vBd, t1, t0))
    k('''s_and_b32 s%d, s3, 1
    s_mul_i32 s%d, s%d, %d
    s_lshr_b32 s10, s2, 4
    s_mul_i32 s11, s10, 224
    s_add_u32 s%d, s%d, s11
    s_and_b32 s10, s10, 1
    s_lshl_b32 s10, s10, 5
    s_sub_u32 s%d, s%d, s10
    s_lshl_b32 s%d, s%d, 10
    s_bfe_u32 s10, s3, 0x10001
    s_lshl_b32 s10, s10, 13
    s_add_u32 s%d, s%d, s10''' % (sM, sB, sM, 16 * 3584, sB, sB, sB, sB, sM, sM, sM, sM))


def p4_bstage(k, ks, vBd, sB, sM, srd, q=None):
    sl = ((ks + 3) % NSL) * SLOT
    for j in range(4):
        k('s_add_u32 s30, s%d, %d' % (sB, ks * 32 * 3584 + j * 64))
        k('s_add_u32 m0, s%d, %d' % (sM, sl + j * 2048))
        t = 'buffer_load_dwordx4 v%d, s[%d:%d], s30 offen lds' % (vBd, srd, srd + 3)
        if q:
            q.issue(t, ('B', ks))
        else:
            k(t)


def p5_bstep(k, s, vBd, sB, sM, srd, q=None):
    qs = (s + 3) % 18
    for h in range(2):
        k('s_add_u32 s30, s%d, %d' % (sB, (s * 16 + h * 8) * 1024))
        k('s_add_u32 m0, s%d, %d' % (sM, qs * 8192 + h * 1024))
        t = 'buffer_load_dwordx4 v%d, s[%d:%d], s30 offen lds' % (vBd, srd, srd + 3)
        if q:
            q.issue(t, ('B', s))
        else:
            k(t)


def phase2(k):
    S = 12
    O = 156
    vQ, vK, vV, vSt, vNeg = 4, 5, 6, 8, 9
    t0, t1 = 10, 11
    vPf = 172
    aK, aV0, aQ = 176, 212, 248
    vCl, vMk, vBd = 252, 253, 254

    def mk(i):
        return 32 + 2 * i
    k.label('J_P2')
    k('''s_cmp_lt_u32 s3, 6
    s_cselect_b32 s10, 32, 40
    s_mov_b32 s14, 0x%x
    s_cmp_lt_u32 s3, 4
    s_cselect_b32 s10, 16, s10
    s_cselect_b32 s14, 0x80000, s14
    s_load_dwordx2 s[12:13], s[0:1], s10
    s_load_dwordx4 s[16:19], s[0:1], 32
    s_mov_b32 s15, 0x00020000''' % WSZ)
    k('''s_lshr_b32 s20, s2, 5
    s_lshl_b32 s20, s20, 2
    s_and_b32 s21, s3, 3
    s_add_u32 s20, s20, s21
    s_and_b32 s21, s2, 7
    s_lshl_b32 s21, s21, 2
    s_bfe_u32 s22, s2, 0x20003
    s_add_u32 s21, s21, s22
    s_lshl_b32 s21, s21, 1
    s_lshr_b32 s23, s3, 2
    s_add_u32 s21, s21, s23
    v_and_b32 v1, 63, v0
    v_and_b32 v2, 31, v1
    v_lshrrev_b32 v3, 5, v1''')
    k('''s_lshl_b32 s22, s22, 6
    s_add_u32 s22, s22, s23
    s_lshl_b32 s23, s20, 1
    s_add_u32 s22, s22, s23
    s_add_u32 s22, s22, s8
    s_add_u32 s22, s22, %d''' % F2)
    k('''s_lshl_b32 s23, s20, 16
    s_lshl_b32 s24, s21, 10
    s_add_u32 s23, s23, s24
    v_lshlrev_b32 v10, 5, v2
    v_lshl_add_u32 v10, v3, 4, v10
    v_add_u32 v%d, s23, v10
    v_add_u32 v%d, 0x%x, v%d
    v_and_b32 v10, 15, v1
    v_lshlrev_b32 v10, 5, v10
    v_lshl_add_u32 v10, v3, 4, v10
    v_add_u32 v10, s23, v10
    v_add_u32 v%d, 0x%x, v10''' % (vQ, vK, WS_K - 8192, vQ, vV, WS_VT - 8192))
    k('s_mov_b32 s26, 4096')
    k('s_mov_b32 s27, 8192')
    k('v_mov_b32 v%d, 0x3f803f80' % t1)

    def so(off):
        return ('0', 's26', 's27')[off // 4096], off % 4096

    k('buffer_load_dwordx4 %s, v%d, s[4:7], 0 offen' % (vr(aQ, 4), vQ))
    for T in range(9):
        s_, i_ = so(T * 1024)
        k('buffer_load_dwordx4 %s, v%d, s[4:7], %s offen offset:%d' % (vr(aK + T * 4, 4), vK, s_, i_))

    def vreg(idx):
        return aV0 + idx * 4 if idx < 9 else aK + (idx - 9) * 4

    def vloads(idxs):
        for idx in idxs:
            for r in range(4):
                k('v_mov_b32 v%d, v%d' % (vreg(idx) + r, t1))
        k('s_mov_b32 exec_lo, 0x0000ffff')
        k('s_mov_b32 exec_hi, 0x0000ffff')
        for idx in idxs:
            s_, i_ = so(idx * 512)
            k('buffer_load_dwordx4 %s, v%d, s[4:7], %s offen offset:%d' % (vr(vreg(idx), 4), vV, s_, i_))
        k('s_mov_b64 exec, -1')

    vloads(range(9))
    k('''s_lshl_b32 s25, s21, 5
    s_add_u32 s25, s25, s20
    s_lshl_b32 s25, s25, 10
    s_add_u32 s25, s25, 0x%x
    v_lshlrev_b32 v10, 4, v2
    v_lshl_add_u32 v10, v3, 3, v10
    v_add_u32 v%d, s25, v10''' % (WS_O, vSt))
    k('v_mov_b32 v%d, %s' % (vNeg, f32hex(-1e9)))
    k('s_sub_i32 s28, 8, s21')
    k('s_max_i32 s28, s28, 0')
    for i in range(16):
        kk = (i >> 2) * 8 + (i & 3)
        m = 0
        for l in range(64):
            if kk > (l & 31) - (l >> 5) * 4:
                m |= 1 << l
        k('s_mov_b32 s%d, 0x%x' % (mk(i), m & 0xffffffff))
        k('s_mov_b32 s%d, 0x%x' % (mk(i) + 1, m >> 32))
    k.ts(2)
    for T in range(9):
        k('s_waitcnt vmcnt(%d)' % (9 + 8 - T))
        k('v_mfma_f32_32x32x16_bf16 %s, %s, %s, 0' % (vr(S + T * 16, 16), vr(aK + T * 4, 4), vr(aQ, 4)))
    vloads(range(9, 18))
    npf = 16
    k('s_waitcnt lgkmcnt(0)')
    k('s_cmp_ge_u32 s3, 4')
    k('s_cbranch_scc1 P2_pfl')
    wo_dma(k, vBd, vPf, vPf + 1)
    k('s_branch P2_pfx')
    k.label('P2_pfl')
    p4_bsetup(k, vBd, vPf, vPf + 1, 23, 24)
    for ks in range(3):
        p4_bstage(k, ks, vBd, 23, 24, 12)
    NPF2 = int(ENV('NPF2', '4'))
    k('''s_lshr_b32 s10, s2, 3
    s_lshl_b32 s10, s10, 1
    s_and_b32 s11, s3, 1
    s_add_u32 s10, s10, s11
    s_lshl_b32 s10, s10, 13
    s_add_u32 s10, s10, %d
    v_lshlrev_b32 v%d, 7, v1''' % (96 * 3584, vPf))
    for i in range(4):
        if i < NPF2:
            k('s_add_u32 s30, s10, %d' % (i * 0x80000))
        k('buffer_load_dword v%d, v%d, s[12:15], s30 offen' % (vPf + 1, vPf))
    k.label('P2_pfx')
    for i in range(16):
        k('v_cndmask_b32_e64 v%d, v%d, v%d, s[%d:%d]' % (S + i, vNeg, S + i, mk(i), mk(i) + 1))
    for i in range(16):
        k('v_cndmask_b32_e64 v%d, v%d, v%d, s[%d:%d]' % (S + 128 + i, S + 128 + i, vNeg, mk(i), mk(i) + 1))
    k('s_cmp_eq_u32 s28, 0')
    k('s_cbranch_scc1 J_P2_nomask')
    for T in range(8):
        k('s_cmp_gt_u32 s28, %d' % T)
        k('s_cbranch_scc0 J_P2_nomask')
        for i in range(16):
            k('v_mov_b32 v%d, v%d' % (S + T * 16 + i, vNeg))
    k.label('J_P2_nomask')
    ch = [O, O + 1, O + 2, O + 3]
    regs = list(range(S, S + 144))
    for c in range(4):
        k('v_max3_f32 v%d, v%d, v%d, v%d' % (ch[c], regs[c * 36], regs[c * 36 + 1], regs[c * 36 + 2]))
    for j in range(3, 35, 2):
        for c in range(4):
            k('v_max3_f32 v%d, v%d, v%d, v%d' % (ch[c], ch[c], regs[c * 36 + j], regs[c * 36 + j + 1]))
    for c in range(4):
        k('v_max_f32 v%d, v%d, v%d' % (ch[c], ch[c], regs[c * 36 + 35]))
    k('v_max3_f32 v%d, v%d, v%d, v%d' % (t0, ch[0], ch[1], ch[2]))
    k('v_max_f32 v%d, v%d, v%d' % (t0, t0, ch[3]))
    k('v_mov_b32 v%d, v%d' % (t1, t0))
    k('v_permlane32_swap_b32 v%d, v%d' % (t0, t1))
    k('v_max_f32 v%d, v%d, v%d' % (t0, t0, t1))
    k.ts(3)
    c_ = 0.25 * 1.4426950408889634
    k('s_mov_b32 s29, %s' % f32hex(c_))
    k('v_mul_f32 v%d, s29, v%d' % (t0, t0))
    first = True
    for T in range(9):
        b = S + T * 16
        if T == 7:
            k('s_mov_b64 exec, 1')
            k('buffer_load_dword v%d, off, s[4:7], s8 sc1' % vMk)
            k('s_mov_b64 exec, -1')
        for i in range(16):
            k('v_fma_f32 v%d, v%d, s29, -v%d' % (b + i, b + i, t0))
        for i in range(16):
            k('v_exp_f32 v%d, v%d' % (b + i, b + i))
        for u in range(2):
            for j in range(4):
                k('v_cvt_pk_bf16_f32 v%d, v%d, v%d' % (b + 8 * u + j, b + 8 * u + 2 * j, b + 8 * u + 2 * j + 1))
        for u in range(2):
            idx = 2 * T + u
            if idx == 0:
                k('s_waitcnt vmcnt(%d)' % (9 + npf))
            if idx == 9:
                k('s_waitcnt vmcnt(%d)' % npf)
            k('v_mfma_f32_32x32x16_bf16 %s, %s, %s, %s' % (
                vr(O, 16), vr(vreg(idx), 4), vr(b + 8 * u, 4), '0' if first else vr(O, 16)))
            first = False
    k('v_rcp_f32 v%d, v%d' % (t0, O + 8))
    for i in range(8):
        k('v_mul_f32 v%d, v%d, v%d' % (O + i, O + i, t0))
    for j in range(4):
        k('v_cvt_pk_bf16_f32 v%d, v%d, v%d' % (O + j, O + 2 * j, O + 2 * j + 1))
    k('buffer_store_dwordx2 %s, v%d, s[4:7], 0 offen' % (vr(O, 2), vSt))
    k('buffer_store_dwordx2 %s, v%d, s[4:7], 0 offen offset:512' % (vr(O + 2, 2), vSt))
    setflag(k, 22, t0)
    k.ts(4)
    k('s_cmp_lg_u32 s100, 0')
    k('s_cbranch_scc1 J_SLOW_claim')
    k('s_cmp_lg_u32 s3, 0')
    k('s_cbranch_scc1 P2_dec')
    k('''v_readfirstlane_b32 s10, v%d
    v_readfirstlane_b32 s11, v%d
    s_lshr_b32 s30, s2, 3
    s_lshr_b32 s10, s10, s30
    s_and_b32 s10, s10, 1
    s_cmp_lg_u32 s11, -1
    s_cselect_b32 s11, 2, 0
    s_or_b32 s10, s10, s11
    v_mov_b32 v4, s10
    v_mov_b32 v5, 0x%x
    ds_write_b32 v5, v4
    s_waitcnt lgkmcnt(0)''' % (vCl, vMk, DEC))
    k.label('P2_dec')
    k('v_mov_b32 v5, 0x%x' % DEC)
    k('s_barrier')
    k('ds_read_b32 v4, v5')
    k('s_waitcnt lgkmcnt(0)')
    k('v_readfirstlane_b32 s10, v4')
    k('s_cmp_lg_u32 s10, 0')
    k('s_cbranch_scc1 J_SLOW_start')


def gemm(k, p3):
    L = 'P3' if p3 else 'P5'
    KT = 32 if p3 else 112
    wsA = WS_O if p3 else WS_HH
    NS = KT // 4
    NR = min(NS, 16)
    PF = NS if NS <= NR else NR - 1
    RS = 16384
    AR = 28 if p3 else 24
    BFR = AR + NR * 8
    ACC = BFR + 16
    RES = ACC + 64
    T = RES + 8
    vA0, vA1, vBd, vBr, vOut, vRes = 8, 9, 10, 11, 12, 13
    vW = 14
    vR = 18
    vFw, vFr, vFo = 22, 23, 24
    vSt = 25
    SCR = 4 * RS
    tsb = 5 if p3 else 11
    k('s_load_dwordx2 s[10:11], s[0:1], %d' % (0 if p3 else 56))
    if not p3:
        k('s_load_dwordx2 s[12:13], s[0:1], 48')
    k('''s_and_b32 s20, s2, 7
    s_lshl_b32 s20, s20, 2
    s_bfe_u32 s22, s2, 0x20003
    s_add_u32 s20, s20, s22
    s_lshr_b32 s21, s2, 5''')
    lanes(k)
    if p3:
        k('s_lshl_b32 s29, s22, 6')
        k('s_lshl_b32 s23, s3, 4')
    else:
        k('s_lshl_b32 s29, s22, 5')
        k('s_lshl_b32 s23, s3, 3')
    k('s_add_u32 s29, s29, s23')
    k('s_add_u32 s29, s29, s8')
    k('s_add_u32 s29, s29, %d' % (F2 if p3 else F4))
    if p3:
        k('''s_lshl_b32 s40, s22, 2
        s_add_u32 s40, s40, s3
        s_lshl_b32 s40, s40, 3
        s_add_u32 s40, s40, s21
        s_add_u32 s40, s40, s8
        s_add_u32 s40, s40, %d''' % F3)
    k('s_mul_i32 s23, s20, %d' % (2 * KT * 1024))
    k('s_mul_i32 s24, s3, %d' % (NS * 1024))
    k('s_add_u32 s23, s23, s24')
    k('s_add_u32 s23, s23, 0x%x' % wsA)
    k('v_lshlrev_b32 v4, 4, v1')
    k('v_add_u32 v%d, s23, v4' % vA0)
    k('v_add_u32 v%d, %d, v%d' % (vA1, KT * 1024, vA0))
    k('s_lshl_b32 s24, s21, 7')
    if not p3:
        gemm_bd(k, vBd, 4, 5, 24)
        k('s_mul_i32 s25, s3, %d' % (NS * 16 * 1024))
    k('s_lshl_b32 s26, s3, %d' % (14 if p3 else 11))
    k('''v_lshrrev_b32 v4, 1, v3
    v_lshlrev_b32 v4, 10, v4
    v_lshrrev_b32 v5, 2, v2
    v_lshl_add_u32 v4, v5, 6, v4
    v_and_b32 v5, 1, v3
    v_lshl_add_u32 v4, v5, 5, v4
    v_and_b32 v5, 3, v2
    v_lshl_add_u32 v4, v5, 3, v4
    v_add_u32 v%d, s26, v4''' % vBr)
    if not p3:
        k('v_add_u32 v%d, 0x10000, v%d' % (vFw, vBr))
        k('v_add_u32 v%d, 0x20000, v%d' % (vFr, vBr))
    k('v_and_b32 v4, 31, v1')
    if p3:
        k('v_lshlrev_b32 v5, 8, v4')
    else:
        k('v_lshrrev_b32 v5, 3, v4')
        k('v_lshlrev_b32 v5, 13, v5')
        k('v_and_b32 v6, 7, v4')
        k('v_lshl_add_u32 v5, v6, 8, v5')
    k('v_add_u32 v5, s26, v5')
    k('v_and_b32 v4, 7, v4')
    k('v_lshrrev_b32 v6, 5, v1')
    k('v_xor_b32 v4, v4, v6')
    for q in range(4):
        k('v_xor_b32 v6, %d, v4' % (q * 2))
        k('v_lshl_add_u32 v%d, v6, 4, v5' % (vW + q))
    k('s_lshl_b32 s27, s3, %d' % (12 if p3 else 14))
    k('v_lshrrev_b32 v4, 3, v1')
    k('v_lshlrev_b32 v5, 8, v4')
    k('v_add_u32 v5, s27, v5')
    k('v_and_b32 v6, 7, v1')
    k('v_lshlrev_b32 v6, 1, v6')
    k('v_xor_b32 v6, v6, v4')
    k('v_lshl_add_u32 v%d, v6, 4, v5' % vR)
    k('v_xor_b32 v6, 1, v6')
    k('v_lshl_add_u32 v%d, v6, 4, v5' % (vR + 1))
    k('''s_lshl_b32 s27, s3, 4
    s_lshl_b32 s28, s20, 6
    s_add_u32 s27, s27, s28
    s_lshl_b32 s27, s27, 10
    s_add_u32 s27, s27, s24
    v_lshlrev_b32 v5, 10, v4
    v_and_b32 v6, 7, v1
    v_lshl_add_u32 v5, v6, 4, v5
    v_add_u32 v4, s27, v5''')
    k('v_add_u32 v%d, 0x%x, v4' % (vOut, WS_H if p3 else 0))
    k('v_add_u32 v%d, 0x%x, v4' % (vRes, 0 if p3 else WS_H))
    k('s_mov_b32 s41, 8192')
    if p3:
        k('''s_lshl_b32 s27, s3, 11
        v_lshrrev_b32 v4, 3, v1
        v_and_b32 v5, 3, v1
        v_lshl_add_u32 v4, v5, 4, v4
        v_lshlrev_b32 v4, 4, v4
        v_bfe_u32 v5, v1, 2, 1
        v_lshl_add_u32 v4, v5, 10, v4
        v_add_u32 v4, s27, v4''')
        k('v_add_u32 v%d, %d, v4' % (vFw, SCR))
        k('v_lshlrev_b32 v4, 4, v1')
        k('v_add_u32 v5, s27, v4')
        k('v_add_u32 v%d, %d, v5' % (vFr, SCR))
        k('''s_lshl_b32 s27, s20, 2
        s_add_u32 s27, s27, s3
        s_lshl_b32 s27, s27, 4
        s_lshl_b32 s28, s21, 1
        s_add_u32 s27, s27, s28
        s_lshl_b32 s27, s27, 10''')
        k('s_add_u32 s27, s27, 0x%x' % WS_HF)
        k('v_add_u32 v%d, s27, v4' % vFo)
        k('''s_lshl_b32 s27, s20, 2
        s_add_u32 s27, s27, s3
        s_lshl_b32 s27, s27, 10
        s_lshl_b32 s28, s21, 3
        s_add_u32 s27, s27, s28
        v_lshrrev_b32 v4, 3, v1
        v_lshlrev_b32 v4, 6, v4''')
        k('s_add_u32 s27, s27, 0x%x' % WS_ST)
        k('v_add_u32 v%d, s27, v4' % vSt)
        k('s_mov_b32 s44, 0x3f803f80')
        k('s_mov_b32 s42, 0x01010101')
        k('s_mov_b32 s43, 0x01010101')
    k('s_waitcnt lgkmcnt(0)')
    make_srd(k, 16, 10, 11, 2048 * 512 * 2)
    if not p3:
        k('s_mov_b32 s14, 0x%x' % WSZ)
        k('s_mov_b32 s15, 0x00020000')
        yield 'pre'
    rsrd, osrd = (16, 4) if p3 else (4, 16)
    poll(k, L + '_poll', 29, 4 if p3 else 2)
    k.ts(tsb)
    q = Q(k)

    def aloads(s):
        slot = s % NR
        k('s_mov_b32 s30, %d' % (s * 1024))
        for mi in range(2):
            q.issue('buffer_load_dwordx4 %s, v%d, s[4:7], s30 offen sc1' % (vr(AR + slot * 8 + mi * 4, 4), vA0 + mi), ('A', s))

    def reads(s):
        p = s & 1
        if p3:
            base, va = s * 2048, vBr
        else:
            a = ((s + 3) % 18) * 8192
            va = (vBr, vFw, vFr)[a >> 16]
            base = a & 0xffff
        for nb in range(2):
            for sec in range(2):
                k('ds_read_b64_tr_b16 %s, v%d offset:%d' % (
                    vr(BFR + p * 8 + nb * 4 + sec * 2, 2), va, base + sec * 512 + nb * 256))

    issued = 0
    for s in range(PF):
        aloads(s)
        issued += 1
    for j in range(2):
        q.issue('buffer_load_dwordx4 %s, v%d, s[%d:%d], %s offen%s' % (
            vr(RES + 4 * j, 4), vRes, rsrd, rsrd + 3, 's41' if j else '0', '' if p3 else ' sc1'), ('R', j))
    reads(0)
    for s in range(NS):
        p = s & 1
        if s + 1 < NS:
            if ('B', s + 1) in q.at:
                q.wait(('B', s + 1))
            reads(s + 1)
            k('s_waitcnt lgkmcnt(4)')
        else:
            k('s_waitcnt lgkmcnt(0)')
        q.wait(('A', s))
        slot = s % NR
        for mi in range(2):
            for nb in range(2):
                acc = vr(ACC + (mi * 2 + nb) * 16, 16)
                k('v_mfma_f32_32x32x16_bf16 %s, %s, %s, %s' % (
                    acc, vr(BFR + p * 8 + nb * 4, 4), vr(AR + slot * 8 + mi * 4, 4), '0' if s == 0 else acc))
        if issued < NS:
            aloads(issued)
            issued += 1
        if not p3 and s + 18 < NS:
            p5_bstep(k, s + 18, vBd, 25, 26, 12, q)
    k.ts(tsb + 1)
    for t in range(4):
        for qq in range(4):
            k('ds_write_b128 v%d, %s offset:%d' % (vW + qq, vr(ACC + t * 16 + qq * 4, 4),
                                                   (t >> 1) * (8192 if p3 else 32768) + (t & 1) * 128))
    k('s_waitcnt lgkmcnt(0)')
    k('s_barrier')
    for j in range(2):
        for src in range(4):
            for e in range(2):
                off = (src * RS + j * 2048) if p3 else (src * 2048 + j * 8192)
                k('ds_read_b128 %s, v%d offset:%d' % (vr(ACC + (j * 4 + src) * 8 + e * 4, 4), vR + e, off))
    for j in range(2):
        b = ACC + j * 32
        k('s_waitcnt lgkmcnt(%d)' % (12 - 8 * j))
        for i in range(8):
            k('v_add_f32 v%d, v%d, v%d' % (b + i, b + i, b + 8 + i))
        k('s_waitcnt lgkmcnt(%d)' % (8 - 8 * j))
        for i in range(8):
            k('v_add_f32 v%d, v%d, v%d' % (b + 16 + i, b + 16 + i, b + 24 + i))
        for i in range(8):
            k('v_add_f32 v%d, v%d, v%d' % (b + i, b + i, b + 16 + i))
        if j == 0:
            k('s_waitcnt vmcnt(0)')
        for i in range(4):
            k('v_cvt_pk_bf16_f32 v%d, v%d, v%d' % (T + 4, b + 2 * i, b + 2 * i + 1))
            k('v_lshlrev_b32 v%d, 16, v%d' % (T, T + 4))
            k('v_and_b32 v%d, 0xffff0000, v%d' % (T + 1, T + 4))
            k('v_lshlrev_b32 v%d, 16, v%d' % (T + 2, RES + 4 * j + i))
            k('v_and_b32 v%d, 0xffff0000, v%d' % (T + 3, RES + 4 * j + i))
            k('v_add_f32 v%d, v%d, v%d' % (T, T, T + 2))
            k('v_add_f32 v%d, v%d, v%d' % (T + 1, T + 1, T + 3))
            k('v_cvt_pk_bf16_f32 v%d, v%d, v%d' % (T + 8 + 4 * j + i, T, T + 1))
        k('buffer_store_dwordx4 %s, v%d, s[%d:%d], %s offen' % (vr(T + 8 + 4 * j, 4), vOut, osrd, osrd + 3, 's41' if j else '0'))
        if p3:
            k('ds_write_b128 v%d, %s offset:%d' % (vFw, vr(T + 8 + 4 * j, 4), j * 128))
            for i in range(4):
                d = T + 8 + 4 * j + i
                k('v_dot2_f32_bf16 v%d, v%d, s44, %s' % (BFR + 2 * j, d, 'v%d' % (BFR + 2 * j) if i else '0'))
                k('v_dot2_f32_bf16 v%d, v%d, v%d, %s' % (BFR + 2 * j + 1, d, d, 'v%d' % (BFR + 2 * j + 1) if i else '0'))
    if p3:
        k('s_waitcnt lgkmcnt(0)')
        for j in range(2):
            k('ds_read_b128 %s, v%d offset:%d' % (vr(ACC + 4 * j, 4), vFr, j * 1024))
        DP = ' row_mask:0xf bank_mask:0xf'
        for m in ('quad_perm:[1,0,3,2]', 'quad_perm:[2,3,0,1]', 'row_half_mirror'):
            for i in range(4):
                k('v_add_f32_dpp v%d, v%d, v%d %s%s' % (BFR + i, BFR + i, BFR + i, m, DP))
        k('s_mov_b64 exec, s[42:43]')
        for j in range(2):
            k('buffer_store_dwordx2 %s, v%d, s[4:7], 0 offen offset:%d' % (vr(BFR + 2 * j, 2), vSt, j * 512))
        k('s_mov_b64 exec, -1')
        for j in range(2):
            k('s_waitcnt lgkmcnt(%d)' % (1 - j))
            k('buffer_store_dwordx4 %s, v%d, s[4:7], 0 offen offset:%d' % (vr(ACC + 4 * j, 4), vFo, j * 1024))
    yield 'end'


def cs_sum(k):
    k('''s_lshr_b32 s10, s2, 4
    s_mul_i32 s10, s10, 448
    s_bfe_u32 s11, s3, 0x10001
    s_mul_i32 s30, s11, 7168
    s_add_u32 s10, s10, s30
    s_add_u32 s10, s10, 0x%x
    s_mul_i32 s11, s11, 448
    s_add_u32 s11, s11, %d
    v_and_b32 v4, 31, v1
    v_lshlrev_b32 v4, 4, v4
    v_add_u32 v6, s11, v4
    v_lshrrev_b32 v5, 5, v1
    v_mul_u32_u24 v5, %d, v5
    v_add_u32 v4, v4, v5''' % (WS_CS2, CSB, 8 * 14336))
    for p in range(8):
        k('s_add_u32 s30, s10, %d' % (p * 14336))
        k('buffer_load_dwordx4 %s, v4, s[4:7], s30 offen' % vr(32 + p * 4, 4))
    for p in range(1, 8):
        k('s_waitcnt vmcnt(%d)' % (7 - p))
        for i in range(4):
            k('v_add_f32 v%d, v%d, v%d' % (32 + i, 32 + i, 32 + p * 4 + i))
    for i in range(4):
        k('v_mov_b32 v%d, v%d' % (36 + i, 32 + i))
    for i in range(4):
        k('v_permlane32_swap_b32 v%d, v%d' % (32 + i, 36 + i))
    for i in range(4):
        k('v_add_f32 v%d, v%d, v%d' % (32 + i, 32 + i, 36 + i))
    k('s_mov_b64 exec, 0x0fffffff')
    k('ds_write_b128 v6, v[32:35]')
    k('s_mov_b64 exec, -1')


def p4_loader(k):
    vA, vBd, vB5, vG = 8, 16, 17, 18
    RAMP = int(ENV('RAMP', '2'))
    k.label('J_LD4')
    k('s_and_b32 s22, s3, 3')
    k('''s_cmp_lt_u32 s22, 2
    s_cselect_b32 s10, 32, 40
    s_load_dwordx2 s[16:17], s[0:1], s10
    s_load_dwordx2 s[12:13], s[0:1], 48''')
    k('v_and_b32 v1, 63, v0')
    k('''s_and_b32 s20, s2, 7
    s_lshl_b32 s20, s20, 1
    s_bfe_u32 s21, s2, 0x10003
    s_add_u32 s20, s20, s21
    s_lshl_b32 s23, s20, 17
    s_lshl_b32 s24, s22, 15
    s_add_u32 s23, s23, s24
    s_add_u32 s23, s23, 0x%x
    v_lshlrev_b32 v4, 4, v1
    v_add_u32 v%d, s23, v4''' % (WS_HF, vA))
    k('''s_lshl_b32 s29, s21, 6
    s_lshl_b32 s24, s22, 4
    s_add_u32 s29, s29, s24
    s_add_u32 s29, s29, s8
    s_add_u32 s29, s29, %d''' % F3)
    for i in range(1, 8):
        k('s_mov_b32 s%d, %d' % (47 + i, i * 4096))
    p4_bsetup(k, vBd, 4, 5, 26, 27)
    k('s_lshl_b32 s28, s22, 11')
    k('s_lshr_b32 s10, s2, 5')
    k('s_lshl_b32 s10, s10, 7')
    gemm_bd(k, vB5, 4, 5, 10)
    k('s_mul_i32 s25, s22, %d' % (28 * 16 * 1024))
    k('v_lshlrev_b32 v%d, 10, v1' % vG)
    k('s_mov_b32 s40, 0x%x' % (WS_FL + GST))
    k('s_waitcnt lgkmcnt(0)')
    k('s_mov_b32 s18, 0x%x' % WSZ)
    k('s_mov_b32 s19, 0x00020000')
    k('s_mov_b32 s14, 0x%x' % WSZ)
    k('s_mov_b32 s15, 0x00020000')
    poll(k, 'LD4_poll', 29, 4)
    k.ts(8)
    q = Q(k)

    def astage(ks):
        sl = ((ks + 3) % NSL) * SLOT
        for mf in range(2):
            o_ = (mf * 16 + ks) * 1024
            k('s_add_u32 m0, s28, %d' % (sl + 16384 + mf * 1024 - o_ % 4096))
            q.issue('buffer_load_dwordx4 v%d, s[4:7], %s offen offset:%d sc1 lds' % (
                vA, ('s%d' % (47 + o_ // 4096)) if o_ >= 4096 else '0', o_ % 4096), ('S', ks))

    def stage(ks):
        astage(ks)
        if ks >= 3:
            p4_bstage(k, ks, vBd, 26, 27, 16, q)
            q.at[('S', ks)] = q.n

    issued = 0
    for ks in range(3):
        stage(ks)
        issued += 1
    for ks in range(16):
        q.wait(('S', ks))
        k('s_barrier')
        for _ in range(RAMP):
            if issued < 16 and issued <= ks + NSL - 1:
                stage(issued)
                issued += 1
        if ks == 8:
            k('s_mov_b64 exec, 0xff')
            q.issue('buffer_load_dword v%d, v%d, s[4:7], s40 offen sc1' % (vG + 1, vG), 'G')
            k('s_mov_b64 exec, -1')
        if ks >= 11:
            for s in range((ks - 11) * 3, (ks - 11) * 3 + 3):
                p5_bstep(k, s, vB5, 25, 28, 12, q)
    k('s_barrier')
    k('s_cmp_lg_u32 s100, 0')
    k('s_cbranch_scc1 J_SLOW_next')
    for s in range(15, 18):
        p5_bstep(k, s, vB5, 25, 28, 12, q)
    q.wait('G')
    k('s_mov_b64 exec, 0xff')
    k('v_cmp_eq_u32 vcc, 0, v%d' % (vG + 1))
    k('s_mov_b64 exec, -1')
    k('v_mov_b32 v5, 0x%x' % DEC)
    k('s_and_b32 s10, vcc_lo, 0xff')
    k('v_mov_b32 v4, s10')
    k('s_cmp_lg_u32 s3, 4')
    k('s_cbranch_scc1 LD4_nw')
    k('ds_write_b32 v5, v4 offset:4')
    k.label('LD4_nw')
    k('s_waitcnt vmcnt(0) lgkmcnt(0)')
    k.ts(9)
    k('s_barrier')
    k('ds_read_b32 v4, v5 offset:4')
    k('s_waitcnt lgkmcnt(0)')
    k('v_readfirstlane_b32 s10, v4')
    k('s_cmp_lg_u32 s10, 0')
    k('s_cbranch_scc1 LD4_steal')
    prof_end(k)
    k('s_endpgm')
    k.label('LD4_steal')
    k('s_barrier')
    k('s_branch J_SLOW_end')


def p4_comp(k):
    SS = 18
    vM, vC, vI = 26, 28, 30
    AF = 32
    BF = 48
    ACC = 104
    T = 216
    E = 224
    CS = BF
    vSt = 9
    vRd = 10
    vRa = 14
    vCs = 17
    vS2 = 16
    k.label('J_P4')
    lanes(k)
    k('''s_and_b32 s20, s2, 7
    s_lshl_b32 s20, s20, 1
    s_bfe_u32 s22, s2, 0x10003
    s_add_u32 s20, s20, s22
    s_lshr_b32 s21, s2, 4''')
    k('''s_lshl_b32 s40, s22, 1
    s_lshr_b32 s23, s3, 1
    s_add_u32 s40, s40, s23
    s_lshl_b32 s40, s40, 4
    s_add_u32 s40, s40, s21
    s_lshl_b32 s40, s40, 1
    s_and_b32 s23, s3, 1
    s_add_u32 s40, s40, s23
    s_add_u32 s40, s40, s8
    s_add_u32 s40, s40, %d''' % F4)
    k('''v_lshlrev_b32 v4, 3, v3
    v_lshrrev_b32 v5, 2, v2
    v_add_u32 v4, v4, v5
    v_lshlrev_b32 v4, 6, v4
    v_and_b32 v5, 3, v2
    v_lshl_add_u32 v4, v5, 3, v4
    s_and_b32 s30, s21, 1
    v_and_b32 v5, 1, v3
    v_xor_b32 v5, s30, v5
    v_lshl_add_u32 v%d, v5, 5, v4
    v_xor_b32 v5, 1, v5
    v_lshl_add_u32 v4, v5, 5, v4
    s_lshl_b32 s30, s30, 11
    v_add_u32 v%d, s30, v4''' % (vRd, vRd + 1))
    for par in range(2):
        k('v_add_u32 v%d, %d, v%d' % (vRd + 2 + par, 3 * SLOT, vRd + par))
    k('s_lshl_b32 s28, s3, 11')
    k('s_add_u32 s28, s28, 16384')
    k('v_lshlrev_b32 v4, 4, v1')
    k('v_add_u32 v%d, s28, v4' % vRa)
    k('v_add_u32 v%d, %d, v%d' % (vRa + 1, 3 * SLOT, vRa))
    k('''v_lshrrev_b32 v4, 1, v3
    v_lshlrev_b32 v4, 5, v4
    v_add_u32 v4, v4, v2
    v_lshlrev_b32 v4, 4, v4
    v_and_b32 v5, 1, v3
    v_lshl_add_u32 v%d, v5, 3, v4''' % vSt)
    k('''s_lshl_b32 s25, s20, 2
    s_add_u32 s25, s25, s3
    s_mul_i32 s25, s25, 112
    s_mul_i32 s30, s21, 7
    s_add_u32 s25, s25, s30
    s_lshl_b32 s25, s25, 10
    s_add_u32 s25, s25, 0x%x''' % WS_HH)
    k('v_lshlrev_b32 v4, 4, v3')
    k('v_add_u32 v%d, 0x%x, v4' % (vCs, CSB))
    k('''s_lshl_b32 s30, s20, 2
    s_add_u32 s30, s30, s3
    s_lshl_b32 s30, s30, 11
    s_add_u32 s30, s30, 0x%x
    v_lshl_add_u32 v4, v2, 6, v4
    v_add_u32 v%d, s30, v4''' % (WS_ST, vS2))
    yield 'pre'

    def areg(ks, mf):
        return AF + ((ks & 1) * 2 + mf) * 4

    def reads(hs):
        ks, mx = hs >> 1, hs & 1
        slot = (ks + 3) % NSL
        out = []
        if mx == 0:
            for mf in range(2):
                out.append('ds_read_b128 %s, v%d offset:%d' % (vr(areg(ks, mf), 4), vRa + slot // 3, (slot % 3) * SLOT + mf * 1024))
        for nf in range(7):
            for kgl in range(2):
                out.append('ds_read_b64_tr_b16 %s, v%d offset:%d' % (
                    vr(BF + mx * 28 + nf * 4 + kgl * 2, 2), vRd + (slot // 3) * 2 + (nf & 1),
                    (slot % 3) * SLOT + mx * 8192 + (nf >> 1) * 2048 + kgl * 256))
        return out

    class Lst:
        def __init__(self):
            self.l = []

        def __call__(self, x):
            self.l.append(x)

    k('s_barrier')
    k.ts(8)
    for o in reads(0):
        k(o)
    for mf in range(2):
        k('buffer_load_dwordx4 %s, v%d, s[4:7], 0 offen offset:%d sc1' % (vr(SS + mf * 4, 4), vS2, mf * 1024))
    SF = Lst()
    stats_fin(SF, SS, T, vM, vC, vI)
    no = []
    for hs in range(32):
        ks, mx = hs >> 1, hs & 1
        k('s_waitcnt lgkmcnt(0)')
        if mx == 1 and ks + 1 < 16:
            k('s_barrier')
        rd = reads(hs + 1) if hs + 1 < 32 else []
        if hs == 8:
            k('s_waitcnt vmcnt(0)')
            no = SF.l
        for nf in range(7):
            for mf in range(2):
                acc = vr(ACC + (mf * 14 + mx * 7 + nf) * 4, 4)
                a = vr(areg(ks, mf), 4)
                b = vr(BF + mx * 28 + nf * 4, 4)
                k('v_mfma_f32_16x16x32_bf16 %s, %s, %s, %s' % (acc, b, a, '0' if ks == 0 else acc))
                for _ in range(2):
                    if rd:
                        k(rd.pop(0))
                if no and not rd:
                    k(no.pop(0))
                    if no:
                        k(no.pop(0))
        for o in rd:
            k(o)
    assert not no
    k.ts(9)
    k('s_barrier')
    for mx in range(2):
        for nf in range(7):
            k('ds_read_b128 %s, v%d offset:%d' % (vr(CS + (mx * 7 + nf) * 4, 4), vCs, mx * 448 + nf * 64))
    k('s_waitcnt lgkmcnt(0)')
    n = 0
    for nf in range(7):
        k('s_add_u32 s29, s25, %d' % (nf * 1024))
        for mf in range(2):
            e = E + (n & 3) * 8
            n += 1
            G = ACC + (mf * 14 + nf) * 4
            U = ACC + (mf * 14 + 7 + nf) * 4
            sel = 'op_sel:[0,%d,0] op_sel_hi:[1,%d,1]' % (mf, mf)
            sel2 = 'op_sel:[0,%d] op_sel_hi:[1,%d]' % (mf, mf)
            sel3 = 'op_sel:[0,%d,%d] op_sel_hi:[1,%d,%d]' % (mf, mf, mf, mf)
            for h in range(2):
                k('v_pk_fma_f32 %s, %s, %s, %s %s neg_lo:[0,1,0] neg_hi:[0,1,0]' % (
                    vr(G + 2 * h, 2), vr(CS + nf * 4 + 2 * h, 2), vr(vM, 2), vr(G + 2 * h, 2), sel))
            for h in range(2):
                k('v_pk_mul_f32 %s, %s, %s %s' % (vr(e + 2 * h, 2), vr(G + 2 * h, 2), vr(vC, 2), sel2))
            for r in range(4):
                k('v_exp_f32 v%d, v%d' % (e + r, e + r))
            for h in range(2):
                k('v_pk_fma_f32 %s, %s, %s, %s %s neg_lo:[0,1,0] neg_hi:[0,1,0]' % (
                    vr(U + 2 * h, 2), vr(CS + (7 + nf) * 4 + 2 * h, 2), vr(vM, 2), vr(U + 2 * h, 2), sel))
            for h in range(2):
                k('v_pk_fma_f32 %s, %s, %s, %s %s' % (vr(e + 2 * h, 2), vr(e + 2 * h, 2), vr(vI, 2), vr(vI, 2), sel3))
            for r in range(4):
                k('v_rcp_f32 v%d, v%d' % (e + r, e + r))
            for h in range(2):
                k('v_pk_mul_f32 %s, %s, %s' % (vr(G + 2 * h, 2), vr(G + 2 * h, 2), vr(U + 2 * h, 2)))
            for h in range(2):
                k('v_pk_mul_f32 %s, %s, %s' % (vr(G + 2 * h, 2), vr(G + 2 * h, 2), vr(e + 2 * h, 2)))
            k('v_cvt_pk_bf16_f32 v%d, v%d, v%d' % (e + 4, G, G + 1))
            k('v_cvt_pk_bf16_f32 v%d, v%d, v%d' % (e + 5, G + 2, G + 3))
            k('buffer_store_dwordx2 %s, v%d, s[4:7], s29 offen offset:%d' % (vr(e + 4, 2), vSt, mf * 256))
    yield 'end'


def prof_end(k):
    if not PROF:
        return
    k('s_waitcnt vmcnt(0)')
    k.ts(14)
    k.ts(15, True)
    k('s_waitcnt lgkmcnt(0)')
    k('s_lshl_b32 s99, s2, 3')
    k('s_add_u32 s99, s99, s3')
    k('s_lshl_b32 s99, s99, 7')
    k('s_add_u32 s99, s99, 0x%x' % (PROF_BASE + 0x40000))
    k('v_mov_b32 v4, 0')
    for i in range(16):
        k('v_mov_b32 v2, s%d' % (64 + 2 * i))
        k('v_mov_b32 v3, s%d' % (65 + 2 * i))
        k('buffer_store_dwordx2 v[2:3], v4, s[4:7], s99 offen offset:%d' % (8 * i))
        k('s_nop 1')


def bcast_read(k, off):
    k('v_mov_b32 v5, 0x%x' % DEC)
    k('s_barrier')
    k('ds_read_b32 v4, v5 offset:%d' % off)
    k('s_waitcnt lgkmcnt(0)')
    k('v_readfirstlane_b32 s10, v4')


def slow(k):
    k.label('J_SLOW_start')
    k('s_lshr_b32 s11, s2, 3')
    k('s_lshl_b32 s9, 1, s11')
    k('s_bitcmp1_b32 s10, 0')
    k('s_cselect_b32 s9, 0, s9')
    k('s_mov_b32 s100, 1')
    k('s_mov_b32 s97, %d' % PATIENCE)
    k.label('J_SLOW_claim')
    k('s_waitcnt vmcnt(0) lgkmcnt(0)')
    k('s_barrier')
    k('s_cmp_lg_u32 s3, 0')
    k('s_cbranch_scc1 SL_c9')
    k('s_mov_b64 exec, 1')
    k('s_mov_b32 s30, 0')
    k('s_mov_b32 s31, 0')
    k.label('J_SL_c1')
    k('v_mov_b32 v4, 0')
    k('buffer_atomic_or v4, off, s[4:7], s8 sc0')
    k('s_add_u32 s31, s31, 1')
    k('s_waitcnt vmcnt(0)')
    k('v_readfirstlane_b32 s10, v4')
    k('s_mov_b32 s11, -1')
    k('s_cmp_eq_u32 s10, -1')
    k('s_cbranch_scc1 SL_c8')
    k('s_cmp_gt_u32 s31, 4096')
    k('s_cbranch_scc1 SL_c8')
    k('s_cmp_eq_u32 s9, 0')
    k('s_cbranch_scc1 SL_c2')
    k('s_cmp_ge_u32 s30, s97')
    k('s_cbranch_scc1 SL_c2')
    k('s_add_u32 s30, s30, 1')
    k('s_sleep 16')
    k('s_branch J_SL_c1')
    k.label('SL_c2')
    k('s_ff0_i32_b32 s11, s10')
    k('s_lshl_b32 s10, 1, s11')
    k('v_mov_b32 v4, s10')
    k('buffer_atomic_or v4, off, s[4:7], s8 sc0')
    k('s_waitcnt vmcnt(0)')
    k('v_readfirstlane_b32 s12, v4')
    k('s_and_b32 s12, s12, s10')
    k('s_cmp_lg_u32 s12, 0')
    k('s_cbranch_scc1 J_SL_c1')
    k.label('SL_c8')
    k('v_mov_b32 v4, s11')
    k('v_mov_b32 v5, 0x%x' % DEC)
    k('ds_write_b32 v5, v4 offset:8')
    k('s_mov_b64 exec, -1')
    k('s_waitcnt lgkmcnt(0)')
    k.label('SL_c9')
    bcast_read(k, 8)
    k('s_cmp_eq_u32 s10, -1')
    k('s_cbranch_scc1 SL_ph')
    k('s_and_b32 s10, s10, 31')
    k('s_lshl_b32 s11, 1, s10')
    k('s_or_b32 s9, s9, s11')
    k('s_and_b32 s2, s2, 7')
    k('s_lshl_b32 s10, s10, 3')
    k('s_or_b32 s2, s2, s10')
    k('s_branch J_P2')
    k.label('SL_ph')
    k('s_mov_b32 s100, 3')
    k('s_mov_b32 s101, s9')
    k.label('J_SLOW_next')
    k('s_waitcnt vmcnt(0) lgkmcnt(0)')
    k('s_barrier')
    k('s_cmp_lg_u32 s101, 0')
    k('s_cbranch_scc1 SL_n1')
    k('s_add_u32 s100, s100, 1')
    k('s_mov_b32 s101, s9')
    k('s_cmp_gt_u32 s100, 5')
    k('s_cbranch_scc1 J_SLOW_end')
    k('s_branch J_SLOW_next')
    k.label('SL_n1')
    k('s_ff1_i32_b32 s10, s101')
    k('s_bitset0_b32 s101, s10')
    k('s_and_b32 s2, s2, 7')
    k('s_lshl_b32 s10, s10, 3')
    k('s_or_b32 s2, s2, s10')
    k('v_and_b32 v1, 63, v0')
    k('s_cmp_ge_u32 s3, 4')
    k('s_cbranch_scc1 SL_ld')
    k('s_cmp_eq_u32 s100, 4')
    k('s_cbranch_scc1 J_P4')
    k('s_cmp_eq_u32 s100, 5')
    k('s_cbranch_scc1 J_P5')
    k('s_load_dwordx2 s[12:13], s[0:1], 16')
    k('s_mov_b32 s14, 0x80000')
    k('s_mov_b32 s15, 0x00020000')
    k('s_waitcnt lgkmcnt(0)')
    wo_dma(k, 8, 4, 5)
    k('s_waitcnt vmcnt(0)')
    k('s_branch J_P3')
    k.label('SL_ld')
    k('s_cmp_eq_u32 s100, 3')
    k('s_cbranch_scc1 SL_l3')
    k('s_cmp_eq_u32 s100, 5')
    k('s_cbranch_scc1 SL_l5')
    k('''s_cmp_lt_u32 s3, 6
    s_cselect_b32 s10, 32, 40
    s_load_dwordx2 s[12:13], s[0:1], s10
    s_mov_b32 s14, 0x%x
    s_mov_b32 s15, 0x00020000''' % WSZ)
    p4_bsetup(k, 8, 4, 5, 23, 24)
    k('s_waitcnt lgkmcnt(0)')
    for ks in range(3):
        p4_bstage(k, ks, 8, 23, 24, 12)
    cs_sum(k)
    k('s_waitcnt lgkmcnt(0)')
    k('s_branch J_LD4')
    k.label('SL_l5')
    k('s_load_dwordx2 s[12:13], s[0:1], 48')
    k('s_mov_b32 s14, 0x%x' % WSZ)
    k('s_mov_b32 s15, 0x00020000')
    k('s_lshr_b32 s10, s2, 5')
    k('s_lshl_b32 s10, s10, 7')
    gemm_bd(k, 8, 4, 5, 10)
    k('s_and_b32 s22, s3, 3')
    k('s_mul_i32 s25, s22, %d' % (28 * 16 * 1024))
    k('s_lshl_b32 s28, s22, 11')
    k('s_waitcnt lgkmcnt(0)')
    for s in range(18):
        p5_bstep(k, s, 8, 25, 28, 12)
    k('s_waitcnt vmcnt(0)')
    k('s_barrier')
    k.label('SL_l3')
    k('s_barrier')
    k('s_branch J_SLOW_next')
    k.label('J_SLOW_end')
    k('s_waitcnt vmcnt(0) lgkmcnt(0)')
    k('s_barrier')
    k('s_cmp_lg_u32 s3, 0')
    k('s_cbranch_scc1 SL_e9')
    k('v_and_b32 v1, 63, v0')
    k('v_lshlrev_b32 v6, 10, v1')
    k('s_mov_b32 s11, 0x%x' % (WS_FL + GST))
    k('s_mov_b64 exec, 0xff')
    k('buffer_load_dword v4, v6, s[4:7], s11 offen sc1')
    k('s_waitcnt vmcnt(0)')
    k('v_cmp_eq_u32 vcc, 0, v4')
    k('s_mov_b64 exec, 1')
    k('s_and_b32 s10, vcc_lo, 0xff')
    k('s_ff1_i32_b32 s10, s10')
    k('s_cmp_eq_u32 s10, -1')
    k('s_cbranch_scc1 SL_e8')
    k('s_lshl_b32 s12, s10, 10')
    k('s_add_u32 s11, s11, s12')
    k('v_mov_b32 v4, 1')
    k('buffer_store_dword v4, off, s[4:7], s11 sc1')
    k('s_waitcnt vmcnt(0)')
    k.label('SL_e8')
    k('v_mov_b32 v4, s10')
    k('v_mov_b32 v5, 0x%x' % DEC)
    k('ds_write_b32 v5, v4 offset:12')
    k('s_mov_b64 exec, -1')
    k('s_waitcnt lgkmcnt(0)')
    k.label('SL_e9')
    bcast_read(k, 12)
    k('s_cmp_eq_u32 s10, -1')
    k('s_cbranch_scc1 KF_done')
    k('s_and_b32 s2, s10, 7')
    k('s_lshl_b32 s8, s98, 3')
    k('s_add_u32 s8, s8, s2')
    k('s_lshl_b32 s8, s8, 10')
    k('s_add_u32 s8, s8, 0x%x' % WS_FL)
    k('s_mov_b32 s9, 0')
    k('s_mov_b32 s100, 1')
    k('s_mov_b32 s97, 0')
    k('s_branch J_SLOW_claim')


def gen_kf():
    k = Kernel('kf')
    k('s_cmp_ge_u32 s2, 256')
    k('s_cbranch_scc1 KF_done')
    k.ts(0, True)
    k.ts(1)
    k('s_load_dwordx2 s[4:5], s[0:1], 72')
    k('s_getreg_b32 s98, hwreg(HW_REG_XCC_ID, 0, 4)')
    FAKE = ENV('FAKEX', '')
    if FAKE == 'g0':
        gsrc = '0'
    else:
        gsrc = None
    k('v_lshrrev_b32 v1, 6, v0')
    k('v_readfirstlane_b32 s3, v1')
    if gsrc is None:
        k('s_and_b32 s10, s98, 7')
    else:
        k('s_mov_b32 s10, %s' % gsrc)
    k('''s_andn2_b32 s2, s2, 7
    s_or_b32 s2, s2, s10
    s_lshl_b32 s8, s98, 3
    s_add_u32 s8, s8, s10
    s_lshl_b32 s8, s8, 10
    s_add_u32 s8, s8, 0x%x
    s_lshl_b32 s10, s10, 10
    s_add_u32 s10, s10, 0x%x
    s_mov_b32 s100, 0
    s_mov_b32 s6, 0x%x
    s_mov_b32 s7, 0x00020000
    s_lshr_b32 s11, s2, 3
    s_lshl_b32 s11, 1, s11
    v_mov_b32 v252, s11
    v_mov_b32 v253, 1''' % (WS_FL, WS_FL + GST, WS_SIZE))
    if FAKE == 'drop':
        k('s_and_b32 s11, s2, 0x78')
        k('s_cmp_eq_u32 s11, 0x28')
        k('s_cbranch_scc1 KF_done')
    k('s_waitcnt lgkmcnt(0)')
    k('s_cmp_lg_u32 s3, 0')
    k('s_cbranch_scc1 J_P2')
    k('s_mov_b64 exec, 1')
    k('buffer_atomic_or v252, off, s[4:7], s8 sc0')
    k('buffer_store_dword v253, off, s[4:7], s10 sc1')
    k('s_mov_b64 exec, -1')
    phase2(k)
    k('s_cmp_ge_u32 s3, 4')
    k('s_cbranch_scc1 J_LD3')
    k.label('J_P3')
    for _ in gemm(k, True):
        pass
    g4 = p4_comp(k)
    k('s_cmp_lg_u32 s100, 0')
    k('s_cbranch_scc0 P3_fast')
    setflag(k, 40, 4)
    k('s_branch J_SLOW_next')
    k.label('P3_fast')
    k('s_mov_b32 s41, s40')
    next(g4)
    k('s_cmp_lg_u32 s100, 0')
    k('s_cbranch_scc1 P4_go')
    setflag(k, 41, 4)
    k.ts(7)
    k.label('P4_go')
    next(g4)
    g5 = gemm(k, False)
    k('s_cmp_lg_u32 s100, 0')
    k('s_cbranch_scc0 J_P5')
    setflag(k, 40, 4)
    k('s_branch J_SLOW_next')
    k.label('J_P5')
    next(g5)
    k('s_cmp_lg_u32 s100, 0')
    k('s_cbranch_scc1 P5_go')
    setflag(k, 40, 4)
    k.ts(10)
    k.label('P5_go')
    k('v_mov_b32 v5, 0x%x' % DEC)
    k('s_barrier')
    k('ds_read_b32 v4, v5 offset:4')
    k('s_waitcnt lgkmcnt(0)')
    k('v_readfirstlane_b32 s96, v4')
    next(g5)
    k.ts(13)
    k('s_cmp_lg_u32 s100, 0')
    k('s_cbranch_scc1 J_SLOW_next')
    k('s_cmp_lg_u32 s96, 0')
    k('s_cbranch_scc1 J_SLOW_end')
    prof_end(k)
    k.label('KF_done')
    k('s_endpgm')
    k.label('J_LD3')
    k('v_and_b32 v1, 63, v0')
    cs_sum(k)
    k('s_waitcnt lgkmcnt(0)')
    k('s_barrier')
    k.ts(5)
    p4_loader(k)
    slow(k)
    return k, dict(vgpr=256, agpr=0, lds=LDS_SIZE, grid=256, block=512)
```

```python
import sys, os, importlib
sys.path.insert(0, os.path.dirname(__file__))
from k1 import gen_k1

NAME = 'sequential_preLN__sliding_block__glu_gated_swiglu__prompt'
HEAD = open('cdna_kernels/%s.s.ref' % NAME).read().split('; Override launch geometry')[0]


def build(gens, out):
    ks = [(lbl, g()) for lbl, g in gens]
    s = HEAD
    for lbl, (k, m) in ks:
        s += '; @launch kernel=%s grid=(%d,1,1) block=(%d,1,1) lds=%d\n' % (lbl, m['grid'], m.get('block', 256), m['lds'])
    s += '.amdgcn_target "amdgcn-amd-amdhsa--gfx950"\n.text\n'
    for lbl, (k, m) in ks:
        s += '.globl %s\n.p2align 8\n.type %s,@function\n%s:\n' % (lbl, lbl, lbl)
        s += '\n'.join(k.finalize()) + '\n'
    s += '.section .rodata,"a"\n'
    for lbl, (k, m) in ks:
        acc = (m['vgpr'] + 3) // 4 * 4
        s += '.p2align 6\n.amdhsa_kernel %s\n' % lbl
        s += '  .amdhsa_next_free_vgpr %d\n' % (acc + m['agpr'])
        s += '  .amdhsa_next_free_sgpr 102\n'
        s += '  .amdhsa_accum_offset %d\n' % acc
        s += '  .amdhsa_group_segment_fixed_size 0\n  .amdhsa_kernarg_size 80\n  .amdhsa_user_sgpr_count 2\n'
        s += '  .amdhsa_user_sgpr_kernarg_segment_ptr 1\n  .amdhsa_system_sgpr_workgroup_id_x 1\n.end_amdhsa_kernel\n'
    open(out, 'w').write(s)
    print('wrote', out, len(s), 'bytes')


if __name__ == '__main__':
    gens = [('k1_kernel', gen_k1)]
    if int(os.environ.get('FUSED', '1')):
        from kf import gen_kf
        gens.append(('kf_kernel', gen_kf))
        build(gens, sys.argv[1] if len(sys.argv) > 1 else 'cur.s')
        sys.exit(0)
    try:
        from k2 import gen_k2
        gens.append(('k2_kernel', gen_k2))
        from k35 import gen_k3, gen_k5
        gens.append(('k3_kernel', gen_k3))
        from k4 import gen_k4
        gens.append(('k4_kernel', gen_k4))
        gens.append(('k5_kernel', gen_k5))
    except ImportError as e:
        print('partial build:', e)
    build(gens, sys.argv[1] if len(sys.argv) > 1 else 'cdna_kernels/%s.s' % NAME)
```

```python
import re

_TOK = re.compile(r'^(v|a|s)(\d+)$')
_RNG = re.compile(r'^(v|a|s)\[(\d+):(\d+)\]$')


def regs_of(tok):
    tok = tok.strip()
    if tok.startswith('-'):
        tok = tok[1:]
    if tok.startswith('|') and tok.endswith('|'):
        tok = tok[1:-1]
    m = _TOK.match(tok)
    if m:
        return [(m.group(1), int(m.group(2)))]
    m = _RNG.match(tok)
    if m:
        return [(m.group(1), i) for i in range(int(m.group(2)), int(m.group(3)) + 1)]
    if tok in ('vcc', 'vcc_lo', 'vcc_hi'):
        return [('s', 'vcc')]
    if tok in ('exec', 'exec_lo', 'exec_hi'):
        return [('s', 'exec')]
    if tok == 'm0':
        return [('s', 'm0')]
    return []


def split_ops(s):
    out, depth, cur = [], 0, ''
    for ch in s:
        if ch == '[':
            depth += 1
        if ch == ']':
            depth -= 1
        if ch == ',' and depth == 0:
            out.append(cur.strip())
            cur = ''
        else:
            cur += ch
    if cur.strip():
        out.append(cur.strip())
    return out


TRANS = ('v_exp_', 'v_log_', 'v_rcp_', 'v_rsq_', 'v_sqrt_', 'v_sin_', 'v_cos_')


class Ins:
    __slots__ = ('text', 'name', 'kind', 'dst', 'src', 'states', 'passes', 'A', 'B', 'C', 'trans',
                 'mods', 'wide_store', 'stdata', 'ldsdma', 'perm')

    def __init__(self, text):
        self.text = text
        t = text.split(';')[0].strip()
        self.dst, self.src = set(), set()
        self.A = self.B = self.C = None
        self.states = 1
        self.passes = 0
        self.trans = False
        self.wide_store = False
        self.stdata = set()
        self.ldsdma = False
        self.perm = False
        if not t or t.endswith(':') or t.startswith('.'):
            self.kind = 'label' if t.endswith(':') else 'none'
            self.name = t
            self.states = 0
            return
        parts = t.split(None, 1)
        name = parts[0]
        self.name = name
        rest = parts[1] if len(parts) > 1 else ''
        ops = split_ops(rest)
        mods = ''
        if ops:
            last = ops[-1].split()
            ops[-1] = last[0]
            mods = ' '.join(last[1:])
        self.mods = mods
        R = [regs_of(o) for o in ops]
        if name.startswith('v_mfma'):
            self.kind = 'mfma'
            self.passes = 8 if '32x32' in name else 4
            self.dst = set(R[0])
            self.A, self.B, self.C = R[1], R[2], R[3]
            self.src = set(R[1]) | set(R[2]) | set(R[3])
        elif name.startswith('v_'):
            self.kind = 'valu'
            self.trans = name.startswith(TRANS)
            if name.startswith('v_nop'):
                pass
            elif name.startswith('v_permlane') and 'swap' in name:
                self.dst = set(R[0]) | set(R[1])
                self.src = set(R[0]) | set(R[1])
                self.perm = True
            elif name.startswith(('v_add_co', 'v_sub_co', 'v_addc_co', 'v_subb_co')):
                self.dst = set(R[0]) | set(R[1])
                for r in R[2:]:
                    self.src |= set(r)
            else:
                self.dst = set(R[0])
                for r in R[1:]:
                    self.src |= set(r)
                if name.startswith(('v_fmac', 'v_mac')):
                    self.src |= set(R[0])
                if 'dpp' in name or 'row_' in mods or 'quad_perm' in mods:
                    self.perm = True
        elif name.startswith(('buffer_', 'global_')):
            self.kind = 'vmem'
            is_store = 'store' in name
            lds = (' lds' in (' ' + mods)) or ('_lds_' in name)
            self.ldsdma = lds
            if is_store:
                for r in R:
                    self.src |= set(r)
                self.stdata = set(R[0]) if name.startswith('buffer_') else set(R[1])
                self.wide_store = name.endswith(('x3', 'x4'))
            elif lds:
                for r in R:
                    self.src |= set(r)
                self.src.add(('s', 'm0'))
            else:
                self.dst = set(R[0])
                for r in R[1:]:
                    self.src |= set(r)
        elif name.startswith('ds_'):
            self.kind = 'ds'
            if name.startswith(('ds_write', 'ds_store')):
                for r in R:
                    self.src |= set(r)
            else:
                self.dst = set(R[0])
                for r in R[1:]:
                    self.src |= set(r)
        elif name.startswith('s_'):
            self.kind = 'salu'
            if name == 's_nop':
                self.states = int(ops[0], 0) + 1
            elif name.startswith(('s_waitcnt', 's_barrier', 's_cbranch', 's_branch', 's_endpgm', 's_cmp',
                                  's_setprio', 's_sleep')):
                for r in R:
                    self.src |= set(r)
            else:
                if R:
                    self.dst = set(R[0])
                for r in R[1:]:
                    self.src |= set(r)
        else:
            raise ValueError('unknown instr ' + text)


def required(P, I):
    req = 0
    if P.kind == 'valu':
        pv = {r for r in P.dst if r[0] in 'va'}
        ps = {r for r in P.dst if r[0] == 's'}
        if I.kind == 'mfma' and pv & I.src:
            req = max(req, 2)
        if ps:
            if I.kind == 'vmem' and ps & I.src:
                req = max(req, 5)
            if I.kind == 'valu' and ps & I.src:
                req = max(req, 4 if I.name.startswith(('v_readlane', 'v_writelane')) else 2)
            if I.kind == 'mfma' and ('s', 'exec') in ps:
                req = max(req, 4)
        if I.kind == 'valu' and I.name.startswith(('v_readfirstlane', 'v_readlane')) and pv & I.src:
            req = max(req, 1)
        if P.trans and I.kind == 'valu' and not I.trans and pv & I.src:
            req = max(req, 1)
        if I.kind == 'valu' and I.perm and pv & I.src:
            req = max(req, 2)
    if P.kind == 'valu' and P.name.startswith('v_dot'):
        if I.name == P.name:
            ops = split_ops(I.text.split(';')[0].strip().split(None, 1)[1])
            ab = set(regs_of(ops[1])) | set(regs_of(ops[2]))
            if P.dst & ab:
                req = max(req, 3)
        elif P.dst & (I.src | I.dst):
            req = max(req, 3)
    if P.kind == 'mfma':
        big = 12 if P.passes == 8 else 8
        if I.kind == 'mfma':
            if P.dst & (set(I.A) | set(I.B)):
                req = max(req, big)
            if P.dst & set(I.C):
                if set(I.C) == P.dst and I.passes == P.passes:
                    pass
                else:
                    req = max(req, 10 if P.passes == 8 else 6)
        elif I.kind in ('valu', 'vmem', 'ds'):
            if P.dst & (I.src | I.dst):
                req = max(req, big)
            if I.kind == 'valu' and set(P.C) & I.dst:
                req = max(req, 7 if P.passes == 8 else 3)
    if P.kind == 'vmem' and P.wide_store:
        if I.kind == 'valu' and P.stdata & I.dst:
            req = max(req, 2)
        elif P.stdata & I.dst:
            req = max(req, 1)
    if P.kind == 'salu' and ('s', 'm0') in P.dst and I.ldsdma:
        req = max(req, 1)
    return req


import os
PROF = int(os.environ.get('PROF', '0'))
PROF_BASE = 0x2000000


class Kernel:
    def __init__(self, name):
        self.name = name
        self.raw = []

    def ts(self, i, real=False):
        if PROF and not (getattr(self, 'tsoff', None) and i in self.tsoff):
            self.raw.append('%s s[%d:%d]' % ('s_memrealtime' if real else 's_memtime', 64 + 2 * i, 65 + 2 * i))

    def ts2(self, i):
        if PROF:
            self.raw.append('s_memtime s[%d:%d]' % (64 + 2 * i, 65 + 2 * i))

    def prof_end(self, srd, kidx, wave_s, n):
        if not PROF:
            return
        self('s_waitcnt vmcnt(0)')
        self.ts(n - 2)
        self.ts(n - 1, True)
        self('s_waitcnt lgkmcnt(0)')
        self('s_lshl_b32 s99, s2, 2')
        self('s_add_u32 s99, s99, s%d' % wave_s)
        self('s_lshl_b32 s99, s99, 7')
        self('s_add_u32 s99, s99, 0x%x' % (PROF_BASE + kidx * 0x40000))
        self('v_mov_b32 v0, 0')
        for i in range(n):
            self('v_mov_b32 v2, s%d' % (64 + 2 * i))
            self('v_mov_b32 v3, s%d' % (65 + 2 * i))
            self('buffer_store_dwordx2 v[2:3], v0, s[%d:%d], s99 offen offset:%d' % (srd, srd + 3, 8 * i))
            self('s_nop 1')

    def __call__(self, s):
        for line in s.split('\n'):
            if line.strip():
                self.raw.append(line.strip())

    def label(self, l):
        self.raw.append(l + ':')

    def finalize(self):
        out = []
        for t in self.raw:
            I = Ins(t)
            if I.kind == 'label':
                out.append(I)
                if I.name.startswith('J_'):
                    out.append(Ins('s_nop 7'))
                    out.append(Ins('s_nop 7'))
                continue
            if I.kind == 'none':
                out.append(I)
                continue
            need = 0
            dist = 0
            for P in reversed(out):
                if dist >= 12:
                    break
                r = required(P, I)
                if r > dist:
                    need = max(need, r - dist)
                dist += P.states
            while need > 0:
                n = min(need, 8)
                out.append(Ins('s_nop %d' % (n - 1)))
                need -= n
            out.append(I)
        return [('    ' if i.kind not in ('label',) else '') + i.text for i in out]
```

```python
from asmlib import Kernel

WS_Q = 0x000000
WS_K = 0x200000
WS_VT = 0x400000
WS_O = 0x600000
WS_H = 0x800000
WS_HH = 0xA00000
WS_HF = 0x1200000
WS_CS = 0x1400000
WS_ST = 0x1410000
WS_CS2 = 0x1440000
WS_FL = 0x1500000
WS_SIZE = 0x10000000


def vr(b, n):
    return 'v[%d:%d]' % (b, b + n - 1) if n > 1 else 'v%d' % b


def ar(b, n):
    return 'a[%d:%d]' % (b, b + n - 1) if n > 1 else 'a%d' % b


def sr(b, n):
    return 's[%d:%d]' % (b, b + n - 1) if n > 1 else 's%d' % b


def make_srd(k, dst, lo, hi, size):
    k('s_mov_b32 s%d, s%d' % (dst, lo))
    k('s_mov_b32 s%d, s%d' % (dst + 1, hi))
    k('s_mov_b32 s%d, 0x%x' % (dst + 2, size))
    k('s_mov_b32 s%d, 0x00020000' % (dst + 3))


def ln_stats(k, AF, ST, ONES, T, nload_after, NKS=16, pre=None):
    for i in range(4):
        k('v_mov_b32 v%d, 0x3f803f80' % (ONES + i))
    for ks in range(NKS):
        k('s_waitcnt vmcnt(%d)' % (nload_after + 2 * (NKS - 1 - ks)))
        for mf in range(2):
            a = vr(AF + (ks * 2 + mf) * 4, 4)
            c0 = '0' if ks == 0 else vr(ST + mf * 4, 4)
            c1 = '0' if ks == 0 else vr(ST + 8 + mf * 4, 4)
            k('v_mfma_f32_16x16x32_bf16 %s, %s, %s, %s' % (vr(ST + mf * 4, 4), vr(ONES, 4), a, c0))
            k('v_mfma_f32_16x16x32_bf16 %s, %s, %s, %s' % (vr(ST + 8 + mf * 4, 4), a, a, c1))
    ln_stats_fin(k, ST, T)


def ln_stats_fin(k, ST, T):
    for r in range(4):
        k('s_mov_b32 s%d, 0x%x' % (40 + 2 * r, (1 << r) | (1 << (20 + r))))
        k('s_mov_b32 s%d, 0x%x' % (41 + 2 * r, (1 << (8 + r)) | (1 << (28 + r))))
    res = []
    for mf in range(2):
        t, t2, m, v = T, T + 1, T + 2 + mf * 2, T + 3 + mf * 2
        k('v_mov_b32 v%d, 0' % t)
        for r in range(4):
            k('v_cndmask_b32_e64 v%d, v%d, v%d, s[%d:%d]' % (t, t, ST + 8 + mf * 4 + r, 40 + 2 * r, 41 + 2 * r))
        k('v_mov_b32 v%d, v%d' % (t2, t))
        k('v_permlane32_swap_b32 v%d, v%d' % (t, t2))
        k('v_add_f32 v%d, v%d, v%d' % (t, t, t2))
        k('v_mov_b32 v%d, v%d' % (t2, t))
        k('v_permlane16_swap_b32 v%d, v%d' % (t, t2))
        k('v_add_f32 v%d, v%d, v%d' % (t, t, t2))
        k('v_mul_f32 v%d, 0x3b000000, v%d' % (m, ST + mf * 4))
        k('v_mul_f32 v%d, 0x3b000000, v%d' % (v, t))
        k('v_fma_f32 v%d, -v%d, v%d, v%d' % (v, m, m, v))
        k('v_max_f32 v%d, 0, v%d' % (v, v))
        k('v_cvt_pk_bf16_f32 v%d, v%d, v%d' % (t, m, v))
        k('v_lshlrev_b32 v%d, 16, v%d' % (m, t))
        k('v_and_b32 v%d, 0xffff0000, v%d' % (v, t))
        k('v_add_f32 v%d, 0x3727c5ac, v%d' % (v, v))
        k('v_cvt_pk_bf16_f32 v%d, v%d, v%d' % (t, v, v))
        k('v_lshlrev_b32 v%d, 16, v%d' % (v, t))
        k('v_sqrt_f32 v%d, v%d' % (v, v))
        k('v_cvt_pk_bf16_f32 v%d, v%d, v%d' % (t, v, v))
        k('v_lshlrev_b32 v%d, 16, v%d' % (v, t))
        k('v_rcp_f32 v%d, v%d' % (v, v))
        k('v_mul_f32 v%d, v%d, v%d' % (m, m, v))
    for mf in range(2):
        k('v_mov_b32 v%d, v%d' % (ST + mf, T + 3 + mf * 2))
        k('v_mov_b32 v%d, v%d' % (ST + 2 + mf, T + 2 + mf * 2))


def norm_ops(AF, ST, T, ks):
    ops = []
    for mf in range(2):
        for r in range(4):
            a = AF + (ks * 2 + mf) * 4 + r
            t0, t1 = T + (r & 1) * 2, T + (r & 1) * 2 + 1
            ops.append('v_lshlrev_b32 v%d, 16, v%d' % (t0, a))
            ops.append('v_and_b32 v%d, 0xffff0000, v%d' % (t1, a))
            ops.append('v_fma_f32 v%d, v%d, v%d, -v%d' % (t0, t0, ST + mf, ST + 2 + mf))
            ops.append('v_fma_f32 v%d, v%d, v%d, -v%d' % (t1, t1, ST + mf, ST + 2 + mf))
            ops.append('v_cvt_pk_bf16_f32 v%d, v%d, v%d' % (a, t0, t1))
    return ops


PF_SZ = {16: 0x80000, 32: 0x1c0000, 40: 0x1c0000, 48: 0x1c0000}


def pf_setup(k, sb, kargs):
    for i, ka in enumerate(kargs):
        k('s_load_dwordx2 s[%d:%d], s[0:1], %d' % (sb + 2 * i, sb + 2 * i + 1, ka))


def pf_sel(k, sW, sb, kargs):
    d = sb + 8
    k('s_mov_b32 s%d, s%d' % (d, sb))
    k('s_mov_b32 s%d, s%d' % (d + 1, sb + 1))
    k('s_mov_b32 s%d, 0x%x' % (d + 2, PF_SZ[kargs[0]]))
    k('s_mov_b32 s%d, 0x00020000' % (d + 3))
    k('s_mov_b32 s%d, s%d' % (d + 4, sW))
    lim = 0
    for i in range(1, len(kargs)):
        lim += PF_SZ[kargs[i - 1]] >> 13
        src = sb + 2 * i
        k('s_sub_u32 s%d, s%d, %d' % (d + 5, sW, lim))
        k('s_cmp_ge_u32 s%d, %d' % (sW, lim))
        k('s_cselect_b32 s%d, s%d, s%d' % (d, src, d))
        k('s_cselect_b32 s%d, s%d, s%d' % (d + 1, src + 1, d + 1))
        k('s_cselect_b32 s%d, 0x%x, s%d' % (d + 2, PF_SZ[kargs[i]], d + 2))
        k('s_cselect_b32 s%d, s%d, s%d' % (d + 4, d + 5, d + 4))
    k('s_lshl_b32 s%d, s%d, 13' % (d + 4, d + 4))


import os
PF1 = [int(x) for x in os.environ.get('PF1', '16,32').split(',') if x]
PF2 = [int(x) for x in os.environ.get('PF2', '40,48').split(',') if x]


def stats_fin2(k, ST, T, vM, vR):
    for r in range(4):
        k('s_mov_b32 s%d, 0x%x' % (40 + 2 * r, (1 << r) | (1 << (20 + r))))
        k('s_mov_b32 s%d, 0x%x' % (41 + 2 * r, (1 << (8 + r)) | (1 << (28 + r))))
    for mf in range(2):
        t, t2, m, v = T + mf * 2, T + mf * 2 + 1, vM + mf, vR + mf
        k('v_mov_b32 v%d, 0' % t)
        for r in range(4):
            k('v_cndmask_b32_e64 v%d, v%d, v%d, s[%d:%d]' % (t, t, ST + 8 + mf * 4 + r, 40 + 2 * r, 41 + 2 * r))
        k('v_mov_b32 v%d, v%d' % (t2, t))
        k('v_permlane32_swap_b32 v%d, v%d' % (t, t2))
        k('v_add_f32 v%d, v%d, v%d' % (t, t, t2))
        k('v_mov_b32 v%d, v%d' % (t2, t))
        k('v_permlane16_swap_b32 v%d, v%d' % (t, t2))
        k('v_add_f32 v%d, v%d, v%d' % (t, t, t2))
        k('v_mul_f32 v%d, 0x3b000000, v%d' % (m, ST + mf * 4))
        k('v_mul_f32 v%d, 0x3b000000, v%d' % (v, t))
        k('v_fma_f32 v%d, -v%d, v%d, v%d' % (v, m, m, v))
        k('v_max_f32 v%d, 0, v%d' % (v, v))
        k('v_cvt_pk_bf16_f32 v%d, v%d, v%d' % (t, m, v))
        k('v_lshlrev_b32 v%d, 16, v%d' % (m, t))
        k('v_and_b32 v%d, 0xffff0000, v%d' % (v, t))
        k('v_add_f32 v%d, 0x3727c5ac, v%d' % (v, v))
        k('v_cvt_pk_bf16_f32 v%d, v%d, v%d' % (t, v, v))
        k('v_lshlrev_b32 v%d, 16, v%d' % (v, t))
        k('v_sqrt_f32 v%d, v%d' % (v, v))
        k('v_cvt_pk_bf16_f32 v%d, v%d, v%d' % (t, v, v))
        k('v_lshlrev_b32 v%d, 16, v%d' % (v, t))
        k('v_rcp_f32 v%d, v%d' % (v, v))


def gen_k1():
    k = Kernel('k1')
    SLOT = 28672
    NSL = 5
    AOFF = 12288
    CX = NSL * SLOT
    SX = CX + 1024
    R0 = int(os.environ.get('K1R0', '3'))
    R1 = int(os.environ.get('K1R1', '1'))
    PFS = int(os.environ.get('K1PFS', '5'))
    TS2 = int(os.environ.get('K1TS', '0'))
    NOC = int(os.environ.get('K1NOC', '0'))
    NOCS = int(os.environ.get('K1NOCS', '0'))
    vSS, vSV = 8, 9
    vRd, vRa = 10, 16
    ONES = 22
    ST = 26
    T = 42
    vM, vR = 50, 52
    AF = 54
    BF = 70
    ACC = 118
    CS = 166
    M4 = 190
    vCa, vCb, vSw, vSr = 206, 207, 208, 209
    k('s_cmp_ge_u32 s2, 256')
    k('s_cbranch_scc1 K1_done')
    k.ts(0, True)
    k.ts(1)
    k('s_load_dwordx4 s[4:7], s[0:1], 0')
    k('s_load_dwordx2 s[8:9], s[0:1], 72')
    FUSED = int(os.environ.get('FUSED', '1'))
    CSS = int(os.environ.get('K1CS', '4'))
    W2S = int(os.environ.get('K1W2', '5'))
    if FUSED:
        k('s_load_dwordx2 s[48:49], s[0:1], 16')
        k('s_load_dwordx2 s[50:51], s[0:1], 48')
        k('s_load_dwordx4 s[52:55], s[0:1], 32')
        if int(os.environ.get('CPF', '1')):
            k('s_getpc_b64 s[40:41]')
            k.label('K1_pc0')
            k('s_cmp_ge_u32 s2, 8')
            k('s_cbranch_scc1 K1_pc1')
            k('v_lshlrev_b32 v4, 7, v0')
            k('v_min_u32 v4, KF_END-K1_pc0-4, v4')
            k('global_load_dword v212, v4, s[40:41]')
            k.label('K1_pc1')
    else:
        pf_setup(k, 48, PF1)
    k('''s_and_b32 s10, s2, 7
    s_lshr_b32 s11, s2, 3
    s_and_b32 s20, s10, 3
    s_lshl_b32 s20, s20, 2
    s_and_b32 s21, s11, 3
    s_add_u32 s20, s20, s21
    s_lshr_b32 s21, s10, 2
    s_lshl_b32 s21, s21, 3
    s_lshr_b32 s22, s11, 2
    s_add_u32 s21, s21, s22
    v_lshrrev_b32 v1, 6, v0
    v_readfirstlane_b32 s22, v1
    v_and_b32 v1, 63, v0
    v_and_b32 v2, 15, v1
    v_lshrrev_b32 v3, 4, v1''')
    k('''v_lshlrev_b32 v4, 3, v3
    v_lshrrev_b32 v5, 2, v2
    v_add_u32 v4, v4, v5
    v_lshlrev_b32 v4, 6, v4
    v_and_b32 v5, 3, v2
    v_lshl_add_u32 v7, v5, 3, v4
    v_and_b32 v6, 1, v3''')
    for i in range(4):
        k('v_mov_b32 v%d, 0x3f803f80' % (ONES + i))
    ROT = int(os.environ.get('K1ROT', '1'))
    if ROT:
        k('s_mul_i32 s47, s10, %d' % ROT)
    else:
        k('s_mov_b32 s47, 0')
    k('s_cmp_lt_u32 s22, 4')
    k('s_cbranch_scc1 J_K1_comp')
    vA, vBd, vPf = 8, 9, 30
    vLr = 10
    LB = 32
    LC = 44
    k('s_and_b32 s22, s22, 3')
    k('''v_lshrrev_b32 v4, 3, v1
    v_and_b32 v5, 7, v1
    v_xor_b32 v5, v5, v4
    v_lshlrev_b32 v4, 10, v4
    v_lshl_add_u32 v%d, v5, 4, v4
    s_lshl_b32 s24, s20, 17
    s_lshl_b32 s23, s22, 15
    s_add_u32 s24, s24, s23
    s_add_u32 s25, s24, 8192
    s_add_u32 s26, s24, 16384
    s_add_u32 s27, s24, 24576
    s_lshl_b32 s28, s22, 12
    s_add_u32 s28, s28, %d''' % (vA, AOFF))
    k('''v_lshrrev_b32 v4, 2, v1
    v_mul_u32_u24 v4, 0xc00, v4
    v_lshrrev_b32 v5, 5, v1
    v_lshlrev_b32 v5, 1, v5
    v_and_b32 v%d, 3, v1
    v_xor_b32 v5, v5, v%d
    v_lshl_add_u32 v%d, v5, 4, v4''' % (vBd, vBd, vBd))
    k('s_mul_i32 s29, s22, 3')
    k('s_mul_i32 s23, s21, 192')
    for t in range(3):
        k('''s_add_u32 s36, s29, %d
        s_and_b32 s37, s36, 1
        s_lshr_b32 s36, s36, 1
        s_mul_i32 s37, s37, %d
        s_cmp_ge_u32 s36, 3
        s_cselect_b32 s38, %d, 0
        s_lshl_b32 s36, s36, 6
        s_add_u32 s37, s37, s38
        s_add_u32 s37, s37, s36
        s_add_u32 s%d, s37, s23''' % (t, 16 * 3072, 32 * 3072 - 192, 44 + t))
    k('s_mul_i32 s29, s22, 3072')
    k('s_and_b32 s36, s22, 1')
    k('s_mul_i32 s36, s36, 3')
    k('s_lshr_b32 s37, s22, 1')
    k('s_mul_i32 s37, s37, 3')
    for t in range(3):
        k('''s_add_u32 s38, s36, %d
        s_and_b32 s39, s38, 1
        s_lshr_b32 s38, s38, 1
        s_add_u32 s38, s38, s37
        s_lshl_b32 s38, s38, 11
        v_xor_b32 v4, s39, v6
        v_lshl_add_u32 v4, v4, 5, v7
        v_add_u32 v%d, s38, v4
        v_add_u32 v%d, %d, v%d
        v_add_u32 v%d, %d, v%d''' % (t, vLr + t, vLr + 3 + t, 2 * SLOT, vLr + t, vLr + 6 + t, 4 * SLOT, vLr + t))
    k('''s_lshl_b32 s38, s37, 7
    s_lshl_b32 s39, s36, 6
    s_add_u32 s38, s38, s39
    s_add_u32 s38, s38, %d
    v_lshlrev_b32 v4, 2, v2
    v_add_u32 v20, s38, v4''' % CX)
    k('s_waitcnt lgkmcnt(0)')
    make_srd(k, 12, 4, 5, 2048 * 512 * 2)
    make_srd(k, 16, 6, 7, 512 * 1536 * 2)
    CD = 64
    CA = 80
    if FUSED:
        make_srd(k, 32, 8, 9, WS_SIZE)
        k('''s_lshl_b32 s30, s2, 2
        s_add_u32 s30, s30, s22
        s_lshl_b32 s36, s30, 7
        s_add_u32 s36, s36, 0x%x
        v_lshlrev_b32 v4, 1, v1
        v_mov_b32 v5, 0
        buffer_store_short v5, v4, s[32:35], s36 offen
        s_lshr_b32 s36, s30, 4
        s_and_b32 s37, s30, 15
        s_cmp_ge_u32 s36, 28
        s_cselect_b32 s56, s54, s52
        s_cselect_b32 s57, s55, s53
        s_cselect_b32 s38, 28, 0
        s_cselect_b32 s39, 7168, 0
        s_sub_u32 s36, s36, s38
        s_mov_b32 s58, 0x1c0000
        s_mov_b32 s59, 0x00020000
        s_mul_i32 s60, s37, %d
        s_lshl_b32 s38, s36, 7
        s_add_u32 s60, s60, s38
        s_mul_i32 s61, s37, 14336
        s_add_u32 s61, s61, s39
        s_lshl_b32 s38, s36, 8
        s_add_u32 s61, s61, s38
        s_add_u32 s61, s61, 0x%x
        s_mov_b32 s62, %d
        v_lshrrev_b32 v4, 3, v1
        v_mul_u32_u24 v4, 0xe00, v4
        v_and_b32 v5, 7, v1
        v_lshl_add_u32 v%d, v5, 4, v4
        v_lshlrev_b32 v%d, 5, v5
        v_min_u32 v4, 13, v1
        v_lshlrev_b32 v%d, 7, v4
        s_mul_i32 s63, s30, 1792
        s_mov_b32 s52, s50
        s_mov_b32 s53, s51
        s_mov_b32 s54, 0x1c0000
        s_mov_b32 s55, 0x00020000
        s_cmp_lt_u32 s30, 896
        s_cbranch_scc1 K1_cs1
        s_mov_b32 s56, s48
        s_mov_b32 s57, s49
        s_mov_b32 s58, 0x80000
        s_sub_u32 s60, s30, 896
        s_lshl_b32 s60, s60, 12
        s_mov_b32 s62, 1024
        v_lshlrev_b32 v%d, 4, v1''' % (WS_FL, 32 * 3584, WS_CS2, 8 * 3584, vPf, vPf + 1, vPf - 1, vPf))
        k.label('K1_cs1')
    else:
        k('s_lshl_b32 s30, s22, 8')
        k('s_add_u32 s30, s30, s2')
        if PF1:
            pf_sel(k, 30, 48, PF1)
        k('v_lshlrev_b32 v%d, 7, v1' % vPf)

    cnt = [1 if FUSED else 0]
    last = {}

    def stage(s):
        sl = (s % NSL) * SLOT
        k('s_add_u32 s36, s47, %d' % s)
        k('s_and_b32 s36, s36, 7')
        k('s_lshl_b32 s37, s36, 7')
        k('s_mul_i32 s38, s36, %d' % (64 * 3072))
        for t in range(4):
            k('s_add_u32 s31, s%d, s37' % (24 + t))
            k('s_add_u32 m0, s28, %d' % (sl + t * 1024))
            k('buffer_load_dwordx4 v%d, s[12:15], s31 offen lds' % vA)
        for t in range(3):
            k('s_add_u32 s31, s%d, s38' % (44 + t))
            k('s_add_u32 m0, s29, %d' % (sl + t * 1024))
            k('buffer_load_dwordx4 v%d, s[16:19], s31 offen lds' % vBd)
        cnt[0] += 7
        last[s] = cnt[0]

    issued = 0
    LS = int(os.environ.get('K1LS', '0'))
    for s in range(R0):
        if s and LS:
            k('s_sleep %d' % LS)
        stage(s)
        issued += 1
    for s in range(8):
        k('s_waitcnt vmcnt(%d)' % (cnt[0] - last[s]))
        k('s_barrier')
        slot = s % NSL
        for t in range(3):
            for kgl in range(2):
                if NOCS: continue
                k('ds_read_b64_tr_b16 %s, v%d offset:%d' % (
                    vr(LB + t * 4 + kgl * 2, 2), vLr + (slot // 2) * 3 + t, (slot % 2) * SLOT + kgl * 256))
        for _ in range(R1):
            if issued < 8 and issued <= s + NSL - 1:
                stage(issued)
                issued += 1
        if s == PFS and PF1 and not FUSED:
            k('buffer_load_dword v%d, v%d, s[56:59], s60 offen' % (vPf + 1, vPf))
            cnt[0] += 1
        if FUSED and s == CSS:
            for i in range(4):
                k('buffer_load_dwordx4 %s, v%d, s[56:59], s60 offen' % (vr(CD + 4 * i, 4), vPf))
                if i < 3:
                    k('s_add_u32 s60, s60, s62')
            cnt[0] += 4
        if FUSED and s == W2S:
            k('buffer_load_dword v%d, v%d, s[52:55], s63 offen' % (CA + 15, vPf - 1))
            cnt[0] += 1
        k('s_waitcnt lgkmcnt(0)')
        for t in range(3):
            k('v_mfma_f32_16x16x32_bf16 %s, %s, %s, %s' % (
                vr(LC + t * 4, 4), vr(ONES, 4), vr(LB + t * 4, 4), '0' if s == 0 else vr(LC + t * 4, 4)))
    for t in range(3):
        k('ds_write_b32 v20, v%d offset:%d' % (LC + t * 4, t * 64))
    k('s_waitcnt lgkmcnt(0)')
    k('s_barrier')
    if FUSED:
        k('s_cmp_ge_u32 s30, 896')
        k('s_cbranch_scc1 K1_done')
        k('s_mov_b32 s36, 0x00003f80')
        k('s_mov_b32 s37, 0x3f800000')
        k('s_waitcnt vmcnt(0)')
        for i in range(4):
            for r in range(4):
                for h in range(2):
                    a = CA + 2 * r + h
                    k('v_dot2_f32_bf16 v%d, v%d, s%d, %s' % (a, CD + 4 * i + r, 36 + h, 'v%d' % a if i else '0'))
        for r in range(8):
            k('v_add_f32_dpp v%d, v%d, v%d row_ror:8 row_mask:0xf bank_mask:0xf' % (CA + r, CA + r, CA + r))
        for pl in ('v_permlane16_swap_b32', 'v_permlane32_swap_b32'):
            for r in range(8):
                k('v_mov_b32 v%d, v%d' % (CA + 8 + r, CA + r))
            for r in range(8):
                k('%s v%d, v%d' % (pl, CA + r, CA + 8 + r))
            for r in range(8):
                k('v_add_f32 v%d, v%d, v%d' % (CA + r, CA + r, CA + 8 + r))
        k('s_mov_b64 exec, 0xff')
        for h in range(2):
            k('buffer_store_dwordx4 %s, v%d, s[32:35], s61 offen offset:%d' % (vr(CA + 4 * h, 4), vPf + 1, 16 * h))
    k('s_endpgm')

    k.label('J_K1_comp')
    k('''v_lshl_add_u32 v%d, v6, 5, v7
    v_xor_b32 v5, 1, v6
    v_lshl_add_u32 v%d, v5, 5, v7''' % (vRd, vRd + 1))
    k('''s_lshl_b32 s23, s22, 12
    s_add_u32 s23, s23, %d
    v_and_b32 v4, 7, v2
    v_xor_b32 v4, v4, v3
    v_lshlrev_b32 v4, 4, v4
    v_lshl_add_u32 v4, v2, 7, v4
    v_add_u32 v%d, s23, v4
    v_xor_b32 v4, 64, v4
    v_add_u32 v%d, s23, v4''' % (AOFF, vRa, vRa + 1))
    for rg in (1, 2):
        for p in range(2):
            k('v_add_u32 v%d, %d, v%d' % (vRd + rg * 2 + p, rg * 2 * SLOT, vRd + p))
            k('v_add_u32 v%d, %d, v%d' % (vRa + rg * 2 + p, rg * 2 * SLOT, vRa + p))
    k('''s_lshl_b32 s25, s20, 12
    s_lshl_b32 s24, s22, 10
    s_add_u32 s25, s25, s24
    v_lshlrev_b32 v4, 5, v2
    v_add_u32 v4, s25, v4
    v_lshl_add_u32 v%d, v3, 3, v4
    v_lshlrev_b32 v5, 1, v6
    v_lshrrev_b32 v6, 1, v3
    v_or_b32 v5, v5, v6
    v_lshl_add_u32 v%d, v5, 3, v4''' % (vSS, vSV))
    k('s_mul_i32 s28, s21, 0x60000')
    k('''v_lshlrev_b32 v4, 4, v3
    v_lshlrev_b32 v5, 2, v2
    v_add_u32 v%d, %d, v4
    v_add_u32 v%d, %d, v5
    s_lshl_b32 s24, s22, 8
    s_add_u32 s24, s24, %d
    v_add_u32 v%d, s24, v5
    v_add_u32 v%d, s24, v4''' % (vCa, CX, vCb, CX, SX, vSw, vSr))
    k('''s_lshl_b32 s24, s11, 2
    s_add_u32 s24, s24, s22
    s_and_b32 s25, s10, 3
    s_lshl_b32 s25, s25, 19
    s_and_b32 s26, s24, 15
    s_lshl_b32 s26, s26, 15
    s_add_u32 s25, s25, s26
    s_lshr_b32 s30, s24, 4
    s_add_u32 s27, s30, s47
    s_and_b32 s27, s27, 7
    s_lshl_b32 s26, s27, 7
    s_add_u32 s25, s25, s26
    s_lshl_b32 s27, s27, 4
    s_and_b32 s26, s24, 15
    s_add_u32 s26, s26, s27
    s_mul_i32 s26, s26, 12288
    s_lshr_b32 s27, s10, 2
    s_mul_i32 s27, s27, 1536
    s_add_u32 s26, s26, s27
    v_and_b32 v4, 31, v1
    v_lshlrev_b32 v4, 10, v4
    v_min_u32 v5, 11, v2
    v_lshlrev_b32 v5, 7, v5
    v_mul_u32_u24 v6, 0xc00, v3
    v_add_u32 v5, v5, v6''')
    k('s_waitcnt lgkmcnt(0)')
    make_srd(k, 12, 4, 5, 2048 * 512 * 2)
    make_srd(k, 16, 6, 7, 512 * 1536 * 2)
    if int(os.environ.get('K1L2', '1')):
        S0 = int(os.environ.get('K1S0', '3'))
        D = int(os.environ.get('K1D', '6'))
        k('s_cmp_lt_u32 s30, %d' % S0)
        k('s_cbranch_scc1 K1_nopf')
        if D:
            k.label('K1_dl')
            k('s_cmp_le_u32 s30, %d' % S0)
            k('s_cbranch_scc1 K1_dx')
            k('s_sleep %d' % D)
            k('s_sub_u32 s30, s30, 1')
            k('s_branch K1_dl')
            k.label('K1_dx')
        if int(os.environ.get('K1L2', '1')) == 2:
            k('buffer_load_dword v210, v6, s[16:19], s26 offen')
        else:
            k('buffer_load_dword v210, v5, s[16:19], s26 offen')
            k('buffer_load_dword v211, v4, s[12:15], s25 offen')
        k.label('K1_nopf')
    make_srd(k, 32, 8, 9, WS_SIZE)
    if not TS2: k.ts(2)

    def reads(ks):
        p = ks & 1
        slot = (ks >> 1) % NSL
        out = []
        for mf in range(2):
            out.append('ds_read_b128 %s, v%d offset:%d' % (
                vr(AF + (p * 2 + mf) * 4, 4), vRa + (slot // 2) * 2 + p, (slot % 2) * SLOT + mf * 2048))
        for nf in range(6):
            for kgl in range(2):
                out.append('ds_read_b64_tr_b16 %s, v%d offset:%d' % (
                    vr(BF + p * 24 + nf * 4 + kgl * 2, 2), vRd + (slot // 2) * 2 + (nf & 1),
                    (slot % 2) * SLOT + (p * 3 + (nf >> 1)) * 2048 + kgl * 256))
        return out

    class Lst:
        def __init__(self):
            self.l = []

        def __call__(self, x):
            self.l.append(x)

    def variant(name, sw):
        k.label('J_K1_%s' % name)
        k('s_barrier')
        k.ts(2 if TS2 else 3)
        for o in reads(0):
            k(o)

        def stats(ks):
            p = ks & 1
            st = []
            for mf in range(2):
                a = vr(AF + (p * 2 + mf) * 4, 4)
                c0 = '0' if ks == 0 else vr(ST + mf * 4, 4)
                c1 = '0' if ks == 0 else vr(ST + 8 + mf * 4, 4)
                st.append('v_mfma_f32_16x16x32_bf16 %s, %s, %s, %s' % (vr(ST + mf * 4, 4), vr(ONES, 4), a, c0))
                st.append('v_mfma_f32_16x16x32_bf16 %s, %s, %s, %s' % (vr(ST + 8 + mf * 4, 4), a, a, c1))
            return st

        for ks in range(16):
            p = ks & 1
            nxt = ks + 1 < 16
            k('s_waitcnt lgkmcnt(0)')
            if ks == 0 and not TS2:
                k.ts(4)
            if p == 1:
                k('s_barrier')
                if TS2 and ks in (3, 7, 11):
                    k.ts(3 + ks // 4)
            per = 2
            if nxt:
                rd = reads(ks + 1)
            else:
                rd = []
                for nf in range(6):
                    for par in range(2):
                        d = (CS if par == 0 else BF)
                        if sw[nf]:
                            rd.append('ds_read_b128 %s, v%d offset:%d' % (vr(d + nf * 4, 4), vCa, par * 384 + nf * 64))
                        else:
                            rd.append('ds_read_b32 v%d, v%d offset:%d' % (d + nf * 4, vCb, par * 384 + nf * 64))
                L = Lst()
                stats_fin2(L, ST, T, vM, vR)
                n = (len(L.l) - 8) // 2
                fin = L.l[:8]
                for i in range(n):
                    fin += [L.l[8 + i], L.l[8 + n + i]]
                rd = fin[:8] + rd[:4] + fin[8:20] + rd[4:8] + fin[20:32] + rd[8:] + fin[32:]
                per = 6
            ml = []
            for nf in range(6):
                for mf in range(2):
                    acc = vr(ACC + (mf * 6 + nf) * 4, 4)
                    a = vr(AF + (p * 2 + mf) * 4, 4)
                    b = vr(BF + p * 24 + nf * 4, 4)
                    c = '0' if ks == 0 else acc
                    if sw[nf]:
                        ml.append('v_mfma_f32_16x16x32_bf16 %s, %s, %s, %s' % (acc, b, a, c))
                    else:
                        ml.append('v_mfma_f32_16x16x32_bf16 %s, %s, %s, %s' % (acc, a, b, c))
            if ks < 15:
                ml = stats(ks) + ml
            if ks == 14:
                ml = ml + ['s_waitcnt lgkmcnt(12)'] + stats(15)
            for m in ml:
                k(m)
                for _ in range(per):
                    if rd:
                        k(rd.pop(0))
            for o in rd:
                k(o)
        k.ts(6 if TS2 else 5)
        if not all(sw):
            for mf in range(2):
                k('ds_write_b32 v%d, v%d offset:%d' % (vSw, vM + mf, mf * 128))
                k('ds_write_b32 v%d, v%d offset:%d' % (vSw, vR + mf, mf * 128 + 64))
            k('s_waitcnt lgkmcnt(0)')
            for mf in range(2):
                for q in range(2):
                    k('ds_read_b128 %s, v%d offset:%d' % (vr(M4 + (mf * 2 + q) * 4, 4), vSr, mf * 128 + q * 64))
        k('s_waitcnt lgkmcnt(0)')
        for nf in range(6):
            if sw[nf]:
                for h in range(2):
                    k('v_pk_add_f32 %s, %s, %s' % (vr(CS + nf * 4 + 2 * h, 2), vr(CS + nf * 4 + 2 * h, 2), vr(BF + nf * 4 + 2 * h, 2)))
            else:
                k('v_add_f32 v%d, v%d, v%d' % (CS + nf * 4, CS + nf * 4, BF + nf * 4))
        for nf in range(6):
            k('s_add_u32 s29, s28, %d' % (nf * 65536))
            for mf in range(2):
                G = ACC + (mf * 6 + nf) * 4
                t = T + mf * 2
                for h in range(2):
                    if sw[nf]:
                        k('v_pk_fma_f32 %s, %s, %s, %s op_sel:[0,%d,0] op_sel_hi:[1,%d,1] neg_lo:[0,1,0] neg_hi:[0,1,0]' % (
                            vr(G + 2 * h, 2), vr(CS + nf * 4 + 2 * h, 2), vr(vM, 2), vr(G + 2 * h, 2), mf, mf))
                    else:
                        k('v_pk_fma_f32 %s, %s, %s, %s op_sel:[0,0,0] op_sel_hi:[1,0,1] neg_lo:[0,1,0] neg_hi:[0,1,0]' % (
                            vr(G + 2 * h, 2), vr(M4 + mf * 8 + 2 * h, 2), vr(CS + nf * 4, 2), vr(G + 2 * h, 2)))
                for h in range(2):
                    if sw[nf]:
                        k('v_pk_mul_f32 %s, %s, %s op_sel:[0,%d] op_sel_hi:[1,%d]' % (
                            vr(G + 2 * h, 2), vr(G + 2 * h, 2), vr(vR, 2), mf, mf))
                    else:
                        k('v_pk_mul_f32 %s, %s, %s' % (vr(G + 2 * h, 2), vr(G + 2 * h, 2), vr(M4 + mf * 8 + 4 + 2 * h, 2)))
                k('v_cvt_pk_bf16_f32 v%d, v%d, v%d' % (G, G, G + 1))
                k('v_cvt_pk_bf16_f32 v%d, v%d, v%d' % (G + 1, G + 2, G + 3))
                k('buffer_store_dwordx2 %s, v%d, s[32:35], s29 offen offset:%d%s' % (
                    vr(G, 2), vSS if sw[nf] else vSV, mf * 512, os.environ.get('K1SC', '').replace('_', ' ')))
        if not TS2: k.ts(6)
        k.prof_end(32, 0, 22, 9)
        k('s_endpgm')

    k('s_cmp_eq_u32 s21, 10')
    k('s_cbranch_scc1 J_K1_mix')
    k('s_cmp_gt_u32 s21, 10')
    k('s_cbranch_scc1 J_K1_v')
    variant('qk', [1] * 6)
    variant('mix', [1, 1, 1, 1, 0, 0])
    variant('v', [0] * 6)
    k.label('K1_done')
    k('s_endpgm')
    return k, dict(vgpr=216, agpr=0, lds=SX + 1024, grid=256, block=512)
```

```python
from asmlib import Kernel, PROF, PROF_BASE
from k1 import vr, sr, make_srd, WS_Q, WS_K, WS_VT, WS_O, WS_H, WS_HF, WS_HH, WS_ST, WS_CS2, WS_FL, WS_SIZE
from k4 import stats_fin
import struct, os


def f32hex(x):
    return '0x%08x' % struct.unpack('<I', struct.pack('<f', x))[0]


SLOT = 24576
NSL = 6
CSB = NSL * SLOT
DEC = CSB + 1024
LDS_SIZE = DEC + 256
F2, F3, F4 = 128, 384, 512
GST = 15 * 8 * 1024 + 768
POLL_LIMIT = int(os.environ.get('POLL_LIMIT', '0x20000'), 0)
PATIENCE = 48
WSZ = 512 * 1792 * 2
ENV = os.environ.get
DSC = ENV('DSC', '')
PSC = ENV('PSC', ' sc1')
PRE = int(ENV('PRE', '1'))
HPF = int(ENV('HPF', '10'))
NPF3 = int(ENV('NPF3', '0'))


class Q:
    def __init__(self, k):
        self.k = k
        self.n = 0
        self.at = {}

    def issue(self, text, tag=None):
        self.k(text)
        self.n += 1
        if tag is not None:
            self.at[tag] = self.n

    def wait(self, *tags):
        m = max(self.at[t] for t in tags)
        self.k('s_waitcnt vmcnt(%d)' % min(63, self.n - m))


def poll(k, L, soff, nd, vt=4):
    k('s_mov_b32 s30, 0')
    k('s_mov_b64 exec, 1')
    k.label(L)
    k('buffer_load_dwordx%d %s, off, s[4:7], s%d%s' % (nd, vr(vt, nd), soff, PSC))
    k('s_add_u32 s30, s30, 1')
    k('s_waitcnt vmcnt(0)')
    k('v_and_b32 v%d, v%d, v%d' % (vt, vt, vt + 1))
    if nd == 4:
        k('v_and_b32 v%d, v%d, v%d' % (vt + 2, vt + 2, vt + 3))
        k('v_and_b32 v%d, v%d, v%d' % (vt, vt, vt + 2))
    k('v_readfirstlane_b32 s31, v%d' % vt)
    k('s_cmp_eq_u32 s31, 0x01010101')
    k('s_cbranch_scc1 %s_x' % L)
    k('s_cmp_lt_u32 s30, 0x%x' % POLL_LIMIT)
    k('s_cbranch_scc1 %s' % L)
    k.label(L + '_x')
    k('s_mov_b64 exec, -1')


def setflag(k, soff, vt):
    k('v_mov_b32 v%d, 1' % vt)
    k('s_waitcnt vmcnt(0)')
    k('s_mov_b64 exec, 1')
    k('buffer_store_byte v%d, off, s[4:7], s%d' % (vt, soff))
    k('s_mov_b64 exec, -1')


def lanes(k):
    k('v_and_b32 v1, 63, v0')
    k('v_and_b32 v2, 15, v1')
    k('v_lshrrev_b32 v3, 4, v1')


def gemm_bd(k, vBd, t0, t1, snt):
    k('''v_lshrrev_b32 v%d, 5, v1
    v_lshlrev_b32 v%d, 2, v%d
    v_bfe_u32 v%d, v1, 2, 2
    v_add_u32 v%d, v%d, v%d
    v_lshlrev_b32 v%d, 10, v%d
    v_bfe_u32 v%d, v1, 4, 1
    v_lshl_add_u32 v%d, v%d, 6, v%d
    v_and_b32 v%d, 3, v1
    v_lshl_add_u32 v%d, v%d, 4, v%d
    v_add_u32 v%d, s%d, v%d''' % (t0, t0, t0, t1, t0, t0, t1, t0, t0, t1, t0, t1, t0, t1, t0, t1, t0, vBd, snt, t0))


def wo_dma(k, vBd, t0, t1, q=None):
    k('s_lshr_b32 s10, s2, 5')
    k('s_lshl_b32 s10, s10, 7')
    gemm_bd(k, vBd, t0, t1, 10)
    k('s_lshl_b32 s10, s3, 17')
    k('s_lshl_b32 s11, s3, 14')
    for i in range(16):
        k('s_add_u32 s30, s10, %d' % (i * 8192))
        k('s_add_u32 m0, s11, %d' % (i * 1024))
        k('buffer_load_dwordx4 v%d, s[12:15], s30 offen lds' % vBd)


def p4_bsetup(k, vBd, t0, t1, sB, sM):
    k('''v_lshrrev_b32 v%d, 2, v1
    v_mul_u32_u24 v%d, 0xe00, v%d
    v_lshrrev_b32 v%d, 5, v1
    v_lshlrev_b32 v%d, 1, v%d
    v_and_b32 v%d, 3, v1
    v_xor_b32 v%d, v%d, v%d
    v_lshl_add_u32 v%d, v%d, 4, v%d''' % (t0, t0, t0, t1, t1, t1, vBd, t1, t1, vBd, vBd, t1, t0))
    k('''s_and_b32 s%d, s3, 1
    s_mul_i32 s%d, s%d, %d
    s_lshr_b32 s10, s2, 4
    s_mul_i32 s11, s10, 224
    s_add_u32 s%d, s%d, s11
    s_and_b32 s10, s10, 1
    s_lshl_b32 s10, s10, 5
    s_sub_u32 s%d, s%d, s10
    s_lshl_b32 s%d, s%d, 10
    s_bfe_u32 s10, s3, 0x10001
    s_lshl_b32 s10, s10, 13
    s_add_u32 s%d, s%d, s10''' % (sM, sB, sM, 16 * 3584, sB, sB, sB, sB, sM, sM, sM, sM))


def p4_bstage(k, ks, vBd, sB, sM, srd, q=None):
    sl = ((ks + 3) % NSL) * SLOT
    for j in range(4):
        k('s_add_u32 s30, s%d, %d' % (sB, ks * 32 * 3584 + j * 64))
        k('s_add_u32 m0, s%d, %d' % (sM, sl + j * 2048))
        t = 'buffer_load_dwordx4 v%d, s[%d:%d], s30 offen lds' % (vBd, srd, srd + 3)
        if q:
            q.issue(t, ('B', ks))
        else:
            k(t)


def p5_bstep(k, s, vBd, sB, sM, srd, q=None):
    qs = (s + 3) % 18
    for h in range(2):
        k('s_add_u32 s30, s%d, %d' % (sB, (s * 16 + h * 8) * 1024))
        k('s_add_u32 m0, s%d, %d' % (sM, qs * 8192 + h * 1024))
        t = 'buffer_load_dwordx4 v%d, s[%d:%d], s30 offen lds' % (vBd, srd, srd + 3)
        if q:
            q.issue(t, ('B', s))
        else:
            k(t)


def l2pf(k, n, vPf, tot):
    k('''s_lshr_b32 s10, s2, 3
    s_lshl_b32 s10, s10, 1
    s_and_b32 s11, s3, 1
    s_add_u32 s10, s10, s11
    s_lshl_b32 s10, s10, 13
    s_add_u32 s10, s10, %d
    v_lshlrev_b32 v%d, 7, v1''' % (96 * 3584, vPf))
    for i in range(tot):
        if i < n:
            k('s_add_u32 s30, s10, %d' % (i * 0x80000))
        k('buffer_load_dword v%d, v%d, s[12:15], s30 offen' % (vPf + 1, vPf))


def phase2(k):
    S = 12
    O = 156
    vQ, vK, vV, vSt, vNeg = 4, 5, 6, 8, 9
    t0, t1 = 10, 11
    vPf = 172
    aK, aV0, aQ = 176, 212, 248
    vCl, vMk, vBd = 252, 253, 254

    def mk(i):
        return 32 + 2 * i
    k.label('J_P2')
    k('''s_cmp_lt_u32 s3, 6
    s_cselect_b32 s10, 32, 40
    s_mov_b32 s14, 0x%x
    s_cmp_lt_u32 s3, 4
    s_cselect_b32 s10, 16, s10
    s_cselect_b32 s14, 0x80000, s14
    s_load_dwordx2 s[12:13], s[0:1], s10
    s_load_dwordx4 s[16:19], s[0:1], 32
    s_mov_b32 s15, 0x00020000''' % WSZ)
    k('''s_lshr_b32 s20, s2, 5
    s_lshl_b32 s20, s20, 2
    s_and_b32 s21, s3, 3
    s_add_u32 s20, s20, s21
    s_and_b32 s21, s2, 7
    s_lshl_b32 s21, s21, 2
    s_bfe_u32 s22, s2, 0x20003
    s_add_u32 s21, s21, s22
    s_lshl_b32 s21, s21, 1
    s_lshr_b32 s23, s3, 2
    s_add_u32 s21, s21, s23
    v_and_b32 v1, 63, v0
    v_and_b32 v2, 31, v1
    v_lshrrev_b32 v3, 5, v1''')
    k('''s_lshl_b32 s22, s22, 6
    s_add_u32 s22, s22, s23
    s_lshl_b32 s23, s20, 1
    s_add_u32 s22, s22, s23
    s_add_u32 s22, s22, s8
    s_add_u32 s22, s22, %d''' % F2)
    k('''s_lshl_b32 s23, s20, 16
    s_lshl_b32 s24, s21, 10
    s_add_u32 s23, s23, s24
    v_lshlrev_b32 v10, 5, v2
    v_lshl_add_u32 v10, v3, 4, v10
    v_add_u32 v%d, s23, v10
    v_add_u32 v%d, 0x%x, v%d
    v_and_b32 v10, 15, v1
    v_lshlrev_b32 v10, 5, v10
    v_lshl_add_u32 v10, v3, 4, v10
    v_add_u32 v10, s23, v10
    v_add_u32 v%d, 0x%x, v10''' % (vQ, vK, WS_K - 8192, vQ, vV, WS_VT - 8192))
    k('s_mov_b32 s26, 4096')
    k('s_mov_b32 s27, 8192')
    k('v_mov_b32 v%d, 0x3f803f80' % t1)

    def so(off):
        return ('0', 's26', 's27')[off // 4096], off % 4096

    k('buffer_load_dwordx4 %s, v%d, s[4:7], 0 offen' % (vr(aQ, 4), vQ))
    for T in range(9):
        s_, i_ = so(T * 1024)
        k('buffer_load_dwordx4 %s, v%d, s[4:7], %s offen offset:%d' % (vr(aK + T * 4, 4), vK, s_, i_))

    def vreg(idx):
        return aV0 + idx * 4 if idx < 9 else aK + (idx - 9) * 4

    def vloads(idxs):
        for idx in idxs:
            for r in range(4):
                k('v_mov_b32 v%d, v%d' % (vreg(idx) + r, t1))
        k('s_mov_b32 exec_lo, 0x0000ffff')
        k('s_mov_b32 exec_hi, 0x0000ffff')
        for idx in idxs:
            s_, i_ = so(idx * 512)
            k('buffer_load_dwordx4 %s, v%d, s[4:7], %s offen offset:%d' % (vr(vreg(idx), 4), vV, s_, i_))
        k('s_mov_b64 exec, -1')

    vloads(range(9))
    k('''s_lshl_b32 s25, s21, 5
    s_add_u32 s25, s25, s20
    s_lshl_b32 s25, s25, 10
    s_add_u32 s25, s25, 0x%x
    v_lshlrev_b32 v10, 4, v2
    v_lshl_add_u32 v10, v3, 3, v10
    v_add_u32 v%d, s25, v10''' % (WS_O, vSt))
    nx = 0
    if PRE:
        k('v_lshlrev_b32 v10, 7, v1')
        k('s_mov_b64 exec, 0xff')
        k('buffer_load_dword v7, v10, s[4:7], s25 offen')
        k('s_mov_b64 exec, -1')
        nx = 1
    k('v_mov_b32 v%d, %s' % (vNeg, f32hex(-1e9)))
    k('s_sub_i32 s28, 8, s21')
    k('s_max_i32 s28, s28, 0')
    for i in range(16):
        kk = (i >> 2) * 8 + (i & 3)
        m = 0
        for l in range(64):
            if kk > (l & 31) - (l >> 5) * 4:
                m |= 1 << l
        k('s_mov_b32 s%d, 0x%x' % (mk(i), m & 0xffffffff))
        k('s_mov_b32 s%d, 0x%x' % (mk(i) + 1, m >> 32))
    k.ts(2)
    for T in range(9):
        k('s_waitcnt vmcnt(%d)' % (nx + 9 + 8 - T))
        k('v_mfma_f32_32x32x16_bf16 %s, %s, %s, 0' % (vr(S + T * 16, 16), vr(aK + T * 4, 4), vr(aQ, 4)))
    vloads(range(9, 18))
    npf = 13 if PRE else 16
    k('s_waitcnt lgkmcnt(0)')
    k('s_cmp_ge_u32 s3, 4')
    k('s_cbranch_scc1 P2_pfl')
    wo_dma(k, vBd, vPf, vPf + 1)
    k('s_branch P2_pfx')
    k.label('P2_pfl')
    p4_bsetup(k, vBd, vPf, vPf + 1, 23, 24)
    for ks in range(3):
        p4_bstage(k, ks, vBd, 23, 24, 12)
    if PRE:
        k('''s_and_b32 s10, s2, 7
        s_lshl_b32 s10, s10, 2
        s_bfe_u32 s11, s2, 0x20003
        s_add_u32 s10, s10, s11
        s_lshr_b32 s11, s2, 5
        s_lshl_b32 s30, s10, 16
        s_lshl_b32 s31, s11, 7
        s_add_u32 s31, s30, s31
        s_add_u32 s31, s31, 0x%x
        s_lshl_b32 s11, s11, 11
        s_add_u32 s30, s30, s11
        s_add_u32 s30, s30, 0x%x
        s_lshl_b32 s10, s10, 12
        s_add_u32 s10, s10, 0x%x
        s_movk_i32 s11, 128
        s_cmp_eq_u32 s3, 4
        s_cselect_b32 s30, s31, s30
        s_cselect_b32 s11, 1024, s11
        s_mov_b32 s31, 16384
        s_cmp_ge_u32 s3, 6
        s_cselect_b32 s30, s10, s30
        s_cselect_b32 s11, 64, s11
        s_cselect_b32 s31, 1024, s31
        v_lshrrev_b32 v%d, 4, v1
        v_mul_u32_u24 v%d, s31, v%d
        v_and_b32 v%d, 15, v1
        v_mad_u32_u24 v%d, v%d, s11, v%d
        buffer_load_dword v7, v%d, s[4:7], s30 offen''' % (WS_H, WS_HF, WS_ST, vPf, vPf, vPf, vPf + 1, vPf, vPf + 1, vPf, vPf))
    else:
        l2pf(k, int(ENV('NPF2', '4')), vPf, 4)
    k.label('P2_pfx')
    for i in range(16):
        k('v_cndmask_b32_e64 v%d, v%d, v%d, s[%d:%d]' % (S + i, vNeg, S + i, mk(i), mk(i) + 1))
    for i in range(16):
        k('v_cndmask_b32_e64 v%d, v%d, v%d, s[%d:%d]' % (S + 128 + i, S + 128 + i, vNeg, mk(i), mk(i) + 1))
    k('s_cmp_eq_u32 s28, 0')
    k('s_cbranch_scc1 J_P2_nomask')
    for T in range(8):
        k('s_cmp_gt_u32 s28, %d' % T)
        k('s_cbranch_scc0 J_P2_nomask')
        for i in range(16):
            k('v_mov_b32 v%d, v%d' % (S + T * 16 + i, vNeg))
    k.label('J_P2_nomask')
    ch = [O, O + 1, O + 2, O + 3]
    regs = list(range(S, S + 144))
    for c in range(4):
        k('v_max3_f32 v%d, v%d, v%d, v%d' % (ch[c], regs[c * 36], regs[c * 36 + 1], regs[c * 36 + 2]))
    for j in range(3, 35, 2):
        for c in range(4):
            k('v_max3_f32 v%d, v%d, v%d, v%d' % (ch[c], ch[c], regs[c * 36 + j], regs[c * 36 + j + 1]))
    for c in range(4):
        k('v_max_f32 v%d, v%d, v%d' % (ch[c], ch[c], regs[c * 36 + 35]))
    k('v_max3_f32 v%d, v%d, v%d, v%d' % (t0, ch[0], ch[1], ch[2]))
    k('v_max_f32 v%d, v%d, v%d' % (t0, t0, ch[3]))
    k('v_mov_b32 v%d, v%d' % (t1, t0))
    k('v_permlane32_swap_b32 v%d, v%d' % (t0, t1))
    k('v_max_f32 v%d, v%d, v%d' % (t0, t0, t1))
    k.ts(3)
    c_ = 0.25 * 1.4426950408889634
    k('s_mov_b32 s29, %s' % f32hex(c_))
    k('v_mul_f32 v%d, s29, v%d' % (t0, t0))
    first = True
    for T in range(9):
        b = S + T * 16
        if T == 7:
            k('s_mov_b64 exec, 1')
            k('buffer_load_dword v%d, off, s[4:7], s8 sc1' % vMk)
            k('s_mov_b64 exec, -1')
        for i in range(16):
            k('v_fma_f32 v%d, v%d, s29, -v%d' % (b + i, b + i, t0))
        for i in range(16):
            k('v_exp_f32 v%d, v%d' % (b + i, b + i))
        for u in range(2):
            for j in range(4):
                k('v_cvt_pk_bf16_f32 v%d, v%d, v%d' % (b + 8 * u + j, b + 8 * u + 2 * j, b + 8 * u + 2 * j + 1))
        for u in range(2):
            idx = 2 * T + u
            if idx == 0:
                k('s_waitcnt vmcnt(%d)' % (nx + 9 + npf))
            if idx == 9:
                k('s_waitcnt vmcnt(%d)' % npf)
            k('v_mfma_f32_32x32x16_bf16 %s, %s, %s, %s' % (
                vr(O, 16), vr(vreg(idx), 4), vr(b + 8 * u, 4), '0' if first else vr(O, 16)))
            first = False
    k('v_rcp_f32 v%d, v%d' % (t0, O + 8))
    for i in range(8):
        k('v_mul_f32 v%d, v%d, v%d' % (O + i, O + i, t0))
    for j in range(4):
        k('v_cvt_pk_bf16_f32 v%d, v%d, v%d' % (O + j, O + 2 * j, O + 2 * j + 1))
    k('buffer_store_dwordx2 %s, v%d, s[4:7], 0 offen' % (vr(O, 2), vSt))
    k('buffer_store_dwordx2 %s, v%d, s[4:7], 0 offen offset:512' % (vr(O + 2, 2), vSt))
    setflag(k, 22, t0)
    k.ts(4)
    k('s_cmp_lg_u32 s100, 0')
    k('s_cbranch_scc1 J_SLOW_claim')
    k('s_cmp_lg_u32 s3, 0')
    k('s_cbranch_scc1 P2_dec')
    k('''v_readfirstlane_b32 s10, v%d
    v_readfirstlane_b32 s11, v%d
    s_lshr_b32 s30, s2, 3
    s_lshr_b32 s10, s10, s30
    s_and_b32 s10, s10, 1
    s_cmp_lg_u32 s11, -1
    s_cselect_b32 s11, 2, 0
    s_or_b32 s10, s10, s11
    v_mov_b32 v4, s10
    v_mov_b32 v5, 0x%x
    ds_write_b32 v5, v4
    s_waitcnt lgkmcnt(0)''' % (vCl, vMk, DEC))
    k.label('P2_dec')
    k('v_mov_b32 v5, 0x%x' % DEC)
    k('s_barrier')
    k('ds_read_b32 v4, v5')
    k('s_waitcnt lgkmcnt(0)')
    k('v_readfirstlane_b32 s10, v4')
    k('s_cmp_lg_u32 s10, 0')
    k('s_cbranch_scc1 J_SLOW_start')


def gemm(k, p3):
    L = 'P3' if p3 else 'P5'
    KT = 32 if p3 else 112
    wsA = WS_O if p3 else WS_HH
    NS = KT // 4
    NR = min(NS, 16)
    PF = NS if NS <= NR else NR - 1
    RS = 16384
    AR = 28 if p3 else 24
    BFR = AR + NR * 8
    ACC = BFR + 16
    RES = ACC + 64
    T = RES + 8
    vA0, vA1, vBd, vBr, vOut, vRes = 8, 9, 10, 11, 12, 13
    vW = 14
    vR = 18
    vFw, vFr, vFo = 22, 23, 24
    vSt = 25
    SCR = 4 * RS
    tsb = 5 if p3 else 11
    k('s_load_dwordx2 s[10:11], s[0:1], %d' % (0 if p3 else 56))
    if not p3:
        k('s_load_dwordx2 s[12:13], s[0:1], 48')
    k('''s_and_b32 s20, s2, 7
    s_lshl_b32 s20, s20, 2
    s_bfe_u32 s22, s2, 0x20003
    s_add_u32 s20, s20, s22
    s_lshr_b32 s21, s2, 5''')
    lanes(k)
    if p3:
        k('s_lshl_b32 s29, s22, 6')
        k('s_lshl_b32 s23, s3, 4')
    else:
        k('s_lshl_b32 s29, s22, 5')
        k('s_lshl_b32 s23, s3, 3')
    k('s_add_u32 s29, s29, s23')
    k('s_add_u32 s29, s29, s8')
    k('s_add_u32 s29, s29, %d' % (F2 if p3 else F4))
    if p3:
        k('''s_lshl_b32 s40, s22, 2
        s_add_u32 s40, s40, s3
        s_lshl_b32 s40, s40, 3
        s_add_u32 s40, s40, s21
        s_add_u32 s40, s40, s8
        s_add_u32 s40, s40, %d''' % F3)
    k('s_mul_i32 s23, s20, %d' % (2 * KT * 1024))
    k('s_mul_i32 s24, s3, %d' % (NS * 1024))
    k('s_add_u32 s23, s23, s24')
    k('s_add_u32 s23, s23, 0x%x' % wsA)
    k('v_lshlrev_b32 v4, 4, v1')
    k('v_add_u32 v%d, s23, v4' % vA0)
    k('v_add_u32 v%d, %d, v%d' % (vA1, KT * 1024, vA0))
    k('s_lshl_b32 s24, s21, 7')
    if not p3:
        gemm_bd(k, vBd, 4, 5, 24)
        k('s_mul_i32 s25, s3, %d' % (NS * 16 * 1024))
    k('s_lshl_b32 s26, s3, %d' % (14 if p3 else 11))
    k('''v_lshrrev_b32 v4, 1, v3
    v_lshlrev_b32 v4, 10, v4
    v_lshrrev_b32 v5, 2, v2
    v_lshl_add_u32 v4, v5, 6, v4
    v_and_b32 v5, 1, v3
    v_lshl_add_u32 v4, v5, 5, v4
    v_and_b32 v5, 3, v2
    v_lshl_add_u32 v4, v5, 3, v4
    v_add_u32 v%d, s26, v4''' % vBr)
    if not p3:
        k('v_add_u32 v%d, 0x10000, v%d' % (vFw, vBr))
        k('v_add_u32 v%d, 0x20000, v%d' % (vFr, vBr))
    k('v_and_b32 v4, 31, v1')
    if p3:
        k('v_lshlrev_b32 v5, 8, v4')
    else:
        k('v_lshrrev_b32 v5, 3, v4')
        k('v_lshlrev_b32 v5, 13, v5')
        k('v_and_b32 v6, 7, v4')
        k('v_lshl_add_u32 v5, v6, 8, v5')
    k('v_add_u32 v5, s26, v5')
    k('v_and_b32 v4, 7, v4')
    k('v_lshrrev_b32 v6, 5, v1')
    k('v_xor_b32 v4, v4, v6')
    for q in range(4):
        k('v_xor_b32 v6, %d, v4' % (q * 2))
        k('v_lshl_add_u32 v%d, v6, 4, v5' % (vW + q))
    k('s_lshl_b32 s27, s3, %d' % (12 if p3 else 14))
    k('v_lshrrev_b32 v4, 3, v1')
    k('v_lshlrev_b32 v5, 8, v4')
    k('v_add_u32 v5, s27, v5')
    k('v_and_b32 v6, 7, v1')
    k('v_lshlrev_b32 v6, 1, v6')
    k('v_xor_b32 v6, v6, v4')
    k('v_lshl_add_u32 v%d, v6, 4, v5' % vR)
    k('v_xor_b32 v6, 1, v6')
    k('v_lshl_add_u32 v%d, v6, 4, v5' % (vR + 1))
    k('''s_lshl_b32 s27, s3, 4
    s_lshl_b32 s28, s20, 6
    s_add_u32 s27, s27, s28
    s_lshl_b32 s27, s27, 10
    s_add_u32 s27, s27, s24
    v_lshlrev_b32 v5, 10, v4
    v_and_b32 v6, 7, v1
    v_lshl_add_u32 v5, v6, 4, v5
    v_add_u32 v4, s27, v5''')
    k('v_add_u32 v%d, 0x%x, v4' % (vOut, WS_H if p3 else 0))
    k('v_add_u32 v%d, 0x%x, v4' % (vRes, 0 if p3 else WS_H))
    k('s_mov_b32 s41, 8192')
    if p3:
        k('''s_lshl_b32 s27, s3, 11
        v_lshrrev_b32 v4, 3, v1
        v_and_b32 v5, 3, v1
        v_lshl_add_u32 v4, v5, 4, v4
        v_lshlrev_b32 v4, 4, v4
        v_bfe_u32 v5, v1, 2, 1
        v_lshl_add_u32 v4, v5, 10, v4
        v_add_u32 v4, s27, v4''')
        k('v_add_u32 v%d, %d, v4' % (vFw, SCR))
        k('v_lshlrev_b32 v4, 4, v1')
        k('v_add_u32 v5, s27, v4')
        k('v_add_u32 v%d, %d, v5' % (vFr, SCR))
        k('''s_lshl_b32 s27, s20, 2
        s_add_u32 s27, s27, s3
        s_lshl_b32 s27, s27, 4
        s_lshl_b32 s28, s21, 1
        s_add_u32 s27, s27, s28
        s_lshl_b32 s27, s27, 10''')
        k('s_add_u32 s27, s27, 0x%x' % WS_HF)
        k('v_add_u32 v%d, s27, v4' % vFo)
        k('''s_lshl_b32 s27, s20, 2
        s_add_u32 s27, s27, s3
        s_lshl_b32 s27, s27, 10
        s_lshl_b32 s28, s21, 3
        s_add_u32 s27, s27, s28
        v_lshrrev_b32 v4, 3, v1
        v_lshlrev_b32 v4, 6, v4''')
        k('s_add_u32 s27, s27, 0x%x' % WS_ST)
        k('v_add_u32 v%d, s27, v4' % vSt)
        k('s_mov_b32 s44, 0x3f803f80')
        k('s_mov_b32 s42, 0x01010101')
        k('s_mov_b32 s43, 0x01010101')
    k('s_waitcnt lgkmcnt(0)')
    make_srd(k, 16, 10, 11, 2048 * 512 * 2)
    if not p3:
        k('s_mov_b32 s14, 0x%x' % WSZ)
        k('s_mov_b32 s15, 0x00020000')
        yield 'pre'
    rsrd, osrd = (16, 4) if p3 else (4, 16)
    poll(k, L + '_poll', 29, 4 if p3 else 2)
    if not p3 and ENV('X5S'):
        for _ in range(int(ENV('X5S'))):
            k('s_sleep 64')
    k.ts(tsb)
    q = Q(k)

    def aloads(s):
        slot = s % NR
        k('s_mov_b32 s30, %d' % (s * 1024 if p3 or not ENV('X5A') else (s % int(ENV('X5A'))) * 1024))
        for mi in range(2):
            q.issue('buffer_load_dwordx4 %s, v%d, s[4:7], s30 offen%s' % (vr(AR + slot * 8 + mi * 4, 4), vA0 + mi, DSC), ('A', s))

    def reads(s):
        p = s & 1
        if p3:
            base, va = s * 2048, vBr
        else:
            a = ((s + 3) % 18) * 8192
            va = (vBr, vFw, vFr)[a >> 16]
            base = a & 0xffff
        for nb in range(2):
            for sec in range(2):
                k('ds_read_b64_tr_b16 %s, v%d offset:%d' % (
                    vr(BFR + p * 8 + nb * 4 + sec * 2, 2), va, base + sec * 512 + nb * 256))

    issued = 0
    for s in range(PF):
        aloads(s)
        issued += 1
    for j in range(2):
        q.issue('buffer_load_dwordx4 %s, v%d, s[%d:%d], %s offen%s' % (
            vr(RES + 4 * j, 4), vRes, rsrd, rsrd + 3, 's41' if j else '0', '' if p3 else DSC), ('R', j))
    reads(0)
    TS5 = {} if p3 or not ENV('TS5') else {0: 3, 3: 4, 7: 5, 12: 6, 17: 7, 22: 8}
    if TS5:
        k.ts2(2)
    for s in range(NS):
        p = s & 1
        if s + 1 < NS:
            if ('B', s + 1) in q.at:
                q.wait(('B', s + 1))
            reads(s + 1)
            k('s_waitcnt lgkmcnt(4)')
        else:
            k('s_waitcnt lgkmcnt(0)')
        q.wait(('A', s))
        if s in TS5:
            k.ts2(TS5[s])
        slot = s % NR
        for mi in range(2):
            for nb in range(2):
                acc = vr(ACC + (mi * 2 + nb) * 16, 16)
                k('v_mfma_f32_32x32x16_bf16 %s, %s, %s, %s' % (
                    acc, vr(BFR + p * 8 + nb * 4, 4), vr(AR + slot * 8 + mi * 4, 4), '0' if s == 0 else acc))
        if issued < NS:
            aloads(issued)
            issued += 1
        if not p3 and s + 18 < NS and not ENV('X5B'):
            p5_bstep(k, s + 18, vBd, 25, 26, 12, q)
    k.ts(tsb + 1)
    for t in range(4):
        for qq in range(4):
            k('ds_write_b128 v%d, %s offset:%d' % (vW + qq, vr(ACC + t * 16 + qq * 4, 4),
                                                   (t >> 1) * (8192 if p3 else 32768) + (t & 1) * 128))
    k('s_waitcnt lgkmcnt(0)')
    k('s_barrier')
    for j in range(2):
        for src in range(4):
            for e in range(2):
                off = (src * RS + j * 2048) if p3 else (src * 2048 + j * 8192)
                k('ds_read_b128 %s, v%d offset:%d' % (vr(ACC + (j * 4 + src) * 8 + e * 4, 4), vR + e, off))
    for j in range(2):
        b = ACC + j * 32
        k('s_waitcnt lgkmcnt(%d)' % (12 - 8 * j))
        for i in range(8):
            k('v_add_f32 v%d, v%d, v%d' % (b + i, b + i, b + 8 + i))
        k('s_waitcnt lgkmcnt(%d)' % (8 - 8 * j))
        for i in range(8):
            k('v_add_f32 v%d, v%d, v%d' % (b + 16 + i, b + 16 + i, b + 24 + i))
        for i in range(8):
            k('v_add_f32 v%d, v%d, v%d' % (b + i, b + i, b + 16 + i))
        if j == 0:
            k('s_waitcnt vmcnt(0)')
        for i in range(4):
            k('v_cvt_pk_bf16_f32 v%d, v%d, v%d' % (T + 4, b + 2 * i, b + 2 * i + 1))
            k('v_lshlrev_b32 v%d, 16, v%d' % (T, T + 4))
            k('v_and_b32 v%d, 0xffff0000, v%d' % (T + 1, T + 4))
            k('v_lshlrev_b32 v%d, 16, v%d' % (T + 2, RES + 4 * j + i))
            k('v_and_b32 v%d, 0xffff0000, v%d' % (T + 3, RES + 4 * j + i))
            k('v_add_f32 v%d, v%d, v%d' % (T, T, T + 2))
            k('v_add_f32 v%d, v%d, v%d' % (T + 1, T + 1, T + 3))
            k('v_cvt_pk_bf16_f32 v%d, v%d, v%d' % (T + 8 + 4 * j + i, T, T + 1))
        k('buffer_store_dwordx4 %s, v%d, s[%d:%d], %s offen' % (vr(T + 8 + 4 * j, 4), vOut, osrd, osrd + 3, 's41' if j else '0'))
        if p3:
            k('ds_write_b128 v%d, %s offset:%d' % (vFw, vr(T + 8 + 4 * j, 4), j * 128))
            for i in range(4):
                d = T + 8 + 4 * j + i
                k('v_dot2_f32_bf16 v%d, v%d, s44, %s' % (BFR + 2 * j, d, 'v%d' % (BFR + 2 * j) if i else '0'))
                k('v_dot2_f32_bf16 v%d, v%d, v%d, %s' % (BFR + 2 * j + 1, d, d, 'v%d' % (BFR + 2 * j + 1) if i else '0'))
    if p3:
        k('s_waitcnt lgkmcnt(0)')
        for j in range(2):
            k('ds_read_b128 %s, v%d offset:%d' % (vr(ACC + 4 * j, 4), vFr, j * 1024))
        DP = ' row_mask:0xf bank_mask:0xf'
        for m in ('quad_perm:[1,0,3,2]', 'quad_perm:[2,3,0,1]', 'row_half_mirror'):
            for i in range(4):
                k('v_add_f32_dpp v%d, v%d, v%d %s%s' % (BFR + i, BFR + i, BFR + i, m, DP))
        k('s_mov_b64 exec, s[42:43]')
        for j in range(2):
            k('buffer_store_dwordx2 %s, v%d, s[4:7], 0 offen offset:%d' % (vr(BFR + 2 * j, 2), vSt, j * 512))
        k('s_mov_b64 exec, -1')
        for j in range(2):
            k('s_waitcnt lgkmcnt(%d)' % (1 - j))
            k('buffer_store_dwordx4 %s, v%d, s[4:7], 0 offen offset:%d' % (vr(ACC + 4 * j, 4), vFo, j * 1024))
    yield 'end'


def cs_sum(k):
    k('''s_lshr_b32 s10, s2, 4
    s_mul_i32 s10, s10, 448
    s_bfe_u32 s11, s3, 0x10001
    s_mul_i32 s30, s11, 7168
    s_add_u32 s10, s10, s30
    s_add_u32 s10, s10, 0x%x
    s_mul_i32 s11, s11, 448
    s_add_u32 s11, s11, %d
    v_and_b32 v4, 31, v1
    v_lshlrev_b32 v4, 4, v4
    v_add_u32 v6, s11, v4
    v_lshrrev_b32 v5, 5, v1
    v_mul_u32_u24 v5, %d, v5
    v_add_u32 v4, v4, v5''' % (WS_CS2, CSB, 8 * 14336))
    for p in range(8):
        k('s_add_u32 s30, s10, %d' % (p * 14336))
        k('buffer_load_dwordx4 %s, v4, s[4:7], s30 offen' % vr(32 + p * 4, 4))
    for p in range(1, 8):
        k('s_waitcnt vmcnt(%d)' % (7 - p))
        for i in range(4):
            k('v_add_f32 v%d, v%d, v%d' % (32 + i, 32 + i, 32 + p * 4 + i))
    for i in range(4):
        k('v_mov_b32 v%d, v%d' % (36 + i, 32 + i))
    for i in range(4):
        k('v_permlane32_swap_b32 v%d, v%d' % (32 + i, 36 + i))
    for i in range(4):
        k('v_add_f32 v%d, v%d, v%d' % (32 + i, 32 + i, 36 + i))
    k('s_mov_b64 exec, 0x0fffffff')
    k('ds_write_b128 v6, v[32:35]')
    k('s_mov_b64 exec, -1')


def p4_loader(k):
    vA, vBd, vB5, vG = 8, 16, 17, 18
    RAMP = int(ENV('RAMP', '2'))
    k.label('J_LD4')
    k('s_and_b32 s22, s3, 3')
    k('''s_cmp_lt_u32 s22, 2
    s_cselect_b32 s10, 32, 40
    s_load_dwordx2 s[16:17], s[0:1], s10
    s_load_dwordx2 s[12:13], s[0:1], 48''')
    k('v_and_b32 v1, 63, v0')
    k('''s_and_b32 s20, s2, 7
    s_lshl_b32 s20, s20, 1
    s_bfe_u32 s21, s2, 0x10003
    s_add_u32 s20, s20, s21
    s_lshl_b32 s23, s20, 17
    s_lshl_b32 s24, s22, 15
    s_add_u32 s23, s23, s24
    s_add_u32 s23, s23, 0x%x
    v_lshlrev_b32 v4, 4, v1
    v_add_u32 v%d, s23, v4''' % (WS_HF, vA))
    k('''s_lshl_b32 s29, s21, 6
    s_lshl_b32 s24, s22, 4
    s_add_u32 s29, s29, s24
    s_add_u32 s29, s29, s8
    s_add_u32 s29, s29, %d''' % F3)
    for i in range(1, 8):
        k('s_mov_b32 s%d, %d' % (47 + i, i * 4096))
    p4_bsetup(k, vBd, 4, 5, 26, 27)
    k('s_lshl_b32 s28, s22, 11')
    k('s_lshr_b32 s10, s2, 5')
    k('s_lshl_b32 s10, s10, 7')
    gemm_bd(k, vB5, 4, 5, 10)
    k('s_mul_i32 s25, s22, %d' % (28 * 16 * 1024))
    k('v_lshlrev_b32 v%d, 10, v1' % vG)
    k('s_mov_b32 s40, 0x%x' % (WS_FL + GST))
    k('s_waitcnt lgkmcnt(0)')
    k('s_mov_b32 s18, 0x%x' % WSZ)
    k('s_mov_b32 s19, 0x00020000')
    k('s_mov_b32 s14, 0x%x' % WSZ)
    k('s_mov_b32 s15, 0x00020000')
    poll(k, 'LD4_poll', 29, 4)
    k.ts(8)
    q = Q(k)

    def astage(ks):
        sl = ((ks + 3) % NSL) * SLOT
        for mf in range(2):
            o_ = (mf * 16 + ks) * 1024
            k('s_add_u32 m0, s28, %d' % (sl + 16384 + mf * 1024 - o_ % 4096))
            q.issue('buffer_load_dwordx4 v%d, s[4:7], %s offen offset:%d%s lds' % (
                vA, ('s%d' % (47 + o_ // 4096)) if o_ >= 4096 else '0', o_ % 4096, DSC), ('S', ks))

    def stage(ks):
        astage(ks)
        if ks >= 3:
            p4_bstage(k, ks, vBd, 26, 27, 16, q)
            q.at[('S', ks)] = q.n

    issued = 0
    for ks in range(3):
        stage(ks)
        issued += 1
    for ks in range(16):
        q.wait(('S', ks))
        k('s_barrier')
        for _ in range(RAMP):
            if issued < 16 and issued <= ks + NSL - 1:
                stage(issued)
                issued += 1
        if ks == 8:
            k('s_mov_b64 exec, 0xff')
            q.issue('buffer_load_dword v%d, v%d, s[4:7], s40 offen sc1' % (vG + 1, vG), 'G')
            k('s_mov_b64 exec, -1')
        if ks >= 11 and not ENV('X5P'):
            for s in range((ks - 11) * 3, (ks - 11) * 3 + 3):
                p5_bstep(k, s, vB5, 25, 28, 12, q)
    k('s_barrier')
    k('s_cmp_lg_u32 s100, 0')
    k('s_cbranch_scc1 J_SLOW_next')
    for s in range(15, 18):
        p5_bstep(k, s, vB5, 25, 28, 12, q)
    q.wait('G')
    k('s_mov_b64 exec, 0xff')
    k('v_cmp_eq_u32 vcc, 0, v%d' % (vG + 1))
    k('s_mov_b64 exec, -1')
    k('v_mov_b32 v5, 0x%x' % DEC)
    k('s_and_b32 s10, vcc_lo, 0xff')
    k('v_mov_b32 v4, s10')
    k('s_cmp_lg_u32 s3, 4')
    k('s_cbranch_scc1 LD4_nw')
    k('ds_write_b32 v5, v4 offset:4')
    k.label('LD4_nw')
    k('s_waitcnt vmcnt(0) lgkmcnt(0)')
    k.ts(9)
    k('s_barrier')
    k('ds_read_b32 v4, v5 offset:4')
    k('s_waitcnt lgkmcnt(0)')
    k('v_readfirstlane_b32 s10, v4')
    k('s_cmp_lg_u32 s10, 0')
    k('s_cbranch_scc1 LD4_steal')
    prof_end(k)
    k('s_endpgm')
    k.label('LD4_steal')
    k('s_barrier')
    k('s_branch J_SLOW_end')


def p4_comp(k):
    SS = 18
    vM, vC, vI = 26, 28, 30
    AF = 32
    BF = 48
    ACC = 104
    T = 216
    E = 224
    CS = BF
    vSt = 9
    vRd = 10
    vRa = 14
    vCs = 17
    vS2 = 16
    k.label('J_P4')
    lanes(k)
    k('''s_and_b32 s20, s2, 7
    s_lshl_b32 s20, s20, 1
    s_bfe_u32 s22, s2, 0x10003
    s_add_u32 s20, s20, s22
    s_lshr_b32 s21, s2, 4''')
    k('''s_lshl_b32 s40, s22, 1
    s_lshr_b32 s23, s3, 1
    s_add_u32 s40, s40, s23
    s_lshl_b32 s40, s40, 4
    s_add_u32 s40, s40, s21
    s_lshl_b32 s40, s40, 1
    s_and_b32 s23, s3, 1
    s_add_u32 s40, s40, s23
    s_add_u32 s40, s40, s8
    s_add_u32 s40, s40, %d''' % F4)
    k('''v_lshlrev_b32 v4, 3, v3
    v_lshrrev_b32 v5, 2, v2
    v_add_u32 v4, v4, v5
    v_lshlrev_b32 v4, 6, v4
    v_and_b32 v5, 3, v2
    v_lshl_add_u32 v4, v5, 3, v4
    s_and_b32 s30, s21, 1
    v_and_b32 v5, 1, v3
    v_xor_b32 v5, s30, v5
    v_lshl_add_u32 v%d, v5, 5, v4
    v_xor_b32 v5, 1, v5
    v_lshl_add_u32 v4, v5, 5, v4
    s_lshl_b32 s30, s30, 11
    v_add_u32 v%d, s30, v4''' % (vRd, vRd + 1))
    for par in range(2):
        k('v_add_u32 v%d, %d, v%d' % (vRd + 2 + par, 3 * SLOT, vRd + par))
    k('s_lshl_b32 s28, s3, 11')
    k('s_add_u32 s28, s28, 16384')
    k('v_lshlrev_b32 v4, 4, v1')
    k('v_add_u32 v%d, s28, v4' % vRa)
    k('v_add_u32 v%d, %d, v%d' % (vRa + 1, 3 * SLOT, vRa))
    k('''v_lshrrev_b32 v4, 1, v3
    v_lshlrev_b32 v4, 5, v4
    v_add_u32 v4, v4, v2
    v_lshlrev_b32 v4, 4, v4
    v_and_b32 v5, 1, v3
    v_lshl_add_u32 v%d, v5, 3, v4''' % vSt)
    k('''s_lshl_b32 s25, s20, 2
    s_add_u32 s25, s25, s3
    s_mul_i32 s25, s25, 112
    s_mul_i32 s30, s21, 7
    s_add_u32 s25, s25, s30
    s_lshl_b32 s25, s25, 10
    s_add_u32 s25, s25, 0x%x''' % WS_HH)
    k('v_lshlrev_b32 v8, 7, v1')
    k('v_lshlrev_b32 v4, 4, v3')
    k('v_add_u32 v%d, 0x%x, v4' % (vCs, CSB))
    k('''s_lshl_b32 s30, s20, 2
    s_add_u32 s30, s30, s3
    s_lshl_b32 s30, s30, 11
    s_add_u32 s30, s30, 0x%x
    v_lshl_add_u32 v4, v2, 6, v4
    v_add_u32 v%d, s30, v4''' % (WS_ST, vS2))
    yield 'pre'

    def areg(ks, mf):
        return AF + ((ks & 1) * 2 + mf) * 4

    def reads(hs):
        ks, mx = hs >> 1, hs & 1
        slot = (ks + 3) % NSL
        out = []
        if mx == 0:
            for mf in range(2):
                out.append('ds_read_b128 %s, v%d offset:%d' % (vr(areg(ks, mf), 4), vRa + slot // 3, (slot % 3) * SLOT + mf * 1024))
        for nf in range(7):
            for kgl in range(2):
                out.append('ds_read_b64_tr_b16 %s, v%d offset:%d' % (
                    vr(BF + mx * 28 + nf * 4 + kgl * 2, 2), vRd + (slot // 3) * 2 + (nf & 1),
                    (slot % 3) * SLOT + mx * 8192 + (nf >> 1) * 2048 + kgl * 256))
        return out

    class Lst:
        def __init__(self):
            self.l = []

        def __call__(self, x):
            self.l.append(x)

    k('s_barrier')
    k.ts(8)
    for o in reads(0):
        k(o)
    for mf in range(2):
        k('buffer_load_dwordx4 %s, v%d, s[4:7], 0 offen offset:%d%s' % (vr(SS + mf * 4, 4), vS2, mf * 1024, DSC))
    SF = Lst()
    stats_fin(SF, SS, T, vM, vC, vI)
    no = []
    for hs in range(32):
        ks, mx = hs >> 1, hs & 1
        k('s_waitcnt lgkmcnt(0)')
        if mx == 1 and ks + 1 < 16:
            k('s_barrier')
        rd = reads(hs + 1) if hs + 1 < 32 else []
        if hs == 8:
            k('s_waitcnt vmcnt(0)')
            no = SF.l
        if PRE and hs == HPF:
            k('s_mov_b32 exec_hi, 0x00ffffff')
            k('buffer_load_dword v7, v8, s[4:7], s25 offen')
            k('s_mov_b32 exec_hi, -1')
        for nf in range(7):
            for mf in range(2):
                acc = vr(ACC + (mf * 14 + mx * 7 + nf) * 4, 4)
                a = vr(areg(ks, mf), 4)
                b = vr(BF + mx * 28 + nf * 4, 4)
                k('v_mfma_f32_16x16x32_bf16 %s, %s, %s, %s' % (acc, b, a, '0' if ks == 0 else acc))
                for _ in range(2):
                    if rd:
                        k(rd.pop(0))
                if no and not rd:
                    k(no.pop(0))
                    if no:
                        k(no.pop(0))
        for o in rd:
            k(o)
    assert not no
    k.ts(9)
    k('s_waitcnt vmcnt(0)')
    k('s_barrier')
    for mx in range(2):
        for nf in range(7):
            k('ds_read_b128 %s, v%d offset:%d' % (vr(CS + (mx * 7 + nf) * 4, 4), vCs, mx * 448 + nf * 64))
    k('s_waitcnt lgkmcnt(0)')
    n = 0
    for nf in range(7):
        k('s_add_u32 s29, s25, %d' % (nf * 1024))
        for mf in range(2):
            e = E + (n & 3) * 8
            n += 1
            G = ACC + (mf * 14 + nf) * 4
            U = ACC + (mf * 14 + 7 + nf) * 4
            sel = 'op_sel:[0,%d,0] op_sel_hi:[1,%d,1]' % (mf, mf)
            sel2 = 'op_sel:[0,%d] op_sel_hi:[1,%d]' % (mf, mf)
            sel3 = 'op_sel:[0,%d,%d] op_sel_hi:[1,%d,%d]' % (mf, mf, mf, mf)
            for h in range(2):
                k('v_pk_fma_f32 %s, %s, %s, %s %s neg_lo:[0,1,0] neg_hi:[0,1,0]' % (
                    vr(G + 2 * h, 2), vr(CS + nf * 4 + 2 * h, 2), vr(vM, 2), vr(G + 2 * h, 2), sel))
            for h in range(2):
                k('v_pk_mul_f32 %s, %s, %s %s' % (vr(e + 2 * h, 2), vr(G + 2 * h, 2), vr(vC, 2), sel2))
            for r in range(4):
                k('v_exp_f32 v%d, v%d' % (e + r, e + r))
            for h in range(2):
                k('v_pk_fma_f32 %s, %s, %s, %s %s neg_lo:[0,1,0] neg_hi:[0,1,0]' % (
                    vr(U + 2 * h, 2), vr(CS + (7 + nf) * 4 + 2 * h, 2), vr(vM, 2), vr(U + 2 * h, 2), sel))
            for h in range(2):
                k('v_pk_fma_f32 %s, %s, %s, %s %s' % (vr(e + 2 * h, 2), vr(e + 2 * h, 2), vr(vI, 2), vr(vI, 2), sel3))
            for r in range(4):
                k('v_rcp_f32 v%d, v%d' % (e + r, e + r))
            for h in range(2):
                k('v_pk_mul_f32 %s, %s, %s' % (vr(G + 2 * h, 2), vr(G + 2 * h, 2), vr(U + 2 * h, 2)))
            for h in range(2):
                k('v_pk_mul_f32 %s, %s, %s' % (vr(G + 2 * h, 2), vr(G + 2 * h, 2), vr(e + 2 * h, 2)))
            k('v_cvt_pk_bf16_f32 v%d, v%d, v%d' % (e + 4, G, G + 1))
            k('v_cvt_pk_bf16_f32 v%d, v%d, v%d' % (e + 5, G + 2, G + 3))
            k('buffer_store_dwordx2 %s, v%d, s[4:7], s29 offen offset:%d' % (vr(e + 4, 2), vSt, mf * 256))
    yield 'end'


def prof_end(k):
    if not PROF:
        return
    k('s_waitcnt vmcnt(0)')
    k.ts(14)
    k.ts(15, True)
    k('s_waitcnt lgkmcnt(0)')
    k('s_lshl_b32 s99, s2, 3')
    k('s_add_u32 s99, s99, s3')
    k('s_lshl_b32 s99, s99, 7')
    k('s_add_u32 s99, s99, 0x%x' % (PROF_BASE + 0x40000))
    k('v_mov_b32 v4, 0')
    for i in range(16):
        k('v_mov_b32 v2, s%d' % (64 + 2 * i))
        k('v_mov_b32 v3, s%d' % (65 + 2 * i))
        k('buffer_store_dwordx2 v[2:3], v4, s[4:7], s99 offen offset:%d' % (8 * i))
        k('s_nop 1')


def bcast_read(k, off):
    k('v_mov_b32 v5, 0x%x' % DEC)
    k('s_barrier')
    k('ds_read_b32 v4, v5 offset:%d' % off)
    k('s_waitcnt lgkmcnt(0)')
    k('v_readfirstlane_b32 s10, v4')


def slow(k):
    k.label('J_SLOW_start')
    k('s_lshr_b32 s11, s2, 3')
    k('s_lshl_b32 s9, 1, s11')
    k('s_bitcmp1_b32 s10, 0')
    k('s_cselect_b32 s9, 0, s9')
    k('s_mov_b32 s100, 1')
    k('s_mov_b32 s97, %d' % PATIENCE)
    k.label('J_SLOW_claim')
    k('s_waitcnt vmcnt(0) lgkmcnt(0)')
    k('s_barrier')
    k('s_cmp_lg_u32 s3, 0')
    k('s_cbranch_scc1 SL_c9')
    k('s_mov_b64 exec, 1')
    k('s_mov_b32 s30, 0')
    k('s_mov_b32 s31, 0')
    k.label('J_SL_c1')
    k('v_mov_b32 v4, 0')
    k('buffer_atomic_or v4, off, s[4:7], s8 sc0')
    k('s_add_u32 s31, s31, 1')
    k('s_waitcnt vmcnt(0)')
    k('v_readfirstlane_b32 s10, v4')
    k('s_mov_b32 s11, -1')
    k('s_cmp_eq_u32 s10, -1')
    k('s_cbranch_scc1 SL_c8')
    k('s_cmp_gt_u32 s31, 4096')
    k('s_cbranch_scc1 SL_c8')
    k('s_cmp_eq_u32 s9, 0')
    k('s_cbranch_scc1 SL_c2')
    k('s_cmp_ge_u32 s30, s97')
    k('s_cbranch_scc1 SL_c2')
    k('s_add_u32 s30, s30, 1')
    k('s_sleep 16')
    k('s_branch J_SL_c1')
    k.label('SL_c2')
    k('s_ff0_i32_b32 s11, s10')
    k('s_lshl_b32 s10, 1, s11')
    k('v_mov_b32 v4, s10')
    k('buffer_atomic_or v4, off, s[4:7], s8 sc0')
    k('s_waitcnt vmcnt(0)')
    k('v_readfirstlane_b32 s12, v4')
    k('s_and_b32 s12, s12, s10')
    k('s_cmp_lg_u32 s12, 0')
    k('s_cbranch_scc1 J_SL_c1')
    k.label('SL_c8')
    k('v_mov_b32 v4, s11')
    k('v_mov_b32 v5, 0x%x' % DEC)
    k('ds_write_b32 v5, v4 offset:8')
    k('s_mov_b64 exec, -1')
    k('s_waitcnt lgkmcnt(0)')
    k.label('SL_c9')
    bcast_read(k, 8)
    k('s_cmp_eq_u32 s10, -1')
    k('s_cbranch_scc1 SL_ph')
    k('s_and_b32 s10, s10, 31')
    k('s_lshl_b32 s11, 1, s10')
    k('s_or_b32 s9, s9, s11')
    k('s_and_b32 s2, s2, 7')
    k('s_lshl_b32 s10, s10, 3')
    k('s_or_b32 s2, s2, s10')
    k('s_branch J_P2')
    k.label('SL_ph')
    k('s_mov_b32 s100, 3')
    k('s_mov_b32 s101, s9')
    k.label('J_SLOW_next')
    k('s_waitcnt vmcnt(0) lgkmcnt(0)')
    k('s_barrier')
    k('s_cmp_lg_u32 s101, 0')
    k('s_cbranch_scc1 SL_n1')
    k('s_add_u32 s100, s100, 1')
    k('s_mov_b32 s101, s9')
    k('s_cmp_gt_u32 s100, 5')
    k('s_cbranch_scc1 J_SLOW_end')
    k('s_branch J_SLOW_next')
    k.label('SL_n1')
    k('s_ff1_i32_b32 s10, s101')
    k('s_bitset0_b32 s101, s10')
    k('s_and_b32 s2, s2, 7')
    k('s_lshl_b32 s10, s10, 3')
    k('s_or_b32 s2, s2, s10')
    k('v_and_b32 v1, 63, v0')
    k('s_cmp_ge_u32 s3, 4')
    k('s_cbranch_scc1 SL_ld')
    k('s_cmp_eq_u32 s100, 4')
    k('s_cbranch_scc1 J_P4')
    k('s_cmp_eq_u32 s100, 5')
    k('s_cbranch_scc1 J_P5')
    k('s_load_dwordx2 s[12:13], s[0:1], 16')
    k('s_mov_b32 s14, 0x80000')
    k('s_mov_b32 s15, 0x00020000')
    k('s_waitcnt lgkmcnt(0)')
    wo_dma(k, 8, 4, 5)
    k('s_waitcnt vmcnt(0)')
    k('s_branch J_P3')
    k.label('SL_ld')
    k('s_cmp_eq_u32 s100, 3')
    k('s_cbranch_scc1 SL_l3')
    k('s_cmp_eq_u32 s100, 5')
    k('s_cbranch_scc1 SL_l5')
    k('''s_cmp_lt_u32 s3, 6
    s_cselect_b32 s10, 32, 40
    s_load_dwordx2 s[12:13], s[0:1], s10
    s_mov_b32 s14, 0x%x
    s_mov_b32 s15, 0x00020000''' % WSZ)
    p4_bsetup(k, 8, 4, 5, 23, 24)
    k('s_waitcnt lgkmcnt(0)')
    for ks in range(3):
        p4_bstage(k, ks, 8, 23, 24, 12)
    cs_sum(k)
    k('s_waitcnt lgkmcnt(0)')
    k('s_branch J_LD4')
    k.label('SL_l5')
    k('s_load_dwordx2 s[12:13], s[0:1], 48')
    k('s_mov_b32 s14, 0x%x' % WSZ)
    k('s_mov_b32 s15, 0x00020000')
    k('s_lshr_b32 s10, s2, 5')
    k('s_lshl_b32 s10, s10, 7')
    gemm_bd(k, 8, 4, 5, 10)
    k('s_and_b32 s22, s3, 3')
    k('s_mul_i32 s25, s22, %d' % (28 * 16 * 1024))
    k('s_lshl_b32 s28, s22, 11')
    k('s_waitcnt lgkmcnt(0)')
    for s in range(18):
        p5_bstep(k, s, 8, 25, 28, 12)
    k('s_waitcnt vmcnt(0)')
    k('s_barrier')
    k.label('SL_l3')
    k('s_barrier')
    k('s_branch J_SLOW_next')
    k.label('J_SLOW_end')
    k('s_waitcnt vmcnt(0) lgkmcnt(0)')
    k('s_barrier')
    k('s_cmp_lg_u32 s3, 0')
    k('s_cbranch_scc1 SL_e9')
    k('v_and_b32 v1, 63, v0')
    k('v_lshlrev_b32 v6, 10, v1')
    k('s_mov_b32 s11, 0x%x' % (WS_FL + GST))
    k('s_mov_b64 exec, 0xff')
    k('buffer_load_dword v4, v6, s[4:7], s11 offen sc1')
    k('s_waitcnt vmcnt(0)')
    k('v_cmp_eq_u32 vcc, 0, v4')
    k('s_mov_b64 exec, 1')
    k('s_and_b32 s10, vcc_lo, 0xff')
    k('s_ff1_i32_b32 s10, s10')
    k('s_cmp_eq_u32 s10, -1')
    k('s_cbranch_scc1 SL_e8')
    k('s_lshl_b32 s12, s10, 10')
    k('s_add_u32 s11, s11, s12')
    k('v_mov_b32 v4, 1')
    k('buffer_store_dword v4, off, s[4:7], s11 sc1')
    k('s_waitcnt vmcnt(0)')
    k.label('SL_e8')
    k('v_mov_b32 v4, s10')
    k('v_mov_b32 v5, 0x%x' % DEC)
    k('ds_write_b32 v5, v4 offset:12')
    k('s_mov_b64 exec, -1')
    k('s_waitcnt lgkmcnt(0)')
    k.label('SL_e9')
    bcast_read(k, 12)
    k('s_cmp_eq_u32 s10, -1')
    k('s_cbranch_scc1 KF_done')
    k('s_and_b32 s2, s10, 7')
    k('s_lshl_b32 s8, s98, 3')
    k('s_add_u32 s8, s8, s2')
    k('s_lshl_b32 s8, s8, 10')
    k('s_add_u32 s8, s8, 0x%x' % WS_FL)
    k('s_mov_b32 s9, 0')
    k('s_mov_b32 s100, 1')
    k('s_mov_b32 s97, 0')
    k('s_branch J_SLOW_claim')


def gen_kf():
    k = Kernel('kf')
    if ENV('TS5'):
        k.tsoff = set(range(2, 9))
    k('s_cmp_ge_u32 s2, 256')
    k('s_cbranch_scc1 KF_done')
    k.ts(0, True)
    k.ts(1)
    k('s_load_dwordx2 s[4:5], s[0:1], 72')
    k('s_getreg_b32 s98, hwreg(HW_REG_XCC_ID, 0, 4)')
    FAKE = ENV('FAKEX', '')
    if FAKE == 'g0':
        gsrc = '0'
    else:
        gsrc = None
    k('v_lshrrev_b32 v1, 6, v0')
    k('v_readfirstlane_b32 s3, v1')
    if gsrc is None:
        k('s_and_b32 s10, s98, 7')
    else:
        k('s_mov_b32 s10, %s' % gsrc)
    k('''s_andn2_b32 s2, s2, 7
    s_or_b32 s2, s2, s10
    s_lshl_b32 s8, s98, 3
    s_add_u32 s8, s8, s10
    s_lshl_b32 s8, s8, 10
    s_add_u32 s8, s8, 0x%x
    s_lshl_b32 s10, s10, 10
    s_add_u32 s10, s10, 0x%x
    s_mov_b32 s100, 0
    s_mov_b32 s6, 0x%x
    s_mov_b32 s7, 0x00020000
    s_lshr_b32 s11, s2, 3
    s_lshl_b32 s11, 1, s11
    v_mov_b32 v252, s11
    v_mov_b32 v253, 1''' % (WS_FL, WS_FL + GST, WS_SIZE))
    if FAKE == 'drop':
        k('s_and_b32 s11, s2, 0x78')
        k('s_cmp_eq_u32 s11, 0x28')
        k('s_cbranch_scc1 KF_done')
    k('s_waitcnt lgkmcnt(0)')
    k('s_cmp_lg_u32 s3, 0')
    k('s_cbranch_scc1 J_P2')
    k('s_mov_b64 exec, 1')
    k('buffer_atomic_or v252, off, s[4:7], s8 sc0')
    k('buffer_store_dword v253, off, s[4:7], s10 sc1')
    k('s_mov_b64 exec, -1')
    phase2(k)
    k('s_cmp_ge_u32 s3, 4')
    k('s_cbranch_scc1 J_LD3')
    k.label('J_P3')
    for _ in gemm(k, True):
        pass
    g4 = p4_comp(k)
    k('s_cmp_lg_u32 s100, 0')
    k('s_cbranch_scc0 P3_fast')
    setflag(k, 40, 4)
    k('s_branch J_SLOW_next')
    k.label('P3_fast')
    k('s_mov_b32 s41, s40')
    next(g4)
    k('s_cmp_lg_u32 s100, 0')
    k('s_cbranch_scc1 P4_go')
    setflag(k, 41, 4)
    k.ts(7)
    k.label('P4_go')
    next(g4)
    g5 = gemm(k, False)
    k('s_cmp_lg_u32 s100, 0')
    k('s_cbranch_scc0 J_P5')
    setflag(k, 40, 4)
    k('s_branch J_SLOW_next')
    k.label('J_P5')
    next(g5)
    k('s_cmp_lg_u32 s100, 0')
    k('s_cbranch_scc1 P5_go')
    setflag(k, 40, 4)
    k.ts(10)
    k.label('P5_go')
    k('v_mov_b32 v5, 0x%x' % DEC)
    k('s_barrier')
    k('ds_read_b32 v4, v5 offset:4')
    k('s_waitcnt lgkmcnt(0)')
    k('v_readfirstlane_b32 s96, v4')
    next(g5)
    k.ts(13)
    k('s_cmp_lg_u32 s100, 0')
    k('s_cbranch_scc1 J_SLOW_next')
    k('s_cmp_lg_u32 s96, 0')
    k('s_cbranch_scc1 J_SLOW_end')
    prof_end(k)
    k.label('KF_done')
    k('s_endpgm')
    k.label('J_LD3')
    k('v_and_b32 v1, 63, v0')
    cs_sum(k)
    if PRE and NPF3:
        l2pf(k, NPF3, 40, NPF3)
    k('s_waitcnt lgkmcnt(0)')
    k('s_barrier')
    k.ts(5)
    p4_loader(k)
    slow(k)
    k.label('KF_END')
    k('s_endpgm')
    return k, dict(vgpr=256, agpr=0, lds=LDS_SIZE, grid=256, block=512)
```

```python
from asmlib import Kernel, PROF, PROF_BASE
from k1 import vr, sr, make_srd, WS_Q, WS_K, WS_VT, WS_O, WS_H, WS_HF, WS_HH, WS_ST, WS_CS2, WS_FL, WS_SIZE
from k4 import stats_fin
import struct, os


def f32hex(x):
    return '0x%08x' % struct.unpack('<I', struct.pack('<f', x))[0]


SLOT = 24576
NSL = 6
CSB = NSL * SLOT
DEC = CSB + 1024
LDS_SIZE = DEC + 256
F2, F3, F4 = 128, 384, 512
GST = 15 * 8 * 1024 + 768
POLL_LIMIT = int(os.environ.get('POLL_LIMIT', '0x20000'), 0)
PATIENCE = 48
WSZ = 512 * 1792 * 2
ENV = os.environ.get
DSC = ENV('DSC', '')
PSC = ENV('PSC', ' sc1')
PRE = int(ENV('PRE', '1'))
HPF = int(ENV('HPF', '10'))
NPF3 = int(ENV('NPF3', '0'))
SCM = {'': '', '1': ' sc1', '01': ' sc0 sc1', 'nt': ' nt', '0': ' sc0', 'nt1': ' sc1 nt'}
OSC = SCM[ENV('OSC', '1')]
HSC = SCM[ENV('HSC', '1')]
GSC = SCM[ENV('GSC', '1')]
SSC = SCM[ENV('SSC', '')]
FSC = SCM[ENV('FSC', '')]
PREO = int(ENV('PREO', '0'))
PREH = int(ENV('PREH', '6'))
TS2 = ENV('TS2')
DT = int(ENV('DT', '-1'))
PKF = int(ENV('PKF', '1'))
PF2 = int(ENV('PF2', '0'))
PF2L = int(ENV('PF2L', '16'))
PREG = int(ENV('PREG', '0'))


class Q:
    def __init__(self, k):
        self.k = k
        self.n = 0
        self.at = {}

    def issue(self, text, tag=None):
        self.k(text)
        self.n += 1
        if tag is not None:
            self.at[tag] = self.n

    def wait(self, *tags):
        m = max(self.at[t] for t in tags)
        self.k('s_waitcnt vmcnt(%d)' % min(63, self.n - m))


def poll(k, L, soff, nd, vt=4):
    k('s_mov_b32 s30, 0')
    k('s_mov_b64 exec, 1')
    k.label(L)
    k('buffer_load_dwordx%d %s, off, s[4:7], s%d%s' % (nd, vr(vt, nd), soff, PSC))
    k('s_add_u32 s30, s30, 1')
    k('s_waitcnt vmcnt(0)')
    k('v_and_b32 v%d, v%d, v%d' % (vt, vt, vt + 1))
    if nd == 4:
        k('v_and_b32 v%d, v%d, v%d' % (vt + 2, vt + 2, vt + 3))
        k('v_and_b32 v%d, v%d, v%d' % (vt, vt, vt + 2))
    k('v_readfirstlane_b32 s31, v%d' % vt)
    k('s_cmp_eq_u32 s31, 0x01010101')
    k('s_cbranch_scc1 %s_x' % L)
    k('s_cmp_lt_u32 s30, 0x%x' % POLL_LIMIT)
    k('s_cbranch_scc1 %s' % L)
    k.label(L + '_x')
    k('s_mov_b64 exec, -1')


def setflag(k, soff, vt):
    k('v_mov_b32 v%d, 1' % vt)
    k('s_waitcnt vmcnt(0)')
    k('s_mov_b64 exec, 1')
    k('buffer_store_byte v%d, off, s[4:7], s%d' % (vt, soff))
    k('s_mov_b64 exec, -1')


def lanes(k):
    k('v_and_b32 v1, 63, v0')
    k('v_and_b32 v2, 15, v1')
    k('v_lshrrev_b32 v3, 4, v1')


def gemm_bd(k, vBd, t0, t1, snt):
    k('''v_lshrrev_b32 v%d, 5, v1
    v_lshlrev_b32 v%d, 2, v%d
    v_bfe_u32 v%d, v1, 2, 2
    v_add_u32 v%d, v%d, v%d
    v_lshlrev_b32 v%d, 10, v%d
    v_bfe_u32 v%d, v1, 4, 1
    v_lshl_add_u32 v%d, v%d, 6, v%d
    v_and_b32 v%d, 3, v1
    v_lshl_add_u32 v%d, v%d, 4, v%d
    v_add_u32 v%d, s%d, v%d''' % (t0, t0, t0, t1, t0, t0, t1, t0, t0, t1, t0, t1, t0, t1, t0, t1, t0, vBd, snt, t0))


def wo_dma(k, vBd, t0, t1, q=None):
    k('s_lshr_b32 s10, s2, 5')
    k('s_lshl_b32 s10, s10, 7')
    gemm_bd(k, vBd, t0, t1, 10)
    k('s_lshl_b32 s10, s3, 17')
    k('s_lshl_b32 s11, s3, 14')
    for i in range(16):
        k('s_add_u32 s30, s10, %d' % (i * 8192))
        k('s_add_u32 m0, s11, %d' % (i * 1024))
        k('buffer_load_dwordx4 v%d, s[12:15], s30 offen lds' % vBd)


def p4_bsetup(k, vBd, t0, t1, sB, sM):
    k('''v_lshrrev_b32 v%d, 2, v1
    v_mul_u32_u24 v%d, 0xe00, v%d
    v_lshrrev_b32 v%d, 5, v1
    v_lshlrev_b32 v%d, 1, v%d
    v_and_b32 v%d, 3, v1
    v_xor_b32 v%d, v%d, v%d
    v_lshl_add_u32 v%d, v%d, 4, v%d''' % (t0, t0, t0, t1, t1, t1, vBd, t1, t1, vBd, vBd, t1, t0))
    k('''s_and_b32 s%d, s3, 1
    s_mul_i32 s%d, s%d, %d
    s_lshr_b32 s10, s2, 4
    s_mul_i32 s11, s10, 224
    s_add_u32 s%d, s%d, s11
    s_and_b32 s10, s10, 1
    s_lshl_b32 s10, s10, 5
    s_sub_u32 s%d, s%d, s10
    s_lshl_b32 s%d, s%d, 10
    s_bfe_u32 s10, s3, 0x10001
    s_lshl_b32 s10, s10, 13
    s_add_u32 s%d, s%d, s10''' % (sM, sB, sM, 16 * 3584, sB, sB, sB, sB, sM, sM, sM, sM))


def p4_bstage(k, ks, vBd, sB, sM, srd, q=None):
    sl = ((ks + 3) % NSL) * SLOT
    for j in range(4):
        k('s_add_u32 s30, s%d, %d' % (sB, ks * 32 * 3584 + j * 64))
        k('s_add_u32 m0, s%d, %d' % (sM, sl + j * 2048))
        t = 'buffer_load_dwordx4 v%d, s[%d:%d], s30 offen lds' % (vBd, srd, srd + 3)
        if q:
            q.issue(t, ('B', ks))
        else:
            k(t)


def p5_bstep(k, s, vBd, sB, sM, srd, q=None):
    qs = (s + 3) % 18
    for h in range(2):
        k('s_add_u32 s30, s%d, %d' % (sB, (s * 16 + h * 8) * 1024))
        k('s_add_u32 m0, s%d, %d' % (sM, qs * 8192 + h * 1024))
        t = 'buffer_load_dwordx4 v%d, s[%d:%d], s30 offen lds' % (vBd, srd, srd + 3)
        if q:
            q.issue(t, ('B', s))
        else:
            k(t)


def l2pf(k, n, vPf, tot):
    k('''s_lshr_b32 s10, s2, 3
    s_lshl_b32 s10, s10, 1
    s_and_b32 s11, s3, 1
    s_add_u32 s10, s10, s11
    s_lshl_b32 s10, s10, 13
    s_add_u32 s10, s10, %d
    v_lshlrev_b32 v%d, 7, v1''' % (96 * 3584, vPf))
    for i in range(tot):
        if i < n:
            k('s_add_u32 s30, s10, %d' % (i * 0x80000))
        k('buffer_load_dword v%d, v%d, s[12:15], s30 offen' % (vPf + 1, vPf))


def l2pf2(k, n, vPf):
    k('''s_bitcmp1_b32 s3, 0
    s_cselect_b32 s36, s18, s16
    s_cselect_b32 s37, s19, s17
    s_mov_b32 s38, 0x%x
    s_mov_b32 s39, 0x00020000
    s_lshr_b32 s10, s2, 3
    s_lshl_b32 s10, s10, 2
    s_lshr_b32 s11, s3, 1
    s_add_u32 s10, s10, s11
    s_mul_i32 s10, s10, %d
    s_add_u32 s10, s10, %d
    v_lshlrev_b32 v%d, 7, v1''' % (WSZ, PF2L * 128, 96 * 3584, vPf))
    if PF2L < 64:
        k('s_mov_b64 exec, 0x%x' % ((1 << PF2L) - 1))
    for i in range(n):
        k('s_add_u32 s30, s10, %d' % (i * 128 * PF2L * 128))
        k('buffer_load_dword v%d, v%d, s[36:39], s30 offen' % (vPf + 1, vPf))
    k('s_mov_b64 exec, -1')


def phase2(k):
    S = 12
    O = 156
    vQ, vK, vV, vSt, vNeg = 4, 5, 6, 8, 9
    t0, t1 = 10, 11
    vPf = 172
    aK, aV0, aQ = 176, 212, 248
    vCl, vMk, vBd = 252, 253, 254

    def mk(i):
        return 32 + 2 * i
    k.label('J_P2')
    k('''s_cmp_lt_u32 s3, 6
    s_cselect_b32 s10, 32, 40
    s_mov_b32 s14, 0x%x
    s_cmp_lt_u32 s3, 4
    s_cselect_b32 s10, 16, s10
    s_cselect_b32 s14, 0x80000, s14
    s_load_dwordx2 s[12:13], s[0:1], s10
    s_load_dwordx4 s[16:19], s[0:1], 32
    s_mov_b32 s15, 0x00020000''' % WSZ)
    k('''s_lshr_b32 s20, s2, 5
    s_lshl_b32 s20, s20, 2
    s_and_b32 s21, s3, 3
    s_add_u32 s20, s20, s21
    s_and_b32 s21, s2, 7
    s_lshl_b32 s21, s21, 2
    s_bfe_u32 s22, s2, 0x20003
    s_add_u32 s21, s21, s22
    s_lshl_b32 s21, s21, 1
    s_lshr_b32 s23, s3, 2
    s_add_u32 s21, s21, s23
    v_and_b32 v1, 63, v0
    v_and_b32 v2, 31, v1
    v_lshrrev_b32 v3, 5, v1''')
    k('''s_lshl_b32 s22, s22, 6
    s_add_u32 s22, s22, s23
    s_lshl_b32 s23, s20, 1
    s_add_u32 s22, s22, s23
    s_add_u32 s22, s22, s8
    s_add_u32 s22, s22, %d''' % F2)
    k('''s_lshl_b32 s23, s20, 16
    s_lshl_b32 s24, s21, 10
    s_add_u32 s23, s23, s24
    v_lshlrev_b32 v10, 5, v2
    v_lshl_add_u32 v10, v3, 4, v10
    v_add_u32 v%d, s23, v10
    v_add_u32 v%d, 0x%x, v%d
    v_and_b32 v10, 15, v1
    v_lshlrev_b32 v10, 5, v10
    v_lshl_add_u32 v10, v3, 4, v10
    v_add_u32 v10, s23, v10
    v_add_u32 v%d, 0x%x, v10''' % (vQ, vK, WS_K - 8192, vQ, vV, WS_VT - 8192))
    k('s_mov_b32 s26, 4096')
    k('s_mov_b32 s27, 8192')
    k('v_mov_b32 v%d, 0x3f803f80' % t1)

    def so(off):
        return ('0', 's26', 's27')[off // 4096], off % 4096

    if TS2:
        k.ts2(2)
    k('buffer_load_dwordx4 %s, v%d, s[4:7], 0 offen' % (vr(aQ, 4), vQ))
    for T in range(9):
        s_, i_ = so(T * 1024)
        k('buffer_load_dwordx4 %s, v%d, s[4:7], %s offen offset:%d' % (vr(aK + T * 4, 4), vK, s_, i_))

    def vreg(idx):
        return aV0 + idx * 4 if idx < 9 else aK + (idx - 9) * 4

    def vloads(idxs):
        for idx in idxs:
            for r in range(4):
                k('v_mov_b32 v%d, v%d' % (vreg(idx) + r, t1))
        k('s_mov_b32 exec_lo, 0x0000ffff')
        k('s_mov_b32 exec_hi, 0x0000ffff')
        for idx in idxs:
            s_, i_ = so(idx * 512)
            k('buffer_load_dwordx4 %s, v%d, s[4:7], %s offen offset:%d' % (vr(vreg(idx), 4), vV, s_, i_))
        k('s_mov_b64 exec, -1')

    def dmablock():
        k('s_waitcnt lgkmcnt(0)')
        k('s_cmp_ge_u32 s3, 4')
        k('s_cbranch_scc1 P2_pfl')
        wo_dma(k, vBd, vPf, vPf + 1)
        k('s_branch P2_pfx')
        k.label('P2_pfl')
        p4_bsetup(k, vBd, vPf, vPf + 1, 23, 24)
        for ks in range(3):
            p4_bstage(k, ks, vBd, 23, 24, 12)
        if PRE and not PREH:
            pass
        elif PRE:
            k('''s_and_b32 s10, s2, 7
            s_lshl_b32 s10, s10, 2
            s_bfe_u32 s11, s2, 0x20003
            s_add_u32 s10, s10, s11
            s_lshr_b32 s11, s2, 5
            s_lshl_b32 s30, s10, 16
            s_lshl_b32 s31, s11, 7
            s_add_u32 s31, s30, s31
            s_add_u32 s31, s31, 0x%x
            s_lshl_b32 s11, s11, 11
            s_add_u32 s30, s30, s11
            s_add_u32 s30, s30, 0x%x
            s_lshl_b32 s10, s10, 12
            s_add_u32 s10, s10, 0x%x
            s_movk_i32 s11, 128
            s_cmp_eq_u32 s3, 4
            s_cselect_b32 s30, s31, s30
            s_cselect_b32 s11, 1024, s11
            s_mov_b32 s31, 16384
            s_bitcmp1_b32 %d, s3
            s_cselect_b32 s30, s10, s30
            s_cselect_b32 s11, 64, s11
            s_cselect_b32 s31, 1024, s31
            v_lshrrev_b32 v%d, 4, v1
            v_mul_u32_u24 v%d, s31, v%d
            v_and_b32 v%d, 15, v1
            v_mad_u32_u24 v%d, v%d, s11, v%d
            buffer_load_dword v7, v%d, s[4:7], s30 offen''' % (WS_H, WS_HF, WS_ST, 0xc0 | (0 if PREH & 1 else 16) | (0 if PREH & 2 else 32), vPf, vPf, vPf, vPf + 1, vPf, vPf + 1, vPf, vPf))
        else:
            l2pf(k, int(ENV('NPF2', '4')), vPf, 4)
        k.label('P2_pfx')

        if PF2:
            l2pf2(k, PF2, vPf)

    vloads(range(9))
    k('''s_lshl_b32 s25, s21, 5
    s_add_u32 s25, s25, s20
    s_lshl_b32 s25, s25, 10
    s_add_u32 s25, s25, 0x%x
    v_lshlrev_b32 v10, 4, v2
    v_lshl_add_u32 v10, v3, 3, v10
    v_add_u32 v%d, s25, v10''' % (WS_O, vSt))
    nx = 0
    if PRE and PREO:
        k('v_lshlrev_b32 v10, 7, v1')
        k('s_mov_b64 exec, 0xff')
        k('buffer_load_dword v7, v10, s[4:7], s25 offen')
        k('s_mov_b64 exec, -1')
        nx = 1
    k('v_mov_b32 v%d, %s' % (vNeg, f32hex(-1e9)))
    k('s_sub_i32 s28, 8, s21')
    k('s_max_i32 s28, s28, 0')
    for i in range(16):
        kk = (i >> 2) * 8 + (i & 3)
        m = 0
        for l in range(64):
            if kk > (l & 31) - (l >> 5) * 4:
                m |= 1 << l
        k('s_mov_b32 s%d, 0x%x' % (mk(i), m & 0xffffffff))
        k('s_mov_b32 s%d, 0x%x' % (mk(i) + 1, m >> 32))
    k.ts(2)
    if TS2:
        k.ts2(3)
    for T in range(9):
        k('s_waitcnt vmcnt(%d)' % (nx + 9 + 8 - T))
        if TS2 and T in (0, 8):
            k.ts2(4 if T == 0 else 5)
        k('v_mfma_f32_32x32x16_bf16 %s, %s, %s, 0' % (vr(S + T * 16, 16), vr(aK + T * 4, 4), vr(aQ, 4)))
    vloads(range(9, 18))
    npf = (13 if PREH else 12) + PF2
    if DT < 0:
        dmablock()
    for i in range(16):
        k('v_cndmask_b32_e64 v%d, v%d, v%d, s[%d:%d]' % (S + i, vNeg, S + i, mk(i), mk(i) + 1))
    for i in range(16):
        k('v_cndmask_b32_e64 v%d, v%d, v%d, s[%d:%d]' % (S + 128 + i, S + 128 + i, vNeg, mk(i), mk(i) + 1))
    k('s_cmp_eq_u32 s28, 0')
    k('s_cbranch_scc1 J_P2_nomask')
    for T in range(8):
        k('s_cmp_gt_u32 s28, %d' % T)
        k('s_cbranch_scc0 J_P2_nomask')
        for i in range(16):
            k('v_mov_b32 v%d, v%d' % (S + T * 16 + i, vNeg))
    k.label('J_P2_nomask')
    ch = [O, O + 1, O + 2, O + 3]
    regs = list(range(S, S + 144))
    for c in range(4):
        k('v_max3_f32 v%d, v%d, v%d, v%d' % (ch[c], regs[c * 36], regs[c * 36 + 1], regs[c * 36 + 2]))
    for j in range(3, 35, 2):
        for c in range(4):
            k('v_max3_f32 v%d, v%d, v%d, v%d' % (ch[c], ch[c], regs[c * 36 + j], regs[c * 36 + j + 1]))
    for c in range(4):
        k('v_max_f32 v%d, v%d, v%d' % (ch[c], ch[c], regs[c * 36 + 35]))
    k('v_max3_f32 v%d, v%d, v%d, v%d' % (t0, ch[0], ch[1], ch[2]))
    k('v_max_f32 v%d, v%d, v%d' % (t0, t0, ch[3]))
    k('v_mov_b32 v%d, v%d' % (t1, t0))
    k('v_permlane32_swap_b32 v%d, v%d' % (t0, t1))
    k('v_max_f32 v%d, v%d, v%d' % (t0, t0, t1))
    k.ts(3)
    if TS2:
        k.ts2(6)
    c_ = 0.25 * 1.4426950408889634
    k('s_mov_b32 s29, %s' % f32hex(c_))
    k('v_mul_f32 v%d, s29, v%d' % (t0, t0))
    if PKF:
        k('s_mov_b32 s34, s29')
        k('s_mov_b32 s35, s29')
        k('v_mov_b32 v%d, v%d' % (t1, t0))
    first = True
    for T in range(9):
        b = S + T * 16
        if T == 7:
            k('s_mov_b64 exec, 1')
            k('buffer_load_dword v%d, off, s[4:7], s8 sc1' % vMk)
            k('s_mov_b64 exec, -1')
        if T == DT:
            dmablock()
        if PKF:
            for i in range(0, 16, 2):
                k('v_pk_fma_f32 %s, %s, s[34:35], %s neg_lo:[0,0,1] neg_hi:[0,0,1]' % (vr(b + i, 2), vr(b + i, 2), vr(t0, 2)))
        else:
            for i in range(16):
                k('v_fma_f32 v%d, v%d, s29, -v%d' % (b + i, b + i, t0))
        for i in range(16):
            k('v_exp_f32 v%d, v%d' % (b + i, b + i))
        for u in range(2):
            for j in range(4):
                k('v_cvt_pk_bf16_f32 v%d, v%d, v%d' % (b + 8 * u + j, b + 8 * u + 2 * j, b + 8 * u + 2 * j + 1))
        for u in range(2):
            idx = 2 * T + u
            if idx == 0:
                k('s_waitcnt vmcnt(%d)' % (nx + 9 + (npf if DT <= 0 else 0)))
            if idx == 9:
                if TS2:
                    k.ts2(7)
                k('s_waitcnt vmcnt(%d)' % (npf if DT <= 4 else 0))
                if TS2:
                    k.ts2(8)
            k('v_mfma_f32_32x32x16_bf16 %s, %s, %s, %s' % (
                vr(O, 16), vr(vreg(idx), 4), vr(b + 8 * u, 4), '0' if first else vr(O, 16)))
            first = False
    k('v_rcp_f32 v%d, v%d' % (t0, O + 8))
    for i in range(8):
        k('v_mul_f32 v%d, v%d, v%d' % (O + i, O + i, t0))
    for j in range(4):
        k('v_cvt_pk_bf16_f32 v%d, v%d, v%d' % (O + j, O + 2 * j, O + 2 * j + 1))
    k('buffer_store_dwordx2 %s, v%d, s[4:7], 0 offen%s' % (vr(O, 2), vSt, OSC))
    k('buffer_store_dwordx2 %s, v%d, s[4:7], 0 offen offset:512%s' % (vr(O + 2, 2), vSt, OSC))
    if TS2:
        k.ts2(9)
    setflag(k, 22, t0)
    if TS2:
        k.ts2(10)
    k.ts(4)
    k('s_cmp_lg_u32 s100, 0')
    k('s_cbranch_scc1 J_SLOW_claim')
    k('s_cmp_lg_u32 s3, 0')
    k('s_cbranch_scc1 P2_dec')
    k('''v_readfirstlane_b32 s10, v%d
    v_readfirstlane_b32 s11, v%d
    s_lshr_b32 s30, s2, 3
    s_lshr_b32 s10, s10, s30
    s_and_b32 s10, s10, 1
    s_cmp_lg_u32 s11, -1
    s_cselect_b32 s11, 2, 0
    s_or_b32 s10, s10, s11
    v_mov_b32 v4, s10
    v_mov_b32 v5, 0x%x
    ds_write_b32 v5, v4
    s_waitcnt lgkmcnt(0)''' % (vCl, vMk, DEC))
    k.label('P2_dec')
    k('v_mov_b32 v5, 0x%x' % DEC)
    k('s_barrier')
    k('ds_read_b32 v4, v5')
    k('s_waitcnt lgkmcnt(0)')
    k('v_readfirstlane_b32 s10, v4')
    k('s_cmp_lg_u32 s10, 0')
    k('s_cbranch_scc1 J_SLOW_start')


def gemm(k, p3):
    L = 'P3' if p3 else 'P5'
    KT = 32 if p3 else 112
    wsA = WS_O if p3 else WS_HH
    NS = KT // 4
    NR = min(NS, 16)
    PF = NS if NS <= NR else NR - 1
    RS = 16384
    AR = 28 if p3 else 24
    BFR = AR + NR * 8
    ACC = BFR + 16
    RES = ACC + 64
    T = RES + 8
    vA0, vA1, vBd, vBr, vOut, vRes = 8, 9, 10, 11, 12, 13
    vW = 14
    vR = 18
    vFw, vFr, vFo = 22, 23, 24
    vSt = 25
    SCR = 4 * RS
    tsb = 5 if p3 else 11
    k('s_load_dwordx2 s[10:11], s[0:1], %d' % (0 if p3 else 56))
    if not p3:
        k('s_load_dwordx2 s[12:13], s[0:1], 48')
    k('''s_and_b32 s20, s2, 7
    s_lshl_b32 s20, s20, 2
    s_bfe_u32 s22, s2, 0x20003
    s_add_u32 s20, s20, s22
    s_lshr_b32 s21, s2, 5''')
    lanes(k)
    if p3:
        k('s_lshl_b32 s29, s22, 6')
        k('s_lshl_b32 s23, s3, 4')
    else:
        k('s_lshl_b32 s29, s22, 5')
        k('s_lshl_b32 s23, s3, 3')
    k('s_add_u32 s29, s29, s23')
    k('s_add_u32 s29, s29, s8')
    k('s_add_u32 s29, s29, %d' % (F2 if p3 else F4))
    if p3:
        k('''s_lshl_b32 s40, s22, 2
        s_add_u32 s40, s40, s3
        s_lshl_b32 s40, s40, 3
        s_add_u32 s40, s40, s21
        s_add_u32 s40, s40, s8
        s_add_u32 s40, s40, %d''' % F3)
    k('s_mul_i32 s23, s20, %d' % (2 * KT * 1024))
    k('s_mul_i32 s24, s3, %d' % (NS * 1024))
    k('s_add_u32 s23, s23, s24')
    k('s_add_u32 s23, s23, 0x%x' % wsA)
    k('v_lshlrev_b32 v4, 4, v1')
    k('v_add_u32 v%d, s23, v4' % vA0)
    k('v_add_u32 v%d, %d, v%d' % (vA1, KT * 1024, vA0))
    k('s_lshl_b32 s24, s21, 7')
    if not p3:
        gemm_bd(k, vBd, 4, 5, 24)
        k('s_mul_i32 s25, s3, %d' % (NS * 16 * 1024))
    k('s_lshl_b32 s26, s3, %d' % (14 if p3 else 11))
    k('''v_lshrrev_b32 v4, 1, v3
    v_lshlrev_b32 v4, 10, v4
    v_lshrrev_b32 v5, 2, v2
    v_lshl_add_u32 v4, v5, 6, v4
    v_and_b32 v5, 1, v3
    v_lshl_add_u32 v4, v5, 5, v4
    v_and_b32 v5, 3, v2
    v_lshl_add_u32 v4, v5, 3, v4
    v_add_u32 v%d, s26, v4''' % vBr)
    if not p3:
        k('v_add_u32 v%d, 0x10000, v%d' % (vFw, vBr))
        k('v_add_u32 v%d, 0x20000, v%d' % (vFr, vBr))
    k('v_and_b32 v4, 31, v1')
    if p3:
        k('v_lshlrev_b32 v5, 8, v4')
    else:
        k('v_lshrrev_b32 v5, 3, v4')
        k('v_lshlrev_b32 v5, 13, v5')
        k('v_and_b32 v6, 7, v4')
        k('v_lshl_add_u32 v5, v6, 8, v5')
    k('v_add_u32 v5, s26, v5')
    k('v_and_b32 v4, 7, v4')
    k('v_lshrrev_b32 v6, 5, v1')
    k('v_xor_b32 v4, v4, v6')
    for q in range(4):
        k('v_xor_b32 v6, %d, v4' % (q * 2))
        k('v_lshl_add_u32 v%d, v6, 4, v5' % (vW + q))
    k('s_lshl_b32 s27, s3, %d' % (12 if p3 else 14))
    k('v_lshrrev_b32 v4, 3, v1')
    k('v_lshlrev_b32 v5, 8, v4')
    k('v_add_u32 v5, s27, v5')
    k('v_and_b32 v6, 7, v1')
    k('v_lshlrev_b32 v6, 1, v6')
    k('v_xor_b32 v6, v6, v4')
    k('v_lshl_add_u32 v%d, v6, 4, v5' % vR)
    k('v_xor_b32 v6, 1, v6')
    k('v_lshl_add_u32 v%d, v6, 4, v5' % (vR + 1))
    k('''s_lshl_b32 s27, s3, 4
    s_lshl_b32 s28, s20, 6
    s_add_u32 s27, s27, s28
    s_lshl_b32 s27, s27, 10
    s_add_u32 s27, s27, s24
    v_lshlrev_b32 v5, 10, v4
    v_and_b32 v6, 7, v1
    v_lshl_add_u32 v5, v6, 4, v5
    v_add_u32 v4, s27, v5''')
    k('v_add_u32 v%d, 0x%x, v4' % (vOut, WS_H if p3 else 0))
    k('v_add_u32 v%d, 0x%x, v4' % (vRes, 0 if p3 else WS_H))
    k('s_mov_b32 s41, 8192')
    if p3:
        k('''s_lshl_b32 s27, s3, 11
        v_lshrrev_b32 v4, 3, v1
        v_and_b32 v5, 3, v1
        v_lshl_add_u32 v4, v5, 4, v4
        v_lshlrev_b32 v4, 4, v4
        v_bfe_u32 v5, v1, 2, 1
        v_lshl_add_u32 v4, v5, 10, v4
        v_add_u32 v4, s27, v4''')
        k('v_add_u32 v%d, %d, v4' % (vFw, SCR))
        k('v_lshlrev_b32 v4, 4, v1')
        k('v_add_u32 v5, s27, v4')
        k('v_add_u32 v%d, %d, v5' % (vFr, SCR))
        k('''s_lshl_b32 s27, s20, 2
        s_add_u32 s27, s27, s3
        s_lshl_b32 s27, s27, 4
        s_lshl_b32 s28, s21, 1
        s_add_u32 s27, s27, s28
        s_lshl_b32 s27, s27, 10''')
        k('s_add_u32 s27, s27, 0x%x' % WS_HF)
        k('v_add_u32 v%d, s27, v4' % vFo)
        k('''s_lshl_b32 s27, s20, 2
        s_add_u32 s27, s27, s3
        s_lshl_b32 s27, s27, 10
        s_lshl_b32 s28, s21, 3
        s_add_u32 s27, s27, s28
        v_lshrrev_b32 v4, 3, v1
        v_lshlrev_b32 v4, 6, v4''')
        k('s_add_u32 s27, s27, 0x%x' % WS_ST)
        k('v_add_u32 v%d, s27, v4' % vSt)
        k('s_mov_b32 s44, 0x3f803f80')
        k('s_mov_b32 s42, 0x01010101')
        k('s_mov_b32 s43, 0x01010101')
    k('s_waitcnt lgkmcnt(0)')
    make_srd(k, 16, 10, 11, 2048 * 512 * 2)
    if not p3:
        k('s_mov_b32 s14, 0x%x' % WSZ)
        k('s_mov_b32 s15, 0x00020000')
        yield 'pre'
    rsrd, osrd = (16, 4) if p3 else (4, 16)
    poll(k, L + '_poll', 29, 4 if p3 else 2)
    if not p3 and ENV('X5S'):
        for _ in range(int(ENV('X5S'))):
            k('s_sleep 64')
    k.ts(tsb)
    q = Q(k)

    def aloads(s):
        slot = s % NR
        k('s_mov_b32 s30, %d' % (s * 1024 if p3 or not ENV('X5A') else (s % int(ENV('X5A'))) * 1024))
        for mi in range(2):
            q.issue('buffer_load_dwordx4 %s, v%d, s[4:7], s30 offen%s' % (vr(AR + slot * 8 + mi * 4, 4), vA0 + mi, DSC), ('A', s))

    def reads(s):
        p = s & 1
        if p3:
            base, va = s * 2048, vBr
        else:
            a = ((s + 3) % 18) * 8192
            va = (vBr, vFw, vFr)[a >> 16]
            base = a & 0xffff
        for nb in range(2):
            for sec in range(2):
                k('ds_read_b64_tr_b16 %s, v%d offset:%d' % (
                    vr(BFR + p * 8 + nb * 4 + sec * 2, 2), va, base + sec * 512 + nb * 256))

    issued = 0
    for s in range(PF):
        aloads(s)
        issued += 1
    for j in range(2):
        q.issue('buffer_load_dwordx4 %s, v%d, s[%d:%d], %s offen%s' % (
            vr(RES + 4 * j, 4), vRes, rsrd, rsrd + 3, 's41' if j else '0', '' if p3 else DSC), ('R', j))
    reads(0)
    TS5 = {} if p3 or not ENV('TS5') else {0: 3, 3: 4, 7: 5, 12: 6, 17: 7, 22: 8}
    if TS5:
        k.ts2(2)
    for s in range(NS):
        p = s & 1
        if s + 1 < NS:
            if ('B', s + 1) in q.at:
                q.wait(('B', s + 1))
            reads(s + 1)
            k('s_waitcnt lgkmcnt(4)')
        else:
            k('s_waitcnt lgkmcnt(0)')
        q.wait(('A', s))
        if s in TS5:
            k.ts2(TS5[s])
        slot = s % NR
        for mi in range(2):
            for nb in range(2):
                acc = vr(ACC + (mi * 2 + nb) * 16, 16)
                k('v_mfma_f32_32x32x16_bf16 %s, %s, %s, %s' % (
                    acc, vr(BFR + p * 8 + nb * 4, 4), vr(AR + slot * 8 + mi * 4, 4), '0' if s == 0 else acc))
        if issued < NS:
            aloads(issued)
            issued += 1
        if not p3 and s + 18 < NS and not ENV('X5B'):
            p5_bstep(k, s + 18, vBd, 25, 26, 12, q)
    k.ts(tsb + 1)
    for t in range(4):
        for qq in range(4):
            k('ds_write_b128 v%d, %s offset:%d' % (vW + qq, vr(ACC + t * 16 + qq * 4, 4),
                                                   (t >> 1) * (8192 if p3 else 32768) + (t & 1) * 128))
    k('s_waitcnt lgkmcnt(0)')
    k('s_barrier')
    for j in range(2):
        for src in range(4):
            for e in range(2):
                off = (src * RS + j * 2048) if p3 else (src * 2048 + j * 8192)
                k('ds_read_b128 %s, v%d offset:%d' % (vr(ACC + (j * 4 + src) * 8 + e * 4, 4), vR + e, off))
    for j in range(2):
        b = ACC + j * 32
        k('s_waitcnt lgkmcnt(%d)' % (12 - 8 * j))
        for i in range(8):
            k('v_add_f32 v%d, v%d, v%d' % (b + i, b + i, b + 8 + i))
        k('s_waitcnt lgkmcnt(%d)' % (8 - 8 * j))
        for i in range(8):
            k('v_add_f32 v%d, v%d, v%d' % (b + 16 + i, b + 16 + i, b + 24 + i))
        for i in range(8):
            k('v_add_f32 v%d, v%d, v%d' % (b + i, b + i, b + 16 + i))
        if j == 0:
            k('s_waitcnt vmcnt(0)')
        for i in range(4):
            k('v_cvt_pk_bf16_f32 v%d, v%d, v%d' % (T + 4, b + 2 * i, b + 2 * i + 1))
            k('v_lshlrev_b32 v%d, 16, v%d' % (T, T + 4))
            k('v_and_b32 v%d, 0xffff0000, v%d' % (T + 1, T + 4))
            k('v_lshlrev_b32 v%d, 16, v%d' % (T + 2, RES + 4 * j + i))
            k('v_and_b32 v%d, 0xffff0000, v%d' % (T + 3, RES + 4 * j + i))
            k('v_add_f32 v%d, v%d, v%d' % (T, T, T + 2))
            k('v_add_f32 v%d, v%d, v%d' % (T + 1, T + 1, T + 3))
            k('v_cvt_pk_bf16_f32 v%d, v%d, v%d' % (T + 8 + 4 * j + i, T, T + 1))
        k('buffer_store_dwordx4 %s, v%d, s[%d:%d], %s offen%s' % (vr(T + 8 + 4 * j, 4), vOut, osrd, osrd + 3, 's41' if j else '0', HSC if p3 else ''))
        if p3:
            k('ds_write_b128 v%d, %s offset:%d' % (vFw, vr(T + 8 + 4 * j, 4), j * 128))
            for i in range(4):
                d = T + 8 + 4 * j + i
                k('v_dot2_f32_bf16 v%d, v%d, s44, %s' % (BFR + 2 * j, d, 'v%d' % (BFR + 2 * j) if i else '0'))
                k('v_dot2_f32_bf16 v%d, v%d, v%d, %s' % (BFR + 2 * j + 1, d, d, 'v%d' % (BFR + 2 * j + 1) if i else '0'))
    if p3:
        k('s_waitcnt lgkmcnt(0)')
        for j in range(2):
            k('ds_read_b128 %s, v%d offset:%d' % (vr(ACC + 4 * j, 4), vFr, j * 1024))
        DP = ' row_mask:0xf bank_mask:0xf'
        for m in ('quad_perm:[1,0,3,2]', 'quad_perm:[2,3,0,1]', 'row_half_mirror'):
            for i in range(4):
                k('v_add_f32_dpp v%d, v%d, v%d %s%s' % (BFR + i, BFR + i, BFR + i, m, DP))
        k('s_mov_b64 exec, s[42:43]')
        for j in range(2):
            k('buffer_store_dwordx2 %s, v%d, s[4:7], 0 offen offset:%d%s' % (vr(BFR + 2 * j, 2), vSt, j * 512, SSC))
        k('s_mov_b64 exec, -1')
        for j in range(2):
            k('s_waitcnt lgkmcnt(%d)' % (1 - j))
            k('buffer_store_dwordx4 %s, v%d, s[4:7], 0 offen offset:%d%s' % (vr(ACC + 4 * j, 4), vFo, j * 1024, FSC))
    yield 'end'


def cs_sum(k):
    k('''s_lshr_b32 s10, s2, 4
    s_mul_i32 s10, s10, 448
    s_bfe_u32 s11, s3, 0x10001
    s_mul_i32 s30, s11, 7168
    s_add_u32 s10, s10, s30
    s_add_u32 s10, s10, 0x%x
    s_mul_i32 s11, s11, 448
    s_add_u32 s11, s11, %d
    v_and_b32 v4, 31, v1
    v_lshlrev_b32 v4, 4, v4
    v_add_u32 v6, s11, v4
    v_lshrrev_b32 v5, 5, v1
    v_mul_u32_u24 v5, %d, v5
    v_add_u32 v4, v4, v5''' % (WS_CS2, CSB, 8 * 14336))
    for p in range(8):
        k('s_add_u32 s30, s10, %d' % (p * 14336))
        k('buffer_load_dwordx4 %s, v4, s[4:7], s30 offen' % vr(32 + p * 4, 4))
    for p in range(1, 8):
        k('s_waitcnt vmcnt(%d)' % (7 - p))
        for i in range(4):
            k('v_add_f32 v%d, v%d, v%d' % (32 + i, 32 + i, 32 + p * 4 + i))
    for i in range(4):
        k('v_mov_b32 v%d, v%d' % (36 + i, 32 + i))
    for i in range(4):
        k('v_permlane32_swap_b32 v%d, v%d' % (32 + i, 36 + i))
    for i in range(4):
        k('v_add_f32 v%d, v%d, v%d' % (32 + i, 32 + i, 36 + i))
    k('s_mov_b64 exec, 0x0fffffff')
    k('ds_write_b128 v6, v[32:35]')
    k('s_mov_b64 exec, -1')


def p4_loader(k):
    vA, vBd, vB5, vG = 8, 16, 17, 18
    RAMP = int(ENV('RAMP', '2'))
    k.label('J_LD4')
    k('s_and_b32 s22, s3, 3')
    k('''s_cmp_lt_u32 s22, 2
    s_cselect_b32 s10, 32, 40
    s_load_dwordx2 s[16:17], s[0:1], s10
    s_load_dwordx2 s[12:13], s[0:1], 48''')
    k('v_and_b32 v1, 63, v0')
    k('''s_and_b32 s20, s2, 7
    s_lshl_b32 s20, s20, 1
    s_bfe_u32 s21, s2, 0x10003
    s_add_u32 s20, s20, s21
    s_lshl_b32 s23, s20, 17
    s_lshl_b32 s24, s22, 15
    s_add_u32 s23, s23, s24
    s_add_u32 s23, s23, 0x%x
    v_lshlrev_b32 v4, 4, v1
    v_add_u32 v%d, s23, v4''' % (WS_HF, vA))
    k('''s_lshl_b32 s29, s21, 6
    s_lshl_b32 s24, s22, 4
    s_add_u32 s29, s29, s24
    s_add_u32 s29, s29, s8
    s_add_u32 s29, s29, %d''' % F3)
    for i in range(1, 8):
        k('s_mov_b32 s%d, %d' % (47 + i, i * 4096))
    p4_bsetup(k, vBd, 4, 5, 26, 27)
    k('s_lshl_b32 s28, s22, 11')
    k('s_lshr_b32 s10, s2, 5')
    k('s_lshl_b32 s10, s10, 7')
    gemm_bd(k, vB5, 4, 5, 10)
    k('s_mul_i32 s25, s22, %d' % (28 * 16 * 1024))
    k('v_lshlrev_b32 v%d, 10, v1' % vG)
    k('s_mov_b32 s40, 0x%x' % (WS_FL + GST))
    k('s_waitcnt lgkmcnt(0)')
    k('s_mov_b32 s18, 0x%x' % WSZ)
    k('s_mov_b32 s19, 0x00020000')
    k('s_mov_b32 s14, 0x%x' % WSZ)
    k('s_mov_b32 s15, 0x00020000')
    poll(k, 'LD4_poll', 29, 4)
    k.ts(8)
    q = Q(k)

    def astage(ks):
        sl = ((ks + 3) % NSL) * SLOT
        for mf in range(2):
            o_ = (mf * 16 + ks) * 1024
            k('s_add_u32 m0, s28, %d' % (sl + 16384 + mf * 1024 - o_ % 4096))
            q.issue('buffer_load_dwordx4 v%d, s[4:7], %s offen offset:%d%s lds' % (
                vA, ('s%d' % (47 + o_ // 4096)) if o_ >= 4096 else '0', o_ % 4096, DSC), ('S', ks))

    def stage(ks):
        astage(ks)
        if ks >= 3:
            p4_bstage(k, ks, vBd, 26, 27, 16, q)
            q.at[('S', ks)] = q.n

    issued = 0
    for ks in range(3):
        stage(ks)
        issued += 1
    for ks in range(16):
        q.wait(('S', ks))
        if ENV('TS4') and ks in (2, 4, 6, 8, 10, 12):
            k.ts2(1 + ks // 2)
        k('s_barrier')
        for _ in range(RAMP):
            if issued < 16 and issued <= ks + NSL - 1:
                stage(issued)
                issued += 1
        if ks == 8:
            k('s_mov_b64 exec, 0xff')
            q.issue('buffer_load_dword v%d, v%d, s[4:7], s40 offen sc1' % (vG + 1, vG), 'G')
            k('s_mov_b64 exec, -1')
        if ks >= 11 and not ENV('X5P'):
            for s in range((ks - 11) * 3, (ks - 11) * 3 + 3):
                p5_bstep(k, s, vB5, 25, 28, 12, q)
    k('s_barrier')
    k('s_cmp_lg_u32 s100, 0')
    k('s_cbranch_scc1 J_SLOW_next')
    for s in range(15, 18):
        p5_bstep(k, s, vB5, 25, 28, 12, q)
    q.wait('G')
    k('s_mov_b64 exec, 0xff')
    k('v_cmp_eq_u32 vcc, 0, v%d' % (vG + 1))
    k('s_mov_b64 exec, -1')
    k('v_mov_b32 v5, 0x%x' % DEC)
    k('s_and_b32 s10, vcc_lo, 0xff')
    k('v_mov_b32 v4, s10')
    k('s_cmp_lg_u32 s3, 4')
    k('s_cbranch_scc1 LD4_nw')
    k('ds_write_b32 v5, v4 offset:4')
    k.label('LD4_nw')
    k('s_waitcnt vmcnt(0) lgkmcnt(0)')
    k.ts(9)
    k('s_barrier')
    k('ds_read_b32 v4, v5 offset:4')
    k('s_waitcnt lgkmcnt(0)')
    k('v_readfirstlane_b32 s10, v4')
    k('s_cmp_lg_u32 s10, 0')
    k('s_cbranch_scc1 LD4_steal')
    prof_end(k)
    k('s_endpgm')
    k.label('LD4_steal')
    k('s_barrier')
    k('s_branch J_SLOW_end')


def p4_comp(k):
    SS = 18
    vM, vC, vI = 26, 28, 30
    AF = 32
    BF = 48
    ACC = 104
    T = 216
    E = 224
    CS = BF
    vSt = 9
    vRd = 10
    vRa = 14
    vCs = 17
    vS2 = 16
    k.label('J_P4')
    lanes(k)
    k('''s_and_b32 s20, s2, 7
    s_lshl_b32 s20, s20, 1
    s_bfe_u32 s22, s2, 0x10003
    s_add_u32 s20, s20, s22
    s_lshr_b32 s21, s2, 4''')
    k('''s_lshl_b32 s40, s22, 1
    s_lshr_b32 s23, s3, 1
    s_add_u32 s40, s40, s23
    s_lshl_b32 s40, s40, 4
    s_add_u32 s40, s40, s21
    s_lshl_b32 s40, s40, 1
    s_and_b32 s23, s3, 1
    s_add_u32 s40, s40, s23
    s_add_u32 s40, s40, s8
    s_add_u32 s40, s40, %d''' % F4)
    k('''v_lshlrev_b32 v4, 3, v3
    v_lshrrev_b32 v5, 2, v2
    v_add_u32 v4, v4, v5
    v_lshlrev_b32 v4, 6, v4
    v_and_b32 v5, 3, v2
    v_lshl_add_u32 v4, v5, 3, v4
    s_and_b32 s30, s21, 1
    v_and_b32 v5, 1, v3
    v_xor_b32 v5, s30, v5
    v_lshl_add_u32 v%d, v5, 5, v4
    v_xor_b32 v5, 1, v5
    v_lshl_add_u32 v4, v5, 5, v4
    s_lshl_b32 s30, s30, 11
    v_add_u32 v%d, s30, v4''' % (vRd, vRd + 1))
    for par in range(2):
        k('v_add_u32 v%d, %d, v%d' % (vRd + 2 + par, 3 * SLOT, vRd + par))
    k('s_lshl_b32 s28, s3, 11')
    k('s_add_u32 s28, s28, 16384')
    k('v_lshlrev_b32 v4, 4, v1')
    k('v_add_u32 v%d, s28, v4' % vRa)
    k('v_add_u32 v%d, %d, v%d' % (vRa + 1, 3 * SLOT, vRa))
    k('''v_lshrrev_b32 v4, 1, v3
    v_lshlrev_b32 v4, 5, v4
    v_add_u32 v4, v4, v2
    v_lshlrev_b32 v4, 4, v4
    v_and_b32 v5, 1, v3
    v_lshl_add_u32 v%d, v5, 3, v4''' % vSt)
    k('''s_lshl_b32 s25, s20, 2
    s_add_u32 s25, s25, s3
    s_mul_i32 s25, s25, 112
    s_mul_i32 s30, s21, 7
    s_add_u32 s25, s25, s30
    s_lshl_b32 s25, s25, 10
    s_add_u32 s25, s25, 0x%x''' % WS_HH)
    k('v_lshlrev_b32 v8, 7, v1')
    k('v_lshlrev_b32 v4, 4, v3')
    k('v_add_u32 v%d, 0x%x, v4' % (vCs, CSB))
    k('''s_lshl_b32 s30, s20, 2
    s_add_u32 s30, s30, s3
    s_lshl_b32 s30, s30, 11
    s_add_u32 s30, s30, 0x%x
    v_lshl_add_u32 v4, v2, 6, v4
    v_add_u32 v%d, s30, v4''' % (WS_ST, vS2))
    yield 'pre'

    def areg(ks, mf):
        return AF + ((ks & 1) * 2 + mf) * 4

    def reads(hs):
        ks, mx = hs >> 1, hs & 1
        slot = (ks + 3) % NSL
        out = []
        if mx == 0:
            for mf in range(2):
                out.append('ds_read_b128 %s, v%d offset:%d' % (vr(areg(ks, mf), 4), vRa + slot // 3, (slot % 3) * SLOT + mf * 1024))
        for nf in range(7):
            for kgl in range(2):
                out.append('ds_read_b64_tr_b16 %s, v%d offset:%d' % (
                    vr(BF + mx * 28 + nf * 4 + kgl * 2, 2), vRd + (slot // 3) * 2 + (nf & 1),
                    (slot % 3) * SLOT + mx * 8192 + (nf >> 1) * 2048 + kgl * 256))
        return out

    class Lst:
        def __init__(self):
            self.l = []

        def __call__(self, x):
            self.l.append(x)

    k('s_barrier')
    k.ts(8)
    for o in reads(0):
        k(o)
    for mf in range(2):
        k('buffer_load_dwordx4 %s, v%d, s[4:7], 0 offen offset:%d%s' % (vr(SS + mf * 4, 4), vS2, mf * 1024, DSC))
    SF = Lst()
    stats_fin(SF, SS, T, vM, vC, vI)
    no = []
    for hs in range(32):
        ks, mx = hs >> 1, hs & 1
        k('s_waitcnt lgkmcnt(0)')
        if ENV('TS4') == '2' and mx == 1 and ks in (1, 3, 5, 7, 9, 11):
            k.ts2(2 + ks // 2)
        if mx == 1 and ks + 1 < 16:
            k('s_barrier')
        if ENV('TS4') == '1' and mx == 1 and ks in (1, 3, 5, 7, 9, 11):
            k.ts2(2 + ks // 2)
        rd = reads(hs + 1) if hs + 1 < 32 else []
        if hs == 8:
            k('s_waitcnt vmcnt(0)')
            no = SF.l
        if PRE and PREG and hs == HPF:
            k('s_mov_b32 exec_hi, 0x00ffffff')
            k('buffer_load_dword v7, v8, s[4:7], s25 offen')
            k('s_mov_b32 exec_hi, -1')
        for nf in range(7):
            for mf in range(2):
                acc = vr(ACC + (mf * 14 + mx * 7 + nf) * 4, 4)
                a = vr(areg(ks, mf), 4)
                b = vr(BF + mx * 28 + nf * 4, 4)
                k('v_mfma_f32_16x16x32_bf16 %s, %s, %s, %s' % (acc, b, a, '0' if ks == 0 else acc))
                for _ in range(2):
                    if rd:
                        k(rd.pop(0))
                if no and not rd:
                    k(no.pop(0))
                    if no:
                        k(no.pop(0))
        for o in rd:
            k(o)
    assert not no
    k.ts(9)
    k('s_waitcnt vmcnt(0)')
    k('s_barrier')
    for mx in range(2):
        for nf in range(7):
            k('ds_read_b128 %s, v%d offset:%d' % (vr(CS + (mx * 7 + nf) * 4, 4), vCs, mx * 448 + nf * 64))
    k('s_waitcnt lgkmcnt(0)')
    n = 0
    for nf in range(7):
        k('s_add_u32 s29, s25, %d' % (nf * 1024))
        for mf in range(2):
            e = E + (n & 3) * 8
            n += 1
            G = ACC + (mf * 14 + nf) * 4
            U = ACC + (mf * 14 + 7 + nf) * 4
            sel = 'op_sel:[0,%d,0] op_sel_hi:[1,%d,1]' % (mf, mf)
            sel2 = 'op_sel:[0,%d] op_sel_hi:[1,%d]' % (mf, mf)
            sel3 = 'op_sel:[0,%d,%d] op_sel_hi:[1,%d,%d]' % (mf, mf, mf, mf)
            for h in range(2):
                k('v_pk_fma_f32 %s, %s, %s, %s %s neg_lo:[0,1,0] neg_hi:[0,1,0]' % (
                    vr(G + 2 * h, 2), vr(CS + nf * 4 + 2 * h, 2), vr(vM, 2), vr(G + 2 * h, 2), sel))
            for h in range(2):
                k('v_pk_mul_f32 %s, %s, %s %s' % (vr(e + 2 * h, 2), vr(G + 2 * h, 2), vr(vC, 2), sel2))
            for r in range(4):
                k('v_exp_f32 v%d, v%d' % (e + r, e + r))
            for h in range(2):
                k('v_pk_fma_f32 %s, %s, %s, %s %s neg_lo:[0,1,0] neg_hi:[0,1,0]' % (
                    vr(U + 2 * h, 2), vr(CS + (7 + nf) * 4 + 2 * h, 2), vr(vM, 2), vr(U + 2 * h, 2), sel))
            for h in range(2):
                k('v_pk_fma_f32 %s, %s, %s, %s %s' % (vr(e + 2 * h, 2), vr(e + 2 * h, 2), vr(vI, 2), vr(vI, 2), sel3))
            for r in range(4):
                k('v_rcp_f32 v%d, v%d' % (e + r, e + r))
            for h in range(2):
                k('v_pk_mul_f32 %s, %s, %s' % (vr(G + 2 * h, 2), vr(G + 2 * h, 2), vr(U + 2 * h, 2)))
            for h in range(2):
                k('v_pk_mul_f32 %s, %s, %s' % (vr(G + 2 * h, 2), vr(G + 2 * h, 2), vr(e + 2 * h, 2)))
            k('v_cvt_pk_bf16_f32 v%d, v%d, v%d' % (e + 4, G, G + 1))
            k('v_cvt_pk_bf16_f32 v%d, v%d, v%d' % (e + 5, G + 2, G + 3))
            k('buffer_store_dwordx2 %s, v%d, s[4:7], s29 offen offset:%d%s' % (vr(e + 4, 2), vSt, mf * 256, GSC))
    yield 'end'


def prof_end(k):
    if not PROF:
        return
    k('s_waitcnt vmcnt(0)')
    k.ts(14)
    k.ts(15, True)
    k('s_waitcnt lgkmcnt(0)')
    k('s_lshl_b32 s99, s2, 3')
    k('s_add_u32 s99, s99, s3')
    k('s_lshl_b32 s99, s99, 7')
    k('s_add_u32 s99, s99, 0x%x' % (PROF_BASE + 0x40000))
    k('v_mov_b32 v4, 0')
    for i in range(16):
        k('v_mov_b32 v2, s%d' % (64 + 2 * i))
        k('v_mov_b32 v3, s%d' % (65 + 2 * i))
        k('buffer_store_dwordx2 v[2:3], v4, s[4:7], s99 offen offset:%d' % (8 * i))
        k('s_nop 1')


def bcast_read(k, off):
    k('v_mov_b32 v5, 0x%x' % DEC)
    k('s_barrier')
    k('ds_read_b32 v4, v5 offset:%d' % off)
    k('s_waitcnt lgkmcnt(0)')
    k('v_readfirstlane_b32 s10, v4')


def slow(k):
    k.label('J_SLOW_start')
    k('s_lshr_b32 s11, s2, 3')
    k('s_lshl_b32 s9, 1, s11')
    k('s_bitcmp1_b32 s10, 0')
    k('s_cselect_b32 s9, 0, s9')
    k('s_mov_b32 s100, 1')
    k('s_mov_b32 s97, %d' % PATIENCE)
    k.label('J_SLOW_claim')
    k('s_waitcnt vmcnt(0) lgkmcnt(0)')
    k('s_barrier')
    k('s_cmp_lg_u32 s3, 0')
    k('s_cbranch_scc1 SL_c9')
    k('s_mov_b64 exec, 1')
    k('s_mov_b32 s30, 0')
    k('s_mov_b32 s31, 0')
    k.label('J_SL_c1')
    k('v_mov_b32 v4, 0')
    k('buffer_atomic_or v4, off, s[4:7], s8 sc0')
    k('s_add_u32 s31, s31, 1')
    k('s_waitcnt vmcnt(0)')
    k('v_readfirstlane_b32 s10, v4')
    k('s_mov_b32 s11, -1')
    k('s_cmp_eq_u32 s10, -1')
    k('s_cbranch_scc1 SL_c8')
    k('s_cmp_gt_u32 s31, 4096')
    k('s_cbranch_scc1 SL_c8')
    k('s_cmp_eq_u32 s9, 0')
    k('s_cbranch_scc1 SL_c2')
    k('s_cmp_ge_u32 s30, s97')
    k('s_cbranch_scc1 SL_c2')
    k('s_add_u32 s30, s30, 1')
    k('s_sleep 16')
    k('s_branch J_SL_c1')
    k.label('SL_c2')
    k('s_ff0_i32_b32 s11, s10')
    k('s_lshl_b32 s10, 1, s11')
    k('v_mov_b32 v4, s10')
    k('buffer_atomic_or v4, off, s[4:7], s8 sc0')
    k('s_waitcnt vmcnt(0)')
    k('v_readfirstlane_b32 s12, v4')
    k('s_and_b32 s12, s12, s10')
    k('s_cmp_lg_u32 s12, 0')
    k('s_cbranch_scc1 J_SL_c1')
    k.label('SL_c8')
    k('v_mov_b32 v4, s11')
    k('v_mov_b32 v5, 0x%x' % DEC)
    k('ds_write_b32 v5, v4 offset:8')
    k('s_mov_b64 exec, -1')
    k('s_waitcnt lgkmcnt(0)')
    k.label('SL_c9')
    bcast_read(k, 8)
    k('s_cmp_eq_u32 s10, -1')
    k('s_cbranch_scc1 SL_ph')
    k('s_and_b32 s10, s10, 31')
    k('s_lshl_b32 s11, 1, s10')
    k('s_or_b32 s9, s9, s11')
    k('s_and_b32 s2, s2, 7')
    k('s_lshl_b32 s10, s10, 3')
    k('s_or_b32 s2, s2, s10')
    k('s_branch J_P2')
    k.label('SL_ph')
    k('s_mov_b32 s100, 3')
    k('s_mov_b32 s101, s9')
    k.label('J_SLOW_next')
    k('s_waitcnt vmcnt(0) lgkmcnt(0)')
    k('s_barrier')
    k('s_cmp_lg_u32 s101, 0')
    k('s_cbranch_scc1 SL_n1')
    k('s_add_u32 s100, s100, 1')
    k('s_mov_b32 s101, s9')
    k('s_cmp_gt_u32 s100, 5')
    k('s_cbranch_scc1 J_SLOW_end')
    k('s_branch J_SLOW_next')
    k.label('SL_n1')
    k('s_ff1_i32_b32 s10, s101')
    k('s_bitset0_b32 s101, s10')
    k('s_and_b32 s2, s2, 7')
    k('s_lshl_b32 s10, s10, 3')
    k('s_or_b32 s2, s2, s10')
    k('v_and_b32 v1, 63, v0')
    k('s_cmp_ge_u32 s3, 4')
    k('s_cbranch_scc1 SL_ld')
    k('s_cmp_eq_u32 s100, 4')
    k('s_cbranch_scc1 J_P4')
    k('s_cmp_eq_u32 s100, 5')
    k('s_cbranch_scc1 J_P5')
    k('s_load_dwordx2 s[12:13], s[0:1], 16')
    k('s_mov_b32 s14, 0x80000')
    k('s_mov_b32 s15, 0x00020000')
    k('s_waitcnt lgkmcnt(0)')
    wo_dma(k, 8, 4, 5)
    k('s_waitcnt vmcnt(0)')
    k('s_branch J_P3')
    k.label('SL_ld')
    k('s_cmp_eq_u32 s100, 3')
    k('s_cbranch_scc1 SL_l3')
    k('s_cmp_eq_u32 s100, 5')
    k('s_cbranch_scc1 SL_l5')
    k('''s_cmp_lt_u32 s3, 6
    s_cselect_b32 s10, 32, 40
    s_load_dwordx2 s[12:13], s[0:1], s10
    s_mov_b32 s14, 0x%x
    s_mov_b32 s15, 0x00020000''' % WSZ)
    p4_bsetup(k, 8, 4, 5, 23, 24)
    k('s_waitcnt lgkmcnt(0)')
    for ks in range(3):
        p4_bstage(k, ks, 8, 23, 24, 12)
    cs_sum(k)
    k('s_waitcnt lgkmcnt(0)')
    k('s_branch J_LD4')
    k.label('SL_l5')
    k('s_load_dwordx2 s[12:13], s[0:1], 48')
    k('s_mov_b32 s14, 0x%x' % WSZ)
    k('s_mov_b32 s15, 0x00020000')
    k('s_lshr_b32 s10, s2, 5')
    k('s_lshl_b32 s10, s10, 7')
    gemm_bd(k, 8, 4, 5, 10)
    k('s_and_b32 s22, s3, 3')
    k('s_mul_i32 s25, s22, %d' % (28 * 16 * 1024))
    k('s_lshl_b32 s28, s22, 11')
    k('s_waitcnt lgkmcnt(0)')
    for s in range(18):
        p5_bstep(k, s, 8, 25, 28, 12)
    k('s_waitcnt vmcnt(0)')
    k('s_barrier')
    k.label('SL_l3')
    k('s_barrier')
    k('s_branch J_SLOW_next')
    k.label('J_SLOW_end')
    k('s_waitcnt vmcnt(0) lgkmcnt(0)')
    k('s_barrier')
    k('s_cmp_lg_u32 s3, 0')
    k('s_cbranch_scc1 SL_e9')
    k('v_and_b32 v1, 63, v0')
    k('v_lshlrev_b32 v6, 10, v1')
    k('s_mov_b32 s11, 0x%x' % (WS_FL + GST))
    k('s_mov_b64 exec, 0xff')
    k('buffer_load_dword v4, v6, s[4:7], s11 offen sc1')
    k('s_waitcnt vmcnt(0)')
    k('v_cmp_eq_u32 vcc, 0, v4')
    k('s_mov_b64 exec, 1')
    k('s_and_b32 s10, vcc_lo, 0xff')
    k('s_ff1_i32_b32 s10, s10')
    k('s_cmp_eq_u32 s10, -1')
    k('s_cbranch_scc1 SL_e8')
    k('s_lshl_b32 s12, s10, 10')
    k('s_add_u32 s11, s11, s12')
    k('v_mov_b32 v4, 1')
    k('buffer_store_dword v4, off, s[4:7], s11 sc1')
    k('s_waitcnt vmcnt(0)')
    k.label('SL_e8')
    k('v_mov_b32 v4, s10')
    k('v_mov_b32 v5, 0x%x' % DEC)
    k('ds_write_b32 v5, v4 offset:12')
    k('s_mov_b64 exec, -1')
    k('s_waitcnt lgkmcnt(0)')
    k.label('SL_e9')
    bcast_read(k, 12)
    k('s_cmp_eq_u32 s10, -1')
    k('s_cbranch_scc1 KF_done')
    k('s_and_b32 s2, s10, 7')
    k('s_lshl_b32 s8, s98, 3')
    k('s_add_u32 s8, s8, s2')
    k('s_lshl_b32 s8, s8, 10')
    k('s_add_u32 s8, s8, 0x%x' % WS_FL)
    k('s_mov_b32 s9, 0')
    k('s_mov_b32 s100, 1')
    k('s_mov_b32 s97, 0')
    k('s_branch J_SLOW_claim')


def gen_kf():
    k = Kernel('kf')
    if ENV('TS5'):
        k.tsoff = set(range(2, 9))
    if ENV('TS4'):
        k.tsoff = set(range(2, 8))
    if TS2:
        k.tsoff = set(range(2, 11))
    k('s_cmp_ge_u32 s2, 256')
    k('s_cbranch_scc1 KF_done')
    k.ts(0, True)
    k.ts(1)
    k('s_load_dwordx2 s[4:5], s[0:1], 72')
    k('s_getreg_b32 s98, hwreg(HW_REG_XCC_ID, 0, 4)')
    FAKE = ENV('FAKEX', '')
    if FAKE == 'g0':
        gsrc = '0'
    else:
        gsrc = None
    k('v_lshrrev_b32 v1, 6, v0')
    k('v_readfirstlane_b32 s3, v1')
    if gsrc is None:
        k('s_and_b32 s10, s98, 7')
    else:
        k('s_mov_b32 s10, %s' % gsrc)
    k('''s_andn2_b32 s2, s2, 7
    s_or_b32 s2, s2, s10
    s_lshl_b32 s8, s98, 3
    s_add_u32 s8, s8, s10
    s_lshl_b32 s8, s8, 10
    s_add_u32 s8, s8, 0x%x
    s_lshl_b32 s10, s10, 10
    s_add_u32 s10, s10, 0x%x
    s_mov_b32 s100, 0
    s_mov_b32 s6, 0x%x
    s_mov_b32 s7, 0x00020000
    s_lshr_b32 s11, s2, 3
    s_lshl_b32 s11, 1, s11
    v_mov_b32 v252, s11
    v_mov_b32 v253, 1''' % (WS_FL, WS_FL + GST, WS_SIZE))
    if FAKE == 'drop':
        k('s_and_b32 s11, s2, 0x78')
        k('s_cmp_eq_u32 s11, 0x28')
        k('s_cbranch_scc1 KF_done')
    k('s_waitcnt lgkmcnt(0)')
    k('s_cmp_lg_u32 s3, 0')
    k('s_cbranch_scc1 J_P2')
    k('s_mov_b64 exec, 1')
    k('buffer_atomic_or v252, off, s[4:7], s8 sc0')
    k('buffer_store_dword v253, off, s[4:7], s10 sc1')
    k('s_mov_b64 exec, -1')
    phase2(k)
    k('s_cmp_ge_u32 s3, 4')
    k('s_cbranch_scc1 J_LD3')
    k.label('J_P3')
    for _ in gemm(k, True):
        pass
    g4 = p4_comp(k)
    k('s_cmp_lg_u32 s100, 0')
    k('s_cbranch_scc0 P3_fast')
    setflag(k, 40, 4)
    k('s_branch J_SLOW_next')
    k.label('P3_fast')
    k('s_mov_b32 s41, s40')
    next(g4)
    k('s_cmp_lg_u32 s100, 0')
    k('s_cbranch_scc1 P4_go')
    setflag(k, 41, 4)
    k.ts(7)
    k.label('P4_go')
    next(g4)
    g5 = gemm(k, False)
    k('s_cmp_lg_u32 s100, 0')
    k('s_cbranch_scc0 J_P5')
    setflag(k, 40, 4)
    k('s_branch J_SLOW_next')
    k.label('J_P5')
    next(g5)
    k('s_cmp_lg_u32 s100, 0')
    k('s_cbranch_scc1 P5_go')
    setflag(k, 40, 4)
    k.ts(10)
    k.label('P5_go')
    k('v_mov_b32 v5, 0x%x' % DEC)
    k('s_barrier')
    k('ds_read_b32 v4, v5 offset:4')
    k('s_waitcnt lgkmcnt(0)')
    k('v_readfirstlane_b32 s96, v4')
    next(g5)
    k.ts(13)
    k('s_cmp_lg_u32 s100, 0')
    k('s_cbranch_scc1 J_SLOW_next')
    k('s_cmp_lg_u32 s96, 0')
    k('s_cbranch_scc1 J_SLOW_end')
    prof_end(k)
    k.label('KF_done')
    k('s_endpgm')
    k.label('J_LD3')
    k('v_and_b32 v1, 63, v0')
    cs_sum(k)
    if PRE and NPF3:
        l2pf(k, NPF3, 40, NPF3)
    k('s_waitcnt lgkmcnt(0)')
    k('s_barrier')
    k.ts(5)
    p4_loader(k)
    slow(k)
    k.label('KF_END')
    k('s_endpgm')
    return k, dict(vgpr=256, agpr=0, lds=LDS_SIZE, grid=256, block=512)
```

```python
from asmlib import Kernel, PROF, PROF_BASE
from k1 import vr, sr, make_srd, WS_Q, WS_K, WS_VT, WS_O, WS_H, WS_HF, WS_HH, WS_ST, WS_CS2, WS_FL, WS_SIZE
from k4 import stats_fin
import struct, os


def f32hex(x):
    return '0x%08x' % struct.unpack('<I', struct.pack('<f', x))[0]


SLOT = 24576
NSL = 6
CSB = 3 * SLOT + 81920
DEC = CSB + 1024
LDS_SIZE = DEC + 256
F2, F3, F4 = 128, 384, 512
GST = 15 * 8 * 1024 + 768
POLL_LIMIT = int(os.environ.get('POLL_LIMIT', '0x20000'), 0)
PATIENCE = 48
WSZ = 512 * 1792 * 2
ENV = os.environ.get
DSC = ENV('DSC', '')
PSC = ENV('PSC', ' sc1')
PRE = int(ENV('PRE', '1'))
HPF = int(ENV('HPF', '10'))
NPF3 = int(ENV('NPF3', '0'))
SCM = {'': '', '1': ' sc1', '01': ' sc0 sc1', 'nt': ' nt', '0': ' sc0', 'nt1': ' sc1 nt'}
OSC = SCM[ENV('OSC', '1')]
HSC = SCM[ENV('HSC', '1')]
GSC = SCM[ENV('GSC', '1')]
SSC = SCM[ENV('SSC', '')]
FSC = SCM[ENV('FSC', '')]
PREO = int(ENV('PREO', '0'))
PREH = int(ENV('PREH', '6'))
TS2 = ENV('TS2')
DT = int(ENV('DT', '-1'))
PKF = int(ENV('PKF', '1'))
PF2 = int(ENV('PF2', '0'))
PF2L = int(ENV('PF2L', '16'))
PREG = int(ENV('PREG', '0'))
P2V = int(ENV('P2V', '2'))
CPF = int(ENV('CPF', '1'))


class Q:
    def __init__(self, k):
        self.k = k
        self.n = 0
        self.at = {}

    def issue(self, text, tag=None):
        self.k(text)
        self.n += 1
        if tag is not None:
            self.at[tag] = self.n

    def wait(self, *tags):
        m = max(self.at[t] for t in tags)
        self.k('s_waitcnt vmcnt(%d)' % min(63, self.n - m))


def poll(k, L, soff, nd, vt=4):
    k('s_mov_b32 s30, 0')
    k('s_mov_b64 exec, 1')
    k.label(L)
    k('buffer_load_dwordx%d %s, off, s[4:7], s%d%s' % (nd, vr(vt, nd), soff, PSC))
    k('s_add_u32 s30, s30, 1')
    k('s_waitcnt vmcnt(0)')
    k('v_and_b32 v%d, v%d, v%d' % (vt, vt, vt + 1))
    if nd == 4:
        k('v_and_b32 v%d, v%d, v%d' % (vt + 2, vt + 2, vt + 3))
        k('v_and_b32 v%d, v%d, v%d' % (vt, vt, vt + 2))
    k('v_readfirstlane_b32 s31, v%d' % vt)
    k('s_cmp_eq_u32 s31, 0x01010101')
    k('s_cbranch_scc1 %s_x' % L)
    k('s_cmp_lt_u32 s30, 0x%x' % POLL_LIMIT)
    k('s_cbranch_scc1 %s' % L)
    k.label(L + '_x')
    k('s_mov_b64 exec, -1')


def setflag(k, soff, vt):
    k('v_mov_b32 v%d, 1' % vt)
    k('s_waitcnt vmcnt(0)')
    k('s_mov_b64 exec, 1')
    k('buffer_store_byte v%d, off, s[4:7], s%d' % (vt, soff))
    k('s_mov_b64 exec, -1')


def lanes(k):
    k('v_and_b32 v1, 63, v0')
    k('v_and_b32 v2, 15, v1')
    k('v_lshrrev_b32 v3, 4, v1')


def gemm_bd(k, vBd, t0, t1, snt):
    k('''v_lshrrev_b32 v%d, 5, v1
    v_lshlrev_b32 v%d, 2, v%d
    v_bfe_u32 v%d, v1, 2, 2
    v_add_u32 v%d, v%d, v%d
    v_lshlrev_b32 v%d, 10, v%d
    v_bfe_u32 v%d, v1, 4, 1
    v_lshl_add_u32 v%d, v%d, 6, v%d
    v_and_b32 v%d, 3, v1
    v_lshl_add_u32 v%d, v%d, 4, v%d
    v_add_u32 v%d, s%d, v%d''' % (t0, t0, t0, t1, t0, t0, t1, t0, t0, t1, t0, t1, t0, t1, t0, t1, t0, vBd, snt, t0))


def wo_dma(k, vBd, t0, t1, q=None):
    k('s_lshr_b32 s10, s2, 5')
    k('s_lshl_b32 s10, s10, 7')
    gemm_bd(k, vBd, t0, t1, 10)
    k('s_lshl_b32 s10, s3, 17')
    k('s_lshl_b32 s11, s3, 14')
    for i in range(16):
        k('s_add_u32 s30, s10, %d' % (i * 8192))
        k('s_add_u32 m0, s11, %d' % (i * 1024))
        k('buffer_load_dwordx4 v%d, s[12:15], s30 offen lds' % vBd)


def p4_bsetup(k, vBd, t0, t1, sB, sM):
    k('''v_lshrrev_b32 v%d, 2, v1
    v_mul_u32_u24 v%d, 0xe00, v%d
    v_lshrrev_b32 v%d, 5, v1
    v_lshlrev_b32 v%d, 1, v%d
    v_and_b32 v%d, 3, v1
    v_xor_b32 v%d, v%d, v%d
    v_lshl_add_u32 v%d, v%d, 4, v%d''' % (t0, t0, t0, t1, t1, t1, vBd, t1, t1, vBd, vBd, t1, t0))
    k('''s_and_b32 s%d, s3, 1
    s_mul_i32 s%d, s%d, %d
    s_lshr_b32 s10, s2, 4
    s_mul_i32 s11, s10, 224
    s_add_u32 s%d, s%d, s11
    s_and_b32 s10, s10, 1
    s_lshl_b32 s10, s10, 5
    s_sub_u32 s%d, s%d, s10
    s_lshl_b32 s%d, s%d, 10
    s_bfe_u32 s10, s3, 0x10001
    s_lshl_b32 s10, s10, 13
    s_add_u32 s%d, s%d, s10''' % (sM, sB, sM, 16 * 3584, sB, sB, sB, sB, sM, sM, sM, sM))


def p4_bstage(k, ks, vBd, sB, sM, srd, q=None):
    sl = ((ks + 3) % NSL) * SLOT
    for j in range(4):
        k('s_add_u32 s30, s%d, %d' % (sB, ks * 32 * 3584 + j * 64))
        k('s_add_u32 m0, s%d, %d' % (sM, sl + j * 2048))
        t = 'buffer_load_dwordx4 v%d, s[%d:%d], s30 offen lds' % (vBd, srd, srd + 3)
        if q:
            q.issue(t, ('B', ks))
        else:
            k(t)


def p5_bstep(k, s, vBd, sB, sM, srd, q=None):
    qs = (s + 3) % 18
    for h in range(2):
        k('s_add_u32 s30, s%d, %d' % (sB, (s * 16 + h * 8) * 1024))
        k('s_add_u32 m0, s%d, %d' % (sM, qs * 8192 + h * 1024))
        t = 'buffer_load_dwordx4 v%d, s[%d:%d], s30 offen lds' % (vBd, srd, srd + 3)
        if q:
            q.issue(t, ('B', s))
        else:
            k(t)


def l2pf(k, n, vPf, tot):
    k('''s_lshr_b32 s10, s2, 3
    s_lshl_b32 s10, s10, 1
    s_and_b32 s11, s3, 1
    s_add_u32 s10, s10, s11
    s_lshl_b32 s10, s10, 13
    s_add_u32 s10, s10, %d
    v_lshlrev_b32 v%d, 7, v1''' % (96 * 3584, vPf))
    for i in range(tot):
        if i < n:
            k('s_add_u32 s30, s10, %d' % (i * 0x80000))
        k('buffer_load_dword v%d, v%d, s[12:15], s30 offen' % (vPf + 1, vPf))


def l2pf2(k, n, vPf):
    k('''s_bitcmp1_b32 s3, 0
    s_cselect_b32 s36, s18, s16
    s_cselect_b32 s37, s19, s17
    s_mov_b32 s38, 0x%x
    s_mov_b32 s39, 0x00020000
    s_lshr_b32 s10, s2, 3
    s_lshl_b32 s10, s10, 2
    s_lshr_b32 s11, s3, 1
    s_add_u32 s10, s10, s11
    s_mul_i32 s10, s10, %d
    s_add_u32 s10, s10, %d
    v_lshlrev_b32 v%d, 7, v1''' % (WSZ, PF2L * 128, 96 * 3584, vPf))
    if PF2L < 64:
        k('s_mov_b64 exec, 0x%x' % ((1 << PF2L) - 1))
    for i in range(n):
        k('s_add_u32 s30, s10, %d' % (i * 128 * PF2L * 128))
        k('buffer_load_dword v%d, v%d, s[36:39], s30 offen' % (vPf + 1, vPf))
    k('s_mov_b64 exec, -1')


def p2old(k, S, O, vQ, vK, vV, vSt, vNeg, t0, t1, vPf, aK, aV0, aQ, vMk, vBd, mk, so):
    if TS2:
        k.ts2(2)
    k('buffer_load_dwordx4 %s, v%d, s[4:7], 0 offen' % (vr(aQ, 4), vQ))
    for T in range(9):
        s_, i_ = so(T * 1024)
        k('buffer_load_dwordx4 %s, v%d, s[4:7], %s offen offset:%d' % (vr(aK + T * 4, 4), vK, s_, i_))

    def vreg(idx):
        return aV0 + idx * 4 if idx < 9 else aK + (idx - 9) * 4

    def vloads(idxs):
        for idx in idxs:
            for r in range(4):
                k('v_mov_b32 v%d, v%d' % (vreg(idx) + r, t1))
        k('s_mov_b32 exec_lo, 0x0000ffff')
        k('s_mov_b32 exec_hi, 0x0000ffff')
        for idx in idxs:
            s_, i_ = so(idx * 512)
            k('buffer_load_dwordx4 %s, v%d, s[4:7], %s offen offset:%d' % (vr(vreg(idx), 4), vV, s_, i_))
        k('s_mov_b64 exec, -1')

    def dmablock():
        k('s_waitcnt lgkmcnt(0)')
        k('s_cmp_ge_u32 s3, 4')
        k('s_cbranch_scc1 P2_pfl')
        wo_dma(k, vBd, vPf, vPf + 1)
        k('s_branch P2_pfx')
        k.label('P2_pfl')
        p4_bsetup(k, vBd, vPf, vPf + 1, 23, 24)
        for ks in range(3):
            p4_bstage(k, ks, vBd, 23, 24, 12)
        if PRE and not PREH:
            pass
        elif PRE:
            k('''s_and_b32 s10, s2, 7
            s_lshl_b32 s10, s10, 2
            s_bfe_u32 s11, s2, 0x20003
            s_add_u32 s10, s10, s11
            s_lshr_b32 s11, s2, 5
            s_lshl_b32 s30, s10, 16
            s_lshl_b32 s31, s11, 7
            s_add_u32 s31, s30, s31
            s_add_u32 s31, s31, 0x%x
            s_lshl_b32 s11, s11, 11
            s_add_u32 s30, s30, s11
            s_add_u32 s30, s30, 0x%x
            s_lshl_b32 s10, s10, 12
            s_add_u32 s10, s10, 0x%x
            s_movk_i32 s11, 128
            s_cmp_eq_u32 s3, 4
            s_cselect_b32 s30, s31, s30
            s_cselect_b32 s11, 1024, s11
            s_mov_b32 s31, 16384
            s_bitcmp1_b32 %d, s3
            s_cselect_b32 s30, s10, s30
            s_cselect_b32 s11, 64, s11
            s_cselect_b32 s31, 1024, s31
            v_lshrrev_b32 v%d, 4, v1
            v_mul_u32_u24 v%d, s31, v%d
            v_and_b32 v%d, 15, v1
            v_mad_u32_u24 v%d, v%d, s11, v%d
            buffer_load_dword v7, v%d, s[4:7], s30 offen''' % (WS_H, WS_HF, WS_ST, 0xc0 | (0 if PREH & 1 else 16) | (0 if PREH & 2 else 32), vPf, vPf, vPf, vPf + 1, vPf, vPf + 1, vPf, vPf))
        else:
            l2pf(k, int(ENV('NPF2', '4')), vPf, 4)
        k.label('P2_pfx')

        if PF2:
            l2pf2(k, PF2, vPf)

    vloads(range(9))
    k('''s_lshl_b32 s25, s21, 5
    s_add_u32 s25, s25, s20
    s_lshl_b32 s25, s25, 10
    s_add_u32 s25, s25, 0x%x
    v_lshlrev_b32 v10, 4, v2
    v_lshl_add_u32 v10, v3, 3, v10
    v_add_u32 v%d, s25, v10''' % (WS_O, vSt))
    nx = 0
    if PRE and PREO:
        k('v_lshlrev_b32 v10, 7, v1')
        k('s_mov_b64 exec, 0xff')
        k('buffer_load_dword v7, v10, s[4:7], s25 offen')
        k('s_mov_b64 exec, -1')
        nx = 1
    k('v_mov_b32 v%d, %s' % (vNeg, f32hex(-1e9)))
    k('s_sub_i32 s28, 8, s21')
    k('s_max_i32 s28, s28, 0')
    for i in range(16):
        kk = (i >> 2) * 8 + (i & 3)
        m = 0
        for l in range(64):
            if kk > (l & 31) - (l >> 5) * 4:
                m |= 1 << l
        k('s_mov_b32 s%d, 0x%x' % (mk(i), m & 0xffffffff))
        k('s_mov_b32 s%d, 0x%x' % (mk(i) + 1, m >> 32))
    k.ts(2)
    if TS2:
        k.ts2(3)
    for T in range(9):
        k('s_waitcnt vmcnt(%d)' % (nx + 9 + 8 - T))
        if TS2 and T in (0, 8):
            k.ts2(4 if T == 0 else 5)
        k('v_mfma_f32_32x32x16_bf16 %s, %s, %s, 0' % (vr(S + T * 16, 16), vr(aK + T * 4, 4), vr(aQ, 4)))
    vloads(range(9, 18))
    npf = (13 if PREH else 12) + PF2
    if DT < 0:
        dmablock()
    for i in range(16):
        k('v_cndmask_b32_e64 v%d, v%d, v%d, s[%d:%d]' % (S + i, vNeg, S + i, mk(i), mk(i) + 1))
    for i in range(16):
        k('v_cndmask_b32_e64 v%d, v%d, v%d, s[%d:%d]' % (S + 128 + i, S + 128 + i, vNeg, mk(i), mk(i) + 1))
    k('s_cmp_eq_u32 s28, 0')
    k('s_cbranch_scc1 J_P2_nomask')
    for T in range(8):
        k('s_cmp_gt_u32 s28, %d' % T)
        k('s_cbranch_scc0 J_P2_nomask')
        for i in range(16):
            k('v_mov_b32 v%d, v%d' % (S + T * 16 + i, vNeg))
    k.label('J_P2_nomask')
    ch = [O, O + 1, O + 2, O + 3]
    regs = list(range(S, S + 144))
    for c in range(4):
        k('v_max3_f32 v%d, v%d, v%d, v%d' % (ch[c], regs[c * 36], regs[c * 36 + 1], regs[c * 36 + 2]))
    for j in range(3, 35, 2):
        for c in range(4):
            k('v_max3_f32 v%d, v%d, v%d, v%d' % (ch[c], ch[c], regs[c * 36 + j], regs[c * 36 + j + 1]))
    for c in range(4):
        k('v_max_f32 v%d, v%d, v%d' % (ch[c], ch[c], regs[c * 36 + 35]))
    k('v_max3_f32 v%d, v%d, v%d, v%d' % (t0, ch[0], ch[1], ch[2]))
    k('v_max_f32 v%d, v%d, v%d' % (t0, t0, ch[3]))
    k('v_mov_b32 v%d, v%d' % (t1, t0))
    k('v_permlane32_swap_b32 v%d, v%d' % (t0, t1))
    k('v_max_f32 v%d, v%d, v%d' % (t0, t0, t1))
    k.ts(3)
    if TS2:
        k.ts2(6)
    c_ = 0.25 * 1.4426950408889634
    k('s_mov_b32 s29, %s' % f32hex(c_))
    k('v_mul_f32 v%d, s29, v%d' % (t0, t0))
    if PKF:
        k('s_mov_b32 s34, s29')
        k('s_mov_b32 s35, s29')
        k('v_mov_b32 v%d, v%d' % (t1, t0))
    first = True
    for T in range(9):
        b = S + T * 16
        if T == 7:
            k('s_mov_b64 exec, 1')
            k('buffer_load_dword v%d, off, s[4:7], s8 sc1' % vMk)
            k('s_mov_b64 exec, -1')
        if T == DT:
            dmablock()
        if PKF:
            for i in range(0, 16, 2):
                k('v_pk_fma_f32 %s, %s, s[34:35], %s neg_lo:[0,0,1] neg_hi:[0,0,1]' % (vr(b + i, 2), vr(b + i, 2), vr(t0, 2)))
        else:
            for i in range(16):
                k('v_fma_f32 v%d, v%d, s29, -v%d' % (b + i, b + i, t0))
        for i in range(16):
            k('v_exp_f32 v%d, v%d' % (b + i, b + i))
        for u in range(2):
            for j in range(4):
                k('v_cvt_pk_bf16_f32 v%d, v%d, v%d' % (b + 8 * u + j, b + 8 * u + 2 * j, b + 8 * u + 2 * j + 1))
        for u in range(2):
            idx = 2 * T + u
            if idx == 0:
                k('s_waitcnt vmcnt(%d)' % (nx + 9 + (npf if DT <= 0 else 0)))
            if idx == 9:
                if TS2:
                    k.ts2(7)
                k('s_waitcnt vmcnt(%d)' % (npf if DT <= 4 else 0))
                if TS2:
                    k.ts2(8)
            k('v_mfma_f32_32x32x16_bf16 %s, %s, %s, %s' % (
                vr(O, 16), vr(vreg(idx), 4), vr(b + 8 * u, 4), '0' if first else vr(O, 16)))
            first = False


def p2new(k, S, O, vQ, vK, vV, vSt, vNeg, t0, t1, vPf, aK, aV0, aQ, vMk, vBd, mk, so):
    M = O + 4
    q0 = Q(k)
    KO = [0, 8, 1, 2, 3, 4, 5, 6, 7]
    k('s_waitcnt lgkmcnt(0)')
    if TS2:
        k.ts2(2)
    q0.issue('buffer_load_dwordx4 %s, v%d, s[4:7], 0 offen' % (vr(aQ, 4), vQ))
    for T in KO:
        s_, i_ = so(T * 1024)
        q0.issue('buffer_load_dwordx4 %s, v%d, s[4:7], %s offen offset:%d' % (vr(aK + T * 4, 4), vK, s_, i_), ('K', T))
    k('s_or_b32 s10, s3, s100')
    k('s_cmp_lg_u32 s10, 0')
    k('s_cbranch_scc1 P2_ncl')
    k('s_mov_b64 exec, 1')
    k('buffer_atomic_or v252, off, s[4:7], s8 sc0')
    k('buffer_store_dword v253, off, s[4:7], s9 sc1')
    k('s_mov_b64 exec, -1')
    k.label('P2_ncl')
    LO = [0, 1, 16, 17] + list(range(2, 16))

    def vreg(idx):
        j = LO.index(idx)
        return aV0 + j * 4 if j < 9 else aK + KO[j - 9] * 4

    def vfill(j):
        for r in (0, 2):
            k('v_pk_mov_b32 %s, s[14:15], s[14:15]' % vr(vreg(LO[j]) + r, 2))

    k("""s_lshl_b32 s25, s21, 5
    s_add_u32 s25, s25, s20
    s_lshl_b32 s25, s25, 10
    s_add_u32 s25, s25, 0x%x
    v_lshlrev_b32 v10, 4, v1
    v_add_u32 v%d, s25, v10
    s_mov_b32 s14, 0x3f803f80
    s_mov_b32 s15, 0x3f803f80
    s_mov_b32 s20, 0x0000ffff
    s_sub_i32 s28, 8, s21
    s_mov_b32 s21, 0x0000ffff""" % (WS_O, vSt))
    for j in range(9):
        vfill(j)
    k('v_mov_b32 v%d, %s' % (vNeg, f32hex(-1e9)))
    k('s_max_i32 s28, s28, 0')
    for i in range(16):
        kk = (i >> 2) * 8 + (i & 3)
        m = 0
        for l in range(64):
            if kk > (l & 31) - (l >> 5) * 4:
                m |= 1 << l
        k('s_mov_b32 s%d, 0x%x' % (mk(i), m & 0xffffffff))
        k('s_mov_b32 s%d, 0x%x' % (mk(i) + 1, m >> 32))
    k('v_mov_b32 v%d, 0xffff' % O)
    k('v_mov_b32 v%d, 0xffff0000' % (O + 1))
    for jj in range(8):
        k('v_cndmask_b32_e64 v%d, 0, v%d, s[%d:%d]' % (M + jj, O, mk(2 * jj), mk(2 * jj) + 1))
        k('v_cndmask_b32_e64 v%d, 0, v%d, s[%d:%d]' % (O + 2, O + 1, mk(2 * jj + 1), mk(2 * jj + 1) + 1))
        k('v_or_b32 v%d, v%d, v%d' % (M + jj, M + jj, O + 2))
    k('s_cmp_ge_u32 s3, 4')
    k('s_cbranch_scc1 P2_B')

    def path(A):
        L = 'A' if A else 'B'
        S0 = int(ENV('S0' + L, '9' if A else '3'))
        NPS = int(ENV('NPS' + L, '2' if A else '2'))
        LAG = int(ENV('LAG' + L, '3' if A else '2'))
        POST = int(ENV('POST', '0')) if A else 0
        BDMA = int(ENV('BDMA', '1'))
        q = Q(k)
        q.n, q.at = q0.n, dict(q0.at)
        if A:
            k('s_lshr_b32 s10, s2, 5')
            k('s_lshl_b32 s10, s10, 7')
            gemm_bd(k, vBd, vPf + 1, vPf + 2, 10)
            k('s_lshl_b32 s23, s3, 17')
            k('s_lshl_b32 s24, s3, 14')
            if BDMA:
                p4_bsetup(k, vPf, vPf + 1, vPf + 2, 25, 29)
        else:
            if not BDMA:
                p4_bsetup(k, vBd, vPf + 1, vPf + 2, 23, 24)
            k("""s_and_b32 s10, s2, 7
            s_lshl_b32 s10, s10, 2
            s_bfe_u32 s11, s2, 0x20003
            s_add_u32 s10, s10, s11
            s_lshr_b32 s11, s2, 5
            s_lshl_b32 s25, s10, 16
            s_lshl_b32 s31, s11, 7
            s_add_u32 s31, s25, s31
            s_add_u32 s31, s31, 0x%x
            s_lshl_b32 s11, s11, 11
            s_add_u32 s25, s25, s11
            s_add_u32 s25, s25, 0x%x
            s_lshl_b32 s10, s10, 12
            s_add_u32 s10, s10, 0x%x
            s_movk_i32 s11, 128
            s_cmp_eq_u32 s3, 4
            s_cselect_b32 s25, s31, s25
            s_cselect_b32 s11, 1024, s11
            s_mov_b32 s31, 16384
            s_bitcmp1_b32 %d, s3
            s_cselect_b32 s25, s10, s25
            s_cselect_b32 s11, 64, s11
            s_cselect_b32 s31, 1024, s31
            v_lshrrev_b32 v%d, 4, v1
            v_mul_u32_u24 v%d, s31, v%d
            v_and_b32 v%d, 15, v1
            v_mad_u32_u24 v%d, v%d, s11, v%d""" % (WS_H, WS_HF, WS_ST, 0xc0 | (0 if PREH & 1 else 16) | (0 if PREH & 2 else 32), vPf, vPf, vPf, vPf + 1, vPf, vPf + 1, vPf))
        k.ts(2)
        if TS2:
            k.ts2(3)
        mops = []

        def mv(j):
            idx = LO[j]
            s_, i_ = so(idx * 512)
            if j >= 9:
                vfill(j)
            k('s_mov_b64 exec, s[20:21]')
            q.issue('buffer_load_dwordx4 %s, v%d, s[4:7], %s offen offset:%d' % (vr(vreg(idx), 4), vV, s_, i_), ('V', idx))
            k('s_mov_b64 exec, -1')

        def mwo(i):
            if i == 0:
                k('s_mov_b32 s14, 0x80000')
                k('s_mov_b32 s15, 0x00020000')
            k('s_add_u32 s30, s23, %d' % (i * 8192))
            k('s_add_u32 m0, s24, %d' % (i * 1024))
            q.issue('buffer_load_dwordx4 v%d, s[12:15], s30 offen lds' % vBd)

        def mb(i):
            ks, j = i >> 2, i & 3
            sB, sM, v = (25, 29, vPf) if A else (23, 24, vBd)
            k('s_add_u32 s30, s%d, %d' % (sB, ks * 32 * 3584 + j * 64))
            k('s_add_u32 m0, s%d, %d' % (sM, (ks + 3) * SLOT + j * 2048))
            q.issue('buffer_load_dwordx4 v%d, s[16:19], s30 offen lds' % v)

        def mpre():
            q.issue('buffer_load_dword v7, v%d, s[4:7], s25 offen' % vPf)

        for j in range(18):
            mops.append((max(0, j - 9 + 1), lambda j=j: mv(j)))
        if A:
            mops += [(0, lambda i=i: mwo(i)) for i in range(16)]
        else:
            mops.append((0, mpre))
        if bool(BDMA) == A:
            mops += [(0, lambda i=i: mb(i)) for i in range(12)]
        post = mops[len(mops) - POST:] if POST else []
        if POST:
            mops = mops[:len(mops) - POST]
        sl = [0]

        def slot():
            s = sl[0]
            sl[0] += 1
            if s < S0:
                return
            for _ in range(NPS):
                if mops and mops[0][0] <= s:
                    mops.pop(0)[1]()

        ch = [O, O + 1, O + 2, O + 3]
        started = [False]

        def fullmask(T):
            k('s_cmp_gt_u32 s28, %d' % T)
            k('s_cbranch_scc0 J_P2%s_nm%d' % (L, T))
            for i in range(16):
                k('v_mov_b32 v%d, v%d' % (S + T * 16 + i, vNeg))
            k.label('J_P2%s_nm%d' % (L, T))

        def tmax(T):
            r = S + T * 16
            if not started[0]:
                for c in range(4):
                    k('v_max3_f32 v%d, v%d, v%d, v%d' % (ch[c], r + 4 * c, r + 4 * c + 1, r + 4 * c + 2))
                for c in range(4):
                    k('v_max_f32 v%d, v%d, v%d' % (ch[c], ch[c], r + 4 * c + 3))
                started[0] = True
            else:
                for h in range(2):
                    for c in range(4):
                        k('v_max3_f32 v%d, v%d, v%d, v%d' % (ch[c], ch[c], r + 4 * c + 2 * h, r + 4 * c + 2 * h + 1))

        def post_tile(pos):
            T = KO[pos]
            if T == 0:
                fullmask(0)
            elif T == 8:
                for i in range(16):
                    k('v_cndmask_b32_e64 v%d, v%d, v%d, s[%d:%d]' % (S + i, S + 128 + i, S + i, mk(i), mk(i) + 1))
                tmax(0)
            else:
                fullmask(T)
                tmax(T)

        for pos, T in enumerate(KO):
            q.wait(('K', T))
            if TS2 and pos in (0, 8):
                k.ts2(4 if pos == 0 else 5)
            k('v_mfma_f32_32x32x16_bf16 %s, %s, %s, 0' % (vr(S + T * 16, 16), vr(aK + T * 4, 4), vr(aQ, 4)))
            if pos:
                post_tile(pos - 1)
            slot()
        c_ = 0.25 * 1.4426950408889634
        k('s_mov_b32 s34, %s' % f32hex(c_))
        k('s_mov_b32 s35, s34')
        post_tile(8)
        k('v_max3_f32 v%d, v%d, v%d, v%d' % (t0, ch[0], ch[1], ch[2]))
        k('v_max_f32 v%d, v%d, v%d' % (t0, t0, ch[3]))
        k('v_mov_b32 v%d, v%d' % (t1, t0))
        k('v_permlane32_swap_b32 v%d, v%d' % (t0, t1))
        k('v_max_f32 v%d, v%d, v%d' % (t0, t0, t1))
        k.ts(3)
        if TS2:
            k.ts2(6)
        k('v_mul_f32 v%d, s34, v%d' % (t0, t0))
        k('v_mov_b32 v%d, v%d' % (t1, t0))
        first = [True]
        done = [0]

        def pv(p):
            lst = [(0, S), (1, S + 8), (16, S + 128), (17, S + 136)] if p == 0 else [(2 * p, S + p * 16), (2 * p + 1, S + p * 16 + 8)]
            if any(('V', idx) not in q.at for idx, b in lst):
                return False
            for idx, b in lst:
                q.wait(('V', idx))
                k('v_mfma_f32_32x32x16_bf16 %s, %s, %s, %s' % (vr(O, 16), vr(vreg(idx), 4), vr(b, 4), '0' if first[0] else vr(O, 16)))
                first[0] = False
            return True

        for p in range(8):
            b = S + p * 16
            if p == 6 and A:
                k('s_mov_b64 exec, 1')
                q.issue('buffer_load_dword v%d, off, s[4:7], s8 sc1' % vMk)
                k('s_mov_b64 exec, -1')
            for i in range(0, 16, 2):
                k('v_pk_fma_f32 %s, %s, s[34:35], %s neg_lo:[0,0,1] neg_hi:[0,0,1]' % (vr(b + i, 2), vr(b + i, 2), vr(t0, 2)))
            for i in range(16):
                if i % 4 == 0:
                    slot()
                k('v_exp_f32 v%d, v%d' % (b + i, b + i))
            for u in range(2):
                for j in range(4):
                    k('v_cvt_pk_bf16_f32 v%d, v%d, v%d' % (b + 8 * u + j, b + 8 * u + 2 * j, b + 8 * u + 2 * j + 1))
            if p == 0:
                for u in range(2):
                    for j in range(4):
                        k('v_bfi_b32 v%d, v%d, 0, v%d' % (S + 128 + 8 * u + j, M + 4 * u + j, S + 8 * u + j))
                        k('v_and_b32 v%d, v%d, v%d' % (S + 8 * u + j, M + 4 * u + j, S + 8 * u + j))
            if TS2 and p in (3, 7):
                k.ts2(7 if p == 3 else 8)
            while done[0] <= p - LAG and pv(done[0]):
                done[0] += 1
        while mops:
            mops.pop(0)[1]()
        while done[0] < 8:
            assert pv(done[0])
            done[0] += 1
        k('v_rcp_f32 v%d, v%d' % (t0, O + 8))
        for i in range(8):
            k('v_mul_f32 v%d, v%d, v%d' % (O + i, O + i, t0))
        for j in range(4):
            k('v_cvt_pk_bf16_f32 v%d, v%d, v%d' % (O + j, O + 2 * j, O + 2 * j + 1))
        k('v_permlane32_swap_b32 v%d, v%d' % (O, O + 2))
        k('v_permlane32_swap_b32 v%d, v%d' % (O + 1, O + 3))
        k('buffer_store_dwordx4 %s, v%d, s[4:7], 0 offen%s' % (vr(O, 4), vSt, OSC))
        if TS2:
            k.ts2(9)
        setflag(k, 22, t0)
        for m in post:
            m[1]()

    path(True)
    k('s_branch J_P2_join')
    k.label('P2_B')
    path(False)
    k.label('J_P2_join')


KVB = 3 * SLOT


def p2lds(k, S, O, vQ, vK, vV, vSt, vNeg, t0, t1, vPf, aK, aV0, aQ, vMk, vBd, mk, so):
    M = O + 4
    KO = [0, 8, 1, 2, 3, 4, 5, 6, 7]
    VBAR = int(ENV('VBAR', '0'))
    WS0 = int(ENV('WS0', '2'))
    WST = int(ENV('WST', '2'))
    NVS = int(ENV('NVS', '3'))
    LAG = int(ENV('LAG', '1'))
    vKr, vVr = vPf + 2, vPf + 3
    k('s_waitcnt lgkmcnt(0)')
    if TS2:
        k.ts2(2)
    k('buffer_load_dwordx4 %s, v%d, s[4:7], 0 offen' % (vr(aQ, 4), vQ))
    VPOS = int(ENV('VPOS', '1'))

    def kvdma(v, add):
        k('s_add_u32 m0, s18, %d' % add)
        for i in range(4):
            k('buffer_load_dwordx4 v%d, s[4:7], s26 offen offset:%d lds' % (v, i * 1024))
        k('s_add_u32 m0, s18, %d' % (add + 4096))
        k('buffer_load_dwordx4 v%d, s[4:7], s27 offen lds' % v)

    k('s_mov_b32 s18, s24')
    kvdma(vK, 0)
    if VPOS == 0:
        kvdma(vV, 40960)
    if CPF:
        k('s_getpc_b64 s[30:31]')
        k.label('KF_PC')
        k('''s_andn2_b32 s10, s2, 7
        s_add_u32 s10, s10, s3
        s_lshl_b32 s10, s10, 8
        s_add_u32 s11, s10, 128
        s_min_u32 s10, s10, KF_END-KF_PC
        s_min_u32 s11, s11, KF_END-KF_PC
        s_load_dword s96, s[30:31], s10
        s_load_dword s99, s[30:31], s11''')
    k('s_or_b32 s29, s3, s100')
    k('s_cmp_lg_u32 s29, 0')
    k('s_cbranch_scc1 P2_ncl')
    k('s_mov_b64 exec, 1')
    k('buffer_atomic_or v252, off, s[4:7], s8 sc0')
    k('buffer_store_dword v253, off, s[4:7], s9 sc1')
    k('s_mov_b64 exec, -1')
    k.label('P2_ncl')

    def wait2(n, L):
        k('s_waitcnt vmcnt(%d)' % (n + 2))
        k('s_cmp_eq_u32 s29, 0')
        k('s_cbranch_scc1 %s' % L)
        k('s_waitcnt vmcnt(%d)' % n)
        k.label(L)

    LO = [0, 1, 16, 17] + list(range(2, 16))

    def vreg(idx):
        j = LO.index(idx)
        return aV0 + j * 4 if j < 9 else aK + KO[j - 9] * 4

    def vfill(j):
        for r in (0, 2):
            k('v_pk_mov_b32 %s, s[16:17], s[16:17]' % vr(vreg(LO[j]) + r, 2))

    k("""s_lshl_b32 s25, s21, 5
    s_add_u32 s25, s25, s20
    s_lshl_b32 s25, s25, 10
    s_add_u32 s25, s25, 0x%x
    v_lshlrev_b32 v10, 4, v1
    v_add_u32 v%d, s25, v10
    s_sub_u32 s24, s24, s26
    v_add_u32 v%d, s24, v10
    v_and_b32 v10, 15, v1
    v_lshl_add_u32 v10, v3, 4, v10
    v_lshlrev_b32 v10, 4, v10
    s_add_u32 s24, s24, 40960
    v_add_u32 v%d, s24, v10
    s_mov_b32 s16, 0x3f803f80
    s_mov_b32 s17, 0x3f803f80
    s_mov_b32 s20, 0x0000ffff
    s_sub_i32 s28, 8, s21
    s_mov_b32 s21, 0x0000ffff""" % (WS_O, vSt, vKr, vVr))
    for j in range(9):
        vfill(j)
    k('v_mov_b32 v%d, %s' % (vNeg, f32hex(-1e9)))
    k('s_max_i32 s28, s28, 0')
    for i in range(16):
        kk = (i >> 2) * 8 + (i & 3)
        m = 0
        for l in range(64):
            if kk > (l & 31) - (l >> 5) * 4:
                m |= 1 << l
        k('s_mov_b32 s%d, 0x%x' % (mk(i), m & 0xffffffff))
        k('s_mov_b32 s%d, 0x%x' % (mk(i) + 1, m >> 32))
    k('v_mov_b32 v%d, 0xffff' % O)
    k('v_mov_b32 v%d, 0xffff0000' % (O + 1))
    for jj in range(8):
        k('v_cndmask_b32_e64 v%d, 0, v%d, s[%d:%d]' % (M + jj, O, mk(2 * jj), mk(2 * jj) + 1))
        k('v_cndmask_b32_e64 v%d, 0, v%d, s[%d:%d]' % (O + 2, O + 1, mk(2 * jj + 1), mk(2 * jj + 1) + 1))
        k('v_or_b32 v%d, v%d, v%d' % (M + jj, M + jj, O + 2))
    k('s_lshr_b32 s10, s2, 5')
    k('s_lshl_b32 s10, s10, 7')
    gemm_bd(k, vBd, vPf, vPf + 1, 10)
    k("""s_and_b32 s10, s3, 3
    s_lshl_b32 s24, s10, 14
    s_lshl_b32 s11, s26, 1
    s_add_u32 s24, s24, s11
    s_lshl_b32 s23, s24, 3""")
    k("""s_and_b32 s10, s2, 7
    s_lshl_b32 s10, s10, 2
    s_bfe_u32 s11, s2, 0x20003
    s_add_u32 s10, s10, s11
    s_lshr_b32 s11, s2, 5
    s_lshl_b32 s25, s10, 16
    s_lshl_b32 s31, s11, 7
    s_add_u32 s31, s25, s31
    s_add_u32 s31, s31, 0x%x
    s_lshl_b32 s11, s11, 11
    s_add_u32 s25, s25, s11
    s_add_u32 s25, s25, 0x%x
    s_lshl_b32 s10, s10, 12
    s_add_u32 s10, s10, 0x%x
    s_movk_i32 s11, 128
    s_cmp_eq_u32 s3, 4
    s_cselect_b32 s25, s31, s25
    s_cselect_b32 s11, 1024, s11
    s_mov_b32 s31, 16384
    s_bitcmp1_b32 %d, s3
    s_cselect_b32 s25, s10, s25
    s_cselect_b32 s11, 64, s11
    s_cselect_b32 s31, 1024, s31
    v_lshrrev_b32 v%d, 4, v1
    v_mul_u32_u24 v%d, s31, v%d
    v_and_b32 v%d, 15, v1
    v_mad_u32_u24 v%d, v%d, s11, v%d""" % (WS_H, WS_HF, WS_ST, 0xc0 | (0 if PREH & 1 else 16) | (0 if PREH & 2 else 32), vPf, vPf, vPf, vPf + 1, vPf, vPf + 1, vPf))
    k.ts(2)
    if TS2:
        k.ts2(3)
    if VPOS == 1:
        kvdma(vV, 40960)
    wait2(5 if VPOS < 2 else 0, 'P2_wk')
    k('s_barrier')
    if TS2:
        k.ts2(4)
    if VPOS == 2:
        kvdma(vV, 40960)
    for T in KO:
        k('ds_read_b128 %s, v%d offset:%d' % (vr(aK + T * 4, 4), vKr, T * 1024))
    ch = [O, O + 1, O + 2, O + 3]
    started = [False]

    def fullmask(T):
        k('s_cmp_gt_u32 s28, %d' % T)
        k('s_cbranch_scc0 J_P2_nm%d' % T)
        for i in range(16):
            k('v_mov_b32 v%d, v%d' % (S + T * 16 + i, vNeg))
        k.label('J_P2_nm%d' % T)

    def tmax(T):
        r = S + T * 16
        if not started[0]:
            for c in range(4):
                k('v_max3_f32 v%d, v%d, v%d, v%d' % (ch[c], r + 4 * c, r + 4 * c + 1, r + 4 * c + 2))
            for c in range(4):
                k('v_max_f32 v%d, v%d, v%d' % (ch[c], ch[c], r + 4 * c + 3))
            started[0] = True
        else:
            for h in range(2):
                for c in range(4):
                    k('v_max3_f32 v%d, v%d, v%d, v%d' % (ch[c], ch[c], r + 4 * c + 2 * h, r + 4 * c + 2 * h + 1))

    def post_tile(pos):
        T = KO[pos]
        if T == 0:
            fullmask(0)
        elif T == 8:
            for i in range(16):
                k('v_cndmask_b32_e64 v%d, v%d, v%d, s[%d:%d]' % (S + i, S + 128 + i, S + i, mk(i), mk(i) + 1))
            tmax(0)
        else:
            fullmask(T)
            tmax(T)

    PD = int(ENV('PD', '2'))
    for pos, T in enumerate(KO):
        k('s_waitcnt lgkmcnt(%d)' % (8 - pos))
        k('v_mfma_f32_32x32x16_bf16 %s, %s, %s, 0' % (vr(S + T * 16, 16), vr(aK + T * 4, 4), vr(aQ, 4)))
        if pos >= PD:
            post_tile(pos - PD)
            vfill(9 + pos - PD)
    if TS2:
        k.ts2(5)
    for pos in range(9 - PD, 9):
        post_tile(pos)
        vfill(9 + pos)
    c_ = 0.25 * 1.4426950408889634
    k('s_mov_b32 s34, %s' % f32hex(c_))
    k('s_mov_b32 s35, s34')
    k('v_max3_f32 v%d, v%d, v%d, v%d' % (t0, ch[0], ch[1], ch[2]))
    k('v_max_f32 v%d, v%d, v%d' % (t0, t0, ch[3]))
    k('v_mov_b32 v%d, v%d' % (t1, t0))
    k('v_permlane32_swap_b32 v%d, v%d' % (t0, t1))
    k('v_max_f32 v%d, v%d, v%d' % (t0, t0, t1))
    k.ts(3)
    if TS2:
        k.ts2(6)
    k('v_mul_f32 v%d, s34, v%d' % (t0, t0))
    k('v_mov_b32 v%d, v%d' % (t1, t0))
    first = [True]
    done = [0]
    st = dict(v=0, w=0, s=0, bar=False, pre=False)

    def slot():
        s = st['s']
        st['s'] += 1
        if st['bar'] and st['v'] < 18:
            k('s_mov_b64 exec, s[20:21]')
            for _ in range(NVS):
                if st['v'] < 18:
                    idx = LO[st['v']]
                    k('ds_read_b128 %s, v%d offset:%d' % (vr(vreg(idx), 4), vVr, idx * 512))
                    st['v'] += 1
            k('s_mov_b64 exec, -1')
        if s >= WS0 and (s - WS0) % WST == 0:
            if st['w'] < 8:
                i = st['w']
                k('s_add_u32 s30, s23, %d' % (i * 8192))
                k('s_add_u32 m0, s24, %d' % (i * 1024))
                k('buffer_load_dwordx4 v%d, s[12:15], s30 offen lds' % vBd)
                st['w'] += 1
            elif not st['pre']:
                st['pre'] = True
                k('s_cmp_lt_u32 s3, 4')
                k('s_cbranch_scc1 P2_npre')
                k('buffer_load_dword v7, v%d, s[4:7], s25 offen' % vPf)
                k.label('P2_npre')

    def pv(p):
        lst = [(0, S), (1, S + 8), (16, S + 128), (17, S + 136)] if p == 0 else [(2 * p, S + p * 16), (2 * p + 1, S + p * 16 + 8)]
        if any(LO.index(idx) >= st['v'] for idx, b in lst):
            return False
        for idx, b in lst:
            k('s_waitcnt lgkmcnt(%d)' % min(15, st['v'] - 1 - LO.index(idx)))
            k('v_mfma_f32_32x32x16_bf16 %s, %s, %s, %s' % (vr(O, 16), vr(vreg(idx), 4), vr(b, 4), '0' if first[0] else vr(O, 16)))
            first[0] = False
        return True

    for p in range(8):
        b = S + p * 16
        if p == VBAR:
            assert not st['pre']
            if VPOS == 0:
                wait2(st['w'], 'P2_wv')
            else:
                k('s_waitcnt vmcnt(%d)' % st['w'])
            k('s_barrier')
            st['bar'] = True
        if p == 6:
            k('s_cmp_lg_u32 s3, 0')
            k('s_cbranch_scc1 P2_nrr')
            k('s_mov_b64 exec, 1')
            k('buffer_load_dword v%d, off, s[4:7], s8 sc1' % vMk)
            k('s_mov_b64 exec, -1')
            k.label('P2_nrr')
        for i in range(0, 16, 2):
            k('v_pk_fma_f32 %s, %s, s[34:35], %s neg_lo:[0,0,1] neg_hi:[0,0,1]' % (vr(b + i, 2), vr(b + i, 2), vr(t0, 2)))
        for i in range(16):
            if i % 4 == 0:
                slot()
            k('v_exp_f32 v%d, v%d' % (b + i, b + i))
        for u in range(2):
            for j in range(4):
                k('v_cvt_pk_bf16_f32 v%d, v%d, v%d' % (b + 8 * u + j, b + 8 * u + 2 * j, b + 8 * u + 2 * j + 1))
        if p == 0:
            for u in range(2):
                for j in range(4):
                    k('v_bfi_b32 v%d, v%d, 0, v%d' % (S + 128 + 8 * u + j, M + 4 * u + j, S + 8 * u + j))
                    k('v_and_b32 v%d, v%d, v%d' % (S + 8 * u + j, M + 4 * u + j, S + 8 * u + j))
        if TS2 and p in (3, 7):
            k.ts2(7 if p == 3 else 8)
        while done[0] <= p - LAG and pv(done[0]):
            done[0] += 1
    assert st['w'] == 8 and st['pre'] and st['v'] == 18
    while done[0] < 8:
        assert pv(done[0])
        done[0] += 1
    k('v_rcp_f32 v%d, v%d' % (t0, O + 8))
    for i in range(8):
        k('v_mul_f32 v%d, v%d, v%d' % (O + i, O + i, t0))
    for j in range(4):
        k('v_cvt_pk_bf16_f32 v%d, v%d, v%d' % (O + j, O + 2 * j, O + 2 * j + 1))
    k('v_permlane32_swap_b32 v%d, v%d' % (O, O + 2))
    k('v_permlane32_swap_b32 v%d, v%d' % (O + 1, O + 3))
    k('buffer_store_dwordx4 %s, v%d, s[4:7], 0 offen%s' % (vr(O, 4), vSt, OSC))
    if TS2:
        k.ts2(9)
    setflag(k, 22, t0)


def phase2(k):
    S = 12
    O = 156
    vQ, vK, vV, vSt, vNeg = 4, 5, 6, 8, 9
    t0, t1 = 10, 11
    vPf = 172
    aK, aV0, aQ = 176, 212, 248
    vCl, vMk, vBd = 252, 253, 254

    def mk(i):
        return 32 + 2 * i
    k.label('J_P2')
    if P2V == 2:
        k('''s_load_dwordx2 s[12:13], s[0:1], 16
        s_mov_b32 s14, 0x80000
        s_mov_b32 s15, 0x00020000''')
    elif P2V:
        k('''s_bitcmp1_b32 s3, 1
        s_cselect_b32 s10, 40, 32
        s_load_dwordx2 s[12:13], s[0:1], 16
        s_load_dwordx2 s[16:17], s[0:1], s10
        s_mov_b32 s18, 0x%x
        s_mov_b32 s19, 0x00020000''' % WSZ)
    else:
        k('''s_cmp_lt_u32 s3, 6
        s_cselect_b32 s10, 32, 40
        s_mov_b32 s14, 0x%x
        s_cmp_lt_u32 s3, 4
        s_cselect_b32 s10, 16, s10
        s_cselect_b32 s14, 0x80000, s14
        s_load_dwordx2 s[12:13], s[0:1], s10
        s_load_dwordx4 s[16:19], s[0:1], 32
        s_mov_b32 s15, 0x00020000''' % WSZ)
    k('''s_lshr_b32 s20, s2, 5
    s_lshl_b32 s20, s20, 2
    s_and_b32 s21, s3, 3
    s_add_u32 s20, s20, s21
    s_and_b32 s21, s2, 7
    s_lshl_b32 s21, s21, 2
    s_bfe_u32 s22, s2, 0x20003
    s_add_u32 s21, s21, s22
    s_lshl_b32 s21, s21, 1
    s_lshr_b32 s23, s3, 2
    s_add_u32 s21, s21, s23
    v_and_b32 v1, 63, v0
    v_and_b32 v2, 31, v1
    v_lshrrev_b32 v3, 5, v1''')
    k('''s_lshl_b32 s22, s22, 6
    s_add_u32 s22, s22, s23
    s_lshl_b32 s23, s20, 1
    s_add_u32 s22, s22, s23
    s_add_u32 s22, s22, s8
    s_add_u32 s22, s22, %d''' % F2)
    k('''s_lshl_b32 s23, s20, 16
    s_lshl_b32 s24, s21, 10
    s_add_u32 s23, s23, s24
    v_lshlrev_b32 v10, 5, v2
    v_lshl_add_u32 v10, v3, 4, v10
    v_add_u32 v%d, s23, v10
    v_add_u32 v%d, 0x%x, v%d''' % (vQ, vK, WS_K - 8192, vQ))
    if P2V != 2:
        k('''v_and_b32 v10, 15, v1
        v_lshlrev_b32 v10, 5, v10
        v_lshl_add_u32 v10, v3, 4, v10
        v_add_u32 v10, s23, v10
        v_add_u32 v%d, 0x%x, v10''' % (vV, WS_VT - 8192))
    if P2V == 2:
        k('''v_and_b32 v10, 15, v1
        v_lshlrev_b32 v10, 5, v10
        v_lshl_add_u32 v10, v3, 9, v10
        v_and_b32 v11, 16, v1
        v_add3_u32 v10, v10, v11, s23
        v_add_u32 v%d, 0x%x, v10
        s_lshr_b32 s26, s3, 2
        s_mul_i32 s24, s26, 5120
        s_lshl_b32 s26, s26, 12
        s_add_u32 s27, s26, 4096
        s_and_b32 s10, s3, 3
        s_mul_i32 s10, s10, 10240
        s_add_u32 s24, s24, s10
        s_add_u32 s24, s24, %d''' % (vV, WS_VT - 8192, KVB))
    else:
        k('s_mov_b32 s26, 4096')
        k('s_mov_b32 s27, 8192')
        k('v_mov_b32 v%d, 0x3f803f80' % t1)

    def so(off):
        return ('0', 's26', 's27')[off // 4096], off % 4096

    if P2V == 2:
        p2lds(k, S, O, vQ, vK, vV, vSt, vNeg, t0, t1, vPf, aK, aV0, aQ, vMk, vBd, mk, so)
    elif P2V:
        p2new(k, S, O, vQ, vK, vV, vSt, vNeg, t0, t1, vPf, aK, aV0, aQ, vMk, vBd, mk, so)
    else:
        p2old(k, S, O, vQ, vK, vV, vSt, vNeg, t0, t1, vPf, aK, aV0, aQ, vMk, vBd, mk, so)
    if not P2V:
        k('v_rcp_f32 v%d, v%d' % (t0, O + 8))
        for i in range(8):
            k('v_mul_f32 v%d, v%d, v%d' % (O + i, O + i, t0))
        for j in range(4):
            k('v_cvt_pk_bf16_f32 v%d, v%d, v%d' % (O + j, O + 2 * j, O + 2 * j + 1))
        k('buffer_store_dwordx2 %s, v%d, s[4:7], 0 offen%s' % (vr(O, 2), vSt, OSC))
        k('buffer_store_dwordx2 %s, v%d, s[4:7], 0 offen offset:512%s' % (vr(O + 2, 2), vSt, OSC))
        if TS2:
            k.ts2(9)
        setflag(k, 22, t0)
    if TS2:
        k.ts2(10)
    k.ts(4)
    k('s_cmp_lg_u32 s100, 0')
    k('s_cbranch_scc1 J_SLOW_claim')
    k('s_cmp_lg_u32 s3, 0')
    k('s_cbranch_scc1 P2_dec')
    k('''v_readfirstlane_b32 s10, v%d
    v_readfirstlane_b32 s11, v%d
    s_lshr_b32 s30, s2, 3
    s_lshr_b32 s10, s10, s30
    s_and_b32 s10, s10, 1
    s_cmp_lg_u32 s11, -1
    s_cselect_b32 s11, 2, 0
    s_or_b32 s10, s10, s11
    v_mov_b32 v4, s10
    v_mov_b32 v5, 0x%x
    ds_write_b32 v5, v4
    s_waitcnt lgkmcnt(0)''' % (vCl, vMk, DEC))
    k.label('P2_dec')
    k('v_mov_b32 v5, 0x%x' % DEC)
    k('s_barrier')
    k('ds_read_b32 v4, v5')
    k('s_waitcnt lgkmcnt(0)')
    k('v_readfirstlane_b32 s10, v4')
    k('s_cmp_lg_u32 s10, 0')
    k('s_cbranch_scc1 J_SLOW_start')


def gemm(k, p3):
    L = 'P3' if p3 else 'P5'
    KT = 32 if p3 else 112
    wsA = WS_O if p3 else WS_HH
    NS = KT // 4
    NR = min(NS, 16)
    PF = NS if NS <= NR else NR - 1
    RS = 16384
    AR = 28 if p3 else 24
    BFR = AR + NR * 8
    ACC = BFR + 16
    RES = ACC + 64
    T = RES + 8
    vA0, vA1, vBd, vBr, vOut, vRes = 8, 9, 10, 11, 12, 13
    vW = 14
    vR = 18
    vFw, vFr, vFo = 22, 23, 24
    vSt = 25
    SCR = 4 * RS
    tsb = 5 if p3 else 11
    k('s_load_dwordx2 s[10:11], s[0:1], %d' % (0 if p3 else 56))
    if not p3:
        k('s_load_dwordx2 s[12:13], s[0:1], 48')
    k('''s_and_b32 s20, s2, 7
    s_lshl_b32 s20, s20, 2
    s_bfe_u32 s22, s2, 0x20003
    s_add_u32 s20, s20, s22
    s_lshr_b32 s21, s2, 5''')
    lanes(k)
    if p3:
        k('s_lshl_b32 s29, s22, 6')
        k('s_lshl_b32 s23, s3, 4')
    else:
        k('s_lshl_b32 s29, s22, 5')
        k('s_lshl_b32 s23, s3, 3')
    k('s_add_u32 s29, s29, s23')
    k('s_add_u32 s29, s29, s8')
    k('s_add_u32 s29, s29, %d' % (F2 if p3 else F4))
    if p3:
        k('''s_lshl_b32 s40, s22, 2
        s_add_u32 s40, s40, s3
        s_lshl_b32 s40, s40, 3
        s_add_u32 s40, s40, s21
        s_add_u32 s40, s40, s8
        s_add_u32 s40, s40, %d''' % F3)
    k('s_mul_i32 s23, s20, %d' % (2 * KT * 1024))
    k('s_mul_i32 s24, s3, %d' % (NS * 1024))
    k('s_add_u32 s23, s23, s24')
    k('s_add_u32 s23, s23, 0x%x' % wsA)
    k('v_lshlrev_b32 v4, 4, v1')
    k('v_add_u32 v%d, s23, v4' % vA0)
    k('v_add_u32 v%d, %d, v%d' % (vA1, KT * 1024, vA0))
    k('s_lshl_b32 s24, s21, 7')
    if not p3:
        gemm_bd(k, vBd, 4, 5, 24)
        k('s_mul_i32 s25, s3, %d' % (NS * 16 * 1024))
    k('s_lshl_b32 s26, s3, %d' % (14 if p3 else 11))
    k('''v_lshrrev_b32 v4, 1, v3
    v_lshlrev_b32 v4, 10, v4
    v_lshrrev_b32 v5, 2, v2
    v_lshl_add_u32 v4, v5, 6, v4
    v_and_b32 v5, 1, v3
    v_lshl_add_u32 v4, v5, 5, v4
    v_and_b32 v5, 3, v2
    v_lshl_add_u32 v4, v5, 3, v4
    v_add_u32 v%d, s26, v4''' % vBr)
    if not p3:
        k('v_add_u32 v%d, 0x10000, v%d' % (vFw, vBr))
        k('v_add_u32 v%d, 0x20000, v%d' % (vFr, vBr))
    k('v_and_b32 v4, 31, v1')
    if p3:
        k('v_lshlrev_b32 v5, 8, v4')
    else:
        k('v_lshrrev_b32 v5, 3, v4')
        k('v_lshlrev_b32 v5, 13, v5')
        k('v_and_b32 v6, 7, v4')
        k('v_lshl_add_u32 v5, v6, 8, v5')
    k('v_add_u32 v5, s26, v5')
    k('v_and_b32 v4, 7, v4')
    k('v_lshrrev_b32 v6, 5, v1')
    k('v_xor_b32 v4, v4, v6')
    for q in range(4):
        k('v_xor_b32 v6, %d, v4' % (q * 2))
        k('v_lshl_add_u32 v%d, v6, 4, v5' % (vW + q))
    k('s_lshl_b32 s27, s3, %d' % (12 if p3 else 14))
    k('v_lshrrev_b32 v4, 3, v1')
    k('v_lshlrev_b32 v5, 8, v4')
    k('v_add_u32 v5, s27, v5')
    k('v_and_b32 v6, 7, v1')
    k('v_lshlrev_b32 v6, 1, v6')
    k('v_xor_b32 v6, v6, v4')
    k('v_lshl_add_u32 v%d, v6, 4, v5' % vR)
    k('v_xor_b32 v6, 1, v6')
    k('v_lshl_add_u32 v%d, v6, 4, v5' % (vR + 1))
    k('''s_lshl_b32 s27, s3, 4
    s_lshl_b32 s28, s20, 6
    s_add_u32 s27, s27, s28
    s_lshl_b32 s27, s27, 10
    s_add_u32 s27, s27, s24
    v_lshlrev_b32 v5, 10, v4
    v_and_b32 v6, 7, v1
    v_lshl_add_u32 v5, v6, 4, v5
    v_add_u32 v4, s27, v5''')
    k('v_add_u32 v%d, 0x%x, v4' % (vOut, WS_H if p3 else 0))
    k('v_add_u32 v%d, 0x%x, v4' % (vRes, 0 if p3 else WS_H))
    k('s_mov_b32 s41, 8192')
    if p3:
        k('''s_lshl_b32 s27, s3, 11
        v_lshrrev_b32 v4, 3, v1
        v_and_b32 v5, 3, v1
        v_lshl_add_u32 v4, v5, 4, v4
        v_lshlrev_b32 v4, 4, v4
        v_bfe_u32 v5, v1, 2, 1
        v_lshl_add_u32 v4, v5, 10, v4
        v_add_u32 v4, s27, v4''')
        k('v_add_u32 v%d, %d, v4' % (vFw, SCR))
        k('v_lshlrev_b32 v4, 4, v1')
        k('v_add_u32 v5, s27, v4')
        k('v_add_u32 v%d, %d, v5' % (vFr, SCR))
        k('''s_lshl_b32 s27, s20, 2
        s_add_u32 s27, s27, s3
        s_lshl_b32 s27, s27, 4
        s_lshl_b32 s28, s21, 1
        s_add_u32 s27, s27, s28
        s_lshl_b32 s27, s27, 10''')
        k('s_add_u32 s27, s27, 0x%x' % WS_HF)
        k('v_add_u32 v%d, s27, v4' % vFo)
        k('''s_lshl_b32 s27, s20, 2
        s_add_u32 s27, s27, s3
        s_lshl_b32 s27, s27, 10
        s_lshl_b32 s28, s21, 3
        s_add_u32 s27, s27, s28
        v_lshrrev_b32 v4, 3, v1
        v_lshlrev_b32 v4, 6, v4''')
        k('s_add_u32 s27, s27, 0x%x' % WS_ST)
        k('v_add_u32 v%d, s27, v4' % vSt)
        k('s_mov_b32 s44, 0x3f803f80')
        k('s_mov_b32 s42, 0x01010101')
        k('s_mov_b32 s43, 0x01010101')
    k('s_waitcnt lgkmcnt(0)')
    make_srd(k, 16, 10, 11, 2048 * 512 * 2)
    if not p3:
        k('s_mov_b32 s14, 0x%x' % WSZ)
        k('s_mov_b32 s15, 0x00020000')
        yield 'pre'
    rsrd, osrd = (16, 4) if p3 else (4, 16)
    poll(k, L + '_poll', 29, 4 if p3 else 2)
    if not p3 and ENV('X5S'):
        for _ in range(int(ENV('X5S'))):
            k('s_sleep 64')
    k.ts(tsb)
    q = Q(k)

    def aloads(s):
        slot = s % NR
        k('s_mov_b32 s30, %d' % (s * 1024 if p3 or not ENV('X5A') else (s % int(ENV('X5A'))) * 1024))
        for mi in range(2):
            q.issue('buffer_load_dwordx4 %s, v%d, s[4:7], s30 offen%s' % (vr(AR + slot * 8 + mi * 4, 4), vA0 + mi, DSC), ('A', s))

    def reads(s):
        p = s & 1
        if p3:
            base, va = s * 2048, vBr
        else:
            a = ((s + 3) % 18) * 8192
            va = (vBr, vFw, vFr)[a >> 16]
            base = a & 0xffff
        for nb in range(2):
            for sec in range(2):
                k('ds_read_b64_tr_b16 %s, v%d offset:%d' % (
                    vr(BFR + p * 8 + nb * 4 + sec * 2, 2), va, base + sec * 512 + nb * 256))

    issued = 0
    for s in range(PF):
        aloads(s)
        issued += 1
    for j in range(2):
        q.issue('buffer_load_dwordx4 %s, v%d, s[%d:%d], %s offen%s' % (
            vr(RES + 4 * j, 4), vRes, rsrd, rsrd + 3, 's41' if j else '0', '' if p3 else DSC), ('R', j))
    reads(0)
    TS5 = {} if p3 or not ENV('TS5') else {0: 3, 3: 4, 7: 5, 12: 6, 17: 7, 22: 8}
    if TS5:
        k.ts2(2)
    for s in range(NS):
        p = s & 1
        if s + 1 < NS:
            if ('B', s + 1) in q.at:
                q.wait(('B', s + 1))
            reads(s + 1)
            k('s_waitcnt lgkmcnt(4)')
        else:
            k('s_waitcnt lgkmcnt(0)')
        q.wait(('A', s))
        if s in TS5:
            k.ts2(TS5[s])
        slot = s % NR
        for mi in range(2):
            for nb in range(2):
                acc = vr(ACC + (mi * 2 + nb) * 16, 16)
                k('v_mfma_f32_32x32x16_bf16 %s, %s, %s, %s' % (
                    acc, vr(BFR + p * 8 + nb * 4, 4), vr(AR + slot * 8 + mi * 4, 4), '0' if s == 0 else acc))
        if issued < NS:
            aloads(issued)
            issued += 1
        if not p3 and s + 18 < NS and not ENV('X5B'):
            p5_bstep(k, s + 18, vBd, 25, 26, 12, q)
    k.ts(tsb + 1)
    for t in range(4):
        for qq in range(4):
            k('ds_write_b128 v%d, %s offset:%d' % (vW + qq, vr(ACC + t * 16 + qq * 4, 4),
                                                   (t >> 1) * (8192 if p3 else 32768) + (t & 1) * 128))
    k('s_waitcnt lgkmcnt(0)')
    k('s_barrier')
    for j in range(2):
        for src in range(4):
            for e in range(2):
                off = (src * RS + j * 2048) if p3 else (src * 2048 + j * 8192)
                k('ds_read_b128 %s, v%d offset:%d' % (vr(ACC + (j * 4 + src) * 8 + e * 4, 4), vR + e, off))
    for j in range(2):
        b = ACC + j * 32
        k('s_waitcnt lgkmcnt(%d)' % (12 - 8 * j))
        for i in range(8):
            k('v_add_f32 v%d, v%d, v%d' % (b + i, b + i, b + 8 + i))
        k('s_waitcnt lgkmcnt(%d)' % (8 - 8 * j))
        for i in range(8):
            k('v_add_f32 v%d, v%d, v%d' % (b + 16 + i, b + 16 + i, b + 24 + i))
        for i in range(8):
            k('v_add_f32 v%d, v%d, v%d' % (b + i, b + i, b + 16 + i))
        if j == 0:
            k('s_waitcnt vmcnt(0)')
        for i in range(4):
            k('v_cvt_pk_bf16_f32 v%d, v%d, v%d' % (T + 4, b + 2 * i, b + 2 * i + 1))
            k('v_lshlrev_b32 v%d, 16, v%d' % (T, T + 4))
            k('v_and_b32 v%d, 0xffff0000, v%d' % (T + 1, T + 4))
            k('v_lshlrev_b32 v%d, 16, v%d' % (T + 2, RES + 4 * j + i))
            k('v_and_b32 v%d, 0xffff0000, v%d' % (T + 3, RES + 4 * j + i))
            k('v_add_f32 v%d, v%d, v%d' % (T, T, T + 2))
            k('v_add_f32 v%d, v%d, v%d' % (T + 1, T + 1, T + 3))
            k('v_cvt_pk_bf16_f32 v%d, v%d, v%d' % (T + 8 + 4 * j + i, T, T + 1))
        k('buffer_store_dwordx4 %s, v%d, s[%d:%d], %s offen%s' % (vr(T + 8 + 4 * j, 4), vOut, osrd, osrd + 3, 's41' if j else '0', HSC if p3 else ''))
        if p3:
            k('ds_write_b128 v%d, %s offset:%d' % (vFw, vr(T + 8 + 4 * j, 4), j * 128))
            for i in range(4):
                d = T + 8 + 4 * j + i
                k('v_dot2_f32_bf16 v%d, v%d, s44, %s' % (BFR + 2 * j, d, 'v%d' % (BFR + 2 * j) if i else '0'))
                k('v_dot2_f32_bf16 v%d, v%d, v%d, %s' % (BFR + 2 * j + 1, d, d, 'v%d' % (BFR + 2 * j + 1) if i else '0'))
    if p3:
        k('s_waitcnt lgkmcnt(0)')
        for j in range(2):
            k('ds_read_b128 %s, v%d offset:%d' % (vr(ACC + 4 * j, 4), vFr, j * 1024))
        DP = ' row_mask:0xf bank_mask:0xf'
        for m in ('quad_perm:[1,0,3,2]', 'quad_perm:[2,3,0,1]', 'row_half_mirror'):
            for i in range(4):
                k('v_add_f32_dpp v%d, v%d, v%d %s%s' % (BFR + i, BFR + i, BFR + i, m, DP))
        k('s_mov_b64 exec, s[42:43]')
        for j in range(2):
            k('buffer_store_dwordx2 %s, v%d, s[4:7], 0 offen offset:%d%s' % (vr(BFR + 2 * j, 2), vSt, j * 512, SSC))
        k('s_mov_b64 exec, -1')
        for j in range(2):
            k('s_waitcnt lgkmcnt(%d)' % (1 - j))
            k('buffer_store_dwordx4 %s, v%d, s[4:7], 0 offen offset:%d%s' % (vr(ACC + 4 * j, 4), vFo, j * 1024, FSC))
    yield 'end'


def cs_sum(k, mid=None, nmid=0):
    k('''s_lshr_b32 s10, s2, 4
    s_mul_i32 s10, s10, 448
    s_bfe_u32 s11, s3, 0x10001
    s_mul_i32 s30, s11, 7168
    s_add_u32 s10, s10, s30
    s_add_u32 s10, s10, 0x%x
    s_mul_i32 s11, s11, 448
    s_add_u32 s11, s11, %d
    v_and_b32 v4, 31, v1
    v_lshlrev_b32 v4, 4, v4
    v_add_u32 v6, s11, v4
    v_lshrrev_b32 v5, 5, v1
    v_mul_u32_u24 v5, %d, v5
    v_add_u32 v4, v4, v5''' % (WS_CS2, CSB, 8 * 14336))
    for p in range(8):
        k('s_add_u32 s30, s10, %d' % (p * 14336))
        k('buffer_load_dwordx4 %s, v4, s[4:7], s30 offen' % vr(32 + p * 4, 4))
    if mid:
        mid()
    for p in range(1, 8):
        k('s_waitcnt vmcnt(%d)' % (7 - p + nmid))
        for i in range(4):
            k('v_add_f32 v%d, v%d, v%d' % (32 + i, 32 + i, 32 + p * 4 + i))
    for i in range(4):
        k('v_mov_b32 v%d, v%d' % (36 + i, 32 + i))
    for i in range(4):
        k('v_permlane32_swap_b32 v%d, v%d' % (32 + i, 36 + i))
    for i in range(4):
        k('v_add_f32 v%d, v%d, v%d' % (32 + i, 32 + i, 36 + i))
    k('s_mov_b64 exec, 0x0fffffff')
    k('ds_write_b128 v6, v[32:35]')
    k('s_mov_b64 exec, -1')


def p4_loader(k):
    vA, vBd, vB5, vG = 8, 16, 17, 18
    RAMP = int(ENV('RAMP', '2'))
    k.label('J_LD4')
    k('s_and_b32 s22, s3, 3')
    k('''s_cmp_lt_u32 s22, 2
    s_cselect_b32 s10, 32, 40
    s_load_dwordx2 s[16:17], s[0:1], s10
    s_load_dwordx2 s[12:13], s[0:1], 48''')
    k('v_and_b32 v1, 63, v0')
    k('''s_and_b32 s20, s2, 7
    s_lshl_b32 s20, s20, 1
    s_bfe_u32 s21, s2, 0x10003
    s_add_u32 s20, s20, s21
    s_lshl_b32 s23, s20, 17
    s_lshl_b32 s24, s22, 15
    s_add_u32 s23, s23, s24
    s_add_u32 s23, s23, 0x%x
    v_lshlrev_b32 v4, 4, v1
    v_add_u32 v%d, s23, v4''' % (WS_HF, vA))
    k('''s_lshl_b32 s29, s21, 6
    s_lshl_b32 s24, s22, 4
    s_add_u32 s29, s29, s24
    s_add_u32 s29, s29, s8
    s_add_u32 s29, s29, %d''' % F3)
    for i in range(1, 8):
        k('s_mov_b32 s%d, %d' % (47 + i, i * 4096))
    p4_bsetup(k, vBd, 4, 5, 26, 27)
    k('s_lshl_b32 s28, s22, 11')
    k('s_lshr_b32 s10, s2, 5')
    k('s_lshl_b32 s10, s10, 7')
    gemm_bd(k, vB5, 4, 5, 10)
    k('s_mul_i32 s25, s22, %d' % (28 * 16 * 1024))
    k('v_lshlrev_b32 v%d, 10, v1' % vG)
    k('s_mov_b32 s40, 0x%x' % (WS_FL + GST))
    k('s_waitcnt lgkmcnt(0)')
    k('s_mov_b32 s18, 0x%x' % WSZ)
    k('s_mov_b32 s19, 0x00020000')
    k('s_mov_b32 s14, 0x%x' % WSZ)
    k('s_mov_b32 s15, 0x00020000')
    poll(k, 'LD4_poll', 29, 4)
    k.ts(8)
    q = Q(k)

    def astage(ks):
        sl = ((ks + 3) % NSL) * SLOT
        for mf in range(2):
            o_ = (mf * 16 + ks) * 1024
            k('s_add_u32 m0, s28, %d' % (sl + 16384 + mf * 1024 - o_ % 4096))
            q.issue('buffer_load_dwordx4 v%d, s[4:7], %s offen offset:%d%s lds' % (
                vA, ('s%d' % (47 + o_ // 4096)) if o_ >= 4096 else '0', o_ % 4096, DSC), ('S', ks))

    def stage(ks):
        astage(ks)
        if ks >= 3:
            p4_bstage(k, ks, vBd, 26, 27, 16, q)
            q.at[('S', ks)] = q.n

    issued = 0
    for ks in range(3):
        stage(ks)
        issued += 1
    for ks in range(16):
        q.wait(('S', ks))
        if ENV('TS4') and ks in (2, 4, 6, 8, 10, 12):
            k.ts2(1 + ks // 2)
        k('s_barrier')
        for _ in range(RAMP):
            if issued < 16 and issued <= ks + NSL - 1:
                stage(issued)
                issued += 1
        if ks == 8:
            k('s_mov_b64 exec, 0xff')
            q.issue('buffer_load_dword v%d, v%d, s[4:7], s40 offen sc1' % (vG + 1, vG), 'G')
            k('s_mov_b64 exec, -1')
        if ks >= 11 and not ENV('X5P'):
            for s in range((ks - 11) * 3, (ks - 11) * 3 + 3):
                p5_bstep(k, s, vB5, 25, 28, 12, q)
    k('s_barrier')
    k('s_cmp_lg_u32 s100, 0')
    k('s_cbranch_scc1 J_SLOW_next')
    for s in range(15, 18):
        p5_bstep(k, s, vB5, 25, 28, 12, q)
    q.wait('G')
    k('s_mov_b64 exec, 0xff')
    k('v_cmp_eq_u32 vcc, 0, v%d' % (vG + 1))
    k('s_mov_b64 exec, -1')
    k('v_mov_b32 v5, 0x%x' % DEC)
    k('s_and_b32 s10, vcc_lo, 0xff')
    k('v_mov_b32 v4, s10')
    k('s_cmp_lg_u32 s3, 4')
    k('s_cbranch_scc1 LD4_nw')
    k('ds_write_b32 v5, v4 offset:4')
    k.label('LD4_nw')
    k('s_waitcnt vmcnt(0) lgkmcnt(0)')
    k.ts(9)
    k('s_barrier')
    k('ds_read_b32 v4, v5 offset:4')
    k('s_waitcnt lgkmcnt(0)')
    k('v_readfirstlane_b32 s10, v4')
    k('s_cmp_lg_u32 s10, 0')
    k('s_cbranch_scc1 LD4_steal')
    prof_end(k)
    k('s_endpgm')
    k.label('LD4_steal')
    k('s_barrier')
    k('s_branch J_SLOW_end')


def p4_comp(k):
    SS = 18
    vM, vC, vI = 26, 28, 30
    AF = 32
    BF = 48
    ACC = 104
    T = 216
    E = 224
    CS = BF
    vSt = 9
    vRd = 10
    vRa = 14
    vCs = 17
    vS2 = 16
    k.label('J_P4')
    lanes(k)
    k('''s_and_b32 s20, s2, 7
    s_lshl_b32 s20, s20, 1
    s_bfe_u32 s22, s2, 0x10003
    s_add_u32 s20, s20, s22
    s_lshr_b32 s21, s2, 4''')
    k('''s_lshl_b32 s40, s22, 1
    s_lshr_b32 s23, s3, 1
    s_add_u32 s40, s40, s23
    s_lshl_b32 s40, s40, 4
    s_add_u32 s40, s40, s21
    s_lshl_b32 s40, s40, 1
    s_and_b32 s23, s3, 1
    s_add_u32 s40, s40, s23
    s_add_u32 s40, s40, s8
    s_add_u32 s40, s40, %d''' % F4)
    k('''v_lshlrev_b32 v4, 3, v3
    v_lshrrev_b32 v5, 2, v2
    v_add_u32 v4, v4, v5
    v_lshlrev_b32 v4, 6, v4
    v_and_b32 v5, 3, v2
    v_lshl_add_u32 v4, v5, 3, v4
    s_and_b32 s30, s21, 1
    v_and_b32 v5, 1, v3
    v_xor_b32 v5, s30, v5
    v_lshl_add_u32 v%d, v5, 5, v4
    v_xor_b32 v5, 1, v5
    v_lshl_add_u32 v4, v5, 5, v4
    s_lshl_b32 s30, s30, 11
    v_add_u32 v%d, s30, v4''' % (vRd, vRd + 1))
    for par in range(2):
        k('v_add_u32 v%d, %d, v%d' % (vRd + 2 + par, 3 * SLOT, vRd + par))
    k('s_lshl_b32 s28, s3, 11')
    k('s_add_u32 s28, s28, 16384')
    k('v_lshlrev_b32 v4, 4, v1')
    k('v_add_u32 v%d, s28, v4' % vRa)
    k('v_add_u32 v%d, %d, v%d' % (vRa + 1, 3 * SLOT, vRa))
    k('''v_lshrrev_b32 v4, 1, v3
    v_lshlrev_b32 v4, 5, v4
    v_add_u32 v4, v4, v2
    v_lshlrev_b32 v4, 4, v4
    v_and_b32 v5, 1, v3
    v_lshl_add_u32 v%d, v5, 3, v4''' % vSt)
    k('''s_lshl_b32 s25, s20, 2
    s_add_u32 s25, s25, s3
    s_mul_i32 s25, s25, 112
    s_mul_i32 s30, s21, 7
    s_add_u32 s25, s25, s30
    s_lshl_b32 s25, s25, 10
    s_add_u32 s25, s25, 0x%x''' % WS_HH)
    k('v_lshlrev_b32 v8, 7, v1')
    k('v_lshlrev_b32 v4, 4, v3')
    k('v_add_u32 v%d, 0x%x, v4' % (vCs, CSB))
    k('''s_lshl_b32 s30, s20, 2
    s_add_u32 s30, s30, s3
    s_lshl_b32 s30, s30, 11
    s_add_u32 s30, s30, 0x%x
    v_lshl_add_u32 v4, v2, 6, v4
    v_add_u32 v%d, s30, v4''' % (WS_ST, vS2))
    yield 'pre'

    def areg(ks, mf):
        return AF + ((ks & 1) * 2 + mf) * 4

    def reads(hs):
        ks, mx = hs >> 1, hs & 1
        slot = (ks + 3) % NSL
        out = []
        if mx == 0:
            for mf in range(2):
                out.append('ds_read_b128 %s, v%d offset:%d' % (vr(areg(ks, mf), 4), vRa + slot // 3, (slot % 3) * SLOT + mf * 1024))
        for nf in range(7):
            for kgl in range(2):
                out.append('ds_read_b64_tr_b16 %s, v%d offset:%d' % (
                    vr(BF + mx * 28 + nf * 4 + kgl * 2, 2), vRd + (slot // 3) * 2 + (nf & 1),
                    (slot % 3) * SLOT + mx * 8192 + (nf >> 1) * 2048 + kgl * 256))
        return out

    class Lst:
        def __init__(self):
            self.l = []

        def __call__(self, x):
            self.l.append(x)

    k('s_barrier')
    k.ts(8)
    for o in reads(0):
        k(o)
    for mf in range(2):
        k('buffer_load_dwordx4 %s, v%d, s[4:7], 0 offen offset:%d%s' % (vr(SS + mf * 4, 4), vS2, mf * 1024, DSC))
    SF = Lst()
    stats_fin(SF, SS, T, vM, vC, vI)
    no = []
    for hs in range(32):
        ks, mx = hs >> 1, hs & 1
        k('s_waitcnt lgkmcnt(0)')
        if ENV('TS4') == '2' and mx == 1 and ks in (1, 3, 5, 7, 9, 11):
            k.ts2(2 + ks // 2)
        if mx == 1 and ks + 1 < 16:
            k('s_barrier')
        if ENV('TS4') == '1' and mx == 1 and ks in (1, 3, 5, 7, 9, 11):
            k.ts2(2 + ks // 2)
        rd = reads(hs + 1) if hs + 1 < 32 else []
        if hs == 8:
            k('s_waitcnt vmcnt(0)')
            no = SF.l
        if PRE and PREG and hs == HPF:
            k('s_mov_b32 exec_hi, 0x00ffffff')
            k('buffer_load_dword v7, v8, s[4:7], s25 offen')
            k('s_mov_b32 exec_hi, -1')
        for nf in range(7):
            for mf in range(2):
                acc = vr(ACC + (mf * 14 + mx * 7 + nf) * 4, 4)
                a = vr(areg(ks, mf), 4)
                b = vr(BF + mx * 28 + nf * 4, 4)
                k('v_mfma_f32_16x16x32_bf16 %s, %s, %s, %s' % (acc, b, a, '0' if ks == 0 else acc))
                for _ in range(2):
                    if rd:
                        k(rd.pop(0))
                if no and not rd:
                    k(no.pop(0))
                    if no:
                        k(no.pop(0))
        for o in rd:
            k(o)
    assert not no
    k.ts(9)
    k('s_waitcnt vmcnt(0)')
    k('s_barrier')
    for mx in range(2):
        for nf in range(7):
            k('ds_read_b128 %s, v%d offset:%d' % (vr(CS + (mx * 7 + nf) * 4, 4), vCs, mx * 448 + nf * 64))
    k('s_waitcnt lgkmcnt(0)')
    n = 0
    for nf in range(7):
        k('s_add_u32 s29, s25, %d' % (nf * 1024))
        for mf in range(2):
            e = E + (n & 3) * 8
            n += 1
            G = ACC + (mf * 14 + nf) * 4
            U = ACC + (mf * 14 + 7 + nf) * 4
            sel = 'op_sel:[0,%d,0] op_sel_hi:[1,%d,1]' % (mf, mf)
            sel2 = 'op_sel:[0,%d] op_sel_hi:[1,%d]' % (mf, mf)
            sel3 = 'op_sel:[0,%d,%d] op_sel_hi:[1,%d,%d]' % (mf, mf, mf, mf)
            for h in range(2):
                k('v_pk_fma_f32 %s, %s, %s, %s %s neg_lo:[0,1,0] neg_hi:[0,1,0]' % (
                    vr(G + 2 * h, 2), vr(CS + nf * 4 + 2 * h, 2), vr(vM, 2), vr(G + 2 * h, 2), sel))
            for h in range(2):
                k('v_pk_mul_f32 %s, %s, %s %s' % (vr(e + 2 * h, 2), vr(G + 2 * h, 2), vr(vC, 2), sel2))
            for r in range(4):
                k('v_exp_f32 v%d, v%d' % (e + r, e + r))
            for h in range(2):
                k('v_pk_fma_f32 %s, %s, %s, %s %s neg_lo:[0,1,0] neg_hi:[0,1,0]' % (
                    vr(U + 2 * h, 2), vr(CS + (7 + nf) * 4 + 2 * h, 2), vr(vM, 2), vr(U + 2 * h, 2), sel))
            for h in range(2):
                k('v_pk_fma_f32 %s, %s, %s, %s %s' % (vr(e + 2 * h, 2), vr(e + 2 * h, 2), vr(vI, 2), vr(vI, 2), sel3))
            for r in range(4):
                k('v_rcp_f32 v%d, v%d' % (e + r, e + r))
            for h in range(2):
                k('v_pk_mul_f32 %s, %s, %s' % (vr(G + 2 * h, 2), vr(G + 2 * h, 2), vr(U + 2 * h, 2)))
            for h in range(2):
                k('v_pk_mul_f32 %s, %s, %s' % (vr(G + 2 * h, 2), vr(G + 2 * h, 2), vr(e + 2 * h, 2)))
            k('v_cvt_pk_bf16_f32 v%d, v%d, v%d' % (e + 4, G, G + 1))
            k('v_cvt_pk_bf16_f32 v%d, v%d, v%d' % (e + 5, G + 2, G + 3))
            k('buffer_store_dwordx2 %s, v%d, s[4:7], s29 offen offset:%d%s' % (vr(e + 4, 2), vSt, mf * 256, GSC))
    yield 'end'


def prof_end(k):
    if not PROF:
        return
    k('s_waitcnt vmcnt(0)')
    k.ts(14)
    k.ts(15, True)
    k('s_waitcnt lgkmcnt(0)')
    k('s_lshl_b32 s99, s2, 3')
    k('s_add_u32 s99, s99, s3')
    k('s_lshl_b32 s99, s99, 7')
    k('s_add_u32 s99, s99, 0x%x' % (PROF_BASE + 0x40000))
    k('v_mov_b32 v4, 0')
    for i in range(16):
        k('v_mov_b32 v2, s%d' % (64 + 2 * i))
        k('v_mov_b32 v3, s%d' % (65 + 2 * i))
        k('buffer_store_dwordx2 v[2:3], v4, s[4:7], s99 offen offset:%d' % (8 * i))
        k('s_nop 1')


def bcast_read(k, off):
    k('v_mov_b32 v5, 0x%x' % DEC)
    k('s_barrier')
    k('ds_read_b32 v4, v5 offset:%d' % off)
    k('s_waitcnt lgkmcnt(0)')
    k('v_readfirstlane_b32 s10, v4')


def slow(k):
    k.label('J_SLOW_start')
    k('s_lshr_b32 s11, s2, 3')
    k('s_lshl_b32 s9, 1, s11')
    k('s_bitcmp1_b32 s10, 0')
    k('s_cselect_b32 s9, 0, s9')
    k('s_mov_b32 s100, 1')
    k('s_mov_b32 s97, %d' % PATIENCE)
    k.label('J_SLOW_claim')
    k('s_waitcnt vmcnt(0) lgkmcnt(0)')
    k('s_barrier')
    k('s_cmp_lg_u32 s3, 0')
    k('s_cbranch_scc1 SL_c9')
    k('s_mov_b64 exec, 1')
    k('s_mov_b32 s30, 0')
    k('s_mov_b32 s31, 0')
    k.label('J_SL_c1')
    k('v_mov_b32 v4, 0')
    k('buffer_atomic_or v4, off, s[4:7], s8 sc0')
    k('s_add_u32 s31, s31, 1')
    k('s_waitcnt vmcnt(0)')
    k('v_readfirstlane_b32 s10, v4')
    k('s_mov_b32 s11, -1')
    k('s_cmp_eq_u32 s10, -1')
    k('s_cbranch_scc1 SL_c8')
    k('s_cmp_gt_u32 s31, 4096')
    k('s_cbranch_scc1 SL_c8')
    k('s_cmp_eq_u32 s9, 0')
    k('s_cbranch_scc1 SL_c2')
    k('s_cmp_ge_u32 s30, s97')
    k('s_cbranch_scc1 SL_c2')
    k('s_add_u32 s30, s30, 1')
    k('s_sleep 16')
    k('s_branch J_SL_c1')
    k.label('SL_c2')
    k('s_ff0_i32_b32 s11, s10')
    k('s_lshl_b32 s10, 1, s11')
    k('v_mov_b32 v4, s10')
    k('buffer_atomic_or v4, off, s[4:7], s8 sc0')
    k('s_waitcnt vmcnt(0)')
    k('v_readfirstlane_b32 s12, v4')
    k('s_and_b32 s12, s12, s10')
    k('s_cmp_lg_u32 s12, 0')
    k('s_cbranch_scc1 J_SL_c1')
    k.label('SL_c8')
    k('v_mov_b32 v4, s11')
    k('v_mov_b32 v5, 0x%x' % DEC)
    k('ds_write_b32 v5, v4 offset:8')
    k('s_mov_b64 exec, -1')
    k('s_waitcnt lgkmcnt(0)')
    k.label('SL_c9')
    bcast_read(k, 8)
    k('s_cmp_eq_u32 s10, -1')
    k('s_cbranch_scc1 SL_ph')
    k('s_and_b32 s10, s10, 31')
    k('s_lshl_b32 s11, 1, s10')
    k('s_or_b32 s9, s9, s11')
    k('s_and_b32 s2, s2, 7')
    k('s_lshl_b32 s10, s10, 3')
    k('s_or_b32 s2, s2, s10')
    k('s_branch J_P2')
    k.label('SL_ph')
    k('s_mov_b32 s100, 3')
    k('s_mov_b32 s101, s9')
    k.label('J_SLOW_next')
    k('s_waitcnt vmcnt(0) lgkmcnt(0)')
    k('s_barrier')
    k('s_cmp_lg_u32 s101, 0')
    k('s_cbranch_scc1 SL_n1')
    k('s_add_u32 s100, s100, 1')
    k('s_mov_b32 s101, s9')
    k('s_cmp_gt_u32 s100, 5')
    k('s_cbranch_scc1 J_SLOW_end')
    k('s_branch J_SLOW_next')
    k.label('SL_n1')
    k('s_ff1_i32_b32 s10, s101')
    k('s_bitset0_b32 s101, s10')
    k('s_and_b32 s2, s2, 7')
    k('s_lshl_b32 s10, s10, 3')
    k('s_or_b32 s2, s2, s10')
    k('v_and_b32 v1, 63, v0')
    k('s_cmp_ge_u32 s3, 4')
    k('s_cbranch_scc1 SL_ld')
    k('s_cmp_eq_u32 s100, 4')
    k('s_cbranch_scc1 J_P4')
    k('s_cmp_eq_u32 s100, 5')
    k('s_cbranch_scc1 J_P5')
    k('s_load_dwordx2 s[12:13], s[0:1], 16')
    k('s_mov_b32 s14, 0x80000')
    k('s_mov_b32 s15, 0x00020000')
    k('s_waitcnt lgkmcnt(0)')
    wo_dma(k, 8, 4, 5)
    k('s_waitcnt vmcnt(0)')
    k('s_branch J_P3')
    k.label('SL_ld')
    k('s_cmp_eq_u32 s100, 3')
    k('s_cbranch_scc1 SL_l3')
    k('s_cmp_eq_u32 s100, 5')
    k('s_cbranch_scc1 SL_l5')
    k('''s_cmp_lt_u32 s3, 6
    s_cselect_b32 s10, 32, 40
    s_load_dwordx2 s[12:13], s[0:1], s10
    s_mov_b32 s14, 0x%x
    s_mov_b32 s15, 0x00020000''' % WSZ)
    p4_bsetup(k, 8, 4, 5, 23, 24)
    k('s_waitcnt lgkmcnt(0)')
    for ks in range(3):
        p4_bstage(k, ks, 8, 23, 24, 12)
    cs_sum(k)
    k('s_waitcnt lgkmcnt(0)')
    k('s_branch J_LD4')
    k.label('SL_l5')
    k('s_load_dwordx2 s[12:13], s[0:1], 48')
    k('s_mov_b32 s14, 0x%x' % WSZ)
    k('s_mov_b32 s15, 0x00020000')
    k('s_lshr_b32 s10, s2, 5')
    k('s_lshl_b32 s10, s10, 7')
    gemm_bd(k, 8, 4, 5, 10)
    k('s_and_b32 s22, s3, 3')
    k('s_mul_i32 s25, s22, %d' % (28 * 16 * 1024))
    k('s_lshl_b32 s28, s22, 11')
    k('s_waitcnt lgkmcnt(0)')
    for s in range(18):
        p5_bstep(k, s, 8, 25, 28, 12)
    k('s_waitcnt vmcnt(0)')
    k('s_barrier')
    k.label('SL_l3')
    k('s_barrier')
    k('s_branch J_SLOW_next')
    k.label('J_SLOW_end')
    k('s_waitcnt vmcnt(0) lgkmcnt(0)')
    k('s_barrier')
    k('s_cmp_lg_u32 s3, 0')
    k('s_cbranch_scc1 SL_e9')
    k('v_and_b32 v1, 63, v0')
    k('v_lshlrev_b32 v6, 10, v1')
    k('s_mov_b32 s11, 0x%x' % (WS_FL + GST))
    k('s_mov_b64 exec, 0xff')
    k('buffer_load_dword v4, v6, s[4:7], s11 offen sc1')
    k('s_waitcnt vmcnt(0)')
    k('v_cmp_eq_u32 vcc, 0, v4')
    k('s_mov_b64 exec, 1')
    k('s_and_b32 s10, vcc_lo, 0xff')
    k('s_ff1_i32_b32 s10, s10')
    k('s_cmp_eq_u32 s10, -1')
    k('s_cbranch_scc1 SL_e8')
    k('s_lshl_b32 s12, s10, 10')
    k('s_add_u32 s11, s11, s12')
    k('v_mov_b32 v4, 1')
    k('buffer_store_dword v4, off, s[4:7], s11 sc1')
    k('s_waitcnt vmcnt(0)')
    k.label('SL_e8')
    k('v_mov_b32 v4, s10')
    k('v_mov_b32 v5, 0x%x' % DEC)
    k('ds_write_b32 v5, v4 offset:12')
    k('s_mov_b64 exec, -1')
    k('s_waitcnt lgkmcnt(0)')
    k.label('SL_e9')
    bcast_read(k, 12)
    k('s_cmp_eq_u32 s10, -1')
    k('s_cbranch_scc1 KF_done')
    k('s_and_b32 s2, s10, 7')
    k('s_lshl_b32 s8, s98, 3')
    k('s_add_u32 s8, s8, s2')
    k('s_lshl_b32 s8, s8, 10')
    k('s_add_u32 s8, s8, 0x%x' % WS_FL)
    k('s_mov_b32 s9, 0')
    k('s_mov_b32 s100, 1')
    k('s_mov_b32 s97, 0')
    k('s_branch J_SLOW_claim')


def gen_kf():
    k = Kernel('kf')
    if ENV('TS5'):
        k.tsoff = set(range(2, 9))
    if ENV('TS4'):
        k.tsoff = set(range(2, 8))
    if TS2:
        k.tsoff = set(range(2, 11))
    k('s_cmp_ge_u32 s2, 256')
    k('s_cbranch_scc1 KF_done')
    k.ts(0, True)
    k.ts(1)
    k('s_load_dwordx2 s[4:5], s[0:1], 72')
    k('s_getreg_b32 s98, hwreg(HW_REG_XCC_ID, 0, 4)')
    FAKE = ENV('FAKEX', '')
    if FAKE == 'g0':
        gsrc = '0'
    else:
        gsrc = None
    k('v_lshrrev_b32 v1, 6, v0')
    k('v_readfirstlane_b32 s3, v1')
    if gsrc is None:
        k('s_and_b32 s10, s98, 7')
    else:
        k('s_mov_b32 s10, %s' % gsrc)
    k('''s_andn2_b32 s2, s2, 7
    s_or_b32 s2, s2, s10
    s_lshl_b32 s8, s98, 3
    s_add_u32 s8, s8, s10
    s_lshl_b32 s8, s8, 10
    s_add_u32 s8, s8, 0x%x
    s_lshl_b32 s10, s10, 10
    s_add_u32 s10, s10, 0x%x
    s_mov_b32 s100, 0
    s_mov_b32 s6, 0x%x
    s_mov_b32 s7, 0x00020000
    s_lshr_b32 s11, s2, 3
    s_lshl_b32 s11, 1, s11
    v_mov_b32 v252, s11
    v_mov_b32 v253, 1''' % (WS_FL, WS_FL + GST, WS_SIZE))
    if FAKE == 'drop':
        k('s_and_b32 s11, s2, 0x78')
        k('s_cmp_eq_u32 s11, 0x28')
        k('s_cbranch_scc1 KF_done')
    if P2V:
        k('s_mov_b32 s9, s10')
    else:
        k('s_waitcnt lgkmcnt(0)')
        k('s_cmp_lg_u32 s3, 0')
        k('s_cbranch_scc1 J_P2')
        k('s_mov_b64 exec, 1')
        k('buffer_atomic_or v252, off, s[4:7], s8 sc0')
        k('buffer_store_dword v253, off, s[4:7], s10 sc1')
        k('s_mov_b64 exec, -1')
    phase2(k)
    k('s_cmp_ge_u32 s3, 4')
    k('s_cbranch_scc1 J_LD3')
    k.label('J_P3')
    for _ in gemm(k, True):
        pass
    g4 = p4_comp(k)
    k('s_cmp_lg_u32 s100, 0')
    k('s_cbranch_scc0 P3_fast')
    setflag(k, 40, 4)
    k('s_branch J_SLOW_next')
    k.label('P3_fast')
    k('s_mov_b32 s41, s40')
    next(g4)
    k('s_cmp_lg_u32 s100, 0')
    k('s_cbranch_scc1 P4_go')
    setflag(k, 41, 4)
    k.ts(7)
    k.label('P4_go')
    next(g4)
    g5 = gemm(k, False)
    k('s_cmp_lg_u32 s100, 0')
    k('s_cbranch_scc0 J_P5')
    setflag(k, 40, 4)
    k('s_branch J_SLOW_next')
    k.label('J_P5')
    next(g5)
    k('s_cmp_lg_u32 s100, 0')
    k('s_cbranch_scc1 P5_go')
    setflag(k, 40, 4)
    k.ts(10)
    k.label('P5_go')
    k('v_mov_b32 v5, 0x%x' % DEC)
    k('s_barrier')
    k('ds_read_b32 v4, v5 offset:4')
    k('s_waitcnt lgkmcnt(0)')
    k('v_readfirstlane_b32 s96, v4')
    next(g5)
    k.ts(13)
    k('s_cmp_lg_u32 s100, 0')
    k('s_cbranch_scc1 J_SLOW_next')
    k('s_cmp_lg_u32 s96, 0')
    k('s_cbranch_scc1 J_SLOW_end')
    prof_end(k)
    k.label('KF_done')
    k('s_endpgm')
    k.label('J_LD3')
    k('v_and_b32 v1, 63, v0')
    if P2V == 2:
        k('''s_cmp_lt_u32 s3, 6
        s_cselect_b32 s10, 32, 40
        s_load_dwordx2 s[12:13], s[0:1], s10
        s_mov_b32 s14, 0x%x''' % WSZ)
        p4_bsetup(k, 8, 4, 5, 23, 24)

        def mid():
            k('s_waitcnt lgkmcnt(0)')
            for ks in range(3):
                p4_bstage(k, ks, 8, 23, 24, 12)
        cs_sum(k, mid, 12)
    else:
        cs_sum(k)
    if PRE and NPF3:
        l2pf(k, NPF3, 40, NPF3)
    k('s_waitcnt lgkmcnt(0)')
    k('s_barrier')
    k.ts(5)
    p4_loader(k)
    slow(k)
    k.label('KF_END')
    k('s_endpgm')
    return k, dict(vgpr=256, agpr=0, lds=LDS_SIZE, grid=256, block=512)
```

```python
from asmlib import Kernel, PROF, PROF_BASE
from k1 import vr, sr, make_srd, WS_Q, WS_K, WS_VT, WS_O, WS_H, WS_HF, WS_HH, WS_ST, WS_CS2, WS_FL, WS_SIZE
from k4 import stats_fin
import struct, os


def f32hex(x):
    return '0x%08x' % struct.unpack('<I', struct.pack('<f', x))[0]


SLOT = 24576
NSL = 6
CSB = 3 * SLOT + 81920
DEC = CSB + 1024
LDS_SIZE = DEC + 256
F2, F3, F4 = 128, 384, 512
GST = 15 * 8 * 1024 + 768
POLL_LIMIT = int(os.environ.get('POLL_LIMIT', '0x20000'), 0)
PATIENCE = 48
WSZ = 512 * 1792 * 2
ENV = os.environ.get
DSC = ENV('DSC', '')
PSC = ENV('PSC', ' sc1')
PRE = int(ENV('PRE', '1'))
HPF = int(ENV('HPF', '10'))
NPF3 = int(ENV('NPF3', '0'))
SCM = {'': '', '1': ' sc1', '01': ' sc0 sc1', 'nt': ' nt', '0': ' sc0', 'nt1': ' sc1 nt'}
OSC = SCM[ENV('OSC', '1')]
HSC = SCM[ENV('HSC', '1')]
GSC = SCM[ENV('GSC', '1')]
SSC = SCM[ENV('SSC', '')]
FSC = SCM[ENV('FSC', '')]
PREO = int(ENV('PREO', '0'))
PREH = int(ENV('PREH', '6'))
TS2 = ENV('TS2')
DT = int(ENV('DT', '-1'))
PKF = int(ENV('PKF', '1'))
PF2 = int(ENV('PF2', '0'))
PF2L = int(ENV('PF2L', '16'))
PREG = int(ENV('PREG', '0'))
P2V = int(ENV('P2V', '2'))
CPF = int(ENV('KCPF', '1'))


class Q:
    def __init__(self, k):
        self.k = k
        self.n = 0
        self.at = {}

    def issue(self, text, tag=None):
        self.k(text)
        self.n += 1
        if tag is not None:
            self.at[tag] = self.n

    def wait(self, *tags):
        m = max(self.at[t] for t in tags)
        self.k('s_waitcnt vmcnt(%d)' % min(63, self.n - m))


def poll(k, L, soff, nd, vt=4):
    k('s_mov_b32 s30, 0')
    k('s_mov_b64 exec, 1')
    k.label(L)
    k('buffer_load_dwordx%d %s, off, s[4:7], s%d%s' % (nd, vr(vt, nd), soff, PSC))
    k('s_add_u32 s30, s30, 1')
    k('s_waitcnt vmcnt(0)')
    k('v_and_b32 v%d, v%d, v%d' % (vt, vt, vt + 1))
    if nd == 4:
        k('v_and_b32 v%d, v%d, v%d' % (vt + 2, vt + 2, vt + 3))
        k('v_and_b32 v%d, v%d, v%d' % (vt, vt, vt + 2))
    k('v_readfirstlane_b32 s31, v%d' % vt)
    k('s_cmp_eq_u32 s31, 0x01010101')
    k('s_cbranch_scc1 %s_x' % L)
    k('s_cmp_lt_u32 s30, 0x%x' % POLL_LIMIT)
    k('s_cbranch_scc1 %s' % L)
    k.label(L + '_x')
    k('s_mov_b64 exec, -1')


def setflag(k, soff, vt):
    k('v_mov_b32 v%d, 1' % vt)
    k('s_waitcnt vmcnt(0)')
    k('s_mov_b64 exec, 1')
    k('buffer_store_byte v%d, off, s[4:7], s%d' % (vt, soff))
    k('s_mov_b64 exec, -1')


def lanes(k):
    k('v_and_b32 v1, 63, v0')
    k('v_and_b32 v2, 15, v1')
    k('v_lshrrev_b32 v3, 4, v1')


def gemm_bd(k, vBd, t0, t1, snt):
    k('''v_lshrrev_b32 v%d, 5, v1
    v_lshlrev_b32 v%d, 2, v%d
    v_bfe_u32 v%d, v1, 2, 2
    v_add_u32 v%d, v%d, v%d
    v_lshlrev_b32 v%d, 10, v%d
    v_bfe_u32 v%d, v1, 4, 1
    v_lshl_add_u32 v%d, v%d, 6, v%d
    v_and_b32 v%d, 3, v1
    v_lshl_add_u32 v%d, v%d, 4, v%d
    v_add_u32 v%d, s%d, v%d''' % (t0, t0, t0, t1, t0, t0, t1, t0, t0, t1, t0, t1, t0, t1, t0, t1, t0, vBd, snt, t0))


def wo_dma(k, vBd, t0, t1, q=None):
    k('s_lshr_b32 s10, s2, 5')
    k('s_lshl_b32 s10, s10, 7')
    gemm_bd(k, vBd, t0, t1, 10)
    k('s_lshl_b32 s10, s3, 17')
    k('s_lshl_b32 s11, s3, 14')
    for i in range(16):
        k('s_add_u32 s30, s10, %d' % (i * 8192))
        k('s_add_u32 m0, s11, %d' % (i * 1024))
        k('buffer_load_dwordx4 v%d, s[12:15], s30 offen lds' % vBd)


def p4_bsetup(k, vBd, t0, t1, sB, sM):
    k('''v_lshrrev_b32 v%d, 2, v1
    v_mul_u32_u24 v%d, 0xe00, v%d
    v_lshrrev_b32 v%d, 5, v1
    v_lshlrev_b32 v%d, 1, v%d
    v_and_b32 v%d, 3, v1
    v_xor_b32 v%d, v%d, v%d
    v_lshl_add_u32 v%d, v%d, 4, v%d''' % (t0, t0, t0, t1, t1, t1, vBd, t1, t1, vBd, vBd, t1, t0))
    k('''s_and_b32 s%d, s3, 1
    s_mul_i32 s%d, s%d, %d
    s_lshr_b32 s10, s2, 4
    s_mul_i32 s11, s10, 224
    s_add_u32 s%d, s%d, s11
    s_and_b32 s10, s10, 1
    s_lshl_b32 s10, s10, 5
    s_sub_u32 s%d, s%d, s10
    s_lshl_b32 s%d, s%d, 10
    s_bfe_u32 s10, s3, 0x10001
    s_lshl_b32 s10, s10, 13
    s_add_u32 s%d, s%d, s10''' % (sM, sB, sM, 16 * 3584, sB, sB, sB, sB, sM, sM, sM, sM))


def p4_bstage(k, ks, vBd, sB, sM, srd, q=None):
    sl = ((ks + 3) % NSL) * SLOT
    for j in range(4):
        k('s_add_u32 s30, s%d, %d' % (sB, ks * 32 * 3584 + j * 64))
        k('s_add_u32 m0, s%d, %d' % (sM, sl + j * 2048))
        t = 'buffer_load_dwordx4 v%d, s[%d:%d], s30 offen lds' % (vBd, srd, srd + 3)
        if q:
            q.issue(t, ('B', ks))
        else:
            k(t)


def p5_bstep(k, s, vBd, sB, sM, srd, q=None):
    qs = (s + 3) % 18
    for h in range(2):
        k('s_add_u32 s30, s%d, %d' % (sB, (s * 16 + h * 8) * 1024))
        k('s_add_u32 m0, s%d, %d' % (sM, qs * 8192 + h * 1024))
        t = 'buffer_load_dwordx4 v%d, s[%d:%d], s30 offen lds' % (vBd, srd, srd + 3)
        if q:
            q.issue(t, ('B', s))
        else:
            k(t)


def l2pf(k, n, vPf, tot):
    k('''s_lshr_b32 s10, s2, 3
    s_lshl_b32 s10, s10, 1
    s_and_b32 s11, s3, 1
    s_add_u32 s10, s10, s11
    s_lshl_b32 s10, s10, 13
    s_add_u32 s10, s10, %d
    v_lshlrev_b32 v%d, 7, v1''' % (96 * 3584, vPf))
    for i in range(tot):
        if i < n:
            k('s_add_u32 s30, s10, %d' % (i * 0x80000))
        k('buffer_load_dword v%d, v%d, s[12:15], s30 offen' % (vPf + 1, vPf))


def l2pf2(k, n, vPf):
    k('''s_bitcmp1_b32 s3, 0
    s_cselect_b32 s36, s18, s16
    s_cselect_b32 s37, s19, s17
    s_mov_b32 s38, 0x%x
    s_mov_b32 s39, 0x00020000
    s_lshr_b32 s10, s2, 3
    s_lshl_b32 s10, s10, 2
    s_lshr_b32 s11, s3, 1
    s_add_u32 s10, s10, s11
    s_mul_i32 s10, s10, %d
    s_add_u32 s10, s10, %d
    v_lshlrev_b32 v%d, 7, v1''' % (WSZ, PF2L * 128, 96 * 3584, vPf))
    if PF2L < 64:
        k('s_mov_b64 exec, 0x%x' % ((1 << PF2L) - 1))
    for i in range(n):
        k('s_add_u32 s30, s10, %d' % (i * 128 * PF2L * 128))
        k('buffer_load_dword v%d, v%d, s[36:39], s30 offen' % (vPf + 1, vPf))
    k('s_mov_b64 exec, -1')


def p2old(k, S, O, vQ, vK, vV, vSt, vNeg, t0, t1, vPf, aK, aV0, aQ, vMk, vBd, mk, so):
    if TS2:
        k.ts2(2)
    k('buffer_load_dwordx4 %s, v%d, s[4:7], 0 offen' % (vr(aQ, 4), vQ))
    for T in range(9):
        s_, i_ = so(T * 1024)
        k('buffer_load_dwordx4 %s, v%d, s[4:7], %s offen offset:%d' % (vr(aK + T * 4, 4), vK, s_, i_))

    def vreg(idx):
        return aV0 + idx * 4 if idx < 9 else aK + (idx - 9) * 4

    def vloads(idxs):
        for idx in idxs:
            for r in range(4):
                k('v_mov_b32 v%d, v%d' % (vreg(idx) + r, t1))
        k('s_mov_b32 exec_lo, 0x0000ffff')
        k('s_mov_b32 exec_hi, 0x0000ffff')
        for idx in idxs:
            s_, i_ = so(idx * 512)
            k('buffer_load_dwordx4 %s, v%d, s[4:7], %s offen offset:%d' % (vr(vreg(idx), 4), vV, s_, i_))
        k('s_mov_b64 exec, -1')

    def dmablock():
        k('s_waitcnt lgkmcnt(0)')
        k('s_cmp_ge_u32 s3, 4')
        k('s_cbranch_scc1 P2_pfl')
        wo_dma(k, vBd, vPf, vPf + 1)
        k('s_branch P2_pfx')
        k.label('P2_pfl')
        p4_bsetup(k, vBd, vPf, vPf + 1, 23, 24)
        for ks in range(3):
            p4_bstage(k, ks, vBd, 23, 24, 12)
        if PRE and not PREH:
            pass
        elif PRE:
            k('''s_and_b32 s10, s2, 7
            s_lshl_b32 s10, s10, 2
            s_bfe_u32 s11, s2, 0x20003
            s_add_u32 s10, s10, s11
            s_lshr_b32 s11, s2, 5
            s_lshl_b32 s30, s10, 16
            s_lshl_b32 s31, s11, 7
            s_add_u32 s31, s30, s31
            s_add_u32 s31, s31, 0x%x
            s_lshl_b32 s11, s11, 11
            s_add_u32 s30, s30, s11
            s_add_u32 s30, s30, 0x%x
            s_lshl_b32 s10, s10, 12
            s_add_u32 s10, s10, 0x%x
            s_movk_i32 s11, 128
            s_cmp_eq_u32 s3, 4
            s_cselect_b32 s30, s31, s30
            s_cselect_b32 s11, 1024, s11
            s_mov_b32 s31, 16384
            s_bitcmp1_b32 %d, s3
            s_cselect_b32 s30, s10, s30
            s_cselect_b32 s11, 64, s11
            s_cselect_b32 s31, 1024, s31
            v_lshrrev_b32 v%d, 4, v1
            v_mul_u32_u24 v%d, s31, v%d
            v_and_b32 v%d, 15, v1
            v_mad_u32_u24 v%d, v%d, s11, v%d
            buffer_load_dword v7, v%d, s[4:7], s30 offen''' % (WS_H, WS_HF, WS_ST, 0xc0 | (0 if PREH & 1 else 16) | (0 if PREH & 2 else 32), vPf, vPf, vPf, vPf + 1, vPf, vPf + 1, vPf, vPf))
        else:
            l2pf(k, int(ENV('NPF2', '4')), vPf, 4)
        k.label('P2_pfx')

        if PF2:
            l2pf2(k, PF2, vPf)

    vloads(range(9))
    k('''s_lshl_b32 s25, s21, 5
    s_add_u32 s25, s25, s20
    s_lshl_b32 s25, s25, 10
    s_add_u32 s25, s25, 0x%x
    v_lshlrev_b32 v10, 4, v2
    v_lshl_add_u32 v10, v3, 3, v10
    v_add_u32 v%d, s25, v10''' % (WS_O, vSt))
    nx = 0
    if PRE and PREO:
        k('v_lshlrev_b32 v10, 7, v1')
        k('s_mov_b64 exec, 0xff')
        k('buffer_load_dword v7, v10, s[4:7], s25 offen')
        k('s_mov_b64 exec, -1')
        nx = 1
    k('v_mov_b32 v%d, %s' % (vNeg, f32hex(-1e9)))
    k('s_sub_i32 s28, 8, s21')
    k('s_max_i32 s28, s28, 0')
    for i in range(16):
        kk = (i >> 2) * 8 + (i & 3)
        m = 0
        for l in range(64):
            if kk > (l & 31) - (l >> 5) * 4:
                m |= 1 << l
        k('s_mov_b32 s%d, 0x%x' % (mk(i), m & 0xffffffff))
        k('s_mov_b32 s%d, 0x%x' % (mk(i) + 1, m >> 32))
    k.ts(2)
    if TS2:
        k.ts2(3)
    for T in range(9):
        k('s_waitcnt vmcnt(%d)' % (nx + 9 + 8 - T))
        if TS2 and T in (0, 8):
            k.ts2(4 if T == 0 else 5)
        k('v_mfma_f32_32x32x16_bf16 %s, %s, %s, 0' % (vr(S + T * 16, 16), vr(aK + T * 4, 4), vr(aQ, 4)))
    vloads(range(9, 18))
    npf = (13 if PREH else 12) + PF2
    if DT < 0:
        dmablock()
    for i in range(16):
        k('v_cndmask_b32_e64 v%d, v%d, v%d, s[%d:%d]' % (S + i, vNeg, S + i, mk(i), mk(i) + 1))
    for i in range(16):
        k('v_cndmask_b32_e64 v%d, v%d, v%d, s[%d:%d]' % (S + 128 + i, S + 128 + i, vNeg, mk(i), mk(i) + 1))
    k('s_cmp_eq_u32 s28, 0')
    k('s_cbranch_scc1 J_P2_nomask')
    for T in range(8):
        k('s_cmp_gt_u32 s28, %d' % T)
        k('s_cbranch_scc0 J_P2_nomask')
        for i in range(16):
            k('v_mov_b32 v%d, v%d' % (S + T * 16 + i, vNeg))
    k.label('J_P2_nomask')
    ch = [O, O + 1, O + 2, O + 3]
    regs = list(range(S, S + 144))
    for c in range(4):
        k('v_max3_f32 v%d, v%d, v%d, v%d' % (ch[c], regs[c * 36], regs[c * 36 + 1], regs[c * 36 + 2]))
    for j in range(3, 35, 2):
        for c in range(4):
            k('v_max3_f32 v%d, v%d, v%d, v%d' % (ch[c], ch[c], regs[c * 36 + j], regs[c * 36 + j + 1]))
    for c in range(4):
        k('v_max_f32 v%d, v%d, v%d' % (ch[c], ch[c], regs[c * 36 + 35]))
    k('v_max3_f32 v%d, v%d, v%d, v%d' % (t0, ch[0], ch[1], ch[2]))
    k('v_max_f32 v%d, v%d, v%d' % (t0, t0, ch[3]))
    k('v_mov_b32 v%d, v%d' % (t1, t0))
    k('v_permlane32_swap_b32 v%d, v%d' % (t0, t1))
    k('v_max_f32 v%d, v%d, v%d' % (t0, t0, t1))
    k.ts(3)
    if TS2:
        k.ts2(6)
    c_ = 0.25 * 1.4426950408889634
    k('s_mov_b32 s29, %s' % f32hex(c_))
    k('v_mul_f32 v%d, s29, v%d' % (t0, t0))
    if PKF:
        k('s_mov_b32 s34, s29')
        k('s_mov_b32 s35, s29')
        k('v_mov_b32 v%d, v%d' % (t1, t0))
    first = True
    for T in range(9):
        b = S + T * 16
        if T == 7:
            k('s_mov_b64 exec, 1')
            k('buffer_load_dword v%d, off, s[4:7], s8 sc1' % vMk)
            k('s_mov_b64 exec, -1')
        if T == DT:
            dmablock()
        if PKF:
            for i in range(0, 16, 2):
                k('v_pk_fma_f32 %s, %s, s[34:35], %s neg_lo:[0,0,1] neg_hi:[0,0,1]' % (vr(b + i, 2), vr(b + i, 2), vr(t0, 2)))
        else:
            for i in range(16):
                k('v_fma_f32 v%d, v%d, s29, -v%d' % (b + i, b + i, t0))
        for i in range(16):
            k('v_exp_f32 v%d, v%d' % (b + i, b + i))
        for u in range(2):
            for j in range(4):
                k('v_cvt_pk_bf16_f32 v%d, v%d, v%d' % (b + 8 * u + j, b + 8 * u + 2 * j, b + 8 * u + 2 * j + 1))
        for u in range(2):
            idx = 2 * T + u
            if idx == 0:
                k('s_waitcnt vmcnt(%d)' % (nx + 9 + (npf if DT <= 0 else 0)))
            if idx == 9:
                if TS2:
                    k.ts2(7)
                k('s_waitcnt vmcnt(%d)' % (npf if DT <= 4 else 0))
                if TS2:
                    k.ts2(8)
            k('v_mfma_f32_32x32x16_bf16 %s, %s, %s, %s' % (
                vr(O, 16), vr(vreg(idx), 4), vr(b + 8 * u, 4), '0' if first else vr(O, 16)))
            first = False


def cpf(k):
    if CPF:
        k('s_getpc_b64 s[30:31]')
        k.label('KF_PC')
        k("""s_andn2_b32 s10, s2, 7
        s_add_u32 s10, s10, s3
        s_lshl_b32 s10, s10, 8
        s_add_u32 s11, s10, 128
        s_min_u32 s10, s10, KF_END-KF_PC
        s_min_u32 s11, s11, KF_END-KF_PC
        s_load_dword s96, s[30:31], s10
        s_load_dword s99, s[30:31], s11""")


def p2new(k, S, O, vQ, vK, vV, vSt, vNeg, t0, t1, vPf, aK, aV0, aQ, vMk, vBd, mk, so):
    M = O + 4
    q0 = Q(k)
    KO = [0, 8, 1, 2, 3, 4, 5, 6, 7]
    k('s_waitcnt lgkmcnt(0)')
    if TS2:
        k.ts2(2)
    q0.issue('buffer_load_dwordx4 %s, v%d, s[4:7], 0 offen' % (vr(aQ, 4), vQ))
    for T in KO:
        s_, i_ = so(T * 1024)
        q0.issue('buffer_load_dwordx4 %s, v%d, s[4:7], %s offen offset:%d' % (vr(aK + T * 4, 4), vK, s_, i_), ('K', T))
    cpf(k)
    k('s_or_b32 s10, s3, s100')
    k('s_cmp_lg_u32 s10, 0')
    k('s_cbranch_scc1 P2_ncl')
    k('s_mov_b64 exec, 1')
    k('buffer_atomic_or v252, off, s[4:7], s8 sc0')
    k('buffer_store_dword v253, off, s[4:7], s9 sc1')
    k('s_mov_b64 exec, -1')
    k.label('P2_ncl')
    LO = [0, 1, 16, 17] + list(range(2, 16))

    def vreg(idx):
        j = LO.index(idx)
        return aV0 + j * 4 if j < 9 else aK + KO[j - 9] * 4

    def vfill(j):
        for r in (0, 2):
            k('v_pk_mov_b32 %s, s[14:15], s[14:15]' % vr(vreg(LO[j]) + r, 2))

    k("""s_lshl_b32 s25, s21, 5
    s_add_u32 s25, s25, s20
    s_lshl_b32 s25, s25, 10
    s_add_u32 s25, s25, 0x%x
    v_lshlrev_b32 v10, 4, v1
    v_add_u32 v%d, s25, v10
    s_mov_b32 s14, 0x3f803f80
    s_mov_b32 s15, 0x3f803f80
    s_mov_b32 s20, 0x0000ffff
    s_sub_i32 s28, 8, s21
    s_mov_b32 s21, 0x0000ffff""" % (WS_O, vSt))
    for j in range(9):
        vfill(j)
    k('v_mov_b32 v%d, %s' % (vNeg, f32hex(-1e9)))
    k('s_max_i32 s28, s28, 0')
    for i in range(16):
        kk = (i >> 2) * 8 + (i & 3)
        m = 0
        for l in range(64):
            if kk > (l & 31) - (l >> 5) * 4:
                m |= 1 << l
        k('s_mov_b32 s%d, 0x%x' % (mk(i), m & 0xffffffff))
        k('s_mov_b32 s%d, 0x%x' % (mk(i) + 1, m >> 32))
    k('v_mov_b32 v%d, 0xffff' % O)
    k('v_mov_b32 v%d, 0xffff0000' % (O + 1))
    for jj in range(8):
        k('v_cndmask_b32_e64 v%d, 0, v%d, s[%d:%d]' % (M + jj, O, mk(2 * jj), mk(2 * jj) + 1))
        k('v_cndmask_b32_e64 v%d, 0, v%d, s[%d:%d]' % (O + 2, O + 1, mk(2 * jj + 1), mk(2 * jj + 1) + 1))
        k('v_or_b32 v%d, v%d, v%d' % (M + jj, M + jj, O + 2))
    k('s_cmp_ge_u32 s3, 4')
    k('s_cbranch_scc1 P2_B')

    def path(A):
        L = 'A' if A else 'B'
        S0 = int(ENV('S0' + L, '9' if A else '3'))
        NPS = int(ENV('NPS' + L, '2' if A else '2'))
        LAG = int(ENV('LAG' + L, '3' if A else '2'))
        POST = int(ENV('POST', '0')) if A else 0
        BDMA = int(ENV('BDMA', '1'))
        q = Q(k)
        q.n, q.at = q0.n, dict(q0.at)
        if A:
            k('s_lshr_b32 s10, s2, 5')
            k('s_lshl_b32 s10, s10, 7')
            gemm_bd(k, vBd, vPf + 1, vPf + 2, 10)
            k('s_lshl_b32 s23, s3, 17')
            k('s_lshl_b32 s24, s3, 14')
            if BDMA:
                p4_bsetup(k, vPf, vPf + 1, vPf + 2, 25, 29)
        else:
            if not BDMA:
                p4_bsetup(k, vBd, vPf + 1, vPf + 2, 23, 24)
            k("""s_and_b32 s10, s2, 7
            s_lshl_b32 s10, s10, 2
            s_bfe_u32 s11, s2, 0x20003
            s_add_u32 s10, s10, s11
            s_lshr_b32 s11, s2, 5
            s_lshl_b32 s25, s10, 16
            s_lshl_b32 s31, s11, 7
            s_add_u32 s31, s25, s31
            s_add_u32 s31, s31, 0x%x
            s_lshl_b32 s11, s11, 11
            s_add_u32 s25, s25, s11
            s_add_u32 s25, s25, 0x%x
            s_lshl_b32 s10, s10, 12
            s_add_u32 s10, s10, 0x%x
            s_movk_i32 s11, 128
            s_cmp_eq_u32 s3, 4
            s_cselect_b32 s25, s31, s25
            s_cselect_b32 s11, 1024, s11
            s_mov_b32 s31, 16384
            s_bitcmp1_b32 %d, s3
            s_cselect_b32 s25, s10, s25
            s_cselect_b32 s11, 64, s11
            s_cselect_b32 s31, 1024, s31
            v_lshrrev_b32 v%d, 4, v1
            v_mul_u32_u24 v%d, s31, v%d
            v_and_b32 v%d, 15, v1
            v_mad_u32_u24 v%d, v%d, s11, v%d""" % (WS_H, WS_HF, WS_ST, 0xc0 | (0 if PREH & 1 else 16) | (0 if PREH & 2 else 32), vPf, vPf, vPf, vPf + 1, vPf, vPf + 1, vPf))
        k.ts(2)
        if TS2:
            k.ts2(3)
        mops = []

        def mv(j):
            idx = LO[j]
            s_, i_ = so(idx * 512)
            if j >= 9:
                vfill(j)
            k('s_mov_b64 exec, s[20:21]')
            q.issue('buffer_load_dwordx4 %s, v%d, s[4:7], %s offen offset:%d' % (vr(vreg(idx), 4), vV, s_, i_), ('V', idx))
            k('s_mov_b64 exec, -1')

        def mwo(i):
            if i == 0:
                k('s_mov_b32 s14, 0x80000')
                k('s_mov_b32 s15, 0x00020000')
            k('s_add_u32 s30, s23, %d' % (i * 8192))
            k('s_add_u32 m0, s24, %d' % (i * 1024))
            q.issue('buffer_load_dwordx4 v%d, s[12:15], s30 offen lds' % vBd)

        def mb(i):
            ks, j = i >> 2, i & 3
            sB, sM, v = (25, 29, vPf) if A else (23, 24, vBd)
            k('s_add_u32 s30, s%d, %d' % (sB, ks * 32 * 3584 + j * 64))
            k('s_add_u32 m0, s%d, %d' % (sM, (ks + 3) * SLOT + j * 2048))
            q.issue('buffer_load_dwordx4 v%d, s[16:19], s30 offen lds' % v)

        def mpre():
            q.issue('buffer_load_dword v7, v%d, s[4:7], s25 offen' % vPf)

        for j in range(18):
            mops.append((max(0, j - 9 + 1), lambda j=j: mv(j)))
        if A:
            mops += [(0, lambda i=i: mwo(i)) for i in range(16)]
        else:
            mops.append((0, mpre))
        if bool(BDMA) == A:
            mops += [(0, lambda i=i: mb(i)) for i in range(12)]
        post = mops[len(mops) - POST:] if POST else []
        if POST:
            mops = mops[:len(mops) - POST]
        sl = [0]

        def slot():
            s = sl[0]
            sl[0] += 1
            if s < S0:
                return
            for _ in range(NPS):
                if mops and mops[0][0] <= s:
                    mops.pop(0)[1]()

        ch = [O, O + 1, O + 2, O + 3]
        started = [False]

        def fullmask(T):
            k('s_cmp_gt_u32 s28, %d' % T)
            k('s_cbranch_scc0 J_P2%s_nm%d' % (L, T))
            for i in range(16):
                k('v_mov_b32 v%d, v%d' % (S + T * 16 + i, vNeg))
            k.label('J_P2%s_nm%d' % (L, T))

        def tmax(T):
            r = S + T * 16
            if not started[0]:
                for c in range(4):
                    k('v_max3_f32 v%d, v%d, v%d, v%d' % (ch[c], r + 4 * c, r + 4 * c + 1, r + 4 * c + 2))
                for c in range(4):
                    k('v_max_f32 v%d, v%d, v%d' % (ch[c], ch[c], r + 4 * c + 3))
                started[0] = True
            else:
                for h in range(2):
                    for c in range(4):
                        k('v_max3_f32 v%d, v%d, v%d, v%d' % (ch[c], ch[c], r + 4 * c + 2 * h, r + 4 * c + 2 * h + 1))

        def post_tile(pos):
            T = KO[pos]
            if T == 0:
                fullmask(0)
            elif T == 8:
                for i in range(16):
                    k('v_cndmask_b32_e64 v%d, v%d, v%d, s[%d:%d]' % (S + i, S + 128 + i, S + i, mk(i), mk(i) + 1))
                tmax(0)
            else:
                fullmask(T)
                tmax(T)

        for pos, T in enumerate(KO):
            q.wait(('K', T))
            if TS2 and pos in (0, 8):
                k.ts2(4 if pos == 0 else 5)
            k('v_mfma_f32_32x32x16_bf16 %s, %s, %s, 0' % (vr(S + T * 16, 16), vr(aK + T * 4, 4), vr(aQ, 4)))
            if pos:
                post_tile(pos - 1)
            slot()
        c_ = 0.25 * 1.4426950408889634
        k('s_mov_b32 s34, %s' % f32hex(c_))
        k('s_mov_b32 s35, s34')
        post_tile(8)
        k('v_max3_f32 v%d, v%d, v%d, v%d' % (t0, ch[0], ch[1], ch[2]))
        k('v_max_f32 v%d, v%d, v%d' % (t0, t0, ch[3]))
        k('v_mov_b32 v%d, v%d' % (t1, t0))
        k('v_permlane32_swap_b32 v%d, v%d' % (t0, t1))
        k('v_max_f32 v%d, v%d, v%d' % (t0, t0, t1))
        k.ts(3)
        if TS2:
            k.ts2(6)
        k('v_mul_f32 v%d, s34, v%d' % (t0, t0))
        k('v_mov_b32 v%d, v%d' % (t1, t0))
        first = [True]
        done = [0]

        def pv(p):
            lst = [(0, S), (1, S + 8), (16, S + 128), (17, S + 136)] if p == 0 else [(2 * p, S + p * 16), (2 * p + 1, S + p * 16 + 8)]
            if any(('V', idx) not in q.at for idx, b in lst):
                return False
            for idx, b in lst:
                q.wait(('V', idx))
                k('v_mfma_f32_32x32x16_bf16 %s, %s, %s, %s' % (vr(O, 16), vr(vreg(idx), 4), vr(b, 4), '0' if first[0] else vr(O, 16)))
                first[0] = False
            return True

        for p in range(8):
            b = S + p * 16
            if p == 6 and A:
                k('s_mov_b64 exec, 1')
                q.issue('buffer_load_dword v%d, off, s[4:7], s8 sc1' % vMk)
                k('s_mov_b64 exec, -1')
            for i in range(0, 16, 2):
                k('v_pk_fma_f32 %s, %s, s[34:35], %s neg_lo:[0,0,1] neg_hi:[0,0,1]' % (vr(b + i, 2), vr(b + i, 2), vr(t0, 2)))
            for i in range(16):
                if i % 4 == 0:
                    slot()
                k('v_exp_f32 v%d, v%d' % (b + i, b + i))
            for u in range(2):
                for j in range(4):
                    k('v_cvt_pk_bf16_f32 v%d, v%d, v%d' % (b + 8 * u + j, b + 8 * u + 2 * j, b + 8 * u + 2 * j + 1))
            if p == 0:
                for u in range(2):
                    for j in range(4):
                        k('v_bfi_b32 v%d, v%d, 0, v%d' % (S + 128 + 8 * u + j, M + 4 * u + j, S + 8 * u + j))
                        k('v_and_b32 v%d, v%d, v%d' % (S + 8 * u + j, M + 4 * u + j, S + 8 * u + j))
            if TS2 and p in (3, 7):
                k.ts2(7 if p == 3 else 8)
            while done[0] <= p - LAG and pv(done[0]):
                done[0] += 1
        while mops:
            mops.pop(0)[1]()
        while done[0] < 8:
            assert pv(done[0])
            done[0] += 1
        k('v_rcp_f32 v%d, v%d' % (t0, O + 8))
        for i in range(8):
            k('v_mul_f32 v%d, v%d, v%d' % (O + i, O + i, t0))
        for j in range(4):
            k('v_cvt_pk_bf16_f32 v%d, v%d, v%d' % (O + j, O + 2 * j, O + 2 * j + 1))
        k('v_permlane32_swap_b32 v%d, v%d' % (O, O + 2))
        k('v_permlane32_swap_b32 v%d, v%d' % (O + 1, O + 3))
        k('buffer_store_dwordx4 %s, v%d, s[4:7], 0 offen%s' % (vr(O, 4), vSt, OSC))
        if TS2:
            k.ts2(9)
        setflag(k, 22, t0)
        for m in post:
            m[1]()

    path(True)
    k('s_branch J_P2_join')
    k.label('P2_B')
    path(False)
    k.label('J_P2_join')


KVB = 3 * SLOT


def p2lds(k, S, O, vQ, vK, vV, vSt, vNeg, t0, t1, vPf, aK, aV0, aQ, vMk, vBd, mk, so):
    M = O + 4
    KO = [0, 8, 1, 2, 3, 4, 5, 6, 7]
    VBAR = int(ENV('VBAR', '0'))
    WS0 = int(ENV('WS0', '2'))
    WST = int(ENV('WST', '2'))
    NVS = int(ENV('NVS', '3'))
    LAG = int(ENV('LAG', '1'))
    vKr, vVr = vPf + 2, vPf + 3
    k('s_waitcnt lgkmcnt(0)')
    if TS2:
        k.ts2(2)
    k('buffer_load_dwordx4 %s, v%d, s[4:7], 0 offen' % (vr(aQ, 4), vQ))
    VPOS = int(ENV('VPOS', '1'))

    def kvdma(v, add):
        k('s_add_u32 m0, s18, %d' % add)
        for i in range(4):
            k('buffer_load_dwordx4 v%d, s[4:7], s26 offen offset:%d lds' % (v, i * 1024))
        k('s_add_u32 m0, s18, %d' % (add + 4096))
        k('buffer_load_dwordx4 v%d, s[4:7], s27 offen lds' % v)

    k('s_mov_b32 s18, s24')
    kvdma(vK, 0)
    if VPOS == 0:
        kvdma(vV, 40960)
    cpf(k)
    k('s_or_b32 s29, s3, s100')
    k('s_cmp_lg_u32 s29, 0')
    k('s_cbranch_scc1 P2_ncl')
    k('s_mov_b64 exec, 1')
    k('buffer_atomic_or v252, off, s[4:7], s8 sc0')
    k('buffer_store_dword v253, off, s[4:7], s9 sc1')
    k('s_mov_b64 exec, -1')
    k.label('P2_ncl')

    def wait2(n, L):
        k('s_waitcnt vmcnt(%d)' % (n + 2))
        k('s_cmp_eq_u32 s29, 0')
        k('s_cbranch_scc1 %s' % L)
        k('s_waitcnt vmcnt(%d)' % n)
        k.label(L)

    LO = [0, 1, 16, 17] + list(range(2, 16))

    def vreg(idx):
        j = LO.index(idx)
        return aV0 + j * 4 if j < 9 else aK + KO[j - 9] * 4

    def vfill(j):
        for r in (0, 2):
            k('v_pk_mov_b32 %s, s[16:17], s[16:17]' % vr(vreg(LO[j]) + r, 2))

    k("""s_lshl_b32 s25, s21, 5
    s_add_u32 s25, s25, s20
    s_lshl_b32 s25, s25, 10
    s_add_u32 s25, s25, 0x%x
    v_lshlrev_b32 v10, 4, v1
    v_add_u32 v%d, s25, v10
    s_sub_u32 s24, s24, s26
    v_add_u32 v%d, s24, v10
    v_and_b32 v10, 15, v1
    v_lshl_add_u32 v10, v3, 4, v10
    v_lshlrev_b32 v10, 4, v10
    s_add_u32 s24, s24, 40960
    v_add_u32 v%d, s24, v10
    s_mov_b32 s16, 0x3f803f80
    s_mov_b32 s17, 0x3f803f80
    s_mov_b32 s20, 0x0000ffff
    s_sub_i32 s28, 8, s21
    s_mov_b32 s21, 0x0000ffff""" % (WS_O, vSt, vKr, vVr))
    for j in range(9):
        vfill(j)
    k('v_mov_b32 v%d, %s' % (vNeg, f32hex(-1e9)))
    k('s_max_i32 s28, s28, 0')
    for i in range(16):
        kk = (i >> 2) * 8 + (i & 3)
        m = 0
        for l in range(64):
            if kk > (l & 31) - (l >> 5) * 4:
                m |= 1 << l
        k('s_mov_b32 s%d, 0x%x' % (mk(i), m & 0xffffffff))
        k('s_mov_b32 s%d, 0x%x' % (mk(i) + 1, m >> 32))
    k('v_mov_b32 v%d, 0xffff' % O)
    k('v_mov_b32 v%d, 0xffff0000' % (O + 1))
    for jj in range(8):
        k('v_cndmask_b32_e64 v%d, 0, v%d, s[%d:%d]' % (M + jj, O, mk(2 * jj), mk(2 * jj) + 1))
        k('v_cndmask_b32_e64 v%d, 0, v%d, s[%d:%d]' % (O + 2, O + 1, mk(2 * jj + 1), mk(2 * jj + 1) + 1))
        k('v_or_b32 v%d, v%d, v%d' % (M + jj, M + jj, O + 2))
    k('s_lshr_b32 s10, s2, 5')
    k('s_lshl_b32 s10, s10, 7')
    gemm_bd(k, vBd, vPf, vPf + 1, 10)
    k("""s_and_b32 s10, s3, 3
    s_lshl_b32 s24, s10, 14
    s_lshl_b32 s11, s26, 1
    s_add_u32 s24, s24, s11
    s_lshl_b32 s23, s24, 3""")
    k("""s_and_b32 s10, s2, 7
    s_lshl_b32 s10, s10, 2
    s_bfe_u32 s11, s2, 0x20003
    s_add_u32 s10, s10, s11
    s_lshr_b32 s11, s2, 5
    s_lshl_b32 s25, s10, 16
    s_lshl_b32 s31, s11, 7
    s_add_u32 s31, s25, s31
    s_add_u32 s31, s31, 0x%x
    s_lshl_b32 s11, s11, 11
    s_add_u32 s25, s25, s11
    s_add_u32 s25, s25, 0x%x
    s_lshl_b32 s10, s10, 12
    s_add_u32 s10, s10, 0x%x
    s_movk_i32 s11, 128
    s_cmp_eq_u32 s3, 4
    s_cselect_b32 s25, s31, s25
    s_cselect_b32 s11, 1024, s11
    s_mov_b32 s31, 16384
    s_bitcmp1_b32 %d, s3
    s_cselect_b32 s25, s10, s25
    s_cselect_b32 s11, 64, s11
    s_cselect_b32 s31, 1024, s31
    v_lshrrev_b32 v%d, 4, v1
    v_mul_u32_u24 v%d, s31, v%d
    v_and_b32 v%d, 15, v1
    v_mad_u32_u24 v%d, v%d, s11, v%d""" % (WS_H, WS_HF, WS_ST, 0xc0 | (0 if PREH & 1 else 16) | (0 if PREH & 2 else 32), vPf, vPf, vPf, vPf + 1, vPf, vPf + 1, vPf))
    k.ts(2)
    if TS2:
        k.ts2(3)
    if VPOS == 1:
        kvdma(vV, 40960)
    wait2(5 if VPOS < 2 else 0, 'P2_wk')
    k('s_barrier')
    if TS2:
        k.ts2(4)
    if VPOS == 2:
        kvdma(vV, 40960)
    for T in KO:
        k('ds_read_b128 %s, v%d offset:%d' % (vr(aK + T * 4, 4), vKr, T * 1024))
    ch = [O, O + 1, O + 2, O + 3]
    started = [False]

    def fullmask(T):
        k('s_cmp_gt_u32 s28, %d' % T)
        k('s_cbranch_scc0 J_P2_nm%d' % T)
        for i in range(16):
            k('v_mov_b32 v%d, v%d' % (S + T * 16 + i, vNeg))
        k.label('J_P2_nm%d' % T)

    def tmax(T):
        r = S + T * 16
        if not started[0]:
            for c in range(4):
                k('v_max3_f32 v%d, v%d, v%d, v%d' % (ch[c], r + 4 * c, r + 4 * c + 1, r + 4 * c + 2))
            for c in range(4):
                k('v_max_f32 v%d, v%d, v%d' % (ch[c], ch[c], r + 4 * c + 3))
            started[0] = True
        else:
            for h in range(2):
                for c in range(4):
                    k('v_max3_f32 v%d, v%d, v%d, v%d' % (ch[c], ch[c], r + 4 * c + 2 * h, r + 4 * c + 2 * h + 1))

    def post_tile(pos):
        T = KO[pos]
        if T == 0:
            fullmask(0)
        elif T == 8:
            for i in range(16):
                k('v_cndmask_b32_e64 v%d, v%d, v%d, s[%d:%d]' % (S + i, S + 128 + i, S + i, mk(i), mk(i) + 1))
            tmax(0)
        else:
            fullmask(T)
            tmax(T)

    PD = int(ENV('PD', '2'))
    for pos, T in enumerate(KO):
        k('s_waitcnt lgkmcnt(%d)' % (8 - pos))
        k('v_mfma_f32_32x32x16_bf16 %s, %s, %s, 0' % (vr(S + T * 16, 16), vr(aK + T * 4, 4), vr(aQ, 4)))
        if pos >= PD:
            post_tile(pos - PD)
            vfill(9 + pos - PD)
    if TS2:
        k.ts2(5)
    for pos in range(9 - PD, 9):
        post_tile(pos)
        vfill(9 + pos)
    c_ = 0.25 * 1.4426950408889634
    k('s_mov_b32 s34, %s' % f32hex(c_))
    k('s_mov_b32 s35, s34')
    k('v_max3_f32 v%d, v%d, v%d, v%d' % (t0, ch[0], ch[1], ch[2]))
    k('v_max_f32 v%d, v%d, v%d' % (t0, t0, ch[3]))
    k('v_mov_b32 v%d, v%d' % (t1, t0))
    k('v_permlane32_swap_b32 v%d, v%d' % (t0, t1))
    k('v_max_f32 v%d, v%d, v%d' % (t0, t0, t1))
    k.ts(3)
    if TS2:
        k.ts2(6)
    k('v_mul_f32 v%d, s34, v%d' % (t0, t0))
    k('v_mov_b32 v%d, v%d' % (t1, t0))
    first = [True]
    done = [0]
    st = dict(v=0, w=0, s=0, bar=False, pre=False)

    def slot():
        s = st['s']
        st['s'] += 1
        if st['bar'] and st['v'] < 18:
            k('s_mov_b64 exec, s[20:21]')
            for _ in range(NVS):
                if st['v'] < 18:
                    idx = LO[st['v']]
                    k('ds_read_b128 %s, v%d offset:%d' % (vr(vreg(idx), 4), vVr, idx * 512))
                    st['v'] += 1
            k('s_mov_b64 exec, -1')
        if s >= WS0 and (s - WS0) % WST == 0:
            if st['w'] < 8:
                i = st['w']
                k('s_add_u32 s30, s23, %d' % (i * 8192))
                k('s_add_u32 m0, s24, %d' % (i * 1024))
                k('buffer_load_dwordx4 v%d, s[12:15], s30 offen lds' % vBd)
                st['w'] += 1
            elif not st['pre']:
                st['pre'] = True
                k('s_cmp_lt_u32 s3, 4')
                k('s_cbranch_scc1 P2_npre')
                k('buffer_load_dword v7, v%d, s[4:7], s25 offen' % vPf)
                k.label('P2_npre')

    def pv(p):
        lst = [(0, S), (1, S + 8), (16, S + 128), (17, S + 136)] if p == 0 else [(2 * p, S + p * 16), (2 * p + 1, S + p * 16 + 8)]
        if any(LO.index(idx) >= st['v'] for idx, b in lst):
            return False
        for idx, b in lst:
            k('s_waitcnt lgkmcnt(%d)' % min(15, st['v'] - 1 - LO.index(idx)))
            k('v_mfma_f32_32x32x16_bf16 %s, %s, %s, %s' % (vr(O, 16), vr(vreg(idx), 4), vr(b, 4), '0' if first[0] else vr(O, 16)))
            first[0] = False
        return True

    for p in range(8):
        b = S + p * 16
        if p == VBAR:
            assert not st['pre']
            if VPOS == 0:
                wait2(st['w'], 'P2_wv')
            else:
                k('s_waitcnt vmcnt(%d)' % st['w'])
            k('s_barrier')
            st['bar'] = True
        if p == 6:
            k('s_cmp_lg_u32 s3, 0')
            k('s_cbranch_scc1 P2_nrr')
            k('s_mov_b64 exec, 1')
            k('buffer_load_dword v%d, off, s[4:7], s8 sc1' % vMk)
            k('s_mov_b64 exec, -1')
            k.label('P2_nrr')
        for i in range(0, 16, 2):
            k('v_pk_fma_f32 %s, %s, s[34:35], %s neg_lo:[0,0,1] neg_hi:[0,0,1]' % (vr(b + i, 2), vr(b + i, 2), vr(t0, 2)))
        for i in range(16):
            if i % 4 == 0:
                slot()
            k('v_exp_f32 v%d, v%d' % (b + i, b + i))
        for u in range(2):
            for j in range(4):
                k('v_cvt_pk_bf16_f32 v%d, v%d, v%d' % (b + 8 * u + j, b + 8 * u + 2 * j, b + 8 * u + 2 * j + 1))
        if p == 0:
            for u in range(2):
                for j in range(4):
                    k('v_bfi_b32 v%d, v%d, 0, v%d' % (S + 128 + 8 * u + j, M + 4 * u + j, S + 8 * u + j))
                    k('v_and_b32 v%d, v%d, v%d' % (S + 8 * u + j, M + 4 * u + j, S + 8 * u + j))
        if TS2 and p in (3, 7):
            k.ts2(7 if p == 3 else 8)
        while done[0] <= p - LAG and pv(done[0]):
            done[0] += 1
    assert st['w'] == 8 and st['pre'] and st['v'] == 18
    while done[0] < 8:
        assert pv(done[0])
        done[0] += 1
    k('v_rcp_f32 v%d, v%d' % (t0, O + 8))
    for i in range(8):
        k('v_mul_f32 v%d, v%d, v%d' % (O + i, O + i, t0))
    for j in range(4):
        k('v_cvt_pk_bf16_f32 v%d, v%d, v%d' % (O + j, O + 2 * j, O + 2 * j + 1))
    k('v_permlane32_swap_b32 v%d, v%d' % (O, O + 2))
    k('v_permlane32_swap_b32 v%d, v%d' % (O + 1, O + 3))
    k('buffer_store_dwordx4 %s, v%d, s[4:7], 0 offen%s' % (vr(O, 4), vSt, OSC))
    if TS2:
        k.ts2(9)
    setflag(k, 22, t0)


def phase2(k):
    S = 12
    O = 156
    vQ, vK, vV, vSt, vNeg = 4, 5, 6, 8, 9
    t0, t1 = 10, 11
    vPf = 172
    aK, aV0, aQ = 176, 212, 248
    vCl, vMk, vBd = 252, 253, 254

    def mk(i):
        return 32 + 2 * i
    k.label('J_P2')
    if P2V == 2:
        k('''s_load_dwordx2 s[12:13], s[0:1], 16
        s_mov_b32 s14, 0x80000
        s_mov_b32 s15, 0x00020000''')
    elif P2V:
        k('''s_bitcmp1_b32 s3, 1
        s_cselect_b32 s10, 40, 32
        s_load_dwordx2 s[12:13], s[0:1], 16
        s_load_dwordx2 s[16:17], s[0:1], s10
        s_mov_b32 s18, 0x%x
        s_mov_b32 s19, 0x00020000''' % WSZ)
    else:
        k('''s_cmp_lt_u32 s3, 6
        s_cselect_b32 s10, 32, 40
        s_mov_b32 s14, 0x%x
        s_cmp_lt_u32 s3, 4
        s_cselect_b32 s10, 16, s10
        s_cselect_b32 s14, 0x80000, s14
        s_load_dwordx2 s[12:13], s[0:1], s10
        s_load_dwordx4 s[16:19], s[0:1], 32
        s_mov_b32 s15, 0x00020000''' % WSZ)
    k('''s_lshr_b32 s20, s2, 5
    s_lshl_b32 s20, s20, 2
    s_and_b32 s21, s3, 3
    s_add_u32 s20, s20, s21
    s_and_b32 s21, s2, 7
    s_lshl_b32 s21, s21, 2
    s_bfe_u32 s22, s2, 0x20003
    s_add_u32 s21, s21, s22
    s_lshl_b32 s21, s21, 1
    s_lshr_b32 s23, s3, 2
    s_add_u32 s21, s21, s23
    v_and_b32 v1, 63, v0
    v_and_b32 v2, 31, v1
    v_lshrrev_b32 v3, 5, v1''')
    k('''s_lshl_b32 s22, s22, 6
    s_add_u32 s22, s22, s23
    s_lshl_b32 s23, s20, 1
    s_add_u32 s22, s22, s23
    s_add_u32 s22, s22, s8
    s_add_u32 s22, s22, %d''' % F2)
    k('''s_lshl_b32 s23, s20, 16
    s_lshl_b32 s24, s21, 10
    s_add_u32 s23, s23, s24
    v_lshlrev_b32 v10, 5, v2
    v_lshl_add_u32 v10, v3, 4, v10
    v_add_u32 v%d, s23, v10
    v_add_u32 v%d, 0x%x, v%d''' % (vQ, vK, WS_K - 8192, vQ))
    if P2V != 2:
        k('''v_and_b32 v10, 15, v1
        v_lshlrev_b32 v10, 5, v10
        v_lshl_add_u32 v10, v3, 4, v10
        v_add_u32 v10, s23, v10
        v_add_u32 v%d, 0x%x, v10''' % (vV, WS_VT - 8192))
    if P2V == 2:
        k('''v_and_b32 v10, 15, v1
        v_lshlrev_b32 v10, 5, v10
        v_lshl_add_u32 v10, v3, 9, v10
        v_and_b32 v11, 16, v1
        v_add3_u32 v10, v10, v11, s23
        v_add_u32 v%d, 0x%x, v10
        s_lshr_b32 s26, s3, 2
        s_mul_i32 s24, s26, 5120
        s_lshl_b32 s26, s26, 12
        s_add_u32 s27, s26, 4096
        s_and_b32 s10, s3, 3
        s_mul_i32 s10, s10, 10240
        s_add_u32 s24, s24, s10
        s_add_u32 s24, s24, %d''' % (vV, WS_VT - 8192, KVB))
    else:
        k('s_mov_b32 s26, 4096')
        k('s_mov_b32 s27, 8192')
        k('v_mov_b32 v%d, 0x3f803f80' % t1)

    def so(off):
        return ('0', 's26', 's27')[off // 4096], off % 4096

    if P2V == 2:
        p2lds(k, S, O, vQ, vK, vV, vSt, vNeg, t0, t1, vPf, aK, aV0, aQ, vMk, vBd, mk, so)
    elif P2V:
        p2new(k, S, O, vQ, vK, vV, vSt, vNeg, t0, t1, vPf, aK, aV0, aQ, vMk, vBd, mk, so)
    else:
        p2old(k, S, O, vQ, vK, vV, vSt, vNeg, t0, t1, vPf, aK, aV0, aQ, vMk, vBd, mk, so)
    if not P2V:
        k('v_rcp_f32 v%d, v%d' % (t0, O + 8))
        for i in range(8):
            k('v_mul_f32 v%d, v%d, v%d' % (O + i, O + i, t0))
        for j in range(4):
            k('v_cvt_pk_bf16_f32 v%d, v%d, v%d' % (O + j, O + 2 * j, O + 2 * j + 1))
        k('buffer_store_dwordx2 %s, v%d, s[4:7], 0 offen%s' % (vr(O, 2), vSt, OSC))
        k('buffer_store_dwordx2 %s, v%d, s[4:7], 0 offen offset:512%s' % (vr(O + 2, 2), vSt, OSC))
        if TS2:
            k.ts2(9)
        setflag(k, 22, t0)
    if TS2:
        k.ts2(10)
    k.ts(4)
    k('s_cmp_lg_u32 s100, 0')
    k('s_cbranch_scc1 J_SLOW_claim')
    k('s_cmp_lg_u32 s3, 0')
    k('s_cbranch_scc1 P2_dec')
    k('''v_readfirstlane_b32 s10, v%d
    v_readfirstlane_b32 s11, v%d
    s_lshr_b32 s30, s2, 3
    s_lshr_b32 s10, s10, s30
    s_and_b32 s10, s10, 1
    s_cmp_lg_u32 s11, -1
    s_cselect_b32 s11, 2, 0
    s_or_b32 s10, s10, s11
    v_mov_b32 v4, s10
    v_mov_b32 v5, 0x%x
    ds_write_b32 v5, v4
    s_waitcnt lgkmcnt(0)''' % (vCl, vMk, DEC))
    k.label('P2_dec')
    k('v_mov_b32 v5, 0x%x' % DEC)
    k('s_barrier')
    k('ds_read_b32 v4, v5')
    k('s_waitcnt lgkmcnt(0)')
    k('v_readfirstlane_b32 s10, v4')
    k('s_cmp_lg_u32 s10, 0')
    k('s_cbranch_scc1 J_SLOW_start')


def gemm(k, p3):
    L = 'P3' if p3 else 'P5'
    KT = 32 if p3 else 112
    wsA = WS_O if p3 else WS_HH
    NS = KT // 4
    NR = min(NS, 16)
    PF = NS if NS <= NR else NR - 1
    RS = 16384
    AR = 28 if p3 else 24
    BFR = AR + NR * 8
    ACC = BFR + 16
    RES = ACC + 64
    T = RES + 8
    vA0, vA1, vBd, vBr, vOut, vRes = 8, 9, 10, 11, 12, 13
    vW = 14
    vR = 18
    vFw, vFr, vFo = 22, 23, 24
    vSt = 25
    SCR = 4 * RS
    tsb = 5 if p3 else 11
    k('s_load_dwordx2 s[10:11], s[0:1], %d' % (0 if p3 else 56))
    if not p3:
        k('s_load_dwordx2 s[12:13], s[0:1], 48')
    k('''s_and_b32 s20, s2, 7
    s_lshl_b32 s20, s20, 2
    s_bfe_u32 s22, s2, 0x20003
    s_add_u32 s20, s20, s22
    s_lshr_b32 s21, s2, 5''')
    lanes(k)
    if p3:
        k('s_lshl_b32 s29, s22, 6')
        k('s_lshl_b32 s23, s3, 4')
    else:
        k('s_lshl_b32 s29, s22, 5')
        k('s_lshl_b32 s23, s3, 3')
    k('s_add_u32 s29, s29, s23')
    k('s_add_u32 s29, s29, s8')
    k('s_add_u32 s29, s29, %d' % (F2 if p3 else F4))
    if p3:
        k('''s_lshl_b32 s40, s22, 2
        s_add_u32 s40, s40, s3
        s_lshl_b32 s40, s40, 3
        s_add_u32 s40, s40, s21
        s_add_u32 s40, s40, s8
        s_add_u32 s40, s40, %d''' % F3)
    k('s_mul_i32 s23, s20, %d' % (2 * KT * 1024))
    k('s_mul_i32 s24, s3, %d' % (NS * 1024))
    k('s_add_u32 s23, s23, s24')
    k('s_add_u32 s23, s23, 0x%x' % wsA)
    k('v_lshlrev_b32 v4, 4, v1')
    k('v_add_u32 v%d, s23, v4' % vA0)
    k('v_add_u32 v%d, %d, v%d' % (vA1, KT * 1024, vA0))
    k('s_lshl_b32 s24, s21, 7')
    if not p3:
        gemm_bd(k, vBd, 4, 5, 24)
        k('s_mul_i32 s25, s3, %d' % (NS * 16 * 1024))
    k('s_lshl_b32 s26, s3, %d' % (14 if p3 else 11))
    k('''v_lshrrev_b32 v4, 1, v3
    v_lshlrev_b32 v4, 10, v4
    v_lshrrev_b32 v5, 2, v2
    v_lshl_add_u32 v4, v5, 6, v4
    v_and_b32 v5, 1, v3
    v_lshl_add_u32 v4, v5, 5, v4
    v_and_b32 v5, 3, v2
    v_lshl_add_u32 v4, v5, 3, v4
    v_add_u32 v%d, s26, v4''' % vBr)
    if not p3:
        k('v_add_u32 v%d, 0x10000, v%d' % (vFw, vBr))
        k('v_add_u32 v%d, 0x20000, v%d' % (vFr, vBr))
    k('v_and_b32 v4, 31, v1')
    if p3:
        k('v_lshlrev_b32 v5, 8, v4')
    else:
        k('v_lshrrev_b32 v5, 3, v4')
        k('v_lshlrev_b32 v5, 13, v5')
        k('v_and_b32 v6, 7, v4')
        k('v_lshl_add_u32 v5, v6, 8, v5')
    k('v_add_u32 v5, s26, v5')
    k('v_and_b32 v4, 7, v4')
    k('v_lshrrev_b32 v6, 5, v1')
    k('v_xor_b32 v4, v4, v6')
    for q in range(4):
        k('v_xor_b32 v6, %d, v4' % (q * 2))
        k('v_lshl_add_u32 v%d, v6, 4, v5' % (vW + q))
    k('s_lshl_b32 s27, s3, %d' % (12 if p3 else 14))
    k('v_lshrrev_b32 v4, 3, v1')
    k('v_lshlrev_b32 v5, 8, v4')
    k('v_add_u32 v5, s27, v5')
    k('v_and_b32 v6, 7, v1')
    k('v_lshlrev_b32 v6, 1, v6')
    k('v_xor_b32 v6, v6, v4')
    k('v_lshl_add_u32 v%d, v6, 4, v5' % vR)
    k('v_xor_b32 v6, 1, v6')
    k('v_lshl_add_u32 v%d, v6, 4, v5' % (vR + 1))
    k('''s_lshl_b32 s27, s3, 4
    s_lshl_b32 s28, s20, 6
    s_add_u32 s27, s27, s28
    s_lshl_b32 s27, s27, 10
    s_add_u32 s27, s27, s24
    v_lshlrev_b32 v5, 10, v4
    v_and_b32 v6, 7, v1
    v_lshl_add_u32 v5, v6, 4, v5
    v_add_u32 v4, s27, v5''')
    k('v_add_u32 v%d, 0x%x, v4' % (vOut, WS_H if p3 else 0))
    k('v_add_u32 v%d, 0x%x, v4' % (vRes, 0 if p3 else WS_H))
    k('s_mov_b32 s41, 8192')
    if p3:
        k('''s_lshl_b32 s27, s3, 11
        v_lshrrev_b32 v4, 3, v1
        v_and_b32 v5, 3, v1
        v_lshl_add_u32 v4, v5, 4, v4
        v_lshlrev_b32 v4, 4, v4
        v_bfe_u32 v5, v1, 2, 1
        v_lshl_add_u32 v4, v5, 10, v4
        v_add_u32 v4, s27, v4''')
        k('v_add_u32 v%d, %d, v4' % (vFw, SCR))
        k('v_lshlrev_b32 v4, 4, v1')
        k('v_add_u32 v5, s27, v4')
        k('v_add_u32 v%d, %d, v5' % (vFr, SCR))
        k('''s_lshl_b32 s27, s20, 2
        s_add_u32 s27, s27, s3
        s_lshl_b32 s27, s27, 4
        s_lshl_b32 s28, s21, 1
        s_add_u32 s27, s27, s28
        s_lshl_b32 s27, s27, 10''')
        k('s_add_u32 s27, s27, 0x%x' % WS_HF)
        k('v_add_u32 v%d, s27, v4' % vFo)
        k('''s_lshl_b32 s27, s20, 2
        s_add_u32 s27, s27, s3
        s_lshl_b32 s27, s27, 10
        s_lshl_b32 s28, s21, 3
        s_add_u32 s27, s27, s28
        v_lshrrev_b32 v4, 3, v1
        v_lshlrev_b32 v4, 6, v4''')
        k('s_add_u32 s27, s27, 0x%x' % WS_ST)
        k('v_add_u32 v%d, s27, v4' % vSt)
        k('s_mov_b32 s44, 0x3f803f80')
        k('s_mov_b32 s42, 0x01010101')
        k('s_mov_b32 s43, 0x01010101')
    k('s_waitcnt lgkmcnt(0)')
    make_srd(k, 16, 10, 11, 2048 * 512 * 2)
    if not p3:
        k('s_mov_b32 s14, 0x%x' % WSZ)
        k('s_mov_b32 s15, 0x00020000')
        yield 'pre'
    rsrd, osrd = (16, 4) if p3 else (4, 16)
    poll(k, L + '_poll', 29, 4 if p3 else 2)
    if not p3 and ENV('X5S'):
        for _ in range(int(ENV('X5S'))):
            k('s_sleep 64')
    k.ts(tsb)
    q = Q(k)

    def aloads(s):
        slot = s % NR
        k('s_mov_b32 s30, %d' % (s * 1024 if p3 or not ENV('X5A') else (s % int(ENV('X5A'))) * 1024))
        for mi in range(2):
            q.issue('buffer_load_dwordx4 %s, v%d, s[4:7], s30 offen%s' % (vr(AR + slot * 8 + mi * 4, 4), vA0 + mi, DSC), ('A', s))

    def reads(s):
        p = s & 1
        if p3:
            base, va = s * 2048, vBr
        else:
            a = ((s + 3) % 18) * 8192
            va = (vBr, vFw, vFr)[a >> 16]
            base = a & 0xffff
        for nb in range(2):
            for sec in range(2):
                k('ds_read_b64_tr_b16 %s, v%d offset:%d' % (
                    vr(BFR + p * 8 + nb * 4 + sec * 2, 2), va, base + sec * 512 + nb * 256))

    issued = 0
    for s in range(PF):
        aloads(s)
        issued += 1
    for j in range(2):
        q.issue('buffer_load_dwordx4 %s, v%d, s[%d:%d], %s offen%s' % (
            vr(RES + 4 * j, 4), vRes, rsrd, rsrd + 3, 's41' if j else '0', '' if p3 else DSC), ('R', j))
    reads(0)
    TS5 = {} if p3 or not ENV('TS5') else {0: 3, 3: 4, 7: 5, 12: 6, 17: 7, 22: 8}
    if TS5:
        k.ts2(2)
    for s in range(NS):
        p = s & 1
        if s + 1 < NS:
            if ('B', s + 1) in q.at:
                q.wait(('B', s + 1))
            reads(s + 1)
            k('s_waitcnt lgkmcnt(4)')
        else:
            k('s_waitcnt lgkmcnt(0)')
        q.wait(('A', s))
        if s in TS5:
            k.ts2(TS5[s])
        slot = s % NR
        for mi in range(2):
            for nb in range(2):
                acc = vr(ACC + (mi * 2 + nb) * 16, 16)
                k('v_mfma_f32_32x32x16_bf16 %s, %s, %s, %s' % (
                    acc, vr(BFR + p * 8 + nb * 4, 4), vr(AR + slot * 8 + mi * 4, 4), '0' if s == 0 else acc))
        if issued < NS:
            aloads(issued)
            issued += 1
        if not p3 and s + 18 < NS and not ENV('X5B'):
            p5_bstep(k, s + 18, vBd, 25, 26, 12, q)
    k.ts(tsb + 1)
    for t in range(4):
        for qq in range(4):
            k('ds_write_b128 v%d, %s offset:%d' % (vW + qq, vr(ACC + t * 16 + qq * 4, 4),
                                                   (t >> 1) * (8192 if p3 else 32768) + (t & 1) * 128))
    k('s_waitcnt lgkmcnt(0)')
    k('s_barrier')
    for j in range(2):
        for src in range(4):
            for e in range(2):
                off = (src * RS + j * 2048) if p3 else (src * 2048 + j * 8192)
                k('ds_read_b128 %s, v%d offset:%d' % (vr(ACC + (j * 4 + src) * 8 + e * 4, 4), vR + e, off))
    for j in range(2):
        b = ACC + j * 32
        k('s_waitcnt lgkmcnt(%d)' % (12 - 8 * j))
        for i in range(8):
            k('v_add_f32 v%d, v%d, v%d' % (b + i, b + i, b + 8 + i))
        k('s_waitcnt lgkmcnt(%d)' % (8 - 8 * j))
        for i in range(8):
            k('v_add_f32 v%d, v%d, v%d' % (b + 16 + i, b + 16 + i, b + 24 + i))
        for i in range(8):
            k('v_add_f32 v%d, v%d, v%d' % (b + i, b + i, b + 16 + i))
        if j == 0:
            k('s_waitcnt vmcnt(0)')
        for i in range(4):
            k('v_cvt_pk_bf16_f32 v%d, v%d, v%d' % (T + 4, b + 2 * i, b + 2 * i + 1))
            k('v_lshlrev_b32 v%d, 16, v%d' % (T, T + 4))
            k('v_and_b32 v%d, 0xffff0000, v%d' % (T + 1, T + 4))
            k('v_lshlrev_b32 v%d, 16, v%d' % (T + 2, RES + 4 * j + i))
            k('v_and_b32 v%d, 0xffff0000, v%d' % (T + 3, RES + 4 * j + i))
            k('v_add_f32 v%d, v%d, v%d' % (T, T, T + 2))
            k('v_add_f32 v%d, v%d, v%d' % (T + 1, T + 1, T + 3))
            k('v_cvt_pk_bf16_f32 v%d, v%d, v%d' % (T + 8 + 4 * j + i, T, T + 1))
        k('buffer_store_dwordx4 %s, v%d, s[%d:%d], %s offen%s' % (vr(T + 8 + 4 * j, 4), vOut, osrd, osrd + 3, 's41' if j else '0', HSC if p3 else ''))
        if p3:
            k('ds_write_b128 v%d, %s offset:%d' % (vFw, vr(T + 8 + 4 * j, 4), j * 128))
            for i in range(4):
                d = T + 8 + 4 * j + i
                k('v_dot2_f32_bf16 v%d, v%d, s44, %s' % (BFR + 2 * j, d, 'v%d' % (BFR + 2 * j) if i else '0'))
                k('v_dot2_f32_bf16 v%d, v%d, v%d, %s' % (BFR + 2 * j + 1, d, d, 'v%d' % (BFR + 2 * j + 1) if i else '0'))
    if p3:
        k('s_waitcnt lgkmcnt(0)')
        for j in range(2):
            k('ds_read_b128 %s, v%d offset:%d' % (vr(ACC + 4 * j, 4), vFr, j * 1024))
        DP = ' row_mask:0xf bank_mask:0xf'
        for m in ('quad_perm:[1,0,3,2]', 'quad_perm:[2,3,0,1]', 'row_half_mirror'):
            for i in range(4):
                k('v_add_f32_dpp v%d, v%d, v%d %s%s' % (BFR + i, BFR + i, BFR + i, m, DP))
        k('s_mov_b64 exec, s[42:43]')
        for j in range(2):
            k('buffer_store_dwordx2 %s, v%d, s[4:7], 0 offen offset:%d%s' % (vr(BFR + 2 * j, 2), vSt, j * 512, SSC))
        k('s_mov_b64 exec, -1')
        for j in range(2):
            k('s_waitcnt lgkmcnt(%d)' % (1 - j))
            k('buffer_store_dwordx4 %s, v%d, s[4:7], 0 offen offset:%d%s' % (vr(ACC + 4 * j, 4), vFo, j * 1024, FSC))
    yield 'end'


def cs_sum(k, mid=None, nmid=0):
    k('''s_lshr_b32 s10, s2, 4
    s_mul_i32 s10, s10, 448
    s_bfe_u32 s11, s3, 0x10001
    s_mul_i32 s30, s11, 7168
    s_add_u32 s10, s10, s30
    s_add_u32 s10, s10, 0x%x
    s_mul_i32 s11, s11, 448
    s_add_u32 s11, s11, %d
    v_and_b32 v4, 31, v1
    v_lshlrev_b32 v4, 4, v4
    v_add_u32 v6, s11, v4
    v_lshrrev_b32 v5, 5, v1
    v_mul_u32_u24 v5, %d, v5
    v_add_u32 v4, v4, v5''' % (WS_CS2, CSB, 8 * 14336))
    for p in range(8):
        k('s_add_u32 s30, s10, %d' % (p * 14336))
        k('buffer_load_dwordx4 %s, v4, s[4:7], s30 offen' % vr(32 + p * 4, 4))
    if mid:
        mid()
    for p in range(1, 8):
        k('s_waitcnt vmcnt(%d)' % (7 - p + nmid))
        for i in range(4):
            k('v_add_f32 v%d, v%d, v%d' % (32 + i, 32 + i, 32 + p * 4 + i))
    for i in range(4):
        k('v_mov_b32 v%d, v%d' % (36 + i, 32 + i))
    for i in range(4):
        k('v_permlane32_swap_b32 v%d, v%d' % (32 + i, 36 + i))
    for i in range(4):
        k('v_add_f32 v%d, v%d, v%d' % (32 + i, 32 + i, 36 + i))
    k('s_mov_b64 exec, 0x0fffffff')
    k('ds_write_b128 v6, v[32:35]')
    k('s_mov_b64 exec, -1')


def p4_loader(k):
    vA, vBd, vB5, vG = 8, 16, 17, 18
    RAMP = int(ENV('RAMP', '2'))
    k.label('J_LD4')
    k('s_and_b32 s22, s3, 3')
    k('''s_cmp_lt_u32 s22, 2
    s_cselect_b32 s10, 32, 40
    s_load_dwordx2 s[16:17], s[0:1], s10
    s_load_dwordx2 s[12:13], s[0:1], 48''')
    k('v_and_b32 v1, 63, v0')
    k('''s_and_b32 s20, s2, 7
    s_lshl_b32 s20, s20, 1
    s_bfe_u32 s21, s2, 0x10003
    s_add_u32 s20, s20, s21
    s_lshl_b32 s23, s20, 17
    s_lshl_b32 s24, s22, 15
    s_add_u32 s23, s23, s24
    s_add_u32 s23, s23, 0x%x
    v_lshlrev_b32 v4, 4, v1
    v_add_u32 v%d, s23, v4''' % (WS_HF, vA))
    k('''s_lshl_b32 s29, s21, 6
    s_lshl_b32 s24, s22, 4
    s_add_u32 s29, s29, s24
    s_add_u32 s29, s29, s8
    s_add_u32 s29, s29, %d''' % F3)
    for i in range(1, 8):
        k('s_mov_b32 s%d, %d' % (47 + i, i * 4096))
    p4_bsetup(k, vBd, 4, 5, 26, 27)
    k('s_lshl_b32 s28, s22, 11')
    k('s_lshr_b32 s10, s2, 5')
    k('s_lshl_b32 s10, s10, 7')
    gemm_bd(k, vB5, 4, 5, 10)
    k('s_mul_i32 s25, s22, %d' % (28 * 16 * 1024))
    k('v_lshlrev_b32 v%d, 10, v1' % vG)
    k('s_mov_b32 s40, 0x%x' % (WS_FL + GST))
    k('s_waitcnt lgkmcnt(0)')
    k('s_mov_b32 s18, 0x%x' % WSZ)
    k('s_mov_b32 s19, 0x00020000')
    k('s_mov_b32 s14, 0x%x' % WSZ)
    k('s_mov_b32 s15, 0x00020000')
    poll(k, 'LD4_poll', 29, 4)
    k.ts(8)
    q = Q(k)

    def astage(ks):
        sl = ((ks + 3) % NSL) * SLOT
        for mf in range(2):
            o_ = (mf * 16 + ks) * 1024
            k('s_add_u32 m0, s28, %d' % (sl + 16384 + mf * 1024 - o_ % 4096))
            q.issue('buffer_load_dwordx4 v%d, s[4:7], %s offen offset:%d%s lds' % (
                vA, ('s%d' % (47 + o_ // 4096)) if o_ >= 4096 else '0', o_ % 4096, DSC), ('S', ks))

    def stage(ks):
        astage(ks)
        if ks >= 3:
            p4_bstage(k, ks, vBd, 26, 27, 16, q)
            q.at[('S', ks)] = q.n

    issued = 0
    for ks in range(3):
        stage(ks)
        issued += 1
    for ks in range(16):
        q.wait(('S', ks))
        if ENV('TS4') and ks in (2, 4, 6, 8, 10, 12):
            k.ts2(1 + ks // 2)
        k('s_barrier')
        for _ in range(RAMP):
            if issued < 16 and issued <= ks + NSL - 1:
                stage(issued)
                issued += 1
        if ks == 8:
            k('s_mov_b64 exec, 0xff')
            q.issue('buffer_load_dword v%d, v%d, s[4:7], s40 offen sc1' % (vG + 1, vG), 'G')
            k('s_mov_b64 exec, -1')
        if ks >= 11 and not ENV('X5P'):
            for s in range((ks - 11) * 3, (ks - 11) * 3 + 3):
                p5_bstep(k, s, vB5, 25, 28, 12, q)
    k('s_barrier')
    k('s_cmp_lg_u32 s100, 0')
    k('s_cbranch_scc1 J_SLOW_next')
    for s in range(15, 18):
        p5_bstep(k, s, vB5, 25, 28, 12, q)
    q.wait('G')
    k('s_mov_b64 exec, 0xff')
    k('v_cmp_eq_u32 vcc, 0, v%d' % (vG + 1))
    k('s_mov_b64 exec, -1')
    k('v_mov_b32 v5, 0x%x' % DEC)
    k('s_and_b32 s10, vcc_lo, 0xff')
    k('v_mov_b32 v4, s10')
    k('s_cmp_lg_u32 s3, 4')
    k('s_cbranch_scc1 LD4_nw')
    k('ds_write_b32 v5, v4 offset:4')
    k.label('LD4_nw')
    k('s_waitcnt vmcnt(0) lgkmcnt(0)')
    k.ts(9)
    k('s_barrier')
    k('ds_read_b32 v4, v5 offset:4')
    k('s_waitcnt lgkmcnt(0)')
    k('v_readfirstlane_b32 s10, v4')
    k('s_cmp_lg_u32 s10, 0')
    k('s_cbranch_scc1 LD4_steal')
    prof_end(k)
    k('s_endpgm')
    k.label('LD4_steal')
    k('s_barrier')
    k('s_branch J_SLOW_end')


def p4_comp(k):
    SS = 18
    vM, vC, vI = 26, 28, 30
    AF = 32
    BF = 48
    ACC = 104
    T = 216
    E = 224
    CS = BF
    vSt = 9
    vRd = 10
    vRa = 14
    vCs = 17
    vS2 = 16
    k.label('J_P4')
    lanes(k)
    k('''s_and_b32 s20, s2, 7
    s_lshl_b32 s20, s20, 1
    s_bfe_u32 s22, s2, 0x10003
    s_add_u32 s20, s20, s22
    s_lshr_b32 s21, s2, 4''')
    k('''s_lshl_b32 s40, s22, 1
    s_lshr_b32 s23, s3, 1
    s_add_u32 s40, s40, s23
    s_lshl_b32 s40, s40, 4
    s_add_u32 s40, s40, s21
    s_lshl_b32 s40, s40, 1
    s_and_b32 s23, s3, 1
    s_add_u32 s40, s40, s23
    s_add_u32 s40, s40, s8
    s_add_u32 s40, s40, %d''' % F4)
    k('''v_lshlrev_b32 v4, 3, v3
    v_lshrrev_b32 v5, 2, v2
    v_add_u32 v4, v4, v5
    v_lshlrev_b32 v4, 6, v4
    v_and_b32 v5, 3, v2
    v_lshl_add_u32 v4, v5, 3, v4
    s_and_b32 s30, s21, 1
    v_and_b32 v5, 1, v3
    v_xor_b32 v5, s30, v5
    v_lshl_add_u32 v%d, v5, 5, v4
    v_xor_b32 v5, 1, v5
    v_lshl_add_u32 v4, v5, 5, v4
    s_lshl_b32 s30, s30, 11
    v_add_u32 v%d, s30, v4''' % (vRd, vRd + 1))
    for par in range(2):
        k('v_add_u32 v%d, %d, v%d' % (vRd + 2 + par, 3 * SLOT, vRd + par))
    k('s_lshl_b32 s28, s3, 11')
    k('s_add_u32 s28, s28, 16384')
    k('v_lshlrev_b32 v4, 4, v1')
    k('v_add_u32 v%d, s28, v4' % vRa)
    k('v_add_u32 v%d, %d, v%d' % (vRa + 1, 3 * SLOT, vRa))
    k('''v_lshrrev_b32 v4, 1, v3
    v_lshlrev_b32 v4, 5, v4
    v_add_u32 v4, v4, v2
    v_lshlrev_b32 v4, 4, v4
    v_and_b32 v5, 1, v3
    v_lshl_add_u32 v%d, v5, 3, v4''' % vSt)
    k('''s_lshl_b32 s25, s20, 2
    s_add_u32 s25, s25, s3
    s_mul_i32 s25, s25, 112
    s_mul_i32 s30, s21, 7
    s_add_u32 s25, s25, s30
    s_lshl_b32 s25, s25, 10
    s_add_u32 s25, s25, 0x%x''' % WS_HH)
    k('v_lshlrev_b32 v8, 7, v1')
    k('v_lshlrev_b32 v4, 4, v3')
    k('v_add_u32 v%d, 0x%x, v4' % (vCs, CSB))
    k('''s_lshl_b32 s30, s20, 2
    s_add_u32 s30, s30, s3
    s_lshl_b32 s30, s30, 11
    s_add_u32 s30, s30, 0x%x
    v_lshl_add_u32 v4, v2, 6, v4
    v_add_u32 v%d, s30, v4''' % (WS_ST, vS2))
    yield 'pre'

    def areg(ks, mf):
        return AF + ((ks & 1) * 2 + mf) * 4

    def reads(hs):
        ks, mx = hs >> 1, hs & 1
        slot = (ks + 3) % NSL
        out = []
        if mx == 0:
            for mf in range(2):
                out.append('ds_read_b128 %s, v%d offset:%d' % (vr(areg(ks, mf), 4), vRa + slot // 3, (slot % 3) * SLOT + mf * 1024))
        for nf in range(7):
            for kgl in range(2):
                out.append('ds_read_b64_tr_b16 %s, v%d offset:%d' % (
                    vr(BF + mx * 28 + nf * 4 + kgl * 2, 2), vRd + (slot // 3) * 2 + (nf & 1),
                    (slot % 3) * SLOT + mx * 8192 + (nf >> 1) * 2048 + kgl * 256))
        return out

    class Lst:
        def __init__(self):
            self.l = []

        def __call__(self, x):
            self.l.append(x)

    k('s_barrier')
    k.ts(8)
    for o in reads(0):
        k(o)
    for mf in range(2):
        k('buffer_load_dwordx4 %s, v%d, s[4:7], 0 offen offset:%d%s' % (vr(SS + mf * 4, 4), vS2, mf * 1024, DSC))
    SF = Lst()
    stats_fin(SF, SS, T, vM, vC, vI)
    no = []
    for hs in range(32):
        ks, mx = hs >> 1, hs & 1
        k('s_waitcnt lgkmcnt(0)')
        if ENV('TS4') == '2' and mx == 1 and ks in (1, 3, 5, 7, 9, 11):
            k.ts2(2 + ks // 2)
        if mx == 1 and ks + 1 < 16:
            k('s_barrier')
        if ENV('TS4') == '1' and mx == 1 and ks in (1, 3, 5, 7, 9, 11):
            k.ts2(2 + ks // 2)
        rd = reads(hs + 1) if hs + 1 < 32 else []
        if hs == 8:
            k('s_waitcnt vmcnt(0)')
            no = SF.l
        if PRE and PREG and hs == HPF:
            k('s_mov_b32 exec_hi, 0x00ffffff')
            k('buffer_load_dword v7, v8, s[4:7], s25 offen')
            k('s_mov_b32 exec_hi, -1')
        for nf in range(7):
            for mf in range(2):
                acc = vr(ACC + (mf * 14 + mx * 7 + nf) * 4, 4)
                a = vr(areg(ks, mf), 4)
                b = vr(BF + mx * 28 + nf * 4, 4)
                k('v_mfma_f32_16x16x32_bf16 %s, %s, %s, %s' % (acc, b, a, '0' if ks == 0 else acc))
                for _ in range(2):
                    if rd:
                        k(rd.pop(0))
                if no and not rd:
                    k(no.pop(0))
                    if no:
                        k(no.pop(0))
        for o in rd:
            k(o)
    assert not no
    k.ts(9)
    k('s_waitcnt vmcnt(0)')
    k('s_barrier')
    for mx in range(2):
        for nf in range(7):
            k('ds_read_b128 %s, v%d offset:%d' % (vr(CS + (mx * 7 + nf) * 4, 4), vCs, mx * 448 + nf * 64))
    k('s_waitcnt lgkmcnt(0)')
    n = 0
    for nf in range(7):
        k('s_add_u32 s29, s25, %d' % (nf * 1024))
        for mf in range(2):
            e = E + (n & 3) * 8
            n += 1
            G = ACC + (mf * 14 + nf) * 4
            U = ACC + (mf * 14 + 7 + nf) * 4
            sel = 'op_sel:[0,%d,0] op_sel_hi:[1,%d,1]' % (mf, mf)
            sel2 = 'op_sel:[0,%d] op_sel_hi:[1,%d]' % (mf, mf)
            sel3 = 'op_sel:[0,%d,%d] op_sel_hi:[1,%d,%d]' % (mf, mf, mf, mf)
            for h in range(2):
                k('v_pk_fma_f32 %s, %s, %s, %s %s neg_lo:[0,1,0] neg_hi:[0,1,0]' % (
                    vr(G + 2 * h, 2), vr(CS + nf * 4 + 2 * h, 2), vr(vM, 2), vr(G + 2 * h, 2), sel))
            for h in range(2):
                k('v_pk_mul_f32 %s, %s, %s %s' % (vr(e + 2 * h, 2), vr(G + 2 * h, 2), vr(vC, 2), sel2))
            for r in range(4):
                k('v_exp_f32 v%d, v%d' % (e + r, e + r))
            for h in range(2):
                k('v_pk_fma_f32 %s, %s, %s, %s %s neg_lo:[0,1,0] neg_hi:[0,1,0]' % (
                    vr(U + 2 * h, 2), vr(CS + (7 + nf) * 4 + 2 * h, 2), vr(vM, 2), vr(U + 2 * h, 2), sel))
            for h in range(2):
                k('v_pk_fma_f32 %s, %s, %s, %s %s' % (vr(e + 2 * h, 2), vr(e + 2 * h, 2), vr(vI, 2), vr(vI, 2), sel3))
            for r in range(4):
                k('v_rcp_f32 v%d, v%d' % (e + r, e + r))
            for h in range(2):
                k('v_pk_mul_f32 %s, %s, %s' % (vr(G + 2 * h, 2), vr(G + 2 * h, 2), vr(U + 2 * h, 2)))
            for h in range(2):
                k('v_pk_mul_f32 %s, %s, %s' % (vr(G + 2 * h, 2), vr(G + 2 * h, 2), vr(e + 2 * h, 2)))
            k('v_cvt_pk_bf16_f32 v%d, v%d, v%d' % (e + 4, G, G + 1))
            k('v_cvt_pk_bf16_f32 v%d, v%d, v%d' % (e + 5, G + 2, G + 3))
            k('buffer_store_dwordx2 %s, v%d, s[4:7], s29 offen offset:%d%s' % (vr(e + 4, 2), vSt, mf * 256, GSC))
    yield 'end'


def prof_end(k):
    if not PROF:
        return
    k('s_waitcnt vmcnt(0)')
    k.ts(14)
    k.ts(15, True)
    k('s_waitcnt lgkmcnt(0)')
    k('s_lshl_b32 s99, s2, 3')
    k('s_add_u32 s99, s99, s3')
    k('s_lshl_b32 s99, s99, 7')
    k('s_add_u32 s99, s99, 0x%x' % (PROF_BASE + 0x40000))
    k('v_mov_b32 v4, 0')
    for i in range(16):
        k('v_mov_b32 v2, s%d' % (64 + 2 * i))
        k('v_mov_b32 v3, s%d' % (65 + 2 * i))
        k('buffer_store_dwordx2 v[2:3], v4, s[4:7], s99 offen offset:%d' % (8 * i))
        k('s_nop 1')


def bcast_read(k, off):
    k('v_mov_b32 v5, 0x%x' % DEC)
    k('s_barrier')
    k('ds_read_b32 v4, v5 offset:%d' % off)
    k('s_waitcnt lgkmcnt(0)')
    k('v_readfirstlane_b32 s10, v4')


def slow(k):
    k.label('J_SLOW_start')
    k('s_lshr_b32 s11, s2, 3')
    k('s_lshl_b32 s9, 1, s11')
    k('s_bitcmp1_b32 s10, 0')
    k('s_cselect_b32 s9, 0, s9')
    k('s_mov_b32 s100, 1')
    k('s_mov_b32 s97, %d' % PATIENCE)
    k.label('J_SLOW_claim')
    k('s_waitcnt vmcnt(0) lgkmcnt(0)')
    k('s_barrier')
    k('s_cmp_lg_u32 s3, 0')
    k('s_cbranch_scc1 SL_c9')
    k('s_mov_b64 exec, 1')
    k('s_mov_b32 s30, 0')
    k('s_mov_b32 s31, 0')
    k.label('J_SL_c1')
    k('v_mov_b32 v4, 0')
    k('buffer_atomic_or v4, off, s[4:7], s8 sc0')
    k('s_add_u32 s31, s31, 1')
    k('s_waitcnt vmcnt(0)')
    k('v_readfirstlane_b32 s10, v4')
    k('s_mov_b32 s11, -1')
    k('s_cmp_eq_u32 s10, -1')
    k('s_cbranch_scc1 SL_c8')
    k('s_cmp_gt_u32 s31, 4096')
    k('s_cbranch_scc1 SL_c8')
    k('s_cmp_eq_u32 s9, 0')
    k('s_cbranch_scc1 SL_c2')
    k('s_cmp_ge_u32 s30, s97')
    k('s_cbranch_scc1 SL_c2')
    k('s_add_u32 s30, s30, 1')
    k('s_sleep 16')
    k('s_branch J_SL_c1')
    k.label('SL_c2')
    k('s_ff0_i32_b32 s11, s10')
    k('s_lshl_b32 s10, 1, s11')
    k('v_mov_b32 v4, s10')
    k('buffer_atomic_or v4, off, s[4:7], s8 sc0')
    k('s_waitcnt vmcnt(0)')
    k('v_readfirstlane_b32 s12, v4')
    k('s_and_b32 s12, s12, s10')
    k('s_cmp_lg_u32 s12, 0')
    k('s_cbranch_scc1 J_SL_c1')
    k.label('SL_c8')
    k('v_mov_b32 v4, s11')
    k('v_mov_b32 v5, 0x%x' % DEC)
    k('ds_write_b32 v5, v4 offset:8')
    k('s_mov_b64 exec, -1')
    k('s_waitcnt lgkmcnt(0)')
    k.label('SL_c9')
    bcast_read(k, 8)
    k('s_cmp_eq_u32 s10, -1')
    k('s_cbranch_scc1 SL_ph')
    k('s_and_b32 s10, s10, 31')
    k('s_lshl_b32 s11, 1, s10')
    k('s_or_b32 s9, s9, s11')
    k('s_and_b32 s2, s2, 7')
    k('s_lshl_b32 s10, s10, 3')
    k('s_or_b32 s2, s2, s10')
    k('s_branch J_P2')
    k.label('SL_ph')
    k('s_mov_b32 s100, 3')
    k('s_mov_b32 s101, s9')
    k.label('J_SLOW_next')
    k('s_waitcnt vmcnt(0) lgkmcnt(0)')
    k('s_barrier')
    k('s_cmp_lg_u32 s101, 0')
    k('s_cbranch_scc1 SL_n1')
    k('s_add_u32 s100, s100, 1')
    k('s_mov_b32 s101, s9')
    k('s_cmp_gt_u32 s100, 5')
    k('s_cbranch_scc1 J_SLOW_end')
    k('s_branch J_SLOW_next')
    k.label('SL_n1')
    k('s_ff1_i32_b32 s10, s101')
    k('s_bitset0_b32 s101, s10')
    k('s_and_b32 s2, s2, 7')
    k('s_lshl_b32 s10, s10, 3')
    k('s_or_b32 s2, s2, s10')
    k('v_and_b32 v1, 63, v0')
    k('s_cmp_ge_u32 s3, 4')
    k('s_cbranch_scc1 SL_ld')
    k('s_cmp_eq_u32 s100, 4')
    k('s_cbranch_scc1 J_P4')
    k('s_cmp_eq_u32 s100, 5')
    k('s_cbranch_scc1 J_P5')
    k('s_load_dwordx2 s[12:13], s[0:1], 16')
    k('s_mov_b32 s14, 0x80000')
    k('s_mov_b32 s15, 0x00020000')
    k('s_waitcnt lgkmcnt(0)')
    wo_dma(k, 8, 4, 5)
    k('s_waitcnt vmcnt(0)')
    k('s_branch J_P3')
    k.label('SL_ld')
    k('s_cmp_eq_u32 s100, 3')
    k('s_cbranch_scc1 SL_l3')
    k('s_cmp_eq_u32 s100, 5')
    k('s_cbranch_scc1 SL_l5')
    k('''s_cmp_lt_u32 s3, 6
    s_cselect_b32 s10, 32, 40
    s_load_dwordx2 s[12:13], s[0:1], s10
    s_mov_b32 s14, 0x%x
    s_mov_b32 s15, 0x00020000''' % WSZ)
    p4_bsetup(k, 8, 4, 5, 23, 24)
    k('s_waitcnt lgkmcnt(0)')
    for ks in range(3):
        p4_bstage(k, ks, 8, 23, 24, 12)
    cs_sum(k)
    k('s_waitcnt lgkmcnt(0)')
    k('s_branch J_LD4')
    k.label('SL_l5')
    k('s_load_dwordx2 s[12:13], s[0:1], 48')
    k('s_mov_b32 s14, 0x%x' % WSZ)
    k('s_mov_b32 s15, 0x00020000')
    k('s_lshr_b32 s10, s2, 5')
    k('s_lshl_b32 s10, s10, 7')
    gemm_bd(k, 8, 4, 5, 10)
    k('s_and_b32 s22, s3, 3')
    k('s_mul_i32 s25, s22, %d' % (28 * 16 * 1024))
    k('s_lshl_b32 s28, s22, 11')
    k('s_waitcnt lgkmcnt(0)')
    for s in range(18):
        p5_bstep(k, s, 8, 25, 28, 12)
    k('s_waitcnt vmcnt(0)')
    k('s_barrier')
    k.label('SL_l3')
    k('s_barrier')
    k('s_branch J_SLOW_next')
    k.label('J_SLOW_end')
    k('s_waitcnt vmcnt(0) lgkmcnt(0)')
    k('s_barrier')
    k('s_cmp_lg_u32 s3, 0')
    k('s_cbranch_scc1 SL_e9')
    k('v_and_b32 v1, 63, v0')
    k('v_lshlrev_b32 v6, 10, v1')
    k('s_mov_b32 s11, 0x%x' % (WS_FL + GST))
    k('s_mov_b64 exec, 0xff')
    k('buffer_load_dword v4, v6, s[4:7], s11 offen sc1')
    k('s_waitcnt vmcnt(0)')
    k('v_cmp_eq_u32 vcc, 0, v4')
    k('s_mov_b64 exec, 1')
    k('s_and_b32 s10, vcc_lo, 0xff')
    k('s_ff1_i32_b32 s10, s10')
    k('s_cmp_eq_u32 s10, -1')
    k('s_cbranch_scc1 SL_e8')
    k('s_lshl_b32 s12, s10, 10')
    k('s_add_u32 s11, s11, s12')
    k('v_mov_b32 v4, 1')
    k('buffer_store_dword v4, off, s[4:7], s11 sc1')
    k('s_waitcnt vmcnt(0)')
    k.label('SL_e8')
    k('v_mov_b32 v4, s10')
    k('v_mov_b32 v5, 0x%x' % DEC)
    k('ds_write_b32 v5, v4 offset:12')
    k('s_mov_b64 exec, -1')
    k('s_waitcnt lgkmcnt(0)')
    k.label('SL_e9')
    bcast_read(k, 12)
    k('s_cmp_eq_u32 s10, -1')
    k('s_cbranch_scc1 KF_done')
    k('s_and_b32 s2, s10, 7')
    k('s_lshl_b32 s8, s98, 3')
    k('s_add_u32 s8, s8, s2')
    k('s_lshl_b32 s8, s8, 10')
    k('s_add_u32 s8, s8, 0x%x' % WS_FL)
    k('s_mov_b32 s9, 0')
    k('s_mov_b32 s100, 1')
    k('s_mov_b32 s97, 0')
    k('s_branch J_SLOW_claim')


def gen_kf():
    k = Kernel('kf')
    if ENV('TS5'):
        k.tsoff = set(range(2, 9))
    if ENV('TS4'):
        k.tsoff = set(range(2, 8))
    if TS2:
        k.tsoff = set(range(2, 11))
    k('s_cmp_ge_u32 s2, 256')
    k('s_cbranch_scc1 KF_done')
    k.ts(0, True)
    k.ts(1)
    k('s_load_dwordx2 s[4:5], s[0:1], 72')
    k('s_getreg_b32 s98, hwreg(HW_REG_XCC_ID, 0, 4)')
    FAKE = ENV('FAKEX', '')
    if FAKE == 'g0':
        gsrc = '0'
    else:
        gsrc = None
    k('v_lshrrev_b32 v1, 6, v0')
    k('v_readfirstlane_b32 s3, v1')
    if gsrc is None:
        k('s_and_b32 s10, s98, 7')
    else:
        k('s_mov_b32 s10, %s' % gsrc)
    k('''s_andn2_b32 s2, s2, 7
    s_or_b32 s2, s2, s10
    s_lshl_b32 s8, s98, 3
    s_add_u32 s8, s8, s10
    s_lshl_b32 s8, s8, 10
    s_add_u32 s8, s8, 0x%x
    s_lshl_b32 s10, s10, 10
    s_add_u32 s10, s10, 0x%x
    s_mov_b32 s100, 0
    s_mov_b32 s6, 0x%x
    s_mov_b32 s7, 0x00020000
    s_lshr_b32 s11, s2, 3
    s_lshl_b32 s11, 1, s11
    v_mov_b32 v252, s11
    v_mov_b32 v253, 1''' % (WS_FL, WS_FL + GST, WS_SIZE))
    if FAKE == 'drop':
        k('s_and_b32 s11, s2, 0x78')
        k('s_cmp_eq_u32 s11, 0x28')
        k('s_cbranch_scc1 KF_done')
    if P2V:
        k('s_mov_b32 s9, s10')
    else:
        k('s_waitcnt lgkmcnt(0)')
        k('s_cmp_lg_u32 s3, 0')
        k('s_cbranch_scc1 J_P2')
        k('s_mov_b64 exec, 1')
        k('buffer_atomic_or v252, off, s[4:7], s8 sc0')
        k('buffer_store_dword v253, off, s[4:7], s10 sc1')
        k('s_mov_b64 exec, -1')
    phase2(k)
    k('s_cmp_ge_u32 s3, 4')
    k('s_cbranch_scc1 J_LD3')
    k.label('J_P3')
    for _ in gemm(k, True):
        pass
    g4 = p4_comp(k)
    k('s_cmp_lg_u32 s100, 0')
    k('s_cbranch_scc0 P3_fast')
    setflag(k, 40, 4)
    k('s_branch J_SLOW_next')
    k.label('P3_fast')
    k('s_mov_b32 s41, s40')
    next(g4)
    k('s_cmp_lg_u32 s100, 0')
    k('s_cbranch_scc1 P4_go')
    setflag(k, 41, 4)
    k.ts(7)
    k.label('P4_go')
    next(g4)
    g5 = gemm(k, False)
    k('s_cmp_lg_u32 s100, 0')
    k('s_cbranch_scc0 J_P5')
    setflag(k, 40, 4)
    k('s_branch J_SLOW_next')
    k.label('J_P5')
    next(g5)
    k('s_cmp_lg_u32 s100, 0')
    k('s_cbranch_scc1 P5_go')
    setflag(k, 40, 4)
    k.ts(10)
    k.label('P5_go')
    k('v_mov_b32 v5, 0x%x' % DEC)
    k('s_barrier')
    k('ds_read_b32 v4, v5 offset:4')
    k('s_waitcnt lgkmcnt(0)')
    k('v_readfirstlane_b32 s96, v4')
    next(g5)
    k.ts(13)
    k('s_cmp_lg_u32 s100, 0')
    k('s_cbranch_scc1 J_SLOW_next')
    k('s_cmp_lg_u32 s96, 0')
    k('s_cbranch_scc1 J_SLOW_end')
    prof_end(k)
    k.label('KF_done')
    k('s_endpgm')
    k.label('J_LD3')
    k('v_and_b32 v1, 63, v0')
    if P2V == 2:
        k('''s_cmp_lt_u32 s3, 6
        s_cselect_b32 s10, 32, 40
        s_load_dwordx2 s[12:13], s[0:1], s10
        s_mov_b32 s14, 0x%x''' % WSZ)
        p4_bsetup(k, 8, 4, 5, 23, 24)

        def mid():
            k('s_waitcnt lgkmcnt(0)')
            for ks in range(3):
                p4_bstage(k, ks, 8, 23, 24, 12)
        cs_sum(k, mid, 12)
    else:
        cs_sum(k)
    if PRE and NPF3:
        l2pf(k, NPF3, 40, NPF3)
    k('s_waitcnt lgkmcnt(0)')
    k('s_barrier')
    k.ts(5)
    p4_loader(k)
    slow(k)
    k.label('KF_END')
    k('s_endpgm')
    return k, dict(vgpr=256, agpr=0, lds=LDS_SIZE, grid=256, block=512)
```

```python
from asmlib import Kernel, PROF, PROF_BASE
from k1 import vr, sr, make_srd, WS_Q, WS_K, WS_VT, WS_O, WS_H, WS_HF, WS_HH, WS_ST, WS_CS2, WS_FL, WS_SIZE
from k4 import stats_fin
import struct, os


def f32hex(x):
    return '0x%08x' % struct.unpack('<I', struct.pack('<f', x))[0]


SLOT = 24576
NSL = 6
CSB = 3 * SLOT + 81920
DEC = CSB + 1024
LDS_SIZE = DEC + 256
F2, F3, F4 = 128, 384, 512
GST = 15 * 8 * 1024 + 768
POLL_LIMIT = int(os.environ.get('POLL_LIMIT', '0x20000'), 0)
PATIENCE = 48
WSZ = 512 * 1792 * 2
ENV = os.environ.get
DSC = ENV('DSC', '')
PSC = ENV('PSC', ' sc1')
PRE = int(ENV('PRE', '1'))
HPF = int(ENV('HPF', '10'))
NPF3 = int(ENV('NPF3', '0'))
SCM = {'': '', '1': ' sc1', '01': ' sc0 sc1', 'nt': ' nt', '0': ' sc0', 'nt1': ' sc1 nt'}
OSC = SCM[ENV('OSC', '1')]
HSC = SCM[ENV('HSC', '1')]
GSC = SCM[ENV('GSC', '1')]
SSC = SCM[ENV('SSC', '')]
FSC = SCM[ENV('FSC', '')]
PREO = int(ENV('PREO', '0'))
PREH = int(ENV('PREH', '6'))
TS2 = ENV('TS2')
DT = int(ENV('DT', '-1'))
PKF = int(ENV('PKF', '1'))
PF2 = int(ENV('PF2', '0'))
PF2L = int(ENV('PF2L', '16'))
PREG = int(ENV('PREG', '0'))
P2V = int(ENV('P2V', '2'))
CPF = int(ENV('KCPF', '1'))


OOL = []


class Q:
    def __init__(self, k):
        self.k = k
        self.n = 0
        self.at = {}

    def issue(self, text, tag=None):
        self.k(text)
        self.n += 1
        if tag is not None:
            self.at[tag] = self.n

    def wait(self, *tags):
        m = max(self.at[t] for t in tags)
        self.k('s_waitcnt vmcnt(%d)' % min(63, self.n - m))


def poll(k, L, soff, nd, vt=4):
    k('s_mov_b32 s30, 0')
    k('s_mov_b64 exec, 1')
    k.label(L)
    k('buffer_load_dwordx%d %s, off, s[4:7], s%d%s' % (nd, vr(vt, nd), soff, PSC))
    k('s_add_u32 s30, s30, 1')
    k('s_waitcnt vmcnt(0)')
    k('v_and_b32 v%d, v%d, v%d' % (vt, vt, vt + 1))
    if nd == 4:
        k('v_and_b32 v%d, v%d, v%d' % (vt + 2, vt + 2, vt + 3))
        k('v_and_b32 v%d, v%d, v%d' % (vt, vt, vt + 2))
    k('v_readfirstlane_b32 s31, v%d' % vt)
    k('s_cmp_eq_u32 s31, 0x01010101')
    k('s_cbranch_scc1 %s_x' % L)
    k('s_cmp_lt_u32 s30, 0x%x' % POLL_LIMIT)
    k('s_cbranch_scc1 %s' % L)
    k.label(L + '_x')
    k('s_mov_b64 exec, -1')


def setflag(k, soff, vt):
    k('v_mov_b32 v%d, 1' % vt)
    k('s_waitcnt vmcnt(0)')
    k('s_mov_b64 exec, 1')
    k('buffer_store_byte v%d, off, s[4:7], s%d' % (vt, soff))
    k('s_mov_b64 exec, -1')


def lanes(k):
    k('v_and_b32 v1, 63, v0')
    k('v_and_b32 v2, 15, v1')
    k('v_lshrrev_b32 v3, 4, v1')


def gemm_bd(k, vBd, t0, t1, snt):
    k('''v_lshrrev_b32 v%d, 5, v1
    v_lshlrev_b32 v%d, 2, v%d
    v_bfe_u32 v%d, v1, 2, 2
    v_add_u32 v%d, v%d, v%d
    v_lshlrev_b32 v%d, 10, v%d
    v_bfe_u32 v%d, v1, 4, 1
    v_lshl_add_u32 v%d, v%d, 6, v%d
    v_and_b32 v%d, 3, v1
    v_lshl_add_u32 v%d, v%d, 4, v%d
    v_add_u32 v%d, s%d, v%d''' % (t0, t0, t0, t1, t0, t0, t1, t0, t0, t1, t0, t1, t0, t1, t0, t1, t0, vBd, snt, t0))


def wo_dma(k, vBd, t0, t1, q=None):
    k('s_lshr_b32 s10, s2, 5')
    k('s_lshl_b32 s10, s10, 7')
    gemm_bd(k, vBd, t0, t1, 10)
    k('s_lshl_b32 s10, s3, 17')
    k('s_lshl_b32 s11, s3, 14')
    for i in range(16):
        k('s_add_u32 s30, s10, %d' % (i * 8192))
        k('s_add_u32 m0, s11, %d' % (i * 1024))
        k('buffer_load_dwordx4 v%d, s[12:15], s30 offen lds' % vBd)


def p4_bsetup(k, vBd, t0, t1, sB, sM):
    k('''v_lshrrev_b32 v%d, 2, v1
    v_mul_u32_u24 v%d, 0xe00, v%d
    v_lshrrev_b32 v%d, 5, v1
    v_lshlrev_b32 v%d, 1, v%d
    v_and_b32 v%d, 3, v1
    v_xor_b32 v%d, v%d, v%d
    v_lshl_add_u32 v%d, v%d, 4, v%d''' % (t0, t0, t0, t1, t1, t1, vBd, t1, t1, vBd, vBd, t1, t0))
    k('''s_and_b32 s%d, s3, 1
    s_mul_i32 s%d, s%d, %d
    s_lshr_b32 s10, s2, 4
    s_mul_i32 s11, s10, 224
    s_add_u32 s%d, s%d, s11
    s_and_b32 s10, s10, 1
    s_lshl_b32 s10, s10, 5
    s_sub_u32 s%d, s%d, s10
    s_lshl_b32 s%d, s%d, 10
    s_bfe_u32 s10, s3, 0x10001
    s_lshl_b32 s10, s10, 13
    s_add_u32 s%d, s%d, s10''' % (sM, sB, sM, 16 * 3584, sB, sB, sB, sB, sM, sM, sM, sM))


def p4_bstage(k, ks, vBd, sB, sM, srd, q=None):
    sl = ((ks + 3) % NSL) * SLOT
    for j in range(4):
        k('s_add_u32 s30, s%d, %d' % (sB, ks * 32 * 3584 + j * 64))
        k('s_add_u32 m0, s%d, %d' % (sM, sl + j * 2048))
        t = 'buffer_load_dwordx4 v%d, s[%d:%d], s30 offen lds' % (vBd, srd, srd + 3)
        if q:
            q.issue(t, ('B', ks))
        else:
            k(t)


def p5_bstep(k, s, vBd, sB, sM, srd, q=None):
    qs = (s + 3) % 18
    for h in range(2):
        k('s_add_u32 s30, s%d, %d' % (sB, (s * 16 + h * 8) * 1024))
        k('s_add_u32 m0, s%d, %d' % (sM, qs * 8192 + h * 1024))
        t = 'buffer_load_dwordx4 v%d, s[%d:%d], s30 offen lds' % (vBd, srd, srd + 3)
        if q:
            q.issue(t, ('B', s))
        else:
            k(t)


def l2pf(k, n, vPf, tot):
    k('''s_lshr_b32 s10, s2, 3
    s_lshl_b32 s10, s10, 1
    s_and_b32 s11, s3, 1
    s_add_u32 s10, s10, s11
    s_lshl_b32 s10, s10, 13
    s_add_u32 s10, s10, %d
    v_lshlrev_b32 v%d, 7, v1''' % (96 * 3584, vPf))
    for i in range(tot):
        if i < n:
            k('s_add_u32 s30, s10, %d' % (i * 0x80000))
        k('buffer_load_dword v%d, v%d, s[12:15], s30 offen' % (vPf + 1, vPf))


def l2pf2(k, n, vPf):
    k('''s_bitcmp1_b32 s3, 0
    s_cselect_b32 s36, s18, s16
    s_cselect_b32 s37, s19, s17
    s_mov_b32 s38, 0x%x
    s_mov_b32 s39, 0x00020000
    s_lshr_b32 s10, s2, 3
    s_lshl_b32 s10, s10, 2
    s_lshr_b32 s11, s3, 1
    s_add_u32 s10, s10, s11
    s_mul_i32 s10, s10, %d
    s_add_u32 s10, s10, %d
    v_lshlrev_b32 v%d, 7, v1''' % (WSZ, PF2L * 128, 96 * 3584, vPf))
    if PF2L < 64:
        k('s_mov_b64 exec, 0x%x' % ((1 << PF2L) - 1))
    for i in range(n):
        k('s_add_u32 s30, s10, %d' % (i * 128 * PF2L * 128))
        k('buffer_load_dword v%d, v%d, s[36:39], s30 offen' % (vPf + 1, vPf))
    k('s_mov_b64 exec, -1')


def p2old(k, S, O, vQ, vK, vV, vSt, vNeg, t0, t1, vPf, aK, aV0, aQ, vMk, vBd, mk, so):
    if TS2:
        k.ts2(2)
    k('buffer_load_dwordx4 %s, v%d, s[4:7], 0 offen' % (vr(aQ, 4), vQ))
    for T in range(9):
        s_, i_ = so(T * 1024)
        k('buffer_load_dwordx4 %s, v%d, s[4:7], %s offen offset:%d' % (vr(aK + T * 4, 4), vK, s_, i_))

    def vreg(idx):
        return aV0 + idx * 4 if idx < 9 else aK + (idx - 9) * 4

    def vloads(idxs):
        for idx in idxs:
            for r in range(4):
                k('v_mov_b32 v%d, v%d' % (vreg(idx) + r, t1))
        k('s_mov_b32 exec_lo, 0x0000ffff')
        k('s_mov_b32 exec_hi, 0x0000ffff')
        for idx in idxs:
            s_, i_ = so(idx * 512)
            k('buffer_load_dwordx4 %s, v%d, s[4:7], %s offen offset:%d' % (vr(vreg(idx), 4), vV, s_, i_))
        k('s_mov_b64 exec, -1')

    def dmablock():
        k('s_waitcnt lgkmcnt(0)')
        k('s_cmp_ge_u32 s3, 4')
        k('s_cbranch_scc1 P2_pfl')
        wo_dma(k, vBd, vPf, vPf + 1)
        k('s_branch P2_pfx')
        k.label('P2_pfl')
        p4_bsetup(k, vBd, vPf, vPf + 1, 23, 24)
        for ks in range(3):
            p4_bstage(k, ks, vBd, 23, 24, 12)
        if PRE and not PREH:
            pass
        elif PRE:
            k('''s_and_b32 s10, s2, 7
            s_lshl_b32 s10, s10, 2
            s_bfe_u32 s11, s2, 0x20003
            s_add_u32 s10, s10, s11
            s_lshr_b32 s11, s2, 5
            s_lshl_b32 s30, s10, 16
            s_lshl_b32 s31, s11, 7
            s_add_u32 s31, s30, s31
            s_add_u32 s31, s31, 0x%x
            s_lshl_b32 s11, s11, 11
            s_add_u32 s30, s30, s11
            s_add_u32 s30, s30, 0x%x
            s_lshl_b32 s10, s10, 12
            s_add_u32 s10, s10, 0x%x
            s_movk_i32 s11, 128
            s_cmp_eq_u32 s3, 4
            s_cselect_b32 s30, s31, s30
            s_cselect_b32 s11, 1024, s11
            s_mov_b32 s31, 16384
            s_bitcmp1_b32 %d, s3
            s_cselect_b32 s30, s10, s30
            s_cselect_b32 s11, 64, s11
            s_cselect_b32 s31, 1024, s31
            v_lshrrev_b32 v%d, 4, v1
            v_mul_u32_u24 v%d, s31, v%d
            v_and_b32 v%d, 15, v1
            v_mad_u32_u24 v%d, v%d, s11, v%d
            buffer_load_dword v7, v%d, s[4:7], s30 offen''' % (WS_H, WS_HF, WS_ST, 0xc0 | (0 if PREH & 1 else 16) | (0 if PREH & 2 else 32), vPf, vPf, vPf, vPf + 1, vPf, vPf + 1, vPf, vPf))
        else:
            l2pf(k, int(ENV('NPF2', '4')), vPf, 4)
        k.label('P2_pfx')

        if PF2:
            l2pf2(k, PF2, vPf)

    vloads(range(9))
    k('''s_lshl_b32 s25, s21, 5
    s_add_u32 s25, s25, s20
    s_lshl_b32 s25, s25, 10
    s_add_u32 s25, s25, 0x%x
    v_lshlrev_b32 v10, 4, v2
    v_lshl_add_u32 v10, v3, 3, v10
    v_add_u32 v%d, s25, v10''' % (WS_O, vSt))
    nx = 0
    if PRE and PREO:
        k('v_lshlrev_b32 v10, 7, v1')
        k('s_mov_b64 exec, 0xff')
        k('buffer_load_dword v7, v10, s[4:7], s25 offen')
        k('s_mov_b64 exec, -1')
        nx = 1
    k('v_mov_b32 v%d, %s' % (vNeg, f32hex(-1e9)))
    k('s_sub_i32 s28, 8, s21')
    k('s_max_i32 s28, s28, 0')
    for i in range(16):
        kk = (i >> 2) * 8 + (i & 3)
        m = 0
        for l in range(64):
            if kk > (l & 31) - (l >> 5) * 4:
                m |= 1 << l
        k('s_mov_b32 s%d, 0x%x' % (mk(i), m & 0xffffffff))
        k('s_mov_b32 s%d, 0x%x' % (mk(i) + 1, m >> 32))
    k.ts(2)
    if TS2:
        k.ts2(3)
    for T in range(9):
        k('s_waitcnt vmcnt(%d)' % (nx + 9 + 8 - T))
        if TS2 and T in (0, 8):
            k.ts2(4 if T == 0 else 5)
        k('v_mfma_f32_32x32x16_bf16 %s, %s, %s, 0' % (vr(S + T * 16, 16), vr(aK + T * 4, 4), vr(aQ, 4)))
    vloads(range(9, 18))
    npf = (13 if PREH else 12) + PF2
    if DT < 0:
        dmablock()
    for i in range(16):
        k('v_cndmask_b32_e64 v%d, v%d, v%d, s[%d:%d]' % (S + i, vNeg, S + i, mk(i), mk(i) + 1))
    for i in range(16):
        k('v_cndmask_b32_e64 v%d, v%d, v%d, s[%d:%d]' % (S + 128 + i, S + 128 + i, vNeg, mk(i), mk(i) + 1))
    k('s_cmp_eq_u32 s28, 0')
    k('s_cbranch_scc1 J_P2_nomask')
    for T in range(8):
        k('s_cmp_gt_u32 s28, %d' % T)
        k('s_cbranch_scc0 J_P2_nomask')
        for i in range(16):
            k('v_mov_b32 v%d, v%d' % (S + T * 16 + i, vNeg))
    k.label('J_P2_nomask')
    ch = [O, O + 1, O + 2, O + 3]
    regs = list(range(S, S + 144))
    for c in range(4):
        k('v_max3_f32 v%d, v%d, v%d, v%d' % (ch[c], regs[c * 36], regs[c * 36 + 1], regs[c * 36 + 2]))
    for j in range(3, 35, 2):
        for c in range(4):
            k('v_max3_f32 v%d, v%d, v%d, v%d' % (ch[c], ch[c], regs[c * 36 + j], regs[c * 36 + j + 1]))
    for c in range(4):
        k('v_max_f32 v%d, v%d, v%d' % (ch[c], ch[c], regs[c * 36 + 35]))
    k('v_max3_f32 v%d, v%d, v%d, v%d' % (t0, ch[0], ch[1], ch[2]))
    k('v_max_f32 v%d, v%d, v%d' % (t0, t0, ch[3]))
    k('v_mov_b32 v%d, v%d' % (t1, t0))
    k('v_permlane32_swap_b32 v%d, v%d' % (t0, t1))
    k('v_max_f32 v%d, v%d, v%d' % (t0, t0, t1))
    k.ts(3)
    if TS2:
        k.ts2(6)
    c_ = 0.25 * 1.4426950408889634
    k('s_mov_b32 s29, %s' % f32hex(c_))
    k('v_mul_f32 v%d, s29, v%d' % (t0, t0))
    if PKF:
        k('s_mov_b32 s34, s29')
        k('s_mov_b32 s35, s29')
        k('v_mov_b32 v%d, v%d' % (t1, t0))
    first = True
    for T in range(9):
        b = S + T * 16
        if T == 7:
            k('s_mov_b64 exec, 1')
            k('buffer_load_dword v%d, off, s[4:7], s8 sc1' % vMk)
            k('s_mov_b64 exec, -1')
        if T == DT:
            dmablock()
        if PKF:
            for i in range(0, 16, 2):
                k('v_pk_fma_f32 %s, %s, s[34:35], %s neg_lo:[0,0,1] neg_hi:[0,0,1]' % (vr(b + i, 2), vr(b + i, 2), vr(t0, 2)))
        else:
            for i in range(16):
                k('v_fma_f32 v%d, v%d, s29, -v%d' % (b + i, b + i, t0))
        for i in range(16):
            k('v_exp_f32 v%d, v%d' % (b + i, b + i))
        for u in range(2):
            for j in range(4):
                k('v_cvt_pk_bf16_f32 v%d, v%d, v%d' % (b + 8 * u + j, b + 8 * u + 2 * j, b + 8 * u + 2 * j + 1))
        for u in range(2):
            idx = 2 * T + u
            if idx == 0:
                k('s_waitcnt vmcnt(%d)' % (nx + 9 + (npf if DT <= 0 else 0)))
            if idx == 9:
                if TS2:
                    k.ts2(7)
                k('s_waitcnt vmcnt(%d)' % (npf if DT <= 4 else 0))
                if TS2:
                    k.ts2(8)
            k('v_mfma_f32_32x32x16_bf16 %s, %s, %s, %s' % (
                vr(O, 16), vr(vreg(idx), 4), vr(b + 8 * u, 4), '0' if first else vr(O, 16)))
            first = False


def cpf(k):
    if CPF:
        k('s_getpc_b64 s[30:31]')
        k.label('KF_PC')
        k("""s_andn2_b32 s10, s2, 7
        s_add_u32 s10, s10, s3
        s_lshl_b32 s10, s10, 8
        s_add_u32 s11, s10, 128
        s_min_u32 s10, s10, KF_END-KF_PC
        s_min_u32 s11, s11, KF_END-KF_PC
        s_load_dword s96, s[30:31], s10
        s_load_dword s99, s[30:31], s11""")


def p2new(k, S, O, vQ, vK, vV, vSt, vNeg, t0, t1, vPf, aK, aV0, aQ, vMk, vBd, mk, so):
    M = O + 4
    q0 = Q(k)
    KO = [0, 8, 1, 2, 3, 4, 5, 6, 7]
    k('s_waitcnt lgkmcnt(0)')
    if TS2:
        k.ts2(2)
    q0.issue('buffer_load_dwordx4 %s, v%d, s[4:7], 0 offen' % (vr(aQ, 4), vQ))
    for T in KO:
        s_, i_ = so(T * 1024)
        q0.issue('buffer_load_dwordx4 %s, v%d, s[4:7], %s offen offset:%d' % (vr(aK + T * 4, 4), vK, s_, i_), ('K', T))
    cpf(k)
    k('s_or_b32 s10, s3, s100')
    k('s_cmp_lg_u32 s10, 0')
    k('s_cbranch_scc1 P2_ncl')
    k('s_mov_b64 exec, 1')
    k('buffer_atomic_or v252, off, s[4:7], s8 sc0')
    k('buffer_store_dword v253, off, s[4:7], s9 sc1')
    k('s_mov_b64 exec, -1')
    k.label('P2_ncl')
    LO = [0, 1, 16, 17] + list(range(2, 16))

    def vreg(idx):
        j = LO.index(idx)
        return aV0 + j * 4 if j < 9 else aK + KO[j - 9] * 4

    def vfill(j):
        for r in (0, 2):
            k('v_pk_mov_b32 %s, s[14:15], s[14:15]' % vr(vreg(LO[j]) + r, 2))

    k("""s_lshl_b32 s25, s21, 5
    s_add_u32 s25, s25, s20
    s_lshl_b32 s25, s25, 10
    s_add_u32 s25, s25, 0x%x
    v_lshlrev_b32 v10, 4, v1
    v_add_u32 v%d, s25, v10
    s_mov_b32 s14, 0x3f803f80
    s_mov_b32 s15, 0x3f803f80
    s_mov_b32 s20, 0x0000ffff
    s_sub_i32 s28, 8, s21
    s_mov_b32 s21, 0x0000ffff""" % (WS_O, vSt))
    for j in range(9):
        vfill(j)
    k('v_mov_b32 v%d, %s' % (vNeg, f32hex(-1e9)))
    k('s_max_i32 s28, s28, 0')
    for i in range(16):
        kk = (i >> 2) * 8 + (i & 3)
        m = 0
        for l in range(64):
            if kk > (l & 31) - (l >> 5) * 4:
                m |= 1 << l
        k('s_mov_b32 s%d, 0x%x' % (mk(i), m & 0xffffffff))
        k('s_mov_b32 s%d, 0x%x' % (mk(i) + 1, m >> 32))
    k('v_mov_b32 v%d, 0xffff' % O)
    k('v_mov_b32 v%d, 0xffff0000' % (O + 1))
    for jj in range(8):
        k('v_cndmask_b32_e64 v%d, 0, v%d, s[%d:%d]' % (M + jj, O, mk(2 * jj), mk(2 * jj) + 1))
        k('v_cndmask_b32_e64 v%d, 0, v%d, s[%d:%d]' % (O + 2, O + 1, mk(2 * jj + 1), mk(2 * jj + 1) + 1))
        k('v_or_b32 v%d, v%d, v%d' % (M + jj, M + jj, O + 2))
    k('s_cmp_ge_u32 s3, 4')
    k('s_cbranch_scc1 P2_B')

    def path(A):
        L = 'A' if A else 'B'
        S0 = int(ENV('S0' + L, '9' if A else '3'))
        NPS = int(ENV('NPS' + L, '2' if A else '2'))
        LAG = int(ENV('LAG' + L, '3' if A else '2'))
        POST = int(ENV('POST', '0')) if A else 0
        BDMA = int(ENV('BDMA', '1'))
        q = Q(k)
        q.n, q.at = q0.n, dict(q0.at)
        if A:
            k('s_lshr_b32 s10, s2, 5')
            k('s_lshl_b32 s10, s10, 7')
            gemm_bd(k, vBd, vPf + 1, vPf + 2, 10)
            k('s_lshl_b32 s23, s3, 17')
            k('s_lshl_b32 s24, s3, 14')
            if BDMA:
                p4_bsetup(k, vPf, vPf + 1, vPf + 2, 25, 29)
        else:
            if not BDMA:
                p4_bsetup(k, vBd, vPf + 1, vPf + 2, 23, 24)
            k("""s_and_b32 s10, s2, 7
            s_lshl_b32 s10, s10, 2
            s_bfe_u32 s11, s2, 0x20003
            s_add_u32 s10, s10, s11
            s_lshr_b32 s11, s2, 5
            s_lshl_b32 s25, s10, 16
            s_lshl_b32 s31, s11, 7
            s_add_u32 s31, s25, s31
            s_add_u32 s31, s31, 0x%x
            s_lshl_b32 s11, s11, 11
            s_add_u32 s25, s25, s11
            s_add_u32 s25, s25, 0x%x
            s_lshl_b32 s10, s10, 12
            s_add_u32 s10, s10, 0x%x
            s_movk_i32 s11, 128
            s_cmp_eq_u32 s3, 4
            s_cselect_b32 s25, s31, s25
            s_cselect_b32 s11, 1024, s11
            s_mov_b32 s31, 16384
            s_bitcmp1_b32 %d, s3
            s_cselect_b32 s25, s10, s25
            s_cselect_b32 s11, 64, s11
            s_cselect_b32 s31, 1024, s31
            v_lshrrev_b32 v%d, 4, v1
            v_mul_u32_u24 v%d, s31, v%d
            v_and_b32 v%d, 15, v1
            v_mad_u32_u24 v%d, v%d, s11, v%d""" % (WS_H, WS_HF, WS_ST, 0xc0 | (0 if PREH & 1 else 16) | (0 if PREH & 2 else 32), vPf, vPf, vPf, vPf + 1, vPf, vPf + 1, vPf))
        k.ts(2)
        if TS2:
            k.ts2(3)
        mops = []

        def mv(j):
            idx = LO[j]
            s_, i_ = so(idx * 512)
            if j >= 9:
                vfill(j)
            k('s_mov_b64 exec, s[20:21]')
            q.issue('buffer_load_dwordx4 %s, v%d, s[4:7], %s offen offset:%d' % (vr(vreg(idx), 4), vV, s_, i_), ('V', idx))
            k('s_mov_b64 exec, -1')

        def mwo(i):
            if i == 0:
                k('s_mov_b32 s14, 0x80000')
                k('s_mov_b32 s15, 0x00020000')
            k('s_add_u32 s30, s23, %d' % (i * 8192))
            k('s_add_u32 m0, s24, %d' % (i * 1024))
            q.issue('buffer_load_dwordx4 v%d, s[12:15], s30 offen lds' % vBd)

        def mb(i):
            ks, j = i >> 2, i & 3
            sB, sM, v = (25, 29, vPf) if A else (23, 24, vBd)
            k('s_add_u32 s30, s%d, %d' % (sB, ks * 32 * 3584 + j * 64))
            k('s_add_u32 m0, s%d, %d' % (sM, (ks + 3) * SLOT + j * 2048))
            q.issue('buffer_load_dwordx4 v%d, s[16:19], s30 offen lds' % v)

        def mpre():
            q.issue('buffer_load_dword v7, v%d, s[4:7], s25 offen' % vPf)

        for j in range(18):
            mops.append((max(0, j - 9 + 1), lambda j=j: mv(j)))
        if A:
            mops += [(0, lambda i=i: mwo(i)) for i in range(16)]
        else:
            mops.append((0, mpre))
        if bool(BDMA) == A:
            mops += [(0, lambda i=i: mb(i)) for i in range(12)]
        post = mops[len(mops) - POST:] if POST else []
        if POST:
            mops = mops[:len(mops) - POST]
        sl = [0]

        def slot():
            s = sl[0]
            sl[0] += 1
            if s < S0:
                return
            for _ in range(NPS):
                if mops and mops[0][0] <= s:
                    mops.pop(0)[1]()

        ch = [O, O + 1, O + 2, O + 3]
        started = [False]

        def fullmask(T):
            k('s_cmp_gt_u32 s28, %d' % T)
            k('s_cbranch_scc0 J_P2%s_nm%d' % (L, T))
            for i in range(16):
                k('v_mov_b32 v%d, v%d' % (S + T * 16 + i, vNeg))
            k.label('J_P2%s_nm%d' % (L, T))

        def tmax(T):
            r = S + T * 16
            if not started[0]:
                for c in range(4):
                    k('v_max3_f32 v%d, v%d, v%d, v%d' % (ch[c], r + 4 * c, r + 4 * c + 1, r + 4 * c + 2))
                for c in range(4):
                    k('v_max_f32 v%d, v%d, v%d' % (ch[c], ch[c], r + 4 * c + 3))
                started[0] = True
            else:
                for h in range(2):
                    for c in range(4):
                        k('v_max3_f32 v%d, v%d, v%d, v%d' % (ch[c], ch[c], r + 4 * c + 2 * h, r + 4 * c + 2 * h + 1))

        def post_tile(pos):
            T = KO[pos]
            if T == 0:
                fullmask(0)
            elif T == 8:
                for i in range(16):
                    k('v_cndmask_b32_e64 v%d, v%d, v%d, s[%d:%d]' % (S + i, S + 128 + i, S + i, mk(i), mk(i) + 1))
                tmax(0)
            else:
                fullmask(T)
                tmax(T)

        for pos, T in enumerate(KO):
            q.wait(('K', T))
            if TS2 and pos in (0, 8):
                k.ts2(4 if pos == 0 else 5)
            k('v_mfma_f32_32x32x16_bf16 %s, %s, %s, 0' % (vr(S + T * 16, 16), vr(aK + T * 4, 4), vr(aQ, 4)))
            if pos:
                post_tile(pos - 1)
            slot()
        c_ = 0.25 * 1.4426950408889634
        k('s_mov_b32 s34, %s' % f32hex(c_))
        k('s_mov_b32 s35, s34')
        post_tile(8)
        k('v_max3_f32 v%d, v%d, v%d, v%d' % (t0, ch[0], ch[1], ch[2]))
        k('v_max_f32 v%d, v%d, v%d' % (t0, t0, ch[3]))
        k('v_mov_b32 v%d, v%d' % (t1, t0))
        k('v_permlane32_swap_b32 v%d, v%d' % (t0, t1))
        k('v_max_f32 v%d, v%d, v%d' % (t0, t0, t1))
        k.ts(3)
        if TS2:
            k.ts2(6)
        k('v_mul_f32 v%d, s34, v%d' % (t0, t0))
        k('v_mov_b32 v%d, v%d' % (t1, t0))
        first = [True]
        done = [0]

        def pv(p):
            lst = [(0, S), (1, S + 8), (16, S + 128), (17, S + 136)] if p == 0 else [(2 * p, S + p * 16), (2 * p + 1, S + p * 16 + 8)]
            if any(('V', idx) not in q.at for idx, b in lst):
                return False
            for idx, b in lst:
                q.wait(('V', idx))
                k('v_mfma_f32_32x32x16_bf16 %s, %s, %s, %s' % (vr(O, 16), vr(vreg(idx), 4), vr(b, 4), '0' if first[0] else vr(O, 16)))
                first[0] = False
            return True

        for p in range(8):
            b = S + p * 16
            if p == 6 and A:
                k('s_mov_b64 exec, 1')
                q.issue('buffer_load_dword v%d, off, s[4:7], s8 sc1' % vMk)
                k('s_mov_b64 exec, -1')
            for i in range(0, 16, 2):
                k('v_pk_fma_f32 %s, %s, s[34:35], %s neg_lo:[0,0,1] neg_hi:[0,0,1]' % (vr(b + i, 2), vr(b + i, 2), vr(t0, 2)))
            for i in range(16):
                if i % 4 == 0:
                    slot()
                k('v_exp_f32 v%d, v%d' % (b + i, b + i))
            for u in range(2):
                for j in range(4):
                    k('v_cvt_pk_bf16_f32 v%d, v%d, v%d' % (b + 8 * u + j, b + 8 * u + 2 * j, b + 8 * u + 2 * j + 1))
            if p == 0:
                for u in range(2):
                    for j in range(4):
                        k('v_bfi_b32 v%d, v%d, 0, v%d' % (S + 128 + 8 * u + j, M + 4 * u + j, S + 8 * u + j))
                        k('v_and_b32 v%d, v%d, v%d' % (S + 8 * u + j, M + 4 * u + j, S + 8 * u + j))
            if TS2 and p in (3, 7):
                k.ts2(7 if p == 3 else 8)
            while done[0] <= p - LAG and pv(done[0]):
                done[0] += 1
        while mops:
            mops.pop(0)[1]()
        while done[0] < 8:
            assert pv(done[0])
            done[0] += 1
        k('v_rcp_f32 v%d, v%d' % (t0, O + 8))
        for i in range(8):
            k('v_mul_f32 v%d, v%d, v%d' % (O + i, O + i, t0))
        for j in range(4):
            k('v_cvt_pk_bf16_f32 v%d, v%d, v%d' % (O + j, O + 2 * j, O + 2 * j + 1))
        k('v_permlane32_swap_b32 v%d, v%d' % (O, O + 2))
        k('v_permlane32_swap_b32 v%d, v%d' % (O + 1, O + 3))
        k('buffer_store_dwordx4 %s, v%d, s[4:7], 0 offen%s' % (vr(O, 4), vSt, OSC))
        if TS2:
            k.ts2(9)
        setflag(k, 22, t0)
        for m in post:
            m[1]()

    path(True)
    k('s_branch J_P2_join')
    k.label('P2_B')
    path(False)
    k.label('J_P2_join')


KVB = 3 * SLOT


def p2lds(k, S, O, vQ, vK, vV, vSt, vNeg, t0, t1, vPf, aK, aV0, aQ, vMk, vBd, mk, so):
    M = O + 4
    KO = [0, 8, 1, 2, 3, 4, 5, 6, 7]
    VBAR = int(ENV('VBAR', '0'))
    WS0 = int(ENV('WS0', '2'))
    WST = int(ENV('WST', '2'))
    NVS = int(ENV('NVS', '3'))
    LAG = int(ENV('LAG', '1'))
    vKr, vVr = vPf + 2, vPf + 3
    k('s_waitcnt lgkmcnt(0)')
    if TS2:
        k.ts2(2)
    k('buffer_load_dwordx4 %s, v%d, s[4:7], 0 offen' % (vr(aQ, 4), vQ))
    VPOS = int(ENV('VPOS', '1'))

    def kvdma(v, add):
        k('s_add_u32 m0, s18, %d' % add)
        for i in range(4):
            k('buffer_load_dwordx4 v%d, s[4:7], s26 offen offset:%d lds' % (v, i * 1024))
        k('s_add_u32 m0, s18, %d' % (add + 4096))
        k('buffer_load_dwordx4 v%d, s[4:7], s27 offen lds' % v)

    k('s_mov_b32 s18, s24')
    kvdma(vK, 0)
    if VPOS == 0:
        kvdma(vV, 40960)
    cpf(k)
    k('s_or_b32 s29, s3, s100')
    k('s_cmp_lg_u32 s29, 0')
    k('s_cbranch_scc1 P2_ncl')
    k('s_mov_b64 exec, 1')
    k('buffer_atomic_or v252, off, s[4:7], s8 sc0')
    k('buffer_store_dword v253, off, s[4:7], s9 sc1')
    k('s_mov_b64 exec, -1')
    k.label('P2_ncl')

    def wait2(n, L):
        k('s_waitcnt vmcnt(%d)' % (n + 2))
        k('s_cmp_eq_u32 s29, 0')
        k('s_cbranch_scc1 %s' % L)
        k('s_waitcnt vmcnt(%d)' % n)
        k.label(L)

    LO = [0, 1, 16, 17] + list(range(2, 16))

    def vreg(idx):
        j = LO.index(idx)
        return aV0 + j * 4 if j < 9 else aK + KO[j - 9] * 4

    def vfill(j):
        for r in (0, 2):
            k('v_pk_mov_b32 %s, s[16:17], s[16:17]' % vr(vreg(LO[j]) + r, 2))

    k("""s_lshl_b32 s25, s21, 5
    s_add_u32 s25, s25, s20
    s_lshl_b32 s25, s25, 10
    s_add_u32 s25, s25, 0x%x
    v_lshlrev_b32 v10, 4, v1
    v_add_u32 v%d, s25, v10
    s_sub_u32 s24, s24, s26
    v_add_u32 v%d, s24, v10
    v_and_b32 v10, 15, v1
    v_lshl_add_u32 v10, v3, 4, v10
    v_lshlrev_b32 v10, 4, v10
    s_add_u32 s24, s24, 40960
    v_add_u32 v%d, s24, v10
    s_mov_b32 s16, 0x3f803f80
    s_mov_b32 s17, 0x3f803f80
    s_mov_b32 s20, 0x0000ffff
    s_sub_i32 s28, 8, s21
    s_mov_b32 s21, 0x0000ffff""" % (WS_O, vSt, vKr, vVr))
    for j in range(9):
        vfill(j)
    k('v_mov_b32 v%d, %s' % (vNeg, f32hex(-1e9)))
    k('s_max_i32 s28, s28, 0')
    for i in range(16):
        kk = (i >> 2) * 8 + (i & 3)
        m = 0
        for l in range(64):
            if kk > (l & 31) - (l >> 5) * 4:
                m |= 1 << l
        k('s_mov_b32 s%d, 0x%x' % (mk(i), m & 0xffffffff))
        k('s_mov_b32 s%d, 0x%x' % (mk(i) + 1, m >> 32))
    k('v_mov_b32 v%d, 0xffff' % O)
    k('v_mov_b32 v%d, 0xffff0000' % (O + 1))
    for jj in range(8):
        k('v_cndmask_b32_e64 v%d, 0, v%d, s[%d:%d]' % (M + jj, O, mk(2 * jj), mk(2 * jj) + 1))
        k('v_cndmask_b32_e64 v%d, 0, v%d, s[%d:%d]' % (O + 2, O + 1, mk(2 * jj + 1), mk(2 * jj + 1) + 1))
        k('v_or_b32 v%d, v%d, v%d' % (M + jj, M + jj, O + 2))
    k('s_lshr_b32 s10, s2, 5')
    k('s_lshl_b32 s10, s10, 7')
    gemm_bd(k, vBd, vPf, vPf + 1, 10)
    k("""s_and_b32 s10, s3, 3
    s_lshl_b32 s24, s10, 14
    s_lshl_b32 s11, s26, 1
    s_add_u32 s24, s24, s11
    s_lshl_b32 s23, s24, 3""")
    k("""s_and_b32 s10, s2, 7
    s_lshl_b32 s10, s10, 2
    s_bfe_u32 s11, s2, 0x20003
    s_add_u32 s10, s10, s11
    s_lshr_b32 s11, s2, 5
    s_lshl_b32 s25, s10, 16
    s_lshl_b32 s31, s11, 7
    s_add_u32 s31, s25, s31
    s_add_u32 s31, s31, 0x%x
    s_lshl_b32 s11, s11, 11
    s_add_u32 s25, s25, s11
    s_add_u32 s25, s25, 0x%x
    s_lshl_b32 s10, s10, 12
    s_add_u32 s10, s10, 0x%x
    s_movk_i32 s11, 128
    s_cmp_eq_u32 s3, 4
    s_cselect_b32 s25, s31, s25
    s_cselect_b32 s11, 1024, s11
    s_mov_b32 s31, 16384
    s_bitcmp1_b32 %d, s3
    s_cselect_b32 s25, s10, s25
    s_cselect_b32 s11, 64, s11
    s_cselect_b32 s31, 1024, s31
    v_lshrrev_b32 v%d, 4, v1
    v_mul_u32_u24 v%d, s31, v%d
    v_and_b32 v%d, 15, v1
    v_mad_u32_u24 v%d, v%d, s11, v%d""" % (WS_H, WS_HF, WS_ST, 0xc0 | (0 if PREH & 1 else 16) | (0 if PREH & 2 else 32), vPf, vPf, vPf, vPf + 1, vPf, vPf + 1, vPf))
    k.ts(2)
    if TS2:
        k.ts2(3)
    if VPOS == 1:
        kvdma(vV, 40960)
    assert vNeg == 9
    k('s_cmp_eq_u32 s28, 0')
    k('s_cbranch_scc1 P2_fmend')
    for i in range(0, 128, 2):
        k('v_pk_mov_b32 %s, v[8:9], v[8:9] op_sel:[1,1]' % vr(S + i, 2))
    k.label('P2_fmend')
    wait2(5 if VPOS < 2 else 0, 'P2_wk')
    k('s_barrier')
    if TS2:
        k.ts2(4)
    if VPOS == 2:
        kvdma(vV, 40960)
    for T in KO:
        k('ds_read_b128 %s, v%d offset:%d' % (vr(aK + T * 4, 4), vKr, T * 1024))
    ch = [O, O + 1, O + 2, O + 3]
    started = [False]

    def fullmask(T):
        pass

    def tmax(T):
        r = S + T * 16
        if not started[0]:
            for c in range(4):
                k('v_max3_f32 v%d, v%d, v%d, v%d' % (ch[c], r + 4 * c, r + 4 * c + 1, r + 4 * c + 2))
            for c in range(4):
                k('v_max_f32 v%d, v%d, v%d' % (ch[c], ch[c], r + 4 * c + 3))
            started[0] = True
        else:
            for h in range(2):
                for c in range(4):
                    k('v_max3_f32 v%d, v%d, v%d, v%d' % (ch[c], ch[c], r + 4 * c + 2 * h, r + 4 * c + 2 * h + 1))

    def post_tile(pos):
        T = KO[pos]
        if T == 0:
            fullmask(0)
        elif T == 8:
            k('s_nop 3')
            for i in range(16):
                k('v_cndmask_b32_e64 v%d, v%d, v%d, s[%d:%d]' % (S + i, S + 128 + i, S + i, mk(i), mk(i) + 1))
            tmax(0)
        else:
            fullmask(T)
            tmax(T)

    PD = int(ENV('PD', '2'))
    for pos, T in enumerate(KO):
        if T < 8:
            k('s_cmp_gt_u32 s28, %d' % T)
        k('s_waitcnt lgkmcnt(%d)' % (8 - pos))
        if T < 8:
            k('s_cbranch_scc1 P2_nm%d' % T)
        k('v_mfma_f32_32x32x16_bf16 %s, %s, %s, 0' % (vr(S + T * 16, 16), vr(aK + T * 4, 4), vr(aQ, 4)))
        if T < 8:
            k.label('P2_nm%d' % T)
        if pos >= PD:
            post_tile(pos - PD)
            vfill(9 + pos - PD)
    if TS2:
        k.ts2(5)
    for pos in range(9 - PD, 9):
        post_tile(pos)
        vfill(9 + pos)
    c_ = 0.25 * 1.4426950408889634
    k('s_mov_b32 s34, %s' % f32hex(c_))
    k('s_mov_b32 s35, s34')
    k('v_max3_f32 v%d, v%d, v%d, v%d' % (t0, ch[0], ch[1], ch[2]))
    k('v_max_f32 v%d, v%d, v%d' % (t0, t0, ch[3]))
    k('v_mov_b32 v%d, v%d' % (t1, t0))
    k('v_permlane32_swap_b32 v%d, v%d' % (t0, t1))
    k('v_max_f32 v%d, v%d, v%d' % (t0, t0, t1))
    k.ts(3)
    if TS2:
        k.ts2(6)
    k('v_mul_f32 v%d, s34, v%d' % (t0, t0))
    k('v_mov_b32 v%d, v%d' % (t1, t0))
    first = [True]
    done = [0]
    st = dict(v=0, w=0, s=0, bar=False, pre=False)

    def slot():
        s = st['s']
        st['s'] += 1
        if st['bar'] and st['v'] < 18:
            k('s_mov_b64 exec, s[20:21]')
            for _ in range(NVS):
                if st['v'] < 18:
                    idx = LO[st['v']]
                    k('ds_read_b128 %s, v%d offset:%d' % (vr(vreg(idx), 4), vVr, idx * 512))
                    st['v'] += 1
            k('s_mov_b64 exec, -1')
        if s >= WS0 and (s - WS0) % WST == 0:
            if st['w'] < 8:
                i = st['w']
                k('s_add_u32 s30, s23, %d' % (i * 8192))
                k('s_add_u32 m0, s24, %d' % (i * 1024))
                k('buffer_load_dwordx4 v%d, s[12:15], s30 offen lds' % vBd)
                st['w'] += 1
            elif not st['pre']:
                st['pre'] = True
                k('s_cmp_lt_u32 s3, 4')
                k('s_cbranch_scc1 P2_npre')
                k('buffer_load_dword v7, v%d, s[4:7], s25 offen' % vPf)
                k.label('P2_npre')

    def pv(p):
        lst = [(0, S), (1, S + 8), (16, S + 128), (17, S + 136)] if p == 0 else [(2 * p, S + p * 16), (2 * p + 1, S + p * 16 + 8)]
        if any(LO.index(idx) >= st['v'] for idx, b in lst):
            return False
        for idx, b in lst:
            k('s_waitcnt lgkmcnt(%d)' % min(15, st['v'] - 1 - LO.index(idx)))
            k('v_mfma_f32_32x32x16_bf16 %s, %s, %s, %s' % (vr(O, 16), vr(vreg(idx), 4), vr(b, 4), '0' if first[0] else vr(O, 16)))
            first[0] = False
        return True

    PVS = int(ENV('PVS', '2'))
    PRB = int(ENV('PRB', '6'))
    PRA = int(ENV('PRA', '-1'))
    mq = []

    def pvq(p):
        lst = [(0, S), (1, S + 8), (16, S + 128), (17, S + 136)] if p == 0 else [(2 * p, S + p * 16), (2 * p + 1, S + p * 16 + 8)]
        mq.extend(lst)

    def pv1():
        if not mq or LO.index(mq[0][0]) >= st['v']:
            return False
        idx, b = mq.pop(0)
        k('s_waitcnt lgkmcnt(%d)' % min(15, st['v'] - 1 - LO.index(idx)))
        k('v_mfma_f32_32x32x16_bf16 %s, %s, %s, %s' % (vr(O, 16), vr(vreg(idx), 4), vr(b, 4), '0' if first[0] else vr(O, 16)))
        first[0] = False
        return True

    if PRB >= 0:
        k('s_cmp_lt_u32 s3, 4')
        k('s_cbranch_scc1 P2_pr0')
        k('s_setprio 1')
        k.label('P2_pr0')
    for p in range(8):
        b = S + p * 16
        if p == PRB:
            k('s_setprio 0')
        if p == VBAR:
            assert not st['pre']
            if VPOS == 0:
                wait2(st['w'], 'P2_wv')
            else:
                k('s_waitcnt vmcnt(%d)' % st['w'])
            k('s_barrier')
            st['bar'] = True
        if p == 6:
            k('s_cmp_lg_u32 s3, 0')
            k('s_cbranch_scc1 P2_nrr')
            k('s_mov_b64 exec, 1')
            k('buffer_load_dword v%d, off, s[4:7], s8 sc1' % vMk)
            k('s_mov_b64 exec, -1')
            k.label('P2_nrr')
        for i in range(0, 16, 2):
            k('v_pk_fma_f32 %s, %s, s[34:35], %s neg_lo:[0,0,1] neg_hi:[0,0,1]' % (vr(b + i, 2), vr(b + i, 2), vr(t0, 2)))
        for i in range(16):
            if i % 4 == 0:
                if PVS and (i % 8 == 0 or len(mq) > 2 or PVS == 2):
                    pv1()
                slot()
            k('v_exp_f32 v%d, v%d' % (b + i, b + i))
        for u in range(2):
            for j in range(4):
                k('v_cvt_pk_bf16_f32 v%d, v%d, v%d' % (b + 8 * u + j, b + 8 * u + 2 * j, b + 8 * u + 2 * j + 1))
        if p == 0:
            for u in range(2):
                for j in range(4):
                    k('v_bfi_b32 v%d, v%d, 0, v%d' % (S + 128 + 8 * u + j, M + 4 * u + j, S + 8 * u + j))
                    k('v_and_b32 v%d, v%d, v%d' % (S + 8 * u + j, M + 4 * u + j, S + 8 * u + j))
        if TS2 and p in (3, 7):
            k.ts2(7 if p == 3 else 8)
        if PVS:
            pvq(p)
            continue
        while done[0] <= p - LAG and pv(done[0]):
            done[0] += 1
    assert st['w'] == 8 and st['pre'] and st['v'] == 18
    if PRB >= 8:
        k('s_setprio 0')
    while mq:
        assert pv1()
    while done[0] < 8 and not PVS:
        assert pv(done[0])
        done[0] += 1
    k('v_rcp_f32 v%d, v%d' % (t0, O + 8))
    for i in range(8):
        k('v_mul_f32 v%d, v%d, v%d' % (O + i, O + i, t0))
    for j in range(4):
        k('v_cvt_pk_bf16_f32 v%d, v%d, v%d' % (O + j, O + 2 * j, O + 2 * j + 1))
    k('v_permlane32_swap_b32 v%d, v%d' % (O, O + 2))
    k('v_permlane32_swap_b32 v%d, v%d' % (O + 1, O + 3))
    k('buffer_store_dwordx4 %s, v%d, s[4:7], 0 offen%s' % (vr(O, 4), vSt, OSC))
    if TS2:
        k.ts2(9)
    setflag(k, 22, t0)


def phase2(k):
    S = 12
    O = 156
    vQ, vK, vV, vSt, vNeg = 4, 5, 6, 8, 9
    t0, t1 = 10, 11
    vPf = 172
    aK, aV0, aQ = 176, 212, 248
    vCl, vMk, vBd = 252, 253, 254

    def mk(i):
        return 32 + 2 * i
    k.label('J_P2')
    if P2V == 2:
        k('''s_load_dwordx2 s[12:13], s[0:1], 16
        s_mov_b32 s14, 0x80000
        s_mov_b32 s15, 0x00020000''')
    elif P2V:
        k('''s_bitcmp1_b32 s3, 1
        s_cselect_b32 s10, 40, 32
        s_load_dwordx2 s[12:13], s[0:1], 16
        s_load_dwordx2 s[16:17], s[0:1], s10
        s_mov_b32 s18, 0x%x
        s_mov_b32 s19, 0x00020000''' % WSZ)
    else:
        k('''s_cmp_lt_u32 s3, 6
        s_cselect_b32 s10, 32, 40
        s_mov_b32 s14, 0x%x
        s_cmp_lt_u32 s3, 4
        s_cselect_b32 s10, 16, s10
        s_cselect_b32 s14, 0x80000, s14
        s_load_dwordx2 s[12:13], s[0:1], s10
        s_load_dwordx4 s[16:19], s[0:1], 32
        s_mov_b32 s15, 0x00020000''' % WSZ)
    k('''s_lshr_b32 s20, s2, 5
    s_lshl_b32 s20, s20, 2
    s_and_b32 s21, s3, 3
    s_add_u32 s20, s20, s21
    s_and_b32 s21, s2, 7
    s_lshl_b32 s21, s21, 2
    s_bfe_u32 s22, s2, 0x20003
    s_add_u32 s21, s21, s22
    s_lshl_b32 s21, s21, 1
    s_lshr_b32 s23, s3, 2
    s_add_u32 s21, s21, s23
    v_and_b32 v1, 63, v0
    v_and_b32 v2, 31, v1
    v_lshrrev_b32 v3, 5, v1''')
    k('''s_lshl_b32 s22, s22, 6
    s_add_u32 s22, s22, s23
    s_lshl_b32 s23, s20, 1
    s_add_u32 s22, s22, s23
    s_add_u32 s22, s22, s8
    s_add_u32 s22, s22, %d''' % F2)
    k('''s_lshl_b32 s23, s20, 16
    s_lshl_b32 s24, s21, 10
    s_add_u32 s23, s23, s24
    v_lshlrev_b32 v10, 5, v2
    v_lshl_add_u32 v10, v3, 4, v10
    v_add_u32 v%d, s23, v10
    v_add_u32 v%d, 0x%x, v%d''' % (vQ, vK, WS_K - 8192, vQ))
    if P2V != 2:
        k('''v_and_b32 v10, 15, v1
        v_lshlrev_b32 v10, 5, v10
        v_lshl_add_u32 v10, v3, 4, v10
        v_add_u32 v10, s23, v10
        v_add_u32 v%d, 0x%x, v10''' % (vV, WS_VT - 8192))
    if P2V == 2:
        k('''v_and_b32 v10, 15, v1
        v_lshlrev_b32 v10, 5, v10
        v_lshl_add_u32 v10, v3, 9, v10
        v_and_b32 v11, 16, v1
        v_add3_u32 v10, v10, v11, s23
        v_add_u32 v%d, 0x%x, v10
        s_lshr_b32 s26, s3, 2
        s_mul_i32 s24, s26, 5120
        s_lshl_b32 s26, s26, 12
        s_add_u32 s27, s26, 4096
        s_and_b32 s10, s3, 3
        s_mul_i32 s10, s10, 10240
        s_add_u32 s24, s24, s10
        s_add_u32 s24, s24, %d''' % (vV, WS_VT - 8192, KVB))
    else:
        k('s_mov_b32 s26, 4096')
        k('s_mov_b32 s27, 8192')
        k('v_mov_b32 v%d, 0x3f803f80' % t1)

    def so(off):
        return ('0', 's26', 's27')[off // 4096], off % 4096

    if P2V == 2:
        p2lds(k, S, O, vQ, vK, vV, vSt, vNeg, t0, t1, vPf, aK, aV0, aQ, vMk, vBd, mk, so)
    elif P2V:
        p2new(k, S, O, vQ, vK, vV, vSt, vNeg, t0, t1, vPf, aK, aV0, aQ, vMk, vBd, mk, so)
    else:
        p2old(k, S, O, vQ, vK, vV, vSt, vNeg, t0, t1, vPf, aK, aV0, aQ, vMk, vBd, mk, so)
    if not P2V:
        k('v_rcp_f32 v%d, v%d' % (t0, O + 8))
        for i in range(8):
            k('v_mul_f32 v%d, v%d, v%d' % (O + i, O + i, t0))
        for j in range(4):
            k('v_cvt_pk_bf16_f32 v%d, v%d, v%d' % (O + j, O + 2 * j, O + 2 * j + 1))
        k('buffer_store_dwordx2 %s, v%d, s[4:7], 0 offen%s' % (vr(O, 2), vSt, OSC))
        k('buffer_store_dwordx2 %s, v%d, s[4:7], 0 offen offset:512%s' % (vr(O + 2, 2), vSt, OSC))
        if TS2:
            k.ts2(9)
        setflag(k, 22, t0)
    if TS2:
        k.ts2(10)
    k.ts(4)
    k('s_cmp_lg_u32 s100, 0')
    k('s_cbranch_scc1 J_SLOW_claim')
    k('s_cmp_lg_u32 s3, 0')
    k('s_cbranch_scc1 P2_dec')
    k('''v_readfirstlane_b32 s10, v%d
    v_readfirstlane_b32 s11, v%d
    s_lshr_b32 s30, s2, 3
    s_lshr_b32 s10, s10, s30
    s_and_b32 s10, s10, 1
    s_cmp_lg_u32 s11, -1
    s_cselect_b32 s11, 2, 0
    s_or_b32 s10, s10, s11
    v_mov_b32 v4, s10
    v_mov_b32 v5, 0x%x
    ds_write_b32 v5, v4
    s_waitcnt lgkmcnt(0)''' % (vCl, vMk, DEC))
    k.label('P2_dec')
    k('v_mov_b32 v5, 0x%x' % DEC)
    k('s_barrier')
    k('ds_read_b32 v4, v5')
    k('s_waitcnt lgkmcnt(0)')
    k('v_readfirstlane_b32 s10, v4')
    k('s_cmp_lg_u32 s10, 0')
    k('s_cbranch_scc1 J_SLOW_start')


def gemm(k, p3):
    L = 'P3' if p3 else 'P5'
    KT = 32 if p3 else 112
    wsA = WS_O if p3 else WS_HH
    NS = KT // 4
    NR = min(NS, 16)
    PF = NS if NS <= NR else NR - 1
    RS = 16384
    AR = 28 if p3 else 24
    BFR = AR + NR * 8
    ACC = BFR + 16
    RES = ACC + 64
    T = RES + 8
    vA0, vA1, vBd, vBr, vOut, vRes = 8, 9, 10, 11, 12, 13
    vW = 14
    vR = 18
    vFw, vFr, vFo = 22, 23, 24
    vSt = 25
    SCR = 4 * RS
    tsb = 5 if p3 else 11
    k('s_load_dwordx2 s[10:11], s[0:1], %d' % (0 if p3 else 56))
    if not p3:
        k('s_load_dwordx2 s[12:13], s[0:1], 48')
    k('''s_and_b32 s20, s2, 7
    s_lshl_b32 s20, s20, 2
    s_bfe_u32 s22, s2, 0x20003
    s_add_u32 s20, s20, s22
    s_lshr_b32 s21, s2, 5''')
    lanes(k)
    if p3:
        k('s_lshl_b32 s29, s22, 6')
        k('s_lshl_b32 s23, s3, 4')
    else:
        k('s_lshl_b32 s29, s22, 5')
        k('s_lshl_b32 s23, s3, 3')
    k('s_add_u32 s29, s29, s23')
    k('s_add_u32 s29, s29, s8')
    k('s_add_u32 s29, s29, %d' % (F2 if p3 else F4))
    if p3:
        k('''s_lshl_b32 s40, s22, 2
        s_add_u32 s40, s40, s3
        s_lshl_b32 s40, s40, 3
        s_add_u32 s40, s40, s21
        s_add_u32 s40, s40, s8
        s_add_u32 s40, s40, %d''' % F3)
    k('s_mul_i32 s23, s20, %d' % (2 * KT * 1024))
    k('s_mul_i32 s24, s3, %d' % (NS * 1024))
    k('s_add_u32 s23, s23, s24')
    k('s_add_u32 s23, s23, 0x%x' % wsA)
    k('v_lshlrev_b32 v4, 4, v1')
    k('v_add_u32 v%d, s23, v4' % vA0)
    k('v_add_u32 v%d, %d, v%d' % (vA1, KT * 1024, vA0))
    k('s_lshl_b32 s24, s21, 7')
    if not p3:
        gemm_bd(k, vBd, 4, 5, 24)
        k('s_mul_i32 s25, s3, %d' % (NS * 16 * 1024))
    k('s_lshl_b32 s26, s3, %d' % (14 if p3 else 11))
    k('''v_lshrrev_b32 v4, 1, v3
    v_lshlrev_b32 v4, 10, v4
    v_lshrrev_b32 v5, 2, v2
    v_lshl_add_u32 v4, v5, 6, v4
    v_and_b32 v5, 1, v3
    v_lshl_add_u32 v4, v5, 5, v4
    v_and_b32 v5, 3, v2
    v_lshl_add_u32 v4, v5, 3, v4
    v_add_u32 v%d, s26, v4''' % vBr)
    if not p3:
        k('v_add_u32 v%d, 0x10000, v%d' % (vFw, vBr))
        k('v_add_u32 v%d, 0x20000, v%d' % (vFr, vBr))
    k('v_and_b32 v4, 31, v1')
    if p3:
        k('v_lshlrev_b32 v5, 8, v4')
    else:
        k('v_lshrrev_b32 v5, 3, v4')
        k('v_lshlrev_b32 v5, 13, v5')
        k('v_and_b32 v6, 7, v4')
        k('v_lshl_add_u32 v5, v6, 8, v5')
    k('v_add_u32 v5, s26, v5')
    k('v_and_b32 v4, 7, v4')
    k('v_lshrrev_b32 v6, 5, v1')
    k('v_xor_b32 v4, v4, v6')
    for q in range(4):
        k('v_xor_b32 v6, %d, v4' % (q * 2))
        k('v_lshl_add_u32 v%d, v6, 4, v5' % (vW + q))
    k('s_lshl_b32 s27, s3, %d' % (12 if p3 else 14))
    k('v_lshrrev_b32 v4, 3, v1')
    k('v_lshlrev_b32 v5, 8, v4')
    k('v_add_u32 v5, s27, v5')
    k('v_and_b32 v6, 7, v1')
    k('v_lshlrev_b32 v6, 1, v6')
    k('v_xor_b32 v6, v6, v4')
    k('v_lshl_add_u32 v%d, v6, 4, v5' % vR)
    k('v_xor_b32 v6, 1, v6')
    k('v_lshl_add_u32 v%d, v6, 4, v5' % (vR + 1))
    k('''s_lshl_b32 s27, s3, 4
    s_lshl_b32 s28, s20, 6
    s_add_u32 s27, s27, s28
    s_lshl_b32 s27, s27, 10
    s_add_u32 s27, s27, s24
    v_lshlrev_b32 v5, 10, v4
    v_and_b32 v6, 7, v1
    v_lshl_add_u32 v5, v6, 4, v5
    v_add_u32 v4, s27, v5''')
    k('v_add_u32 v%d, 0x%x, v4' % (vOut, WS_H if p3 else 0))
    k('v_add_u32 v%d, 0x%x, v4' % (vRes, 0 if p3 else WS_H))
    k('s_mov_b32 s41, 8192')
    if p3:
        k('''s_lshl_b32 s27, s3, 11
        v_lshrrev_b32 v4, 3, v1
        v_and_b32 v5, 3, v1
        v_lshl_add_u32 v4, v5, 4, v4
        v_lshlrev_b32 v4, 4, v4
        v_bfe_u32 v5, v1, 2, 1
        v_lshl_add_u32 v4, v5, 10, v4
        v_add_u32 v4, s27, v4''')
        k('v_add_u32 v%d, %d, v4' % (vFw, SCR))
        k('v_lshlrev_b32 v4, 4, v1')
        k('v_add_u32 v5, s27, v4')
        k('v_add_u32 v%d, %d, v5' % (vFr, SCR))
        k('''s_lshl_b32 s27, s20, 2
        s_add_u32 s27, s27, s3
        s_lshl_b32 s27, s27, 4
        s_lshl_b32 s28, s21, 1
        s_add_u32 s27, s27, s28
        s_lshl_b32 s27, s27, 10''')
        k('s_add_u32 s27, s27, 0x%x' % WS_HF)
        k('v_add_u32 v%d, s27, v4' % vFo)
        k('''s_lshl_b32 s27, s20, 2
        s_add_u32 s27, s27, s3
        s_lshl_b32 s27, s27, 10
        s_lshl_b32 s28, s21, 3
        s_add_u32 s27, s27, s28
        v_lshrrev_b32 v4, 3, v1
        v_lshlrev_b32 v4, 6, v4''')
        k('s_add_u32 s27, s27, 0x%x' % WS_ST)
        k('v_add_u32 v%d, s27, v4' % vSt)
        k('s_mov_b32 s44, 0x3f803f80')
        k('s_mov_b32 s42, 0x01010101')
        k('s_mov_b32 s43, 0x01010101')
    k('s_waitcnt lgkmcnt(0)')
    make_srd(k, 16, 10, 11, 2048 * 512 * 2)
    if not p3:
        k('s_mov_b32 s14, 0x%x' % WSZ)
        k('s_mov_b32 s15, 0x00020000')
        yield 'pre'
    rsrd, osrd = (16, 4) if p3 else (4, 16)
    poll(k, L + '_poll', 29, 4 if p3 else 2)
    if not p3 and ENV('X5S'):
        for _ in range(int(ENV('X5S'))):
            k('s_sleep 64')
    k.ts(tsb)
    q = Q(k)

    def aloads(s):
        slot = s % NR
        k('s_mov_b32 s30, %d' % (s * 1024 if p3 or not ENV('X5A') else (s % int(ENV('X5A'))) * 1024))
        for mi in range(2):
            q.issue('buffer_load_dwordx4 %s, v%d, s[4:7], s30 offen%s' % (vr(AR + slot * 8 + mi * 4, 4), vA0 + mi, DSC), ('A', s))

    def reads(s):
        p = s & 1
        if p3:
            base, va = s * 2048, vBr
        else:
            a = ((s + 3) % 18) * 8192
            va = (vBr, vFw, vFr)[a >> 16]
            base = a & 0xffff
        for nb in range(2):
            for sec in range(2):
                k('ds_read_b64_tr_b16 %s, v%d offset:%d' % (
                    vr(BFR + p * 8 + nb * 4 + sec * 2, 2), va, base + sec * 512 + nb * 256))

    issued = 0
    for s in range(PF):
        aloads(s)
        issued += 1
    for j in range(2):
        q.issue('buffer_load_dwordx4 %s, v%d, s[%d:%d], %s offen%s' % (
            vr(RES + 4 * j, 4), vRes, rsrd, rsrd + 3, 's41' if j else '0', '' if p3 else DSC), ('R', j))
    reads(0)
    TS5 = {} if p3 or not ENV('TS5') else {0: 3, 3: 4, 7: 5, 12: 6, 17: 7, 22: 8}
    if TS5:
        k.ts2(2)
    for s in range(NS):
        p = s & 1
        if s + 1 < NS:
            if ('B', s + 1) in q.at:
                q.wait(('B', s + 1))
            reads(s + 1)
            k('s_waitcnt lgkmcnt(4)')
        else:
            k('s_waitcnt lgkmcnt(0)')
        q.wait(('A', s))
        if s in TS5:
            k.ts2(TS5[s])
        slot = s % NR
        for mi in range(2):
            for nb in range(2):
                acc = vr(ACC + (mi * 2 + nb) * 16, 16)
                k('v_mfma_f32_32x32x16_bf16 %s, %s, %s, %s' % (
                    acc, vr(BFR + p * 8 + nb * 4, 4), vr(AR + slot * 8 + mi * 4, 4), '0' if s == 0 else acc))
        if issued < NS:
            aloads(issued)
            issued += 1
        if not p3 and s + 18 < NS and not ENV('X5B'):
            p5_bstep(k, s + 18, vBd, 25, 26, 12, q)
    k.ts(tsb + 1)
    for t in range(4):
        for qq in range(4):
            k('ds_write_b128 v%d, %s offset:%d' % (vW + qq, vr(ACC + t * 16 + qq * 4, 4),
                                                   (t >> 1) * (8192 if p3 else 32768) + (t & 1) * 128))
    k('s_waitcnt lgkmcnt(0)')
    k('s_barrier')
    for j in range(2):
        for src in range(4):
            for e in range(2):
                off = (src * RS + j * 2048) if p3 else (src * 2048 + j * 8192)
                k('ds_read_b128 %s, v%d offset:%d' % (vr(ACC + (j * 4 + src) * 8 + e * 4, 4), vR + e, off))
    for j in range(2):
        b = ACC + j * 32
        k('s_waitcnt lgkmcnt(%d)' % (12 - 8 * j))
        for i in range(8):
            k('v_add_f32 v%d, v%d, v%d' % (b + i, b + i, b + 8 + i))
        k('s_waitcnt lgkmcnt(%d)' % (8 - 8 * j))
        for i in range(8):
            k('v_add_f32 v%d, v%d, v%d' % (b + 16 + i, b + 16 + i, b + 24 + i))
        for i in range(8):
            k('v_add_f32 v%d, v%d, v%d' % (b + i, b + i, b + 16 + i))
        if j == 0:
            k('s_waitcnt vmcnt(0)')
        for i in range(4):
            k('v_cvt_pk_bf16_f32 v%d, v%d, v%d' % (T + 4, b + 2 * i, b + 2 * i + 1))
            k('v_lshlrev_b32 v%d, 16, v%d' % (T, T + 4))
            k('v_and_b32 v%d, 0xffff0000, v%d' % (T + 1, T + 4))
            k('v_lshlrev_b32 v%d, 16, v%d' % (T + 2, RES + 4 * j + i))
            k('v_and_b32 v%d, 0xffff0000, v%d' % (T + 3, RES + 4 * j + i))
            k('v_add_f32 v%d, v%d, v%d' % (T, T, T + 2))
            k('v_add_f32 v%d, v%d, v%d' % (T + 1, T + 1, T + 3))
            k('v_cvt_pk_bf16_f32 v%d, v%d, v%d' % (T + 8 + 4 * j + i, T, T + 1))
        k('buffer_store_dwordx4 %s, v%d, s[%d:%d], %s offen%s' % (vr(T + 8 + 4 * j, 4), vOut, osrd, osrd + 3, 's41' if j else '0', HSC if p3 else ''))
        if p3:
            k('ds_write_b128 v%d, %s offset:%d' % (vFw, vr(T + 8 + 4 * j, 4), j * 128))
            for i in range(4):
                d = T + 8 + 4 * j + i
                k('v_dot2_f32_bf16 v%d, v%d, s44, %s' % (BFR + 2 * j, d, 'v%d' % (BFR + 2 * j) if i else '0'))
                k('v_dot2_f32_bf16 v%d, v%d, v%d, %s' % (BFR + 2 * j + 1, d, d, 'v%d' % (BFR + 2 * j + 1) if i else '0'))
    if p3:
        k('s_waitcnt lgkmcnt(0)')
        for j in range(2):
            k('ds_read_b128 %s, v%d offset:%d' % (vr(ACC + 4 * j, 4), vFr, j * 1024))
        DP = ' row_mask:0xf bank_mask:0xf'
        for m in ('quad_perm:[1,0,3,2]', 'quad_perm:[2,3,0,1]', 'row_half_mirror'):
            for i in range(4):
                k('v_add_f32_dpp v%d, v%d, v%d %s%s' % (BFR + i, BFR + i, BFR + i, m, DP))
        k('s_mov_b64 exec, s[42:43]')
        for j in range(2):
            k('buffer_store_dwordx2 %s, v%d, s[4:7], 0 offen offset:%d%s' % (vr(BFR + 2 * j, 2), vSt, j * 512, SSC))
        k('s_mov_b64 exec, -1')
        for j in range(2):
            k('s_waitcnt lgkmcnt(%d)' % (1 - j))
            k('buffer_store_dwordx4 %s, v%d, s[4:7], 0 offen offset:%d%s' % (vr(ACC + 4 * j, 4), vFo, j * 1024, FSC))
    yield 'end'


def cs_sum(k, mid=None, nmid=0):
    k('''s_lshr_b32 s10, s2, 4
    s_mul_i32 s10, s10, 448
    s_bfe_u32 s11, s3, 0x10001
    s_mul_i32 s30, s11, 7168
    s_add_u32 s10, s10, s30
    s_add_u32 s10, s10, 0x%x
    s_mul_i32 s11, s11, 448
    s_add_u32 s11, s11, %d
    v_and_b32 v4, 31, v1
    v_lshlrev_b32 v4, 4, v4
    v_add_u32 v6, s11, v4
    v_lshrrev_b32 v5, 5, v1
    v_mul_u32_u24 v5, %d, v5
    v_add_u32 v4, v4, v5''' % (WS_CS2, CSB, 8 * 14336))
    for p in range(8):
        k('s_add_u32 s30, s10, %d' % (p * 14336))
        k('buffer_load_dwordx4 %s, v4, s[4:7], s30 offen' % vr(32 + p * 4, 4))
    if mid:
        mid()
    for p in range(1, 8):
        k('s_waitcnt vmcnt(%d)' % (7 - p + nmid))
        for i in range(4):
            k('v_add_f32 v%d, v%d, v%d' % (32 + i, 32 + i, 32 + p * 4 + i))
    for i in range(4):
        k('v_mov_b32 v%d, v%d' % (36 + i, 32 + i))
    for i in range(4):
        k('v_permlane32_swap_b32 v%d, v%d' % (32 + i, 36 + i))
    for i in range(4):
        k('v_add_f32 v%d, v%d, v%d' % (32 + i, 32 + i, 36 + i))
    k('s_mov_b64 exec, 0x0fffffff')
    k('ds_write_b128 v6, v[32:35]')
    k('s_mov_b64 exec, -1')


def p4_loader(k):
    vA, vBd, vB5, vG = 8, 16, 17, 18
    RAMP = int(ENV('RAMP', '2'))
    k.label('J_LD4')
    k('s_and_b32 s22, s3, 3')
    k('''s_cmp_lt_u32 s22, 2
    s_cselect_b32 s10, 32, 40
    s_load_dwordx2 s[16:17], s[0:1], s10
    s_load_dwordx2 s[12:13], s[0:1], 48''')
    k('v_and_b32 v1, 63, v0')
    k('''s_and_b32 s20, s2, 7
    s_lshl_b32 s20, s20, 1
    s_bfe_u32 s21, s2, 0x10003
    s_add_u32 s20, s20, s21
    s_lshl_b32 s23, s20, 17
    s_lshl_b32 s24, s22, 15
    s_add_u32 s23, s23, s24
    s_add_u32 s23, s23, 0x%x
    v_lshlrev_b32 v4, 4, v1
    v_add_u32 v%d, s23, v4''' % (WS_HF, vA))
    k('''s_lshl_b32 s29, s21, 6
    s_lshl_b32 s24, s22, 4
    s_add_u32 s29, s29, s24
    s_add_u32 s29, s29, s8
    s_add_u32 s29, s29, %d''' % F3)
    for i in range(1, 8):
        k('s_mov_b32 s%d, %d' % (47 + i, i * 4096))
    p4_bsetup(k, vBd, 4, 5, 26, 27)
    k('s_lshl_b32 s28, s22, 11')
    k('s_lshr_b32 s10, s2, 5')
    k('s_lshl_b32 s10, s10, 7')
    gemm_bd(k, vB5, 4, 5, 10)
    k('s_mul_i32 s25, s22, %d' % (28 * 16 * 1024))
    k('v_lshlrev_b32 v%d, 10, v1' % vG)
    k('s_mov_b32 s40, 0x%x' % (WS_FL + GST))
    k('s_waitcnt lgkmcnt(0)')
    k('s_mov_b32 s18, 0x%x' % WSZ)
    k('s_mov_b32 s19, 0x00020000')
    k('s_mov_b32 s14, 0x%x' % WSZ)
    k('s_mov_b32 s15, 0x00020000')
    poll(k, 'LD4_poll', 29, 4)
    k.ts(8)
    q = Q(k)

    def astage(ks):
        sl = ((ks + 3) % NSL) * SLOT
        for mf in range(2):
            o_ = (mf * 16 + ks) * 1024
            k('s_add_u32 m0, s28, %d' % (sl + 16384 + mf * 1024 - o_ % 4096))
            q.issue('buffer_load_dwordx4 v%d, s[4:7], %s offen offset:%d%s lds' % (
                vA, ('s%d' % (47 + o_ // 4096)) if o_ >= 4096 else '0', o_ % 4096, DSC), ('S', ks))

    def stage(ks):
        astage(ks)
        if ks >= 3:
            p4_bstage(k, ks, vBd, 26, 27, 16, q)
            q.at[('S', ks)] = q.n

    issued = 0
    for ks in range(3):
        stage(ks)
        issued += 1
    for ks in range(16):
        q.wait(('S', ks))
        if ENV('TS4') and ks in (2, 4, 6, 8, 10, 12):
            k.ts2(1 + ks // 2)
        k('s_barrier')
        for _ in range(RAMP):
            if issued < 16 and issued <= ks + NSL - 1:
                stage(issued)
                issued += 1
        if ks == 8:
            k('s_mov_b64 exec, 0xff')
            q.issue('buffer_load_dword v%d, v%d, s[4:7], s40 offen sc1' % (vG + 1, vG), 'G')
            k('s_mov_b64 exec, -1')
        if ks >= 11 and not ENV('X5P'):
            for s in range((ks - 11) * 3, (ks - 11) * 3 + 3):
                p5_bstep(k, s, vB5, 25, 28, 12, q)
    k('s_barrier')
    k('s_cmp_lg_u32 s100, 0')
    k('s_cbranch_scc1 J_SLOW_next')
    for s in range(15, 18):
        p5_bstep(k, s, vB5, 25, 28, 12, q)
    q.wait('G')
    k('s_mov_b64 exec, 0xff')
    k('v_cmp_eq_u32 vcc, 0, v%d' % (vG + 1))
    k('s_mov_b64 exec, -1')
    k('v_mov_b32 v5, 0x%x' % DEC)
    k('s_and_b32 s10, vcc_lo, 0xff')
    k('v_mov_b32 v4, s10')
    k('s_cmp_lg_u32 s3, 4')
    k('s_cbranch_scc1 LD4_nw')
    k('ds_write_b32 v5, v4 offset:4')
    k.label('LD4_nw')
    k('s_waitcnt vmcnt(0) lgkmcnt(0)')
    k.ts(9)
    k('s_barrier')
    k('ds_read_b32 v4, v5 offset:4')
    k('s_waitcnt lgkmcnt(0)')
    k('v_readfirstlane_b32 s10, v4')
    k('s_cmp_lg_u32 s10, 0')
    k('s_cbranch_scc1 LD4_steal')
    prof_end(k)
    k('s_endpgm')
    k.label('LD4_steal')
    k('s_barrier')
    k('s_branch J_SLOW_end')


def p4_comp(k):
    SS = 18
    vM, vC, vI = 26, 28, 30
    AF = 32
    BF = 48
    ACC = 104
    T = 216
    E = 224
    CS = BF
    vSt = 9
    vRd = 10
    vRa = 14
    vCs = 17
    vS2 = 16
    k.label('J_P4')
    lanes(k)
    k('''s_and_b32 s20, s2, 7
    s_lshl_b32 s20, s20, 1
    s_bfe_u32 s22, s2, 0x10003
    s_add_u32 s20, s20, s22
    s_lshr_b32 s21, s2, 4''')
    k('''s_lshl_b32 s40, s22, 1
    s_lshr_b32 s23, s3, 1
    s_add_u32 s40, s40, s23
    s_lshl_b32 s40, s40, 4
    s_add_u32 s40, s40, s21
    s_lshl_b32 s40, s40, 1
    s_and_b32 s23, s3, 1
    s_add_u32 s40, s40, s23
    s_add_u32 s40, s40, s8
    s_add_u32 s40, s40, %d''' % F4)
    k('''v_lshlrev_b32 v4, 3, v3
    v_lshrrev_b32 v5, 2, v2
    v_add_u32 v4, v4, v5
    v_lshlrev_b32 v4, 6, v4
    v_and_b32 v5, 3, v2
    v_lshl_add_u32 v4, v5, 3, v4
    s_and_b32 s30, s21, 1
    v_and_b32 v5, 1, v3
    v_xor_b32 v5, s30, v5
    v_lshl_add_u32 v%d, v5, 5, v4
    v_xor_b32 v5, 1, v5
    v_lshl_add_u32 v4, v5, 5, v4
    s_lshl_b32 s30, s30, 11
    v_add_u32 v%d, s30, v4''' % (vRd, vRd + 1))
    for par in range(2):
        k('v_add_u32 v%d, %d, v%d' % (vRd + 2 + par, 3 * SLOT, vRd + par))
    k('s_lshl_b32 s28, s3, 11')
    k('s_add_u32 s28, s28, 16384')
    k('v_lshlrev_b32 v4, 4, v1')
    k('v_add_u32 v%d, s28, v4' % vRa)
    k('v_add_u32 v%d, %d, v%d' % (vRa + 1, 3 * SLOT, vRa))
    k('''v_lshrrev_b32 v4, 1, v3
    v_lshlrev_b32 v4, 5, v4
    v_add_u32 v4, v4, v2
    v_lshlrev_b32 v4, 4, v4
    v_and_b32 v5, 1, v3
    v_lshl_add_u32 v%d, v5, 3, v4''' % vSt)
    k('''s_lshl_b32 s25, s20, 2
    s_add_u32 s25, s25, s3
    s_mul_i32 s25, s25, 112
    s_mul_i32 s30, s21, 7
    s_add_u32 s25, s25, s30
    s_lshl_b32 s25, s25, 10
    s_add_u32 s25, s25, 0x%x''' % WS_HH)
    k('v_lshlrev_b32 v8, 7, v1')
    k('v_lshlrev_b32 v4, 4, v3')
    k('v_add_u32 v%d, 0x%x, v4' % (vCs, CSB))
    k('''s_lshl_b32 s30, s20, 2
    s_add_u32 s30, s30, s3
    s_lshl_b32 s30, s30, 11
    s_add_u32 s30, s30, 0x%x
    v_lshl_add_u32 v4, v2, 6, v4
    v_add_u32 v%d, s30, v4''' % (WS_ST, vS2))
    yield 'pre'

    def areg(ks, mf):
        return AF + ((ks & 1) * 2 + mf) * 4

    def reads(hs):
        ks, mx = hs >> 1, hs & 1
        slot = (ks + 3) % NSL
        out = []
        if mx == 0:
            for mf in range(2):
                out.append('ds_read_b128 %s, v%d offset:%d' % (vr(areg(ks, mf), 4), vRa + slot // 3, (slot % 3) * SLOT + mf * 1024))
        for nf in range(7):
            for kgl in range(2):
                out.append('ds_read_b64_tr_b16 %s, v%d offset:%d' % (
                    vr(BF + mx * 28 + nf * 4 + kgl * 2, 2), vRd + (slot // 3) * 2 + (nf & 1),
                    (slot % 3) * SLOT + mx * 8192 + (nf >> 1) * 2048 + kgl * 256))
        return out

    class Lst:
        def __init__(self):
            self.l = []

        def __call__(self, x):
            self.l.append(x)

    k('s_barrier')
    k.ts(8)
    for o in reads(0):
        k(o)
    for mf in range(2):
        k('buffer_load_dwordx4 %s, v%d, s[4:7], 0 offen offset:%d%s' % (vr(SS + mf * 4, 4), vS2, mf * 1024, DSC))
    SF = Lst()
    stats_fin(SF, SS, T, vM, vC, vI)
    no = []
    for hs in range(32):
        ks, mx = hs >> 1, hs & 1
        k('s_waitcnt lgkmcnt(0)')
        if ENV('TS4') == '2' and mx == 1 and ks in (1, 3, 5, 7, 9, 11):
            k.ts2(2 + ks // 2)
        if mx == 1 and ks + 1 < 16:
            k('s_barrier')
        if ENV('TS4') == '1' and mx == 1 and ks in (1, 3, 5, 7, 9, 11):
            k.ts2(2 + ks // 2)
        rd = reads(hs + 1) if hs + 1 < 32 else []
        if hs == 8:
            k('s_waitcnt vmcnt(0)')
            no = SF.l
        if PRE and PREG and hs == HPF:
            k('s_mov_b32 exec_hi, 0x00ffffff')
            k('buffer_load_dword v7, v8, s[4:7], s25 offen')
            k('s_mov_b32 exec_hi, -1')
        for nf in range(7):
            for mf in range(2):
                acc = vr(ACC + (mf * 14 + mx * 7 + nf) * 4, 4)
                a = vr(areg(ks, mf), 4)
                b = vr(BF + mx * 28 + nf * 4, 4)
                k('v_mfma_f32_16x16x32_bf16 %s, %s, %s, %s' % (acc, b, a, '0' if ks == 0 else acc))
                for _ in range(2):
                    if rd:
                        k(rd.pop(0))
                if no and not rd:
                    k(no.pop(0))
                    if no:
                        k(no.pop(0))
        for o in rd:
            k(o)
    assert not no
    k.ts(9)
    k('s_waitcnt vmcnt(0)')
    k('s_barrier')
    for mx in range(2):
        for nf in range(7):
            k('ds_read_b128 %s, v%d offset:%d' % (vr(CS + (mx * 7 + nf) * 4, 4), vCs, mx * 448 + nf * 64))
    k('s_waitcnt lgkmcnt(0)')
    n = 0
    for nf in range(7):
        k('s_add_u32 s29, s25, %d' % (nf * 1024))
        for mf in range(2):
            e = E + (n & 3) * 8
            n += 1
            G = ACC + (mf * 14 + nf) * 4
            U = ACC + (mf * 14 + 7 + nf) * 4
            sel = 'op_sel:[0,%d,0] op_sel_hi:[1,%d,1]' % (mf, mf)
            sel2 = 'op_sel:[0,%d] op_sel_hi:[1,%d]' % (mf, mf)
            sel3 = 'op_sel:[0,%d,%d] op_sel_hi:[1,%d,%d]' % (mf, mf, mf, mf)
            for h in range(2):
                k('v_pk_fma_f32 %s, %s, %s, %s %s neg_lo:[0,1,0] neg_hi:[0,1,0]' % (
                    vr(G + 2 * h, 2), vr(CS + nf * 4 + 2 * h, 2), vr(vM, 2), vr(G + 2 * h, 2), sel))
            for h in range(2):
                k('v_pk_mul_f32 %s, %s, %s %s' % (vr(e + 2 * h, 2), vr(G + 2 * h, 2), vr(vC, 2), sel2))
            for r in range(4):
                k('v_exp_f32 v%d, v%d' % (e + r, e + r))
            for h in range(2):
                k('v_pk_fma_f32 %s, %s, %s, %s %s neg_lo:[0,1,0] neg_hi:[0,1,0]' % (
                    vr(U + 2 * h, 2), vr(CS + (7 + nf) * 4 + 2 * h, 2), vr(vM, 2), vr(U + 2 * h, 2), sel))
            for h in range(2):
                k('v_pk_fma_f32 %s, %s, %s, %s %s' % (vr(e + 2 * h, 2), vr(e + 2 * h, 2), vr(vI, 2), vr(vI, 2), sel3))
            for r in range(4):
                k('v_rcp_f32 v%d, v%d' % (e + r, e + r))
            for h in range(2):
                k('v_pk_mul_f32 %s, %s, %s' % (vr(G + 2 * h, 2), vr(G + 2 * h, 2), vr(U + 2 * h, 2)))
            for h in range(2):
                k('v_pk_mul_f32 %s, %s, %s' % (vr(G + 2 * h, 2), vr(G + 2 * h, 2), vr(e + 2 * h, 2)))
            k('v_cvt_pk_bf16_f32 v%d, v%d, v%d' % (e + 4, G, G + 1))
            k('v_cvt_pk_bf16_f32 v%d, v%d, v%d' % (e + 5, G + 2, G + 3))
            k('buffer_store_dwordx2 %s, v%d, s[4:7], s29 offen offset:%d%s' % (vr(e + 4, 2), vSt, mf * 256, GSC))
    yield 'end'


def prof_end(k):
    if not PROF:
        return
    k('s_waitcnt vmcnt(0)')
    k.ts(14)
    k.ts(15, True)
    k('s_waitcnt lgkmcnt(0)')
    k('s_lshl_b32 s99, s2, 3')
    k('s_add_u32 s99, s99, s3')
    k('s_lshl_b32 s99, s99, 7')
    k('s_add_u32 s99, s99, 0x%x' % (PROF_BASE + 0x40000))
    k('v_mov_b32 v4, 0')
    for i in range(16):
        k('v_mov_b32 v2, s%d' % (64 + 2 * i))
        k('v_mov_b32 v3, s%d' % (65 + 2 * i))
        k('buffer_store_dwordx2 v[2:3], v4, s[4:7], s99 offen offset:%d' % (8 * i))
        k('s_nop 1')


def bcast_read(k, off):
    k('v_mov_b32 v5, 0x%x' % DEC)
    k('s_barrier')
    k('ds_read_b32 v4, v5 offset:%d' % off)
    k('s_waitcnt lgkmcnt(0)')
    k('v_readfirstlane_b32 s10, v4')


def slow(k):
    k.label('J_SLOW_start')
    k('s_lshr_b32 s11, s2, 3')
    k('s_lshl_b32 s9, 1, s11')
    k('s_bitcmp1_b32 s10, 0')
    k('s_cselect_b32 s9, 0, s9')
    k('s_mov_b32 s100, 1')
    k('s_mov_b32 s97, %d' % PATIENCE)
    k.label('J_SLOW_claim')
    k('s_waitcnt vmcnt(0) lgkmcnt(0)')
    k('s_barrier')
    k('s_cmp_lg_u32 s3, 0')
    k('s_cbranch_scc1 SL_c9')
    k('s_mov_b64 exec, 1')
    k('s_mov_b32 s30, 0')
    k('s_mov_b32 s31, 0')
    k.label('J_SL_c1')
    k('v_mov_b32 v4, 0')
    k('buffer_atomic_or v4, off, s[4:7], s8 sc0')
    k('s_add_u32 s31, s31, 1')
    k('s_waitcnt vmcnt(0)')
    k('v_readfirstlane_b32 s10, v4')
    k('s_mov_b32 s11, -1')
    k('s_cmp_eq_u32 s10, -1')
    k('s_cbranch_scc1 SL_c8')
    k('s_cmp_gt_u32 s31, 4096')
    k('s_cbranch_scc1 SL_c8')
    k('s_cmp_eq_u32 s9, 0')
    k('s_cbranch_scc1 SL_c2')
    k('s_cmp_ge_u32 s30, s97')
    k('s_cbranch_scc1 SL_c2')
    k('s_add_u32 s30, s30, 1')
    k('s_sleep 16')
    k('s_branch J_SL_c1')
    k.label('SL_c2')
    k('s_ff0_i32_b32 s11, s10')
    k('s_lshl_b32 s10, 1, s11')
    k('v_mov_b32 v4, s10')
    k('buffer_atomic_or v4, off, s[4:7], s8 sc0')
    k('s_waitcnt vmcnt(0)')
    k('v_readfirstlane_b32 s12, v4')
    k('s_and_b32 s12, s12, s10')
    k('s_cmp_lg_u32 s12, 0')
    k('s_cbranch_scc1 J_SL_c1')
    k.label('SL_c8')
    k('v_mov_b32 v4, s11')
    k('v_mov_b32 v5, 0x%x' % DEC)
    k('ds_write_b32 v5, v4 offset:8')
    k('s_mov_b64 exec, -1')
    k('s_waitcnt lgkmcnt(0)')
    k.label('SL_c9')
    bcast_read(k, 8)
    k('s_cmp_eq_u32 s10, -1')
    k('s_cbranch_scc1 SL_ph')
    k('s_and_b32 s10, s10, 31')
    k('s_lshl_b32 s11, 1, s10')
    k('s_or_b32 s9, s9, s11')
    k('s_and_b32 s2, s2, 7')
    k('s_lshl_b32 s10, s10, 3')
    k('s_or_b32 s2, s2, s10')
    k('s_branch J_P2')
    k.label('SL_ph')
    k('s_mov_b32 s100, 3')
    k('s_mov_b32 s101, s9')
    k.label('J_SLOW_next')
    k('s_waitcnt vmcnt(0) lgkmcnt(0)')
    k('s_barrier')
    k('s_cmp_lg_u32 s101, 0')
    k('s_cbranch_scc1 SL_n1')
    k('s_add_u32 s100, s100, 1')
    k('s_mov_b32 s101, s9')
    k('s_cmp_gt_u32 s100, 5')
    k('s_cbranch_scc1 J_SLOW_end')
    k('s_branch J_SLOW_next')
    k.label('SL_n1')
    k('s_ff1_i32_b32 s10, s101')
    k('s_bitset0_b32 s101, s10')
    k('s_and_b32 s2, s2, 7')
    k('s_lshl_b32 s10, s10, 3')
    k('s_or_b32 s2, s2, s10')
    k('v_and_b32 v1, 63, v0')
    k('s_cmp_ge_u32 s3, 4')
    k('s_cbranch_scc1 SL_ld')
    k('s_cmp_eq_u32 s100, 4')
    k('s_cbranch_scc1 J_P4')
    k('s_cmp_eq_u32 s100, 5')
    k('s_cbranch_scc1 J_P5')
    k('s_load_dwordx2 s[12:13], s[0:1], 16')
    k('s_mov_b32 s14, 0x80000')
    k('s_mov_b32 s15, 0x00020000')
    k('s_waitcnt lgkmcnt(0)')
    wo_dma(k, 8, 4, 5)
    k('s_waitcnt vmcnt(0)')
    k('s_branch J_P3')
    k.label('SL_ld')
    k('s_cmp_eq_u32 s100, 3')
    k('s_cbranch_scc1 SL_l3')
    k('s_cmp_eq_u32 s100, 5')
    k('s_cbranch_scc1 SL_l5')
    k('''s_cmp_lt_u32 s3, 6
    s_cselect_b32 s10, 32, 40
    s_load_dwordx2 s[12:13], s[0:1], s10
    s_mov_b32 s14, 0x%x
    s_mov_b32 s15, 0x00020000''' % WSZ)
    p4_bsetup(k, 8, 4, 5, 23, 24)
    k('s_waitcnt lgkmcnt(0)')
    for ks in range(3):
        p4_bstage(k, ks, 8, 23, 24, 12)
    cs_sum(k)
    k('s_waitcnt lgkmcnt(0)')
    k('s_branch J_LD4')
    k.label('SL_l5')
    k('s_load_dwordx2 s[12:13], s[0:1], 48')
    k('s_mov_b32 s14, 0x%x' % WSZ)
    k('s_mov_b32 s15, 0x00020000')
    k('s_lshr_b32 s10, s2, 5')
    k('s_lshl_b32 s10, s10, 7')
    gemm_bd(k, 8, 4, 5, 10)
    k('s_and_b32 s22, s3, 3')
    k('s_mul_i32 s25, s22, %d' % (28 * 16 * 1024))
    k('s_lshl_b32 s28, s22, 11')
    k('s_waitcnt lgkmcnt(0)')
    for s in range(18):
        p5_bstep(k, s, 8, 25, 28, 12)
    k('s_waitcnt vmcnt(0)')
    k('s_barrier')
    k.label('SL_l3')
    k('s_barrier')
    k('s_branch J_SLOW_next')
    k.label('J_SLOW_end')
    k('s_waitcnt vmcnt(0) lgkmcnt(0)')
    k('s_barrier')
    k('s_cmp_lg_u32 s3, 0')
    k('s_cbranch_scc1 SL_e9')
    k('v_and_b32 v1, 63, v0')
    k('v_lshlrev_b32 v6, 10, v1')
    k('s_mov_b32 s11, 0x%x' % (WS_FL + GST))
    k('s_mov_b64 exec, 0xff')
    k('buffer_load_dword v4, v6, s[4:7], s11 offen sc1')
    k('s_waitcnt vmcnt(0)')
    k('v_cmp_eq_u32 vcc, 0, v4')
    k('s_mov_b64 exec, 1')
    k('s_and_b32 s10, vcc_lo, 0xff')
    k('s_ff1_i32_b32 s10, s10')
    k('s_cmp_eq_u32 s10, -1')
    k('s_cbranch_scc1 SL_e8')
    k('s_lshl_b32 s12, s10, 10')
    k('s_add_u32 s11, s11, s12')
    k('v_mov_b32 v4, 1')
    k('buffer_store_dword v4, off, s[4:7], s11 sc1')
    k('s_waitcnt vmcnt(0)')
    k.label('SL_e8')
    k('v_mov_b32 v4, s10')
    k('v_mov_b32 v5, 0x%x' % DEC)
    k('ds_write_b32 v5, v4 offset:12')
    k('s_mov_b64 exec, -1')
    k('s_waitcnt lgkmcnt(0)')
    k.label('SL_e9')
    bcast_read(k, 12)
    k('s_cmp_eq_u32 s10, -1')
    k('s_cbranch_scc1 KF_done')
    k('s_and_b32 s2, s10, 7')
    k('s_lshl_b32 s8, s98, 3')
    k('s_add_u32 s8, s8, s2')
    k('s_lshl_b32 s8, s8, 10')
    k('s_add_u32 s8, s8, 0x%x' % WS_FL)
    k('s_mov_b32 s9, 0')
    k('s_mov_b32 s100, 1')
    k('s_mov_b32 s97, 0')
    k('s_branch J_SLOW_claim')


def gen_kf():
    k = Kernel('kf')
    if ENV('TS5'):
        k.tsoff = set(range(2, 9))
    if ENV('TS4'):
        k.tsoff = set(range(2, 8))
    if TS2:
        k.tsoff = set(range(2, 11))
    k('s_cmp_ge_u32 s2, 256')
    k('s_cbranch_scc1 KF_done')
    k.ts(0, True)
    k.ts(1)
    k('s_load_dwordx2 s[4:5], s[0:1], 72')
    k('s_getreg_b32 s98, hwreg(HW_REG_XCC_ID, 0, 4)')
    FAKE = ENV('FAKEX', '')
    if FAKE == 'g0':
        gsrc = '0'
    else:
        gsrc = None
    k('v_lshrrev_b32 v1, 6, v0')
    k('v_readfirstlane_b32 s3, v1')
    if gsrc is None:
        k('s_and_b32 s10, s98, 7')
    else:
        k('s_mov_b32 s10, %s' % gsrc)
    k('''s_andn2_b32 s2, s2, 7
    s_or_b32 s2, s2, s10
    s_lshl_b32 s8, s98, 3
    s_add_u32 s8, s8, s10
    s_lshl_b32 s8, s8, 10
    s_add_u32 s8, s8, 0x%x
    s_lshl_b32 s10, s10, 10
    s_add_u32 s10, s10, 0x%x
    s_mov_b32 s100, 0
    s_mov_b32 s6, 0x%x
    s_mov_b32 s7, 0x00020000
    s_lshr_b32 s11, s2, 3
    s_lshl_b32 s11, 1, s11
    v_mov_b32 v252, s11
    v_mov_b32 v253, 1''' % (WS_FL, WS_FL + GST, WS_SIZE))
    if FAKE == 'drop':
        k('s_and_b32 s11, s2, 0x78')
        k('s_cmp_eq_u32 s11, 0x28')
        k('s_cbranch_scc1 KF_done')
    if P2V:
        k('s_mov_b32 s9, s10')
    else:
        k('s_waitcnt lgkmcnt(0)')
        k('s_cmp_lg_u32 s3, 0')
        k('s_cbranch_scc1 J_P2')
        k('s_mov_b64 exec, 1')
        k('buffer_atomic_or v252, off, s[4:7], s8 sc0')
        k('buffer_store_dword v253, off, s[4:7], s10 sc1')
        k('s_mov_b64 exec, -1')
    phase2(k)
    k('s_cmp_ge_u32 s3, 4')
    k('s_cbranch_scc1 J_LD3')
    k.label('J_P3')
    for _ in gemm(k, True):
        pass
    g4 = p4_comp(k)
    k('s_cmp_lg_u32 s100, 0')
    k('s_cbranch_scc0 P3_fast')
    setflag(k, 40, 4)
    k('s_branch J_SLOW_next')
    k.label('P3_fast')
    k('s_mov_b32 s41, s40')
    next(g4)
    k('s_cmp_lg_u32 s100, 0')
    k('s_cbranch_scc1 P4_go')
    setflag(k, 41, 4)
    k.ts(7)
    k.label('P4_go')
    next(g4)
    g5 = gemm(k, False)
    k('s_cmp_lg_u32 s100, 0')
    k('s_cbranch_scc0 J_P5')
    setflag(k, 40, 4)
    k('s_branch J_SLOW_next')
    k.label('J_P5')
    next(g5)
    k('s_cmp_lg_u32 s100, 0')
    k('s_cbranch_scc1 P5_go')
    setflag(k, 40, 4)
    k.ts(10)
    k.label('P5_go')
    k('v_mov_b32 v5, 0x%x' % DEC)
    k('s_barrier')
    k('ds_read_b32 v4, v5 offset:4')
    k('s_waitcnt lgkmcnt(0)')
    k('v_readfirstlane_b32 s96, v4')
    next(g5)
    k.ts(13)
    k('s_cmp_lg_u32 s100, 0')
    k('s_cbranch_scc1 J_SLOW_next')
    k('s_cmp_lg_u32 s96, 0')
    k('s_cbranch_scc1 J_SLOW_end')
    prof_end(k)
    k.label('KF_done')
    k('s_endpgm')
    k.label('J_LD3')
    k('v_and_b32 v1, 63, v0')
    if P2V == 2:
        k('''s_cmp_lt_u32 s3, 6
        s_cselect_b32 s10, 32, 40
        s_load_dwordx2 s[12:13], s[0:1], s10
        s_mov_b32 s14, 0x%x''' % WSZ)
        p4_bsetup(k, 8, 4, 5, 23, 24)

        def mid():
            k('s_waitcnt lgkmcnt(0)')
            for ks in range(3):
                p4_bstage(k, ks, 8, 23, 24, 12)
        cs_sum(k, mid, 12)
    else:
        cs_sum(k)
    if PRE and NPF3:
        l2pf(k, NPF3, 40, NPF3)
    k('s_waitcnt lgkmcnt(0)')
    k('s_barrier')
    k.ts(5)
    p4_loader(k)
    slow(k)
    for f in OOL:
        f()
    k.label('KF_END')
    k('s_endpgm')
    return k, dict(vgpr=256, agpr=0, lds=LDS_SIZE, grid=256, block=512)
```

```python
from asmlib import Kernel, PROF, PROF_BASE
from k1 import vr, sr, make_srd, WS_Q, WS_K, WS_VT, WS_O, WS_H, WS_HF, WS_HH, WS_ST, WS_CS2, WS_FL, WS_SIZE
from k4 import stats_fin
import struct, os


def f32hex(x):
    return '0x%08x' % struct.unpack('<I', struct.pack('<f', x))[0]


SLOT = 24576
NSL = 6
CSB = 3 * SLOT + 81920
DEC = CSB + 1024
LDS_SIZE = DEC + 256
F2, F3, F4 = 128, 384, 512
GST = 15 * 8 * 1024 + 768
POLL_LIMIT = int(os.environ.get('POLL_LIMIT', '0x20000'), 0)
PATIENCE = 48
WSZ = 512 * 1792 * 2
ENV = os.environ.get
DSC = ENV('DSC', '')
PSC = ENV('PSC', ' sc1')
PRE = int(ENV('PRE', '1'))
HPF = int(ENV('HPF', '10'))
NPF3 = int(ENV('NPF3', '0'))
SCM = {'': '', '1': ' sc1', '01': ' sc0 sc1', 'nt': ' nt', '0': ' sc0', 'nt1': ' sc1 nt'}
OSC = SCM[ENV('OSC', '1')]
HSC = SCM[ENV('HSC', '1')]
GSC = SCM[ENV('GSC', '1')]
SSC = SCM[ENV('SSC', '')]
FSC = SCM[ENV('FSC', '')]
PREO = int(ENV('PREO', '0'))
PREH = int(ENV('PREH', '6'))
TS2 = ENV('TS2')
DT = int(ENV('DT', '-1'))
PKF = int(ENV('PKF', '1'))
PF2 = int(ENV('PF2', '0'))
PF2L = int(ENV('PF2L', '16'))
PREG = int(ENV('PREG', '0'))
P2V = int(ENV('P2V', '2'))
CPF = int(ENV('KCPF', '1'))
RED = int(ENV('RED', '2'))
if RED == 2:
    WS_ST = 0x1480000
PFL = int(ENV('PFL', '0'))
PFN = int(ENV('PFN', '1'))
PFS = int(ENV('PFS', '0'))
PFD = int(ENV('PFD', '4'))
PFR = int(ENV('PFR', '96'))


OOL = []


class Q:
    def __init__(self, k):
        self.k = k
        self.n = 0
        self.at = {}

    def issue(self, text, tag=None):
        self.k(text)
        self.n += 1
        if tag is not None:
            self.at[tag] = self.n

    def wait(self, *tags):
        m = max(self.at[t] for t in tags)
        self.k('s_waitcnt vmcnt(%d)' % min(63, self.n - m))


def poll(k, L, soff, nd, vt=4):
    k('s_mov_b32 s30, 0')
    k('s_mov_b64 exec, 1')
    k.label(L)
    k('buffer_load_dwordx%d %s, off, s[4:7], s%d%s' % (nd, vr(vt, nd), soff, PSC))
    k('s_add_u32 s30, s30, 1')
    k('s_waitcnt vmcnt(0)')
    k('v_and_b32 v%d, v%d, v%d' % (vt, vt, vt + 1))
    if nd == 4:
        k('v_and_b32 v%d, v%d, v%d' % (vt + 2, vt + 2, vt + 3))
        k('v_and_b32 v%d, v%d, v%d' % (vt, vt, vt + 2))
    k('v_readfirstlane_b32 s31, v%d' % vt)
    k('s_cmp_eq_u32 s31, 0x01010101')
    k('s_cbranch_scc1 %s_x' % L)
    k('s_cmp_lt_u32 s30, 0x%x' % POLL_LIMIT)
    k('s_cbranch_scc1 %s' % L)
    k.label(L + '_x')
    k('s_mov_b64 exec, -1')


def setflag(k, soff, vt):
    k('v_mov_b32 v%d, 1' % vt)
    k('s_waitcnt vmcnt(0)')
    k('s_mov_b64 exec, 1')
    k('buffer_store_byte v%d, off, s[4:7], s%d' % (vt, soff))
    k('s_mov_b64 exec, -1')


def lanes(k):
    k('v_and_b32 v1, 63, v0')
    k('v_and_b32 v2, 15, v1')
    k('v_lshrrev_b32 v3, 4, v1')


def gemm_bd(k, vBd, t0, t1, snt):
    k('''v_lshrrev_b32 v%d, 5, v1
    v_lshlrev_b32 v%d, 2, v%d
    v_bfe_u32 v%d, v1, 2, 2
    v_add_u32 v%d, v%d, v%d
    v_lshlrev_b32 v%d, 10, v%d
    v_bfe_u32 v%d, v1, 4, 1
    v_lshl_add_u32 v%d, v%d, 6, v%d
    v_and_b32 v%d, 3, v1
    v_lshl_add_u32 v%d, v%d, 4, v%d
    v_add_u32 v%d, s%d, v%d''' % (t0, t0, t0, t1, t0, t0, t1, t0, t0, t1, t0, t1, t0, t1, t0, t1, t0, vBd, snt, t0))


def wo_dma(k, vBd, t0, t1, q=None):
    k('s_lshr_b32 s10, s2, 5')
    k('s_lshl_b32 s10, s10, 7')
    gemm_bd(k, vBd, t0, t1, 10)
    k('s_lshl_b32 s10, s3, 17')
    k('s_lshl_b32 s11, s3, 14')
    for i in range(16):
        k('s_add_u32 s30, s10, %d' % (i * 8192))
        k('s_add_u32 m0, s11, %d' % (i * 1024))
        k('buffer_load_dwordx4 v%d, s[12:15], s30 offen lds' % vBd)


def p4_bsetup(k, vBd, t0, t1, sB, sM):
    k('''v_lshrrev_b32 v%d, 2, v1
    v_mul_u32_u24 v%d, 0xe00, v%d
    v_lshrrev_b32 v%d, 5, v1
    v_lshlrev_b32 v%d, 1, v%d
    v_and_b32 v%d, 3, v1
    v_xor_b32 v%d, v%d, v%d
    v_lshl_add_u32 v%d, v%d, 4, v%d''' % (t0, t0, t0, t1, t1, t1, vBd, t1, t1, vBd, vBd, t1, t0))
    k('''s_and_b32 s%d, s3, 1
    s_mul_i32 s%d, s%d, %d
    s_lshr_b32 s10, s2, 4
    s_mul_i32 s11, s10, 224
    s_add_u32 s%d, s%d, s11
    s_and_b32 s10, s10, 1
    s_lshl_b32 s10, s10, 5
    s_sub_u32 s%d, s%d, s10
    s_lshl_b32 s%d, s%d, 10
    s_bfe_u32 s10, s3, 0x10001
    s_lshl_b32 s10, s10, 13
    s_add_u32 s%d, s%d, s10''' % (sM, sB, sM, 16 * 3584, sB, sB, sB, sB, sM, sM, sM, sM))


def p4_bstage(k, ks, vBd, sB, sM, srd, q=None):
    sl = ((ks + 3) % NSL) * SLOT
    for j in range(4):
        k('s_add_u32 s30, s%d, %d' % (sB, (ks % int(ENV('X4B', '16'))) * 32 * 3584 + j * 64))
        k('s_add_u32 m0, s%d, %d' % (sM, sl + j * 2048))
        t = 'buffer_load_dwordx4 v%d, s[%d:%d], s30 offen lds' % (vBd, srd, srd + 3)
        if q:
            q.issue(t, ('B', ks))
        else:
            k(t)


def p5_bstep(k, s, vBd, sB, sM, srd, q=None):
    qs = (s + 3) % 18
    for h in range(2):
        k('s_add_u32 s30, s%d, %d' % (sB, (s * 16 + h * 8) * 1024))
        k('s_add_u32 m0, s%d, %d' % (sM, qs * 8192 + h * 1024))
        t = 'buffer_load_dwordx4 v%d, s[%d:%d], s30 offen lds' % (vBd, srd, srd + 3)
        if q:
            q.issue(t, ('B', s))
        else:
            k(t)


def l2pf(k, n, vPf, tot):
    k('''s_lshr_b32 s10, s2, 3
    s_lshl_b32 s10, s10, 1
    s_and_b32 s11, s3, 1
    s_add_u32 s10, s10, s11
    s_lshl_b32 s10, s10, 13
    s_add_u32 s10, s10, %d
    v_lshlrev_b32 v%d, 7, v1''' % (96 * 3584, vPf))
    for i in range(tot):
        if i < n:
            k('s_add_u32 s30, s10, %d' % (i * 0x80000))
        k('buffer_load_dword v%d, v%d, s[12:15], s30 offen' % (vPf + 1, vPf))


def l2pf2(k, n, vPf):
    k('''s_bitcmp1_b32 s3, 0
    s_cselect_b32 s36, s18, s16
    s_cselect_b32 s37, s19, s17
    s_mov_b32 s38, 0x%x
    s_mov_b32 s39, 0x00020000
    s_lshr_b32 s10, s2, 3
    s_lshl_b32 s10, s10, 2
    s_lshr_b32 s11, s3, 1
    s_add_u32 s10, s10, s11
    s_mul_i32 s10, s10, %d
    s_add_u32 s10, s10, %d
    v_lshlrev_b32 v%d, 7, v1''' % (WSZ, PF2L * 128, 96 * 3584, vPf))
    if PF2L < 64:
        k('s_mov_b64 exec, 0x%x' % ((1 << PF2L) - 1))
    for i in range(n):
        k('s_add_u32 s30, s10, %d' % (i * 128 * PF2L * 128))
        k('buffer_load_dword v%d, v%d, s[36:39], s30 offen' % (vPf + 1, vPf))
    k('s_mov_b64 exec, -1')


def p2old(k, S, O, vQ, vK, vV, vSt, vNeg, t0, t1, vPf, aK, aV0, aQ, vMk, vBd, mk, so):
    if TS2:
        k.ts2(2)
    k('buffer_load_dwordx4 %s, v%d, s[4:7], 0 offen' % (vr(aQ, 4), vQ))
    for T in range(9):
        s_, i_ = so(T * 1024)
        k('buffer_load_dwordx4 %s, v%d, s[4:7], %s offen offset:%d' % (vr(aK + T * 4, 4), vK, s_, i_))

    def vreg(idx):
        return aV0 + idx * 4 if idx < 9 else aK + (idx - 9) * 4

    def vloads(idxs):
        for idx in idxs:
            for r in range(4):
                k('v_mov_b32 v%d, v%d' % (vreg(idx) + r, t1))
        k('s_mov_b32 exec_lo, 0x0000ffff')
        k('s_mov_b32 exec_hi, 0x0000ffff')
        for idx in idxs:
            s_, i_ = so(idx * 512)
            k('buffer_load_dwordx4 %s, v%d, s[4:7], %s offen offset:%d' % (vr(vreg(idx), 4), vV, s_, i_))
        k('s_mov_b64 exec, -1')

    def dmablock():
        k('s_waitcnt lgkmcnt(0)')
        k('s_cmp_ge_u32 s3, 4')
        k('s_cbranch_scc1 P2_pfl')
        wo_dma(k, vBd, vPf, vPf + 1)
        k('s_branch P2_pfx')
        k.label('P2_pfl')
        p4_bsetup(k, vBd, vPf, vPf + 1, 23, 24)
        for ks in range(3):
            p4_bstage(k, ks, vBd, 23, 24, 12)
        if PRE and not PREH:
            pass
        elif PRE:
            k('''s_and_b32 s10, s2, 7
            s_lshl_b32 s10, s10, 2
            s_bfe_u32 s11, s2, 0x20003
            s_add_u32 s10, s10, s11
            s_lshr_b32 s11, s2, 5
            s_lshl_b32 s30, s10, 16
            s_lshl_b32 s31, s11, 7
            s_add_u32 s31, s30, s31
            s_add_u32 s31, s31, 0x%x
            s_lshl_b32 s11, s11, 11
            s_add_u32 s30, s30, s11
            s_add_u32 s30, s30, 0x%x
            s_lshl_b32 s10, s10, 12
            s_add_u32 s10, s10, 0x%x
            s_movk_i32 s11, 128
            s_cmp_eq_u32 s3, 4
            s_cselect_b32 s30, s31, s30
            s_cselect_b32 s11, 1024, s11
            s_mov_b32 s31, 16384
            s_bitcmp1_b32 %d, s3
            s_cselect_b32 s30, s10, s30
            s_cselect_b32 s11, 64, s11
            s_cselect_b32 s31, 1024, s31
            v_lshrrev_b32 v%d, 4, v1
            v_mul_u32_u24 v%d, s31, v%d
            v_and_b32 v%d, 15, v1
            v_mad_u32_u24 v%d, v%d, s11, v%d
            buffer_load_dword v7, v%d, s[4:7], s30 offen''' % (WS_H, WS_HF, WS_ST, 0xc0 | (0 if PREH & 1 else 16) | (0 if PREH & 2 else 32), vPf, vPf, vPf, vPf + 1, vPf, vPf + 1, vPf, vPf))
        else:
            l2pf(k, int(ENV('NPF2', '4')), vPf, 4)
        k.label('P2_pfx')

        if PF2:
            l2pf2(k, PF2, vPf)

    vloads(range(9))
    k('''s_lshl_b32 s25, s21, 5
    s_add_u32 s25, s25, s20
    s_lshl_b32 s25, s25, 10
    s_add_u32 s25, s25, 0x%x
    v_lshlrev_b32 v10, 4, v2
    v_lshl_add_u32 v10, v3, 3, v10
    v_add_u32 v%d, s25, v10''' % (WS_O, vSt))
    nx = 0
    if PRE and PREO:
        k('v_lshlrev_b32 v10, 7, v1')
        k('s_mov_b64 exec, 0xff')
        k('buffer_load_dword v7, v10, s[4:7], s25 offen')
        k('s_mov_b64 exec, -1')
        nx = 1
    k('v_mov_b32 v%d, %s' % (vNeg, f32hex(-1e9)))
    k('s_sub_i32 s28, 8, s21')
    k('s_max_i32 s28, s28, 0')
    for i in range(16):
        kk = (i >> 2) * 8 + (i & 3)
        m = 0
        for l in range(64):
            if kk > (l & 31) - (l >> 5) * 4:
                m |= 1 << l
        k('s_mov_b32 s%d, 0x%x' % (mk(i), m & 0xffffffff))
        k('s_mov_b32 s%d, 0x%x' % (mk(i) + 1, m >> 32))
    k.ts(2)
    if TS2:
        k.ts2(3)
    for T in range(9):
        k('s_waitcnt vmcnt(%d)' % (nx + 9 + 8 - T))
        if TS2 and T in (0, 8):
            k.ts2(4 if T == 0 else 5)
        k('v_mfma_f32_32x32x16_bf16 %s, %s, %s, 0' % (vr(S + T * 16, 16), vr(aK + T * 4, 4), vr(aQ, 4)))
    vloads(range(9, 18))
    npf = (13 if PREH else 12) + PF2
    if DT < 0:
        dmablock()
    for i in range(16):
        k('v_cndmask_b32_e64 v%d, v%d, v%d, s[%d:%d]' % (S + i, vNeg, S + i, mk(i), mk(i) + 1))
    for i in range(16):
        k('v_cndmask_b32_e64 v%d, v%d, v%d, s[%d:%d]' % (S + 128 + i, S + 128 + i, vNeg, mk(i), mk(i) + 1))
    k('s_cmp_eq_u32 s28, 0')
    k('s_cbranch_scc1 J_P2_nomask')
    for T in range(8):
        k('s_cmp_gt_u32 s28, %d' % T)
        k('s_cbranch_scc0 J_P2_nomask')
        for i in range(16):
            k('v_mov_b32 v%d, v%d' % (S + T * 16 + i, vNeg))
    k.label('J_P2_nomask')
    ch = [O, O + 1, O + 2, O + 3]
    regs = list(range(S, S + 144))
    for c in range(4):
        k('v_max3_f32 v%d, v%d, v%d, v%d' % (ch[c], regs[c * 36], regs[c * 36 + 1], regs[c * 36 + 2]))
    for j in range(3, 35, 2):
        for c in range(4):
            k('v_max3_f32 v%d, v%d, v%d, v%d' % (ch[c], ch[c], regs[c * 36 + j], regs[c * 36 + j + 1]))
    for c in range(4):
        k('v_max_f32 v%d, v%d, v%d' % (ch[c], ch[c], regs[c * 36 + 35]))
    k('v_max3_f32 v%d, v%d, v%d, v%d' % (t0, ch[0], ch[1], ch[2]))
    k('v_max_f32 v%d, v%d, v%d' % (t0, t0, ch[3]))
    k('v_mov_b32 v%d, v%d' % (t1, t0))
    k('v_permlane32_swap_b32 v%d, v%d' % (t0, t1))
    k('v_max_f32 v%d, v%d, v%d' % (t0, t0, t1))
    k.ts(3)
    if TS2:
        k.ts2(6)
    c_ = 0.25 * 1.4426950408889634
    k('s_mov_b32 s29, %s' % f32hex(c_))
    k('v_mul_f32 v%d, s29, v%d' % (t0, t0))
    if PKF:
        k('s_mov_b32 s34, s29')
        k('s_mov_b32 s35, s29')
        k('v_mov_b32 v%d, v%d' % (t1, t0))
    first = True
    for T in range(9):
        b = S + T * 16
        if T == 7:
            k('s_mov_b64 exec, 1')
            k('buffer_load_dword v%d, off, s[4:7], s8 sc1' % vMk)
            k('s_mov_b64 exec, -1')
        if T == DT:
            dmablock()
        if PKF:
            for i in range(0, 16, 2):
                k('v_pk_fma_f32 %s, %s, s[34:35], %s neg_lo:[0,0,1] neg_hi:[0,0,1]' % (vr(b + i, 2), vr(b + i, 2), vr(t0, 2)))
        else:
            for i in range(16):
                k('v_fma_f32 v%d, v%d, s29, -v%d' % (b + i, b + i, t0))
        for i in range(16):
            k('v_exp_f32 v%d, v%d' % (b + i, b + i))
        for u in range(2):
            for j in range(4):
                k('v_cvt_pk_bf16_f32 v%d, v%d, v%d' % (b + 8 * u + j, b + 8 * u + 2 * j, b + 8 * u + 2 * j + 1))
        for u in range(2):
            idx = 2 * T + u
            if idx == 0:
                k('s_waitcnt vmcnt(%d)' % (nx + 9 + (npf if DT <= 0 else 0)))
            if idx == 9:
                if TS2:
                    k.ts2(7)
                k('s_waitcnt vmcnt(%d)' % (npf if DT <= 4 else 0))
                if TS2:
                    k.ts2(8)
            k('v_mfma_f32_32x32x16_bf16 %s, %s, %s, %s' % (
                vr(O, 16), vr(vreg(idx), 4), vr(b + 8 * u, 4), '0' if first else vr(O, 16)))
            first = False


def cpf(k):
    if CPF:
        k('s_getpc_b64 s[30:31]')
        k.label('KF_PC')
        k("""s_andn2_b32 s10, s2, 7
        s_add_u32 s10, s10, s3
        s_lshl_b32 s10, s10, 8
        s_add_u32 s11, s10, 128
        s_min_u32 s10, s10, KF_END-KF_PC
        s_min_u32 s11, s11, KF_END-KF_PC
        s_load_dword s96, s[30:31], s10
        s_load_dword s99, s[30:31], s11""")


def p2new(k, S, O, vQ, vK, vV, vSt, vNeg, t0, t1, vPf, aK, aV0, aQ, vMk, vBd, mk, so):
    M = O + 4
    q0 = Q(k)
    KO = [0, 8, 1, 2, 3, 4, 5, 6, 7]
    k('s_waitcnt lgkmcnt(0)')
    if TS2:
        k.ts2(2)
    q0.issue('buffer_load_dwordx4 %s, v%d, s[4:7], 0 offen' % (vr(aQ, 4), vQ))
    for T in KO:
        s_, i_ = so(T * 1024)
        q0.issue('buffer_load_dwordx4 %s, v%d, s[4:7], %s offen offset:%d' % (vr(aK + T * 4, 4), vK, s_, i_), ('K', T))
    cpf(k)
    k('s_or_b32 s10, s3, s100')
    k('s_cmp_lg_u32 s10, 0')
    k('s_cbranch_scc1 P2_ncl')
    k('s_mov_b64 exec, 1')
    k('buffer_atomic_or v252, off, s[4:7], s8 sc0')
    k('buffer_store_dword v253, off, s[4:7], s9 sc1')
    k('s_mov_b64 exec, -1')
    k.label('P2_ncl')
    LO = [0, 1, 16, 17] + list(range(2, 16))

    def vreg(idx):
        j = LO.index(idx)
        return aV0 + j * 4 if j < 9 else aK + KO[j - 9] * 4

    def vfill(j):
        for r in (0, 2):
            k('v_pk_mov_b32 %s, s[14:15], s[14:15]' % vr(vreg(LO[j]) + r, 2))

    k("""s_lshl_b32 s25, s21, 5
    s_add_u32 s25, s25, s20
    s_lshl_b32 s25, s25, 10
    s_add_u32 s25, s25, 0x%x
    v_lshlrev_b32 v10, 4, v1
    v_add_u32 v%d, s25, v10
    s_mov_b32 s14, 0x3f803f80
    s_mov_b32 s15, 0x3f803f80
    s_mov_b32 s20, 0x0000ffff
    s_sub_i32 s28, 8, s21
    s_mov_b32 s21, 0x0000ffff""" % (WS_O, vSt))
    for j in range(9):
        vfill(j)
    k('v_mov_b32 v%d, %s' % (vNeg, f32hex(-1e9)))
    k('s_max_i32 s28, s28, 0')
    for i in range(16):
        kk = (i >> 2) * 8 + (i & 3)
        m = 0
        for l in range(64):
            if kk > (l & 31) - (l >> 5) * 4:
                m |= 1 << l
        k('s_mov_b32 s%d, 0x%x' % (mk(i), m & 0xffffffff))
        k('s_mov_b32 s%d, 0x%x' % (mk(i) + 1, m >> 32))
    k('v_mov_b32 v%d, 0xffff' % O)
    k('v_mov_b32 v%d, 0xffff0000' % (O + 1))
    for jj in range(8):
        k('v_cndmask_b32_e64 v%d, 0, v%d, s[%d:%d]' % (M + jj, O, mk(2 * jj), mk(2 * jj) + 1))
        k('v_cndmask_b32_e64 v%d, 0, v%d, s[%d:%d]' % (O + 2, O + 1, mk(2 * jj + 1), mk(2 * jj + 1) + 1))
        k('v_or_b32 v%d, v%d, v%d' % (M + jj, M + jj, O + 2))
    k('s_cmp_ge_u32 s3, 4')
    k('s_cbranch_scc1 P2_B')

    def path(A):
        L = 'A' if A else 'B'
        S0 = int(ENV('S0' + L, '9' if A else '3'))
        NPS = int(ENV('NPS' + L, '2' if A else '2'))
        LAG = int(ENV('LAG' + L, '3' if A else '2'))
        POST = int(ENV('POST', '0')) if A else 0
        BDMA = int(ENV('BDMA', '1'))
        q = Q(k)
        q.n, q.at = q0.n, dict(q0.at)
        if A:
            k('s_lshr_b32 s10, s2, 5')
            k('s_lshl_b32 s10, s10, 7')
            gemm_bd(k, vBd, vPf + 1, vPf + 2, 10)
            k('s_lshl_b32 s23, s3, 17')
            k('s_lshl_b32 s24, s3, 14')
            if BDMA:
                p4_bsetup(k, vPf, vPf + 1, vPf + 2, 25, 29)
        else:
            if not BDMA:
                p4_bsetup(k, vBd, vPf + 1, vPf + 2, 23, 24)
            k("""s_and_b32 s10, s2, 7
            s_lshl_b32 s10, s10, 2
            s_bfe_u32 s11, s2, 0x20003
            s_add_u32 s10, s10, s11
            s_lshr_b32 s11, s2, 5
            s_lshl_b32 s25, s10, 16
            s_lshl_b32 s31, s11, 7
            s_add_u32 s31, s25, s31
            s_add_u32 s31, s31, 0x%x
            s_lshl_b32 s11, s11, 11
            s_add_u32 s25, s25, s11
            s_add_u32 s25, s25, 0x%x
            s_lshl_b32 s10, s10, 12
            s_add_u32 s10, s10, 0x%x
            s_movk_i32 s11, 128
            s_cmp_eq_u32 s3, 4
            s_cselect_b32 s25, s31, s25
            s_cselect_b32 s11, 1024, s11
            s_mov_b32 s31, 16384
            s_bitcmp1_b32 %d, s3
            s_cselect_b32 s25, s10, s25
            s_cselect_b32 s11, 64, s11
            s_cselect_b32 s31, 1024, s31
            v_lshrrev_b32 v%d, 4, v1
            v_mul_u32_u24 v%d, s31, v%d
            v_and_b32 v%d, 15, v1
            v_mad_u32_u24 v%d, v%d, s11, v%d""" % (WS_H, WS_HF, WS_ST, 0xc0 | (0 if PREH & 1 else 16) | (0 if PREH & 2 else 32), vPf, vPf, vPf, vPf + 1, vPf, vPf + 1, vPf))
        k.ts(2)
        if TS2:
            k.ts2(3)
        mops = []

        def mv(j):
            idx = LO[j]
            s_, i_ = so(idx * 512)
            if j >= 9:
                vfill(j)
            k('s_mov_b64 exec, s[20:21]')
            q.issue('buffer_load_dwordx4 %s, v%d, s[4:7], %s offen offset:%d' % (vr(vreg(idx), 4), vV, s_, i_), ('V', idx))
            k('s_mov_b64 exec, -1')

        def mwo(i):
            if i == 0:
                k('s_mov_b32 s14, 0x80000')
                k('s_mov_b32 s15, 0x00020000')
            k('s_add_u32 s30, s23, %d' % (i * 8192))
            k('s_add_u32 m0, s24, %d' % (i * 1024))
            q.issue('buffer_load_dwordx4 v%d, s[12:15], s30 offen lds' % vBd)

        def mb(i):
            ks, j = i >> 2, i & 3
            sB, sM, v = (25, 29, vPf) if A else (23, 24, vBd)
            k('s_add_u32 s30, s%d, %d' % (sB, ks * 32 * 3584 + j * 64))
            k('s_add_u32 m0, s%d, %d' % (sM, (ks + 3) * SLOT + j * 2048))
            q.issue('buffer_load_dwordx4 v%d, s[16:19], s30 offen lds' % v)

        def mpre():
            q.issue('buffer_load_dword v7, v%d, s[4:7], s25 offen' % vPf)

        for j in range(18):
            mops.append((max(0, j - 9 + 1), lambda j=j: mv(j)))
        if A:
            mops += [(0, lambda i=i: mwo(i)) for i in range(16)]
        else:
            mops.append((0, mpre))
        if bool(BDMA) == A:
            mops += [(0, lambda i=i: mb(i)) for i in range(12)]
        post = mops[len(mops) - POST:] if POST else []
        if POST:
            mops = mops[:len(mops) - POST]
        sl = [0]

        def slot():
            s = sl[0]
            sl[0] += 1
            if s < S0:
                return
            for _ in range(NPS):
                if mops and mops[0][0] <= s:
                    mops.pop(0)[1]()

        ch = [O, O + 1, O + 2, O + 3]
        started = [False]

        def fullmask(T):
            k('s_cmp_gt_u32 s28, %d' % T)
            k('s_cbranch_scc0 J_P2%s_nm%d' % (L, T))
            for i in range(16):
                k('v_mov_b32 v%d, v%d' % (S + T * 16 + i, vNeg))
            k.label('J_P2%s_nm%d' % (L, T))

        def tmax(T):
            r = S + T * 16
            if not started[0]:
                for c in range(4):
                    k('v_max3_f32 v%d, v%d, v%d, v%d' % (ch[c], r + 4 * c, r + 4 * c + 1, r + 4 * c + 2))
                for c in range(4):
                    k('v_max_f32 v%d, v%d, v%d' % (ch[c], ch[c], r + 4 * c + 3))
                started[0] = True
            else:
                for h in range(2):
                    for c in range(4):
                        k('v_max3_f32 v%d, v%d, v%d, v%d' % (ch[c], ch[c], r + 4 * c + 2 * h, r + 4 * c + 2 * h + 1))

        def post_tile(pos):
            T = KO[pos]
            if T == 0:
                fullmask(0)
            elif T == 8:
                for i in range(16):
                    k('v_cndmask_b32_e64 v%d, v%d, v%d, s[%d:%d]' % (S + i, S + 128 + i, S + i, mk(i), mk(i) + 1))
                tmax(0)
            else:
                fullmask(T)
                tmax(T)

        for pos, T in enumerate(KO):
            q.wait(('K', T))
            if TS2 and pos in (0, 8):
                k.ts2(4 if pos == 0 else 5)
            k('v_mfma_f32_32x32x16_bf16 %s, %s, %s, 0' % (vr(S + T * 16, 16), vr(aK + T * 4, 4), vr(aQ, 4)))
            if pos:
                post_tile(pos - 1)
            slot()
        c_ = 0.25 * 1.4426950408889634
        k('s_mov_b32 s34, %s' % f32hex(c_))
        k('s_mov_b32 s35, s34')
        post_tile(8)
        k('v_max3_f32 v%d, v%d, v%d, v%d' % (t0, ch[0], ch[1], ch[2]))
        k('v_max_f32 v%d, v%d, v%d' % (t0, t0, ch[3]))
        k('v_mov_b32 v%d, v%d' % (t1, t0))
        k('v_permlane32_swap_b32 v%d, v%d' % (t0, t1))
        k('v_max_f32 v%d, v%d, v%d' % (t0, t0, t1))
        k.ts(3)
        if TS2:
            k.ts2(6)
        k('v_mul_f32 v%d, s34, v%d' % (t0, t0))
        k('v_mov_b32 v%d, v%d' % (t1, t0))
        first = [True]
        done = [0]

        def pv(p):
            lst = [(0, S), (1, S + 8), (16, S + 128), (17, S + 136)] if p == 0 else [(2 * p, S + p * 16), (2 * p + 1, S + p * 16 + 8)]
            if any(('V', idx) not in q.at for idx, b in lst):
                return False
            for idx, b in lst:
                q.wait(('V', idx))
                k('v_mfma_f32_32x32x16_bf16 %s, %s, %s, %s' % (vr(O, 16), vr(vreg(idx), 4), vr(b, 4), '0' if first[0] else vr(O, 16)))
                first[0] = False
            return True

        for p in range(8):
            b = S + p * 16
            if p == 6 and A:
                k('s_mov_b64 exec, 1')
                q.issue('buffer_load_dword v%d, off, s[4:7], s8 sc1' % vMk)
                k('s_mov_b64 exec, -1')
            for i in range(0, 16, 2):
                k('v_pk_fma_f32 %s, %s, s[34:35], %s neg_lo:[0,0,1] neg_hi:[0,0,1]' % (vr(b + i, 2), vr(b + i, 2), vr(t0, 2)))
            for i in range(16):
                if i % 4 == 0:
                    slot()
                k('v_exp_f32 v%d, v%d' % (b + i, b + i))
            for u in range(2):
                for j in range(4):
                    k('v_cvt_pk_bf16_f32 v%d, v%d, v%d' % (b + 8 * u + j, b + 8 * u + 2 * j, b + 8 * u + 2 * j + 1))
            if p == 0:
                for u in range(2):
                    for j in range(4):
                        k('v_bfi_b32 v%d, v%d, 0, v%d' % (S + 128 + 8 * u + j, M + 4 * u + j, S + 8 * u + j))
                        k('v_and_b32 v%d, v%d, v%d' % (S + 8 * u + j, M + 4 * u + j, S + 8 * u + j))
            if TS2 and p in (3, 7):
                k.ts2(7 if p == 3 else 8)
            while done[0] <= p - LAG and pv(done[0]):
                done[0] += 1
        while mops:
            mops.pop(0)[1]()
        while done[0] < 8:
            assert pv(done[0])
            done[0] += 1
        k('v_rcp_f32 v%d, v%d' % (t0, O + 8))
        for i in range(8):
            k('v_mul_f32 v%d, v%d, v%d' % (O + i, O + i, t0))
        for j in range(4):
            k('v_cvt_pk_bf16_f32 v%d, v%d, v%d' % (O + j, O + 2 * j, O + 2 * j + 1))
        k('v_permlane32_swap_b32 v%d, v%d' % (O, O + 2))
        k('v_permlane32_swap_b32 v%d, v%d' % (O + 1, O + 3))
        k('buffer_store_dwordx4 %s, v%d, s[4:7], 0 offen%s' % (vr(O, 4), vSt, OSC))
        if TS2:
            k.ts2(9)
        setflag(k, 22, t0)
        for m in post:
            m[1]()

    path(True)
    k('s_branch J_P2_join')
    k.label('P2_B')
    path(False)
    k.label('J_P2_join')


KVB = 3 * SLOT


def p2lds(k, S, O, vQ, vK, vV, vSt, vNeg, t0, t1, vPf, aK, aV0, aQ, vMk, vBd, mk, so):
    M = O + 4
    KO = [0, 8, 1, 2, 3, 4, 5, 6, 7]
    VBAR = int(ENV('VBAR', '0'))
    WS0 = int(ENV('WS0', '2'))
    WST = int(ENV('WST', '2'))
    NVS = int(ENV('NVS', '3'))
    LAG = int(ENV('LAG', '1'))
    vKr, vVr = vPf + 2, vPf + 3
    k('s_waitcnt lgkmcnt(0)')
    if TS2:
        k.ts2(2)
    k('buffer_load_dwordx4 %s, v%d, s[4:7], 0 offen' % (vr(aQ, 4), vQ))
    VPOS = int(ENV('VPOS', '1'))

    def kvdma(v, add):
        k('s_add_u32 m0, s18, %d' % add)
        for i in range(4):
            k('buffer_load_dwordx4 v%d, s[4:7], s26 offen offset:%d lds' % (v, i * 1024))
        k('s_add_u32 m0, s18, %d' % (add + 4096))
        k('buffer_load_dwordx4 v%d, s[4:7], s27 offen lds' % v)

    k('s_mov_b32 s18, s24')
    kvdma(vK, 0)
    if VPOS == 0:
        kvdma(vV, 40960)
    cpf(k)
    k('s_or_b32 s29, s3, s100')
    k('s_cmp_lg_u32 s29, 0')
    k('s_cbranch_scc1 P2_ncl')
    k('s_mov_b64 exec, 1')
    k('buffer_atomic_or v252, off, s[4:7], s8 sc0')
    k('buffer_store_dword v253, off, s[4:7], s9 sc1')
    k('s_mov_b64 exec, -1')
    k.label('P2_ncl')

    def wait2(n, L):
        k('s_waitcnt vmcnt(%d)' % (n + 2))
        k('s_cmp_eq_u32 s29, 0')
        k('s_cbranch_scc1 %s' % L)
        k('s_waitcnt vmcnt(%d)' % n)
        k.label(L)

    LO = [0, 1, 16, 17] + list(range(2, 16))

    def vreg(idx):
        j = LO.index(idx)
        return aV0 + j * 4 if j < 9 else aK + KO[j - 9] * 4

    def vfill(j):
        for r in (0, 2):
            k('v_pk_mov_b32 %s, s[16:17], s[16:17]' % vr(vreg(LO[j]) + r, 2))

    k("""s_lshl_b32 s25, s21, 5
    s_add_u32 s25, s25, s20
    s_lshl_b32 s25, s25, 10
    s_add_u32 s25, s25, 0x%x
    v_lshlrev_b32 v10, 4, v1
    v_add_u32 v%d, s25, v10
    s_sub_u32 s24, s24, s26
    v_add_u32 v%d, s24, v10
    v_and_b32 v10, 15, v1
    v_lshl_add_u32 v10, v3, 4, v10
    v_lshlrev_b32 v10, 4, v10
    s_add_u32 s24, s24, 40960
    v_add_u32 v%d, s24, v10
    s_mov_b32 s16, 0x3f803f80
    s_mov_b32 s17, 0x3f803f80
    s_mov_b32 s20, 0x0000ffff
    s_sub_i32 s28, 8, s21
    s_mov_b32 s21, 0x0000ffff""" % (WS_O, vSt, vKr, vVr))
    for j in range(9):
        vfill(j)
    k('v_mov_b32 v%d, %s' % (vNeg, f32hex(-1e9)))
    k('s_max_i32 s28, s28, 0')
    for i in range(16):
        kk = (i >> 2) * 8 + (i & 3)
        m = 0
        for l in range(64):
            if kk > (l & 31) - (l >> 5) * 4:
                m |= 1 << l
        k('s_mov_b32 s%d, 0x%x' % (mk(i), m & 0xffffffff))
        k('s_mov_b32 s%d, 0x%x' % (mk(i) + 1, m >> 32))
    k('v_mov_b32 v%d, 0xffff' % O)
    k('v_mov_b32 v%d, 0xffff0000' % (O + 1))
    for jj in range(8):
        k('v_cndmask_b32_e64 v%d, 0, v%d, s[%d:%d]' % (M + jj, O, mk(2 * jj), mk(2 * jj) + 1))
        k('v_cndmask_b32_e64 v%d, 0, v%d, s[%d:%d]' % (O + 2, O + 1, mk(2 * jj + 1), mk(2 * jj + 1) + 1))
        k('v_or_b32 v%d, v%d, v%d' % (M + jj, M + jj, O + 2))
    k('s_lshr_b32 s10, s2, 5')
    k('s_lshl_b32 s10, s10, 7')
    gemm_bd(k, vBd, vPf, vPf + 1, 10)
    k("""s_and_b32 s10, s3, 3
    s_lshl_b32 s24, s10, 14
    s_lshl_b32 s11, s26, 1
    s_add_u32 s24, s24, s11
    s_lshl_b32 s23, s24, 3""")
    k("""s_and_b32 s10, s2, 7
    s_lshl_b32 s10, s10, 2
    s_bfe_u32 s11, s2, 0x20003
    s_add_u32 s10, s10, s11
    s_lshr_b32 s11, s2, 5
    s_lshl_b32 s25, s10, 16
    s_lshl_b32 s31, s11, 7
    s_add_u32 s31, s25, s31
    s_add_u32 s31, s31, 0x%x
    s_lshl_b32 s11, s11, 11
    s_add_u32 s25, s25, s11
    s_add_u32 s25, s25, 0x%x
    s_lshl_b32 s10, s10, %d
    s_add_u32 s10, s10, 0x%x
    s_movk_i32 s11, 128
    s_cmp_eq_u32 s3, 4
    s_cselect_b32 s25, s31, s25
    s_cselect_b32 s11, 1024, s11
    s_mov_b32 s31, 16384
    s_bitcmp1_b32 %d, s3
    s_cselect_b32 s25, s10, s25
    s_cselect_b32 s11, %d, s11
    s_cselect_b32 s31, %d, s31
    v_lshrrev_b32 v%d, 4, v1
    v_mul_u32_u24 v%d, s31, v%d
    v_and_b32 v%d, 15, v1
    v_mad_u32_u24 v%d, v%d, s11, v%d""" % (WS_H, WS_HF, 11 + RED, WS_ST, 0xc0 | (0 if PREH & 1 else 16) | (0 if PREH & 2 else 32), 64 * RED, 1024 * RED, vPf, vPf, vPf, vPf + 1, vPf, vPf + 1, vPf))
    assert RED == 1 or not PREH & 1
    k.ts(2)
    if TS2:
        k.ts2(3)
    if VPOS == 1:
        kvdma(vV, 40960)
    assert vNeg == 9
    k('s_cmp_eq_u32 s28, 0')
    k('s_cbranch_scc1 P2_fmend')
    for i in range(0, 128, 2):
        k('v_pk_mov_b32 %s, v[8:9], v[8:9] op_sel:[1,1]' % vr(S + i, 2))
    k.label('P2_fmend')
    wait2(5 if VPOS < 2 else 0, 'P2_wk')
    k('s_barrier')
    if TS2:
        k.ts2(4)
    if VPOS == 2:
        kvdma(vV, 40960)
    for T in KO:
        k('ds_read_b128 %s, v%d offset:%d' % (vr(aK + T * 4, 4), vKr, T * 1024))
    ch = [O, O + 1, O + 2, O + 3]
    started = [False]

    def fullmask(T):
        pass

    def tmax(T):
        r = S + T * 16
        if not started[0]:
            for c in range(4):
                k('v_max3_f32 v%d, v%d, v%d, v%d' % (ch[c], r + 4 * c, r + 4 * c + 1, r + 4 * c + 2))
            for c in range(4):
                k('v_max_f32 v%d, v%d, v%d' % (ch[c], ch[c], r + 4 * c + 3))
            started[0] = True
        else:
            for h in range(2):
                for c in range(4):
                    k('v_max3_f32 v%d, v%d, v%d, v%d' % (ch[c], ch[c], r + 4 * c + 2 * h, r + 4 * c + 2 * h + 1))

    def post_tile(pos):
        T = KO[pos]
        if T == 0:
            fullmask(0)
        elif T == 8:
            k('s_nop 3')
            for i in range(16):
                k('v_cndmask_b32_e64 v%d, v%d, v%d, s[%d:%d]' % (S + i, S + 128 + i, S + i, mk(i), mk(i) + 1))
            tmax(0)
            if PFL:
                k('''s_bitcmp1_b32 s3, 0
                s_cselect_b32 s40, 40, 32
                s_load_dwordx2 s[36:37], s[0:1], s40''')
        else:
            fullmask(T)
            tmax(T)

    PD = int(ENV('PD', '2'))
    for pos, T in enumerate(KO):
        if T < 8:
            k('s_cmp_gt_u32 s28, %d' % T)
        k('s_waitcnt lgkmcnt(%d)' % (8 - pos))
        if T < 8:
            k('s_cbranch_scc1 P2_nm%d' % T)
        k('v_mfma_f32_32x32x16_bf16 %s, %s, %s, 0' % (vr(S + T * 16, 16), vr(aK + T * 4, 4), vr(aQ, 4)))
        if T < 8:
            k.label('P2_nm%d' % T)
        if pos >= PD:
            post_tile(pos - PD)
            vfill(9 + pos - PD)
    if TS2:
        k.ts2(5)
    for pos in range(9 - PD, 9):
        post_tile(pos)
        vfill(9 + pos)
    c_ = 0.25 * 1.4426950408889634
    k('s_mov_b32 s34, %s' % f32hex(c_))
    k('s_mov_b32 s35, s34')
    k('v_max3_f32 v%d, v%d, v%d, v%d' % (t0, ch[0], ch[1], ch[2]))
    k('v_max_f32 v%d, v%d, v%d' % (t0, t0, ch[3]))
    k('v_mov_b32 v%d, v%d' % (t1, t0))
    k('v_permlane32_swap_b32 v%d, v%d' % (t0, t1))
    k('v_max_f32 v%d, v%d, v%d' % (t0, t0, t1))
    k.ts(3)
    if TS2:
        k.ts2(6)
    k('v_mul_f32 v%d, s34, v%d' % (t0, t0))
    k('v_mov_b32 v%d, v%d' % (t1, t0))
    first = [True]
    done = [0]
    st = dict(v=0, w=0, s=0, bar=False, pre=False)

    def slot():
        s = st['s']
        st['s'] += 1
        if PFL and s >= PFS and (s - PFS) % PFD == 0 and (s - PFS) // PFD < PFN:
            i = (s - PFS) // PFD
            assert PFR * 3584 + (i + 1) * 128 * PFL * 128 <= WSZ
            if i == 0:
                k('''s_mov_b32 s38, 0x%x
                s_mov_b32 s39, 0x00020000
                s_lshr_b32 s40, s2, 3
                s_lshl_b32 s40, s40, 2
                s_lshr_b32 s41, s3, 1
                s_add_u32 s40, s40, s41
                s_mul_i32 s40, s40, %d
                v_lshlrev_b32 v%d, 7, v1''' % (WSZ, PFL * 128, vQ))
            k('s_add_u32 s41, s40, %d' % (PFR * 3584 + i * 128 * PFL * 128))
            if PFL < 32:
                k('s_mov_b64 exec, 0x%x' % ((1 << PFL) - 1))
            elif PFL < 64:
                k('s_mov_b32 exec_hi, 0x%x' % ((1 << (PFL - 32)) - 1))
            k('buffer_load_dword v7, v%d, s[36:39], s41 offen' % vQ)
            if PFL < 64:
                k('s_mov_b64 exec, -1')
        if st['bar'] and st['v'] < 18:
            k('s_mov_b64 exec, s[20:21]')
            for _ in range(NVS):
                if st['v'] < 18:
                    idx = LO[st['v']]
                    k('ds_read_b128 %s, v%d offset:%d' % (vr(vreg(idx), 4), vVr, idx * 512))
                    st['v'] += 1
            k('s_mov_b64 exec, -1')
        if s >= WS0 and (s - WS0) % WST == 0:
            if st['w'] < 8:
                i = st['w']
                k('s_add_u32 s30, s23, %d' % (i * 8192))
                k('s_add_u32 m0, s24, %d' % (i * 1024))
                k('buffer_load_dwordx4 v%d, s[12:15], s30 offen lds' % vBd)
                st['w'] += 1
            elif not st['pre']:
                st['pre'] = True
                k('s_cmp_lt_u32 s3, 4')
                k('s_cbranch_scc1 P2_npre')
                k('buffer_load_dword v7, v%d, s[4:7], s25 offen' % vPf)
                k.label('P2_npre')

    def pv(p):
        lst = [(0, S), (1, S + 8), (16, S + 128), (17, S + 136)] if p == 0 else [(2 * p, S + p * 16), (2 * p + 1, S + p * 16 + 8)]
        if any(LO.index(idx) >= st['v'] for idx, b in lst):
            return False
        for idx, b in lst:
            k('s_waitcnt lgkmcnt(%d)' % min(15, st['v'] - 1 - LO.index(idx)))
            k('v_mfma_f32_32x32x16_bf16 %s, %s, %s, %s' % (vr(O, 16), vr(vreg(idx), 4), vr(b, 4), '0' if first[0] else vr(O, 16)))
            first[0] = False
        return True

    PVS = int(ENV('PVS', '2'))
    PRB = int(ENV('PRB', '6'))
    PRA = int(ENV('PRA', '-1'))
    mq = []

    def pvq(p):
        lst = [(0, S), (1, S + 8), (16, S + 128), (17, S + 136)] if p == 0 else [(2 * p, S + p * 16), (2 * p + 1, S + p * 16 + 8)]
        mq.extend(lst)

    def pv1():
        if not mq or LO.index(mq[0][0]) >= st['v']:
            return False
        idx, b = mq.pop(0)
        k('s_waitcnt lgkmcnt(%d)' % min(15, st['v'] - 1 - LO.index(idx)))
        k('v_mfma_f32_32x32x16_bf16 %s, %s, %s, %s' % (vr(O, 16), vr(vreg(idx), 4), vr(b, 4), '0' if first[0] else vr(O, 16)))
        first[0] = False
        return True

    if PRB >= 0:
        k('s_cmp_lt_u32 s3, 4')
        k('s_cbranch_scc1 P2_pr0')
        k('s_setprio 1')
        k.label('P2_pr0')
    for p in range(8):
        b = S + p * 16
        if p == PRB:
            k('s_setprio 0')
        if p == VBAR:
            assert not st['pre']
            if VPOS == 0:
                wait2(st['w'], 'P2_wv')
            else:
                k('s_waitcnt vmcnt(%d)' % st['w'])
            k('s_barrier')
            if PFL:
                assert VBAR == 0
                k('s_waitcnt lgkmcnt(0)')
            st['bar'] = True
        if p == 6:
            k('s_cmp_lg_u32 s3, 0')
            k('s_cbranch_scc1 P2_nrr')
            k('s_mov_b64 exec, 1')
            k('buffer_load_dword v%d, off, s[4:7], s8 sc1' % vMk)
            k('s_mov_b64 exec, -1')
            k.label('P2_nrr')
        for i in range(0, 16, 2):
            k('v_pk_fma_f32 %s, %s, s[34:35], %s neg_lo:[0,0,1] neg_hi:[0,0,1]' % (vr(b + i, 2), vr(b + i, 2), vr(t0, 2)))
        for i in range(16):
            if i % 4 == 0:
                if PVS and (i % 8 == 0 or len(mq) > 2 or PVS == 2):
                    pv1()
                slot()
            k('v_exp_f32 v%d, v%d' % (b + i, b + i))
        for u in range(2):
            for j in range(4):
                k('v_cvt_pk_bf16_f32 v%d, v%d, v%d' % (b + 8 * u + j, b + 8 * u + 2 * j, b + 8 * u + 2 * j + 1))
        if p == 0:
            for u in range(2):
                for j in range(4):
                    k('v_bfi_b32 v%d, v%d, 0, v%d' % (S + 128 + 8 * u + j, M + 4 * u + j, S + 8 * u + j))
                    k('v_and_b32 v%d, v%d, v%d' % (S + 8 * u + j, M + 4 * u + j, S + 8 * u + j))
        if TS2 and p in (3, 7):
            k.ts2(7 if p == 3 else 8)
        if PVS:
            pvq(p)
            continue
        while done[0] <= p - LAG and pv(done[0]):
            done[0] += 1
    assert st['w'] == 8 and st['pre'] and st['v'] == 18
    if PRB >= 8:
        k('s_setprio 0')
    while mq:
        assert pv1()
    while done[0] < 8 and not PVS:
        assert pv(done[0])
        done[0] += 1
    k('v_rcp_f32 v%d, v%d' % (t0, O + 8))
    for i in range(8):
        k('v_mul_f32 v%d, v%d, v%d' % (O + i, O + i, t0))
    for j in range(4):
        k('v_cvt_pk_bf16_f32 v%d, v%d, v%d' % (O + j, O + 2 * j, O + 2 * j + 1))
    k('v_permlane32_swap_b32 v%d, v%d' % (O, O + 2))
    k('v_permlane32_swap_b32 v%d, v%d' % (O + 1, O + 3))
    k('buffer_store_dwordx4 %s, v%d, s[4:7], 0 offen%s' % (vr(O, 4), vSt, OSC))
    if TS2:
        k.ts2(9)
    setflag(k, 22, t0)


def phase2(k):
    S = 12
    O = 156
    vQ, vK, vV, vSt, vNeg = 4, 5, 6, 8, 9
    t0, t1 = 10, 11
    vPf = 172
    aK, aV0, aQ = 176, 212, 248
    vCl, vMk, vBd = 252, 253, 254

    def mk(i):
        return 32 + 2 * i
    k.label('J_P2')
    if P2V == 2:
        k('''s_load_dwordx2 s[12:13], s[0:1], 16
        s_mov_b32 s14, 0x80000
        s_mov_b32 s15, 0x00020000''')

    elif P2V:
        k('''s_bitcmp1_b32 s3, 1
        s_cselect_b32 s10, 40, 32
        s_load_dwordx2 s[12:13], s[0:1], 16
        s_load_dwordx2 s[16:17], s[0:1], s10
        s_mov_b32 s18, 0x%x
        s_mov_b32 s19, 0x00020000''' % WSZ)
    else:
        k('''s_cmp_lt_u32 s3, 6
        s_cselect_b32 s10, 32, 40
        s_mov_b32 s14, 0x%x
        s_cmp_lt_u32 s3, 4
        s_cselect_b32 s10, 16, s10
        s_cselect_b32 s14, 0x80000, s14
        s_load_dwordx2 s[12:13], s[0:1], s10
        s_load_dwordx4 s[16:19], s[0:1], 32
        s_mov_b32 s15, 0x00020000''' % WSZ)
    k('''s_lshr_b32 s20, s2, 5
    s_lshl_b32 s20, s20, 2
    s_and_b32 s21, s3, 3
    s_add_u32 s20, s20, s21
    s_and_b32 s21, s2, 7
    s_lshl_b32 s21, s21, 2
    s_bfe_u32 s22, s2, 0x20003
    s_add_u32 s21, s21, s22
    s_lshl_b32 s21, s21, 1
    s_lshr_b32 s23, s3, 2
    s_add_u32 s21, s21, s23
    v_and_b32 v1, 63, v0
    v_and_b32 v2, 31, v1
    v_lshrrev_b32 v3, 5, v1''')
    k('''s_lshl_b32 s22, s22, 6
    s_add_u32 s22, s22, s23
    s_lshl_b32 s23, s20, 1
    s_add_u32 s22, s22, s23
    s_add_u32 s22, s22, s8
    s_add_u32 s22, s22, %d''' % F2)
    k('''s_lshl_b32 s23, s20, 16
    s_lshl_b32 s24, s21, 10
    s_add_u32 s23, s23, s24
    v_lshlrev_b32 v10, 5, v2
    v_lshl_add_u32 v10, v3, 4, v10
    v_add_u32 v%d, s23, v10
    v_add_u32 v%d, 0x%x, v%d''' % (vQ, vK, WS_K - 8192, vQ))
    if P2V != 2:
        k('''v_and_b32 v10, 15, v1
        v_lshlrev_b32 v10, 5, v10
        v_lshl_add_u32 v10, v3, 4, v10
        v_add_u32 v10, s23, v10
        v_add_u32 v%d, 0x%x, v10''' % (vV, WS_VT - 8192))
    if P2V == 2:
        k('''v_and_b32 v10, 15, v1
        v_lshlrev_b32 v10, 5, v10
        v_lshl_add_u32 v10, v3, 9, v10
        v_and_b32 v11, 16, v1
        v_add3_u32 v10, v10, v11, s23
        v_add_u32 v%d, 0x%x, v10
        s_lshr_b32 s26, s3, 2
        s_mul_i32 s24, s26, 5120
        s_lshl_b32 s26, s26, 12
        s_add_u32 s27, s26, 4096
        s_and_b32 s10, s3, 3
        s_mul_i32 s10, s10, 10240
        s_add_u32 s24, s24, s10
        s_add_u32 s24, s24, %d''' % (vV, WS_VT - 8192, KVB))
    else:
        k('s_mov_b32 s26, 4096')
        k('s_mov_b32 s27, 8192')
        k('v_mov_b32 v%d, 0x3f803f80' % t1)

    def so(off):
        return ('0', 's26', 's27')[off // 4096], off % 4096

    if P2V == 2:
        p2lds(k, S, O, vQ, vK, vV, vSt, vNeg, t0, t1, vPf, aK, aV0, aQ, vMk, vBd, mk, so)
    elif P2V:
        p2new(k, S, O, vQ, vK, vV, vSt, vNeg, t0, t1, vPf, aK, aV0, aQ, vMk, vBd, mk, so)
    else:
        p2old(k, S, O, vQ, vK, vV, vSt, vNeg, t0, t1, vPf, aK, aV0, aQ, vMk, vBd, mk, so)
    if not P2V:
        k('v_rcp_f32 v%d, v%d' % (t0, O + 8))
        for i in range(8):
            k('v_mul_f32 v%d, v%d, v%d' % (O + i, O + i, t0))
        for j in range(4):
            k('v_cvt_pk_bf16_f32 v%d, v%d, v%d' % (O + j, O + 2 * j, O + 2 * j + 1))
        k('buffer_store_dwordx2 %s, v%d, s[4:7], 0 offen%s' % (vr(O, 2), vSt, OSC))
        k('buffer_store_dwordx2 %s, v%d, s[4:7], 0 offen offset:512%s' % (vr(O + 2, 2), vSt, OSC))
        if TS2:
            k.ts2(9)
        setflag(k, 22, t0)
    if TS2:
        k.ts2(10)
    k.ts(4)
    k('s_cmp_lg_u32 s100, 0')
    k('s_cbranch_scc1 J_SLOW_claim')
    k('s_cmp_lg_u32 s3, 0')
    k('s_cbranch_scc1 P2_dec')
    k('''v_readfirstlane_b32 s10, v%d
    v_readfirstlane_b32 s11, v%d
    s_lshr_b32 s30, s2, 3
    s_lshr_b32 s10, s10, s30
    s_and_b32 s10, s10, 1
    s_cmp_lg_u32 s11, -1
    s_cselect_b32 s11, 2, 0
    s_or_b32 s10, s10, s11
    v_mov_b32 v4, s10
    v_mov_b32 v5, 0x%x
    ds_write_b32 v5, v4
    s_waitcnt lgkmcnt(0)''' % (vCl, vMk, DEC))
    k.label('P2_dec')
    k('v_mov_b32 v5, 0x%x' % DEC)
    k('s_barrier')
    k('ds_read_b32 v4, v5')
    k('s_waitcnt lgkmcnt(0)')
    k('v_readfirstlane_b32 s10, v4')
    k('s_cmp_lg_u32 s10, 0')
    k('s_cbranch_scc1 J_SLOW_start')


def gemm(k, p3):
    L = 'P3' if p3 else 'P5'
    KT = 32 if p3 else 112
    wsA = WS_O if p3 else WS_HH
    NS = KT // 4
    NR = min(NS, 16)
    PF = NS if NS <= NR else NR - 1
    RS = 16384
    AR = 28 if p3 else 24
    BFR = AR + NR * 8
    ACC = BFR + 16
    RES = ACC + 64
    T = RES + 8
    vA0, vA1, vBd, vBr, vOut, vRes = 8, 9, 10, 11, 12, 13
    vW = 14
    vR = 18
    vFw, vFr, vFo = 22, 23, 24
    vSt = 25
    SCR = 4 * RS
    tsb = 5 if p3 else 11
    k('s_load_dwordx2 s[10:11], s[0:1], %d' % (0 if p3 else 56))
    if not p3:
        k('s_load_dwordx2 s[12:13], s[0:1], 48')
    k('''s_and_b32 s20, s2, 7
    s_lshl_b32 s20, s20, 2
    s_bfe_u32 s22, s2, 0x20003
    s_add_u32 s20, s20, s22
    s_lshr_b32 s21, s2, 5''')
    lanes(k)
    if p3:
        k('s_lshl_b32 s29, s22, 6')
        k('s_lshl_b32 s23, s3, 4')
    else:
        k('s_lshl_b32 s29, s22, 5')
        k('s_lshl_b32 s23, s3, 3')
    k('s_add_u32 s29, s29, s23')
    k('s_add_u32 s29, s29, s8')
    k('s_add_u32 s29, s29, %d' % (F2 if p3 else F4))
    if p3:
        k('''s_lshl_b32 s40, s22, 2
        s_add_u32 s40, s40, s3
        s_lshl_b32 s40, s40, 3
        s_add_u32 s40, s40, s21
        s_add_u32 s40, s40, s8
        s_add_u32 s40, s40, %d''' % F3)
    k('s_mul_i32 s23, s20, %d' % (2 * KT * 1024))
    k('s_mul_i32 s24, s3, %d' % (NS * 1024))
    k('s_add_u32 s23, s23, s24')
    k('s_add_u32 s23, s23, 0x%x' % wsA)
    k('v_lshlrev_b32 v4, 4, v1')
    if RED == 2:
        vR = 15
        vH = 26
        vB2 = (20, 21, 19)
        k('s_bitcmp1_b32 s3, 1')
        k('s_cselect_b32 s24, %d, 0' % (KT * 1024))
        k('s_cselect_b32 s27, 0, %d' % (KT * 1024))
        k('v_add3_u32 v%d, s23, v4, s24' % vA0) if False else None
        k('s_add_u32 s24, s24, s23')
        k('s_add_u32 s27, s27, s23')
        k('v_add_u32 v%d, s24, v4' % vA0)
        k('v_add_u32 v%d, s27, v4' % vA1)
        k('v_mov_b32 v7, v4')
    else:
        k('v_add_u32 v%d, s23, v4' % vA0)
        k('v_add_u32 v%d, %d, v%d' % (vA1, KT * 1024, vA0))
    k('s_lshl_b32 s24, s21, 7')
    if not p3:
        gemm_bd(k, vBd, 4, 5, 24)
        k('s_mul_i32 s25, s3, %d' % (NS * 16 * 1024))
    k('s_lshl_b32 s26, s3, %d' % (14 if p3 else 11))
    k('''v_lshrrev_b32 v4, 1, v3
    v_lshlrev_b32 v4, 10, v4
    v_lshrrev_b32 v5, 2, v2
    v_lshl_add_u32 v4, v5, 6, v4
    v_and_b32 v5, 1, v3
    v_lshl_add_u32 v4, v5, 5, v4
    v_and_b32 v5, 3, v2
    v_lshl_add_u32 v4, v5, 3, v4
    v_add_u32 v%d, s26, v4''' % vBr)
    if RED == 2:
        sh = 14 if p3 else 11
        k('''s_and_b32 s27, s3, 1
        s_lshl_b32 s27, s27, 8
        s_xor_b32 s28, s27, 0x100
        v_add_u32 v%d, s28, v%d
        v_add_u32 v%d, s27, v%d''' % (vB2[0], vBr, vBr, vBr))
        if not p3:
            k('v_add_u32 v%d, 0x10000, v%d' % (vFw, vBr))
            k('v_add_u32 v%d, 0x20000, v%d' % (vFr, vBr))
            k('v_add_u32 v%d, 0x10000, v%d' % (vB2[1], vB2[0]))
            k('v_add_u32 v%d, 0x20000, v%d' % (vB2[2], vB2[0]))
        k('v_add_u32 v%d, s26, v7' % vW)
        for i in range(1, 4):
            k('v_xor_b32 v%d, 0x%x, v%d' % (vR + i - 1, i << sh, vW))
        k('''s_lshr_b32 s27, s3, 1
        s_lshl_b32 s28, s20, 1
        s_add_u32 s27, s27, s28
        s_lshl_b32 s27, s27, 5
        s_and_b32 s28, s3, 1
        s_lshl_b32 s30, s21, 1
        s_add_u32 s28, s28, s30
        s_lshl_b32 s30, s27, 10
        s_lshl_b32 s31, s28, 6
        s_add_u32 s30, s30, s31
        v_and_b32 v4, 31, v1
        v_lshrrev_b32 v5, 5, v1
        v_lshlrev_b32 v6, 10, v4
        v_lshl_add_u32 v6, v5, 4, v6
        v_add_u32 v%d, s30, v6
        s_lshl_b32 s30, s20, 3
        s_add_u32 s30, s30, s21
        s_lshl_b32 s30, s30, 2
        s_add_u32 s30, s30, s3
        s_lshl_b32 s30, s30, 11
        s_add_u32 s30, s30, 0x%x
        v_add_u32 v%d, s30, v7''' % (vRes if p3 else vOut, WS_H, vH if p3 else vRes))
        if p3:
            k('''s_lshl_b32 s30, s27, 7
            s_lshl_b32 s31, s28, 3
            s_add_u32 s30, s30, s31
            s_add_u32 s30, s30, 0x%x
            v_lshlrev_b32 v6, 7, v4
            v_lshl_add_u32 v6, v5, 2, v6
            v_add_u32 v%d, s30, v6
            s_add_u32 s30, s27, s28
            s_lshl_b32 s30, s30, 10
            s_add_u32 s30, s30, 0x%x
            v_and_b32 v4, 1, v3
            v_lshlrev_b32 v4, 14, v4
            v_lshl_add_u32 v4, v5, 8, v4
            v_lshl_add_u32 v4, v2, 4, v4
            v_add_u32 v%d, s30, v4
            s_mov_b32 s44, 0x3f803f80''' % (WS_ST, vSt, WS_HF, vFo))
    else:
        if not p3:
            k('v_add_u32 v%d, 0x10000, v%d' % (vFw, vBr))
            k('v_add_u32 v%d, 0x20000, v%d' % (vFr, vBr))
        k('v_and_b32 v4, 31, v1')
        if p3:
            k('v_lshlrev_b32 v5, 8, v4')
        else:
            k('v_lshrrev_b32 v5, 3, v4')
            k('v_lshlrev_b32 v5, 13, v5')
            k('v_and_b32 v6, 7, v4')
            k('v_lshl_add_u32 v5, v6, 8, v5')
        k('v_add_u32 v5, s26, v5')
        k('v_and_b32 v4, 7, v4')
        k('v_lshrrev_b32 v6, 5, v1')
        k('v_xor_b32 v4, v4, v6')
        for q in range(4):
            k('v_xor_b32 v6, %d, v4' % (q * 2))
            k('v_lshl_add_u32 v%d, v6, 4, v5' % (vW + q))
        k('s_lshl_b32 s27, s3, %d' % (12 if p3 else 14))
        k('v_lshrrev_b32 v4, 3, v1')
        k('v_lshlrev_b32 v5, 8, v4')
        k('v_add_u32 v5, s27, v5')
        k('v_and_b32 v6, 7, v1')
        k('v_lshlrev_b32 v6, 1, v6')
        k('v_xor_b32 v6, v6, v4')
        k('v_lshl_add_u32 v%d, v6, 4, v5' % vR)
        k('v_xor_b32 v6, 1, v6')
        k('v_lshl_add_u32 v%d, v6, 4, v5' % (vR + 1))
        k('''s_lshl_b32 s27, s3, 4
        s_lshl_b32 s28, s20, 6
        s_add_u32 s27, s27, s28
        s_lshl_b32 s27, s27, 10
        s_add_u32 s27, s27, s24
        v_lshlrev_b32 v5, 10, v4
        v_and_b32 v6, 7, v1
        v_lshl_add_u32 v5, v6, 4, v5
        v_add_u32 v4, s27, v5''')
        k('v_add_u32 v%d, 0x%x, v4' % (vOut, WS_H if p3 else 0))
        k('v_add_u32 v%d, 0x%x, v4' % (vRes, 0 if p3 else WS_H))
        k('s_mov_b32 s41, 8192')
        if p3:
            k('''s_lshl_b32 s27, s3, 11
            v_lshrrev_b32 v4, 3, v1
            v_and_b32 v5, 3, v1
            v_lshl_add_u32 v4, v5, 4, v4
            v_lshlrev_b32 v4, 4, v4
            v_bfe_u32 v5, v1, 2, 1
            v_lshl_add_u32 v4, v5, 10, v4
            v_add_u32 v4, s27, v4''')
            k('v_add_u32 v%d, %d, v4' % (vFw, SCR))
            k('v_lshlrev_b32 v4, 4, v1')
            k('v_add_u32 v5, s27, v4')
            k('v_add_u32 v%d, %d, v5' % (vFr, SCR))
            k('''s_lshl_b32 s27, s20, 2
            s_add_u32 s27, s27, s3
            s_lshl_b32 s27, s27, 4
            s_lshl_b32 s28, s21, 1
            s_add_u32 s27, s27, s28
            s_lshl_b32 s27, s27, 10''')
            k('s_add_u32 s27, s27, 0x%x' % WS_HF)
            k('v_add_u32 v%d, s27, v4' % vFo)
            k('''s_lshl_b32 s27, s20, 2
            s_add_u32 s27, s27, s3
            s_lshl_b32 s27, s27, 10
            s_lshl_b32 s28, s21, 3
            s_add_u32 s27, s27, s28
            v_lshrrev_b32 v4, 3, v1
            v_lshlrev_b32 v4, 6, v4''')
            k('s_add_u32 s27, s27, 0x%x' % WS_ST)
            k('v_add_u32 v%d, s27, v4' % vSt)
            k('s_mov_b32 s44, 0x3f803f80')
            k('s_mov_b32 s42, 0x01010101')
            k('s_mov_b32 s43, 0x01010101')
    k('s_waitcnt lgkmcnt(0)')
    make_srd(k, 16, 10, 11, 2048 * 512 * 2)
    if not p3:
        k('s_mov_b32 s14, 0x%x' % WSZ)
        k('s_mov_b32 s15, 0x00020000')
        yield 'pre'
    rsrd, osrd = (16, 4) if p3 else (4, 16)
    poll(k, L + '_poll', 29, 4 if p3 else 2)
    if not p3 and ENV('X5S'):
        for _ in range(int(ENV('X5S'))):
            k('s_sleep 64')
    k.ts(tsb)
    q = Q(k)

    def aloads(s):
        slot = s % NR
        k('s_mov_b32 s30, %d' % (s * 1024 if p3 or not ENV('X5A') else (s % int(ENV('X5A'))) * 1024))
        for mi in range(2):
            q.issue('buffer_load_dwordx4 %s, v%d, s[4:7], s30 offen%s' % (vr(AR + slot * 8 + mi * 4, 4), vA0 + mi, DSC), ('A', s))

    def reads(s):
        p = s & 1
        if p3:
            base, va = s * 2048, vBr
        else:
            a = ((s + 3) % 18) * 8192
            va = (vBr, vFw, vFr)[a >> 16]
            base = a & 0xffff
        for nb in range(2):
            for sec in range(2):
                if RED == 2:
                    k('ds_read_b64_tr_b16 %s, v%d offset:%d' % (
                        vr(BFR + p * 8 + nb * 4 + sec * 2, 2), vB2[0 if p3 else a >> 16] if nb else va, base + sec * 512))
                    continue
                k('ds_read_b64_tr_b16 %s, v%d offset:%d' % (
                    vr(BFR + p * 8 + nb * 4 + sec * 2, 2), va, base + sec * 512 + nb * 256))

    issued = 0
    for s in range(PF):
        aloads(s)
        issued += 1
    for j in range(2):
        if RED == 2:
            q.issue('buffer_load_dwordx4 %s, v%d, s[%d:%d], 0 offen offset:%d%s' % (
                vr(RES + 4 * j, 4), vRes, rsrd, rsrd + 3, j * (32 if p3 else 1024), '' if p3 else DSC), ('R', j))
            continue
        q.issue('buffer_load_dwordx4 %s, v%d, s[%d:%d], %s offen%s' % (
            vr(RES + 4 * j, 4), vRes, rsrd, rsrd + 3, 's41' if j else '0', '' if p3 else DSC), ('R', j))
    reads(0)
    TS5 = {} if p3 or not ENV('TS5') else {0: 3, 3: 4, 7: 5, 12: 6, 17: 7, 22: 8}
    if TS5:
        k.ts2(2)
    for s in range(NS):
        p = s & 1
        if s + 1 < NS:
            if ('B', s + 1) in q.at:
                q.wait(('B', s + 1))
            reads(s + 1)
            k('s_waitcnt lgkmcnt(4)')
        else:
            k('s_waitcnt lgkmcnt(0)')
        q.wait(('A', s))
        if s in TS5:
            k.ts2(TS5[s])
        slot = s % NR
        for mi in range(2):
            for nb in range(2):
                acc = vr(ACC + (mi * 2 + nb) * 16, 16)
                k('v_mfma_f32_32x32x16_bf16 %s, %s, %s, %s' % (
                    acc, vr(BFR + p * 8 + nb * 4, 4), vr(AR + slot * 8 + mi * 4, 4), '0' if s == 0 else acc))
        if issued < NS:
            aloads(issued)
            issued += 1
        if not p3 and s + 18 < NS and not ENV('X5B'):
            p5_bstep(k, s + 18, vBd, 25, 26, 12, q)
    k.ts(tsb + 1)
    if RED == 2:
        def roff(i, qq):
            return (i - 1) * 4096 + qq * 1024 if p3 else ((i - 1) * 2 + (qq >> 1)) * 8192 + (qq & 1) * 1024
        for i in range(1, 4):
            for qq in range(4):
                k('ds_write_b128 v%d, %s offset:%d' % (vW, vr(ACC + i * 16 + qq * 4, 4), roff(i, qq)))
        k('s_waitcnt vmcnt(0)')
        for i in range(8):
            k('v_lshlrev_b32 v%d, 16, v%d' % (T + 2 * i, RES + i))
            k('v_and_b32 v%d, 0xffff0000, v%d' % (T + 2 * i + 1, RES + i))
        k('s_waitcnt lgkmcnt(0)')
        if p3 and ENV('TS3'):
            k.ts2(2)
        k('s_barrier')
        if p3 and ENV('TS3'):
            k.ts2(3)
        for j in range(2):
            for i in range(1, 4):
                for qq in (2 * j, 2 * j + 1):
                    k('ds_read_b128 %s, v%d offset:%d' % (vr(ACC + i * 16 + qq * 4, 4), vR + i - 1, roff(i, qq)))
        P, U = BFR, BFR + 8
        for j in range(2):
            b = ACC + j * 8
            k('s_waitcnt lgkmcnt(%d)' % (10 - 6 * j))
            for r in range(0, 8, 2):
                k('v_pk_add_f32 %s, %s, %s' % (vr(b + r, 2), vr(b + r, 2), vr(b + 16 + r, 2)))
            k('s_waitcnt lgkmcnt(%d)' % (6 - 6 * j))
            for r in range(0, 8, 2):
                k('v_pk_add_f32 %s, %s, %s' % (vr(b + 32 + r, 2), vr(b + 32 + r, 2), vr(b + 48 + r, 2)))
            for r in range(0, 8, 2):
                k('v_pk_add_f32 %s, %s, %s' % (vr(b + r, 2), vr(b + r, 2), vr(b + 32 + r, 2)))
            for i in range(4):
                k('v_cvt_pk_bf16_f32 v%d, v%d, v%d' % (P + 4 * j + i, b + 2 * i, b + 2 * i + 1))
            k('v_permlane32_swap_b32 v%d, v%d' % (P + 4 * j, P + 4 * j + 2))
            k('v_permlane32_swap_b32 v%d, v%d' % (P + 4 * j + 1, P + 4 * j + 3))
            for i in range(4):
                k('v_lshlrev_b32 v%d, 16, v%d' % (U + 2 * i, P + 4 * j + i))
                k('v_and_b32 v%d, 0xffff0000, v%d' % (U + 2 * i + 1, P + 4 * j + i))
            for i in range(4):
                k('v_pk_add_f32 %s, %s, %s' % (vr(U + 2 * i, 2), vr(U + 2 * i, 2), vr(T + 8 * j + 2 * i, 2)))
            for i in range(4):
                k('v_cvt_pk_bf16_f32 v%d, v%d, v%d' % (RES + 4 * j + i, U + 2 * i, U + 2 * i + 1))
            if p3:
                k('buffer_store_dwordx4 %s, v%d, s[4:7], 0 offen offset:%d%s' % (vr(RES + 4 * j, 4), vFo, j * 512, FSC))
            else:
                k('buffer_store_dwordx4 %s, v%d, s[16:19], 0 offen offset:%d' % (vr(RES + 4 * j, 4), vOut, j * 32))
        if p3:
            for i in range(8):
                d = RES + i
                a = AR + 2 * (i & 1)
                k('v_dot2_f32_bf16 v%d, v%d, s44, %s' % (a, d, 'v%d' % a if i > 1 else '0'))
                k('v_dot2_f32_bf16 v%d, v%d, v%d, %s' % (a + 1, d, d, 'v%d' % (a + 1) if i > 1 else '0'))
            k('v_pk_add_f32 %s, %s, %s' % (vr(AR, 2), vr(AR, 2), vr(AR + 2, 2)))
            k('v_permlane32_swap_b32 v%d, v%d' % (AR, AR + 1))
            k('v_add_f32 v%d, v%d, v%d' % (AR, AR, AR + 1))
            k('buffer_store_dword v%d, v%d, s[4:7], 0 offen%s' % (AR, vSt, SSC))
            if ENV('TS3'):
                k.ts2(4)

            def hst():
                for j in range(2):
                    k('buffer_store_dwordx4 %s, v%d, s[4:7], 0 offen offset:%d%s' % (vr(RES + 4 * j, 4), vH, j * 1024, HSC))
            k.hst = hst
        yield 'end'
        return
    for t in range(4):
        for qq in range(4):
            k('ds_write_b128 v%d, %s offset:%d' % (vW + qq, vr(ACC + t * 16 + qq * 4, 4),
                                                   (t >> 1) * (8192 if p3 else 32768) + (t & 1) * 128))
    k('s_waitcnt lgkmcnt(0)')
    if p3 and ENV('TS3'):
        k.ts2(2)
    k('s_barrier')
    if p3 and ENV('TS3'):
        k.ts2(3)
    for j in range(2):
        for src in range(4):
            for e in range(2):
                off = (src * RS + j * 2048) if p3 else (src * 2048 + j * 8192)
                k('ds_read_b128 %s, v%d offset:%d' % (vr(ACC + (j * 4 + src) * 8 + e * 4, 4), vR + e, off))
    for j in range(2):
        b = ACC + j * 32
        k('s_waitcnt lgkmcnt(%d)' % (12 - 8 * j))
        for i in range(8):
            k('v_add_f32 v%d, v%d, v%d' % (b + i, b + i, b + 8 + i))
        k('s_waitcnt lgkmcnt(%d)' % (8 - 8 * j))
        for i in range(8):
            k('v_add_f32 v%d, v%d, v%d' % (b + 16 + i, b + 16 + i, b + 24 + i))
        for i in range(8):
            k('v_add_f32 v%d, v%d, v%d' % (b + i, b + i, b + 16 + i))
        if j == 0:
            k('s_waitcnt vmcnt(0)')
        for i in range(4):
            k('v_cvt_pk_bf16_f32 v%d, v%d, v%d' % (T + 4, b + 2 * i, b + 2 * i + 1))
            k('v_lshlrev_b32 v%d, 16, v%d' % (T, T + 4))
            k('v_and_b32 v%d, 0xffff0000, v%d' % (T + 1, T + 4))
            k('v_lshlrev_b32 v%d, 16, v%d' % (T + 2, RES + 4 * j + i))
            k('v_and_b32 v%d, 0xffff0000, v%d' % (T + 3, RES + 4 * j + i))
            k('v_add_f32 v%d, v%d, v%d' % (T, T, T + 2))
            k('v_add_f32 v%d, v%d, v%d' % (T + 1, T + 1, T + 3))
            k('v_cvt_pk_bf16_f32 v%d, v%d, v%d' % (T + 8 + 4 * j + i, T, T + 1))
        k('buffer_store_dwordx4 %s, v%d, s[%d:%d], %s offen%s' % (vr(T + 8 + 4 * j, 4), vOut, osrd, osrd + 3, 's41' if j else '0', HSC if p3 else ''))
        if p3:
            k('ds_write_b128 v%d, %s offset:%d' % (vFw, vr(T + 8 + 4 * j, 4), j * 128))
            for i in range(4):
                d = T + 8 + 4 * j + i
                k('v_dot2_f32_bf16 v%d, v%d, s44, %s' % (BFR + 2 * j, d, 'v%d' % (BFR + 2 * j) if i else '0'))
                k('v_dot2_f32_bf16 v%d, v%d, v%d, %s' % (BFR + 2 * j + 1, d, d, 'v%d' % (BFR + 2 * j + 1) if i else '0'))
    if p3:
        k('s_waitcnt lgkmcnt(0)')
        for j in range(2):
            k('ds_read_b128 %s, v%d offset:%d' % (vr(ACC + 4 * j, 4), vFr, j * 1024))
        DP = ' row_mask:0xf bank_mask:0xf'
        for m in ('quad_perm:[1,0,3,2]', 'quad_perm:[2,3,0,1]', 'row_half_mirror'):
            for i in range(4):
                k('v_add_f32_dpp v%d, v%d, v%d %s%s' % (BFR + i, BFR + i, BFR + i, m, DP))
        k('s_mov_b64 exec, s[42:43]')
        for j in range(2):
            k('buffer_store_dwordx2 %s, v%d, s[4:7], 0 offen offset:%d%s' % (vr(BFR + 2 * j, 2), vSt, j * 512, SSC))
        k('s_mov_b64 exec, -1')
        for j in range(2):
            k('s_waitcnt lgkmcnt(%d)' % (1 - j))
            k('buffer_store_dwordx4 %s, v%d, s[4:7], 0 offen offset:%d%s' % (vr(ACC + 4 * j, 4), vFo, j * 1024, FSC))
        if ENV('TS3'):
            k.ts2(4)
    yield 'end'


def cs_sum(k, mid=None, nmid=0):
    k('''s_lshr_b32 s10, s2, 4
    s_mul_i32 s10, s10, 448
    s_bfe_u32 s11, s3, 0x10001
    s_mul_i32 s30, s11, 7168
    s_add_u32 s10, s10, s30
    s_add_u32 s10, s10, 0x%x
    s_mul_i32 s11, s11, 448
    s_add_u32 s11, s11, %d
    v_and_b32 v4, 31, v1
    v_lshlrev_b32 v4, 4, v4
    v_add_u32 v6, s11, v4
    v_lshrrev_b32 v5, 5, v1
    v_mul_u32_u24 v5, %d, v5
    v_add_u32 v4, v4, v5''' % (WS_CS2, CSB, 8 * 14336))
    for p in range(8):
        k('s_add_u32 s30, s10, %d' % (p * 14336))
        k('buffer_load_dwordx4 %s, v4, s[4:7], s30 offen' % vr(32 + p * 4, 4))
    if mid:
        mid()
    for p in range(1, 8):
        k('s_waitcnt vmcnt(%d)' % (7 - p + nmid))
        for i in range(4):
            k('v_add_f32 v%d, v%d, v%d' % (32 + i, 32 + i, 32 + p * 4 + i))
    for i in range(4):
        k('v_mov_b32 v%d, v%d' % (36 + i, 32 + i))
    for i in range(4):
        k('v_permlane32_swap_b32 v%d, v%d' % (32 + i, 36 + i))
    for i in range(4):
        k('v_add_f32 v%d, v%d, v%d' % (32 + i, 32 + i, 36 + i))
    k('s_mov_b64 exec, 0x0fffffff')
    k('ds_write_b128 v6, v[32:35]')
    k('s_mov_b64 exec, -1')


def p4_loader(k):
    vA, vBd, vB5, vG = 8, 16, 17, 18
    RAMP = int(ENV('RAMP', '2'))
    k.label('J_LD4')
    k('s_and_b32 s22, s3, 3')
    k('''s_cmp_lt_u32 s22, 2
    s_cselect_b32 s10, 32, 40
    s_load_dwordx2 s[16:17], s[0:1], s10
    s_load_dwordx2 s[12:13], s[0:1], 48''')
    k('v_and_b32 v1, 63, v0')
    k('''s_and_b32 s20, s2, 7
    s_lshl_b32 s20, s20, 1
    s_bfe_u32 s21, s2, 0x10003
    s_add_u32 s20, s20, s21
    s_lshl_b32 s23, s20, 17
    s_lshl_b32 s24, s22, 15
    s_add_u32 s23, s23, s24
    s_add_u32 s23, s23, 0x%x
    v_lshlrev_b32 v4, 4, v1
    v_add_u32 v%d, s23, v4''' % (WS_HF, vA))
    k('''s_lshl_b32 s29, s21, 6
    s_lshl_b32 s24, s22, 4
    s_add_u32 s29, s29, s24
    s_add_u32 s29, s29, s8
    s_add_u32 s29, s29, %d''' % F3)
    for i in range(1, 8):
        k('s_mov_b32 s%d, %d' % (47 + i, i * 4096))
    p4_bsetup(k, vBd, 4, 5, 26, 27)
    k('s_lshl_b32 s28, s22, 11')
    k('s_lshr_b32 s10, s2, 5')
    k('s_lshl_b32 s10, s10, 7')
    gemm_bd(k, vB5, 4, 5, 10)
    k('s_mul_i32 s25, s22, %d' % (28 * 16 * 1024))
    k('v_lshlrev_b32 v%d, 10, v1' % vG)
    k('s_mov_b32 s40, 0x%x' % (WS_FL + GST))
    k('s_waitcnt lgkmcnt(0)')
    k('s_mov_b32 s18, 0x%x' % WSZ)
    k('s_mov_b32 s19, 0x00020000')
    k('s_mov_b32 s14, 0x%x' % WSZ)
    k('s_mov_b32 s15, 0x00020000')
    poll(k, 'LD4_poll', 29, 4)
    k.ts(8)
    q = Q(k)

    def astage(ks):
        sl = ((ks + 3) % NSL) * SLOT
        for mf in range(2):
            o_ = (mf * 16 + ks % int(ENV('X4A', '16'))) * 1024
            k('s_add_u32 m0, s28, %d' % (sl + 16384 + mf * 1024 - o_ % 4096))
            q.issue('buffer_load_dwordx4 v%d, s[4:7], %s offen offset:%d%s lds' % (
                vA, ('s%d' % (47 + o_ // 4096)) if o_ >= 4096 else '0', o_ % 4096, DSC), ('S', ks))

    def stage(ks):
        astage(ks)
        if ks >= 3:
            p4_bstage(k, ks, vBd, 26, 27, 16, q)
            q.at[('S', ks)] = q.n

    issued = 0
    for ks in range(3):
        stage(ks)
        issued += 1
    for ks in range(16):
        q.wait(('S', ks))
        if ENV('TS4') and ks in (2, 4, 6, 8, 10, 12):
            k.ts2(1 + ks // 2)
        k('s_barrier')
        for _ in range(RAMP):
            if issued < 16 and issued <= ks + NSL - 1:
                stage(issued)
                issued += 1
        if ks == 8:
            k('s_mov_b64 exec, 0xff')
            q.issue('buffer_load_dword v%d, v%d, s[4:7], s40 offen sc1' % (vG + 1, vG), 'G')
            k('s_mov_b64 exec, -1')
        if ks >= 11 and not ENV('X5P'):
            for s in range((ks - 11) * 3, (ks - 11) * 3 + 3):
                p5_bstep(k, s, vB5, 25, 28, 12, q)
    k('s_barrier')
    k('s_cmp_lg_u32 s100, 0')
    k('s_cbranch_scc1 J_SLOW_next')
    for s in range(15, 18):
        p5_bstep(k, s, vB5, 25, 28, 12, q)
    q.wait('G')
    k('s_mov_b64 exec, 0xff')
    k('v_cmp_eq_u32 vcc, 0, v%d' % (vG + 1))
    k('s_mov_b64 exec, -1')
    k('v_mov_b32 v5, 0x%x' % DEC)
    k('s_and_b32 s10, vcc_lo, 0xff')
    k('v_mov_b32 v4, s10')
    k('s_cmp_lg_u32 s3, 4')
    k('s_cbranch_scc1 LD4_nw')
    k('ds_write_b32 v5, v4 offset:4')
    k.label('LD4_nw')
    k('s_waitcnt vmcnt(0) lgkmcnt(0)')
    k.ts(9)
    k('s_barrier')
    k('ds_read_b32 v4, v5 offset:4')
    k('s_waitcnt lgkmcnt(0)')
    k('v_readfirstlane_b32 s10, v4')
    k('s_cmp_lg_u32 s10, 0')
    k('s_cbranch_scc1 LD4_steal')
    prof_end(k)
    k('s_endpgm')
    k.label('LD4_steal')
    k('s_barrier')
    k('s_branch J_SLOW_end')


def p4_comp(k):
    SS = 18
    vM, vC, vI = 26, 28, 30
    AF = 32
    BF = 48
    ACC = 104
    T = 216
    E = 224
    CS = BF
    vSt = 9
    vRd = 10
    vRa = 14
    vCs = 17
    vS2 = 16
    k.label('J_P4')
    lanes(k)
    k('''s_and_b32 s20, s2, 7
    s_lshl_b32 s20, s20, 1
    s_bfe_u32 s22, s2, 0x10003
    s_add_u32 s20, s20, s22
    s_lshr_b32 s21, s2, 4''')
    k('''s_lshl_b32 s40, s22, 1
    s_lshr_b32 s23, s3, 1
    s_add_u32 s40, s40, s23
    s_lshl_b32 s40, s40, 4
    s_add_u32 s40, s40, s21
    s_lshl_b32 s40, s40, 1
    s_and_b32 s23, s3, 1
    s_add_u32 s40, s40, s23
    s_add_u32 s40, s40, s8
    s_add_u32 s40, s40, %d''' % F4)
    k('''v_lshlrev_b32 v4, 3, v3
    v_lshrrev_b32 v5, 2, v2
    v_add_u32 v4, v4, v5
    v_lshlrev_b32 v4, 6, v4
    v_and_b32 v5, 3, v2
    v_lshl_add_u32 v4, v5, 3, v4
    s_and_b32 s30, s21, 1
    v_and_b32 v5, 1, v3
    v_xor_b32 v5, s30, v5
    v_lshl_add_u32 v%d, v5, 5, v4
    v_xor_b32 v5, 1, v5
    v_lshl_add_u32 v4, v5, 5, v4
    s_lshl_b32 s30, s30, 11
    v_add_u32 v%d, s30, v4''' % (vRd, vRd + 1))
    for par in range(2):
        k('v_add_u32 v%d, %d, v%d' % (vRd + 2 + par, 3 * SLOT, vRd + par))
    k('s_lshl_b32 s28, s3, 11')
    k('s_add_u32 s28, s28, 16384')
    k('v_lshlrev_b32 v4, 4, v1')
    k('v_add_u32 v%d, s28, v4' % vRa)
    k('v_add_u32 v%d, %d, v%d' % (vRa + 1, 3 * SLOT, vRa))
    k('''v_lshrrev_b32 v4, 1, v3
    v_lshlrev_b32 v4, 5, v4
    v_add_u32 v4, v4, v2
    v_lshlrev_b32 v4, 4, v4
    v_and_b32 v5, 1, v3
    v_lshl_add_u32 v%d, v5, 3, v4''' % vSt)
    k('''s_lshl_b32 s25, s20, 2
    s_add_u32 s25, s25, s3
    s_mul_i32 s25, s25, 112
    s_mul_i32 s30, s21, 7
    s_add_u32 s25, s25, s30
    s_lshl_b32 s25, s25, 10
    s_add_u32 s25, s25, 0x%x''' % WS_HH)
    k('v_lshlrev_b32 v8, 7, v1')
    k('v_lshlrev_b32 v4, 4, v3')
    k('v_add_u32 v%d, 0x%x, v4' % (vCs, CSB))
    k('''s_lshl_b32 s30, s20, 2
    s_add_u32 s30, s30, s3
    s_lshl_b32 s30, s30, %d
    s_add_u32 s30, s30, 0x%x
    v_lshl_add_u32 v4, v2, 6, v4
    v_lshlrev_b32 v4, %d, v4
    v_add_u32 v%d, s30, v4''' % (10 + RED, WS_ST, RED - 1, vS2))
    yield 'pre'

    def areg(ks, mf):
        return AF + ((ks & 1) * 2 + mf) * 4

    def reads(hs):
        ks, mx = hs >> 1, hs & 1
        slot = (ks + 3) % NSL
        out = []
        if mx == 0:
            for mf in range(2):
                out.append('ds_read_b128 %s, v%d offset:%d' % (vr(areg(ks, mf), 4), vRa + slot // 3, (slot % 3) * SLOT + mf * 1024))
            if ENV('X4R'):
                for mf in range(2):
                    out.append('ds_read_b128 %s, v%d offset:%d' % (vr(E + mf * 4, 4), vRa + slot // 3, (slot % 3) * SLOT + mf * 1024))
        for nf in range(4 if ENV('X4R') else 7):
            for kgl in range(2):
                out.append('ds_read_b64_tr_b16 %s, v%d offset:%d' % (
                    vr(BF + mx * 28 + nf * 4 + kgl * 2, 2), vRd + (slot // 3) * 2 + (nf & 1),
                    (slot % 3) * SLOT + mx * 8192 + (nf >> 1) * 2048 + kgl * 256))
        return out

    class Lst:
        def __init__(self):
            self.l = []

        def __call__(self, x):
            self.l.append(x)

    k('s_barrier')
    k.ts(8)
    for o in reads(0):
        k(o)
    for mf in range(2):
        k('buffer_load_dwordx4 %s, v%d, s[4:7], 0 offen offset:%d%s' % (vr(SS + mf * 4, 4), vS2, mf * 1024 * RED, DSC))
        if RED == 2:
            k('buffer_load_dwordx4 %s, v%d, s[4:7], 0 offen offset:%d%s' % (vr(E + mf * 4, 4), vS2, mf * 2048 + 16, DSC))
    SF = Lst()
    if RED == 2:
        for i in range(0, 8, 2):
            SF('v_pk_add_f32 %s, %s, %s' % (vr(SS + i, 2), vr(SS + i, 2), vr(E + i, 2)))
    stats_fin(SF, SS, T, vM, vC, vI)
    no = []
    for hs in range(32):
        ks, mx = hs >> 1, hs & 1
        k('s_waitcnt lgkmcnt(0)')
        if ENV('TS4') == '2' and mx == 1 and ks in (1, 3, 5, 7, 9, 11):
            k.ts2(2 + ks // 2)
        if mx == 1 and ks + 1 < 16:
            k('s_barrier')
        if ENV('TS4') == '1' and mx == 1 and ks in (1, 3, 5, 7, 9, 11):
            k.ts2(2 + ks // 2)
        rd = reads(hs + 1) if hs + 1 < 32 else []
        if hs == 8:
            k('s_waitcnt vmcnt(0)')
            no = SF.l
        if PRE and PREG and hs == HPF:
            k('s_mov_b32 exec_hi, 0x00ffffff')
            k('buffer_load_dword v7, v8, s[4:7], s25 offen')
            k('s_mov_b32 exec_hi, -1')
        for nf in range(7):
            for mf in range(2):
                acc = vr(ACC + (mf * 14 + mx * 7 + nf) * 4, 4)
                a = vr(areg(ks, mf), 4)
                b = vr(BF + mx * 28 + nf * 4, 4)
                k('v_mfma_f32_16x16x32_bf16 %s, %s, %s, %s' % (acc, b, a, '0' if ks == 0 else acc))
                for _ in range(2):
                    if rd:
                        k(rd.pop(0))
                if no and not rd:
                    k(no.pop(0))
                    if no:
                        k(no.pop(0))
        for o in rd:
            k(o)
    assert not no
    k.ts(9)
    k('s_waitcnt vmcnt(0)')
    k('s_barrier')
    for mx in range(2):
        for nf in range(7):
            k('ds_read_b128 %s, v%d offset:%d' % (vr(CS + (mx * 7 + nf) * 4, 4), vCs, mx * 448 + nf * 64))
    k('s_waitcnt lgkmcnt(0)')
    n = 0
    for nf in range(7):
        k('s_add_u32 s29, s25, %d' % (nf * 1024))
        for mf in range(2):
            e = E + (n & 3) * 8
            n += 1
            G = ACC + (mf * 14 + nf) * 4
            U = ACC + (mf * 14 + 7 + nf) * 4
            sel = 'op_sel:[0,%d,0] op_sel_hi:[1,%d,1]' % (mf, mf)
            sel2 = 'op_sel:[0,%d] op_sel_hi:[1,%d]' % (mf, mf)
            sel3 = 'op_sel:[0,%d,%d] op_sel_hi:[1,%d,%d]' % (mf, mf, mf, mf)
            for h in range(2):
                k('v_pk_fma_f32 %s, %s, %s, %s %s neg_lo:[0,1,0] neg_hi:[0,1,0]' % (
                    vr(G + 2 * h, 2), vr(CS + nf * 4 + 2 * h, 2), vr(vM, 2), vr(G + 2 * h, 2), sel))
            for h in range(2):
                k('v_pk_mul_f32 %s, %s, %s %s' % (vr(e + 2 * h, 2), vr(G + 2 * h, 2), vr(vC, 2), sel2))
            for r in range(4):
                k('v_exp_f32 v%d, v%d' % (e + r, e + r))
            for h in range(2):
                k('v_pk_fma_f32 %s, %s, %s, %s %s neg_lo:[0,1,0] neg_hi:[0,1,0]' % (
                    vr(U + 2 * h, 2), vr(CS + (7 + nf) * 4 + 2 * h, 2), vr(vM, 2), vr(U + 2 * h, 2), sel))
            for h in range(2):
                k('v_pk_fma_f32 %s, %s, %s, %s %s' % (vr(e + 2 * h, 2), vr(e + 2 * h, 2), vr(vI, 2), vr(vI, 2), sel3))
            for r in range(4):
                k('v_rcp_f32 v%d, v%d' % (e + r, e + r))
            for h in range(2):
                k('v_pk_mul_f32 %s, %s, %s' % (vr(G + 2 * h, 2), vr(G + 2 * h, 2), vr(U + 2 * h, 2)))
            for h in range(2):
                k('v_pk_mul_f32 %s, %s, %s' % (vr(G + 2 * h, 2), vr(G + 2 * h, 2), vr(e + 2 * h, 2)))
            k('v_cvt_pk_bf16_f32 v%d, v%d, v%d' % (e + 4, G, G + 1))
            k('v_cvt_pk_bf16_f32 v%d, v%d, v%d' % (e + 5, G + 2, G + 3))
            k('buffer_store_dwordx2 %s, v%d, s[4:7], s29 offen offset:%d%s' % (vr(e + 4, 2), vSt, mf * 256, GSC))
    yield 'end'


def prof_end(k):
    if not PROF:
        return
    k('s_waitcnt vmcnt(0)')
    k.ts(14)
    k.ts(15, True)
    k('s_waitcnt lgkmcnt(0)')
    k('s_lshl_b32 s99, s2, 3')
    k('s_add_u32 s99, s99, s3')
    k('s_lshl_b32 s99, s99, 7')
    k('s_add_u32 s99, s99, 0x%x' % (PROF_BASE + 0x40000))
    k('v_mov_b32 v4, 0')
    for i in range(16):
        k('v_mov_b32 v2, s%d' % (64 + 2 * i))
        k('v_mov_b32 v3, s%d' % (65 + 2 * i))
        k('buffer_store_dwordx2 v[2:3], v4, s[4:7], s99 offen offset:%d' % (8 * i))
        k('s_nop 1')


def bcast_read(k, off):
    k('v_mov_b32 v5, 0x%x' % DEC)
    k('s_barrier')
    k('ds_read_b32 v4, v5 offset:%d' % off)
    k('s_waitcnt lgkmcnt(0)')
    k('v_readfirstlane_b32 s10, v4')


def slow(k):
    k.label('J_SLOW_start')
    k('s_lshr_b32 s11, s2, 3')
    k('s_lshl_b32 s9, 1, s11')
    k('s_bitcmp1_b32 s10, 0')
    k('s_cselect_b32 s9, 0, s9')
    k('s_mov_b32 s100, 1')
    k('s_mov_b32 s97, %d' % PATIENCE)
    k.label('J_SLOW_claim')
    k('s_waitcnt vmcnt(0) lgkmcnt(0)')
    k('s_barrier')
    k('s_cmp_lg_u32 s3, 0')
    k('s_cbranch_scc1 SL_c9')
    k('s_mov_b64 exec, 1')
    k('s_mov_b32 s30, 0')
    k('s_mov_b32 s31, 0')
    k.label('J_SL_c1')
    k('v_mov_b32 v4, 0')
    k('buffer_atomic_or v4, off, s[4:7], s8 sc0')
    k('s_add_u32 s31, s31, 1')
    k('s_waitcnt vmcnt(0)')
    k('v_readfirstlane_b32 s10, v4')
    k('s_mov_b32 s11, -1')
    k('s_cmp_eq_u32 s10, -1')
    k('s_cbranch_scc1 SL_c8')
    k('s_cmp_gt_u32 s31, 4096')
    k('s_cbranch_scc1 SL_c8')
    k('s_cmp_eq_u32 s9, 0')
    k('s_cbranch_scc1 SL_c2')
    k('s_cmp_ge_u32 s30, s97')
    k('s_cbranch_scc1 SL_c2')
    k('s_add_u32 s30, s30, 1')
    k('s_sleep 16')
    k('s_branch J_SL_c1')
    k.label('SL_c2')
    k('s_ff0_i32_b32 s11, s10')
    k('s_lshl_b32 s10, 1, s11')
    k('v_mov_b32 v4, s10')
    k('buffer_atomic_or v4, off, s[4:7], s8 sc0')
    k('s_waitcnt vmcnt(0)')
    k('v_readfirstlane_b32 s12, v4')
    k('s_and_b32 s12, s12, s10')
    k('s_cmp_lg_u32 s12, 0')
    k('s_cbranch_scc1 J_SL_c1')
    k.label('SL_c8')
    k('v_mov_b32 v4, s11')
    k('v_mov_b32 v5, 0x%x' % DEC)
    k('ds_write_b32 v5, v4 offset:8')
    k('s_mov_b64 exec, -1')
    k('s_waitcnt lgkmcnt(0)')
    k.label('SL_c9')
    bcast_read(k, 8)
    k('s_cmp_eq_u32 s10, -1')
    k('s_cbranch_scc1 SL_ph')
    k('s_and_b32 s10, s10, 31')
    k('s_lshl_b32 s11, 1, s10')
    k('s_or_b32 s9, s9, s11')
    k('s_and_b32 s2, s2, 7')
    k('s_lshl_b32 s10, s10, 3')
    k('s_or_b32 s2, s2, s10')
    k('s_branch J_P2')
    k.label('SL_ph')
    k('s_mov_b32 s100, 3')
    k('s_mov_b32 s101, s9')
    k.label('J_SLOW_next')
    k('s_waitcnt vmcnt(0) lgkmcnt(0)')
    k('s_barrier')
    k('s_cmp_lg_u32 s101, 0')
    k('s_cbranch_scc1 SL_n1')
    k('s_add_u32 s100, s100, 1')
    k('s_mov_b32 s101, s9')
    k('s_cmp_gt_u32 s100, 5')
    k('s_cbranch_scc1 J_SLOW_end')
    k('s_branch J_SLOW_next')
    k.label('SL_n1')
    k('s_ff1_i32_b32 s10, s101')
    k('s_bitset0_b32 s101, s10')
    k('s_and_b32 s2, s2, 7')
    k('s_lshl_b32 s10, s10, 3')
    k('s_or_b32 s2, s2, s10')
    k('v_and_b32 v1, 63, v0')
    k('s_cmp_ge_u32 s3, 4')
    k('s_cbranch_scc1 SL_ld')
    k('s_cmp_eq_u32 s100, 4')
    k('s_cbranch_scc1 J_P4')
    k('s_cmp_eq_u32 s100, 5')
    k('s_cbranch_scc1 J_P5')
    k('s_load_dwordx2 s[12:13], s[0:1], 16')
    k('s_mov_b32 s14, 0x80000')
    k('s_mov_b32 s15, 0x00020000')
    k('s_waitcnt lgkmcnt(0)')
    wo_dma(k, 8, 4, 5)
    k('s_waitcnt vmcnt(0)')
    k('s_branch J_P3')
    k.label('SL_ld')
    k('s_cmp_eq_u32 s100, 3')
    k('s_cbranch_scc1 SL_l3')
    k('s_cmp_eq_u32 s100, 5')
    k('s_cbranch_scc1 SL_l5')
    k('''s_cmp_lt_u32 s3, 6
    s_cselect_b32 s10, 32, 40
    s_load_dwordx2 s[12:13], s[0:1], s10
    s_mov_b32 s14, 0x%x
    s_mov_b32 s15, 0x00020000''' % WSZ)
    p4_bsetup(k, 8, 4, 5, 23, 24)
    k('s_waitcnt lgkmcnt(0)')
    for ks in range(3):
        p4_bstage(k, ks, 8, 23, 24, 12)
    cs_sum(k)
    k('s_waitcnt lgkmcnt(0)')
    k('s_branch J_LD4')
    k.label('SL_l5')
    k('s_load_dwordx2 s[12:13], s[0:1], 48')
    k('s_mov_b32 s14, 0x%x' % WSZ)
    k('s_mov_b32 s15, 0x00020000')
    k('s_lshr_b32 s10, s2, 5')
    k('s_lshl_b32 s10, s10, 7')
    gemm_bd(k, 8, 4, 5, 10)
    k('s_and_b32 s22, s3, 3')
    k('s_mul_i32 s25, s22, %d' % (28 * 16 * 1024))
    k('s_lshl_b32 s28, s22, 11')
    k('s_waitcnt lgkmcnt(0)')
    for s in range(18):
        p5_bstep(k, s, 8, 25, 28, 12)
    k('s_waitcnt vmcnt(0)')
    k('s_barrier')
    k.label('SL_l3')
    k('s_barrier')
    k('s_branch J_SLOW_next')
    k.label('J_SLOW_end')
    k('s_waitcnt vmcnt(0) lgkmcnt(0)')
    k('s_barrier')
    k('s_cmp_lg_u32 s3, 0')
    k('s_cbranch_scc1 SL_e9')
    k('v_and_b32 v1, 63, v0')
    k('v_lshlrev_b32 v6, 10, v1')
    k('s_mov_b32 s11, 0x%x' % (WS_FL + GST))
    k('s_mov_b64 exec, 0xff')
    k('buffer_load_dword v4, v6, s[4:7], s11 offen sc1')
    k('s_waitcnt vmcnt(0)')
    k('v_cmp_eq_u32 vcc, 0, v4')
    k('s_mov_b64 exec, 1')
    k('s_and_b32 s10, vcc_lo, 0xff')
    k('s_ff1_i32_b32 s10, s10')
    k('s_cmp_eq_u32 s10, -1')
    k('s_cbranch_scc1 SL_e8')
    k('s_lshl_b32 s12, s10, 10')
    k('s_add_u32 s11, s11, s12')
    k('v_mov_b32 v4, 1')
    k('buffer_store_dword v4, off, s[4:7], s11 sc1')
    k('s_waitcnt vmcnt(0)')
    k.label('SL_e8')
    k('v_mov_b32 v4, s10')
    k('v_mov_b32 v5, 0x%x' % DEC)
    k('ds_write_b32 v5, v4 offset:12')
    k('s_mov_b64 exec, -1')
    k('s_waitcnt lgkmcnt(0)')
    k.label('SL_e9')
    bcast_read(k, 12)
    k('s_cmp_eq_u32 s10, -1')
    k('s_cbranch_scc1 KF_done')
    k('s_and_b32 s2, s10, 7')
    k('s_lshl_b32 s8, s98, 3')
    k('s_add_u32 s8, s8, s2')
    k('s_lshl_b32 s8, s8, 10')
    k('s_add_u32 s8, s8, 0x%x' % WS_FL)
    k('s_mov_b32 s9, 0')
    k('s_mov_b32 s100, 1')
    k('s_mov_b32 s97, 0')
    k('s_branch J_SLOW_claim')


def gen_kf():
    k = Kernel('kf')
    if ENV('TS5'):
        k.tsoff = set(range(2, 9))
    if ENV('TS4'):
        k.tsoff = set(range(2, 8))
    if ENV('TS3'):
        k.tsoff = set(range(2, 5))
    if TS2:
        k.tsoff = set(range(2, 11))
    k('s_cmp_ge_u32 s2, 256')
    k('s_cbranch_scc1 KF_done')
    k.ts(0, True)
    k.ts(1)
    k('s_load_dwordx2 s[4:5], s[0:1], 72')
    k('s_getreg_b32 s98, hwreg(HW_REG_XCC_ID, 0, 4)')
    FAKE = ENV('FAKEX', '')
    if FAKE == 'g0':
        gsrc = '0'
    else:
        gsrc = None
    k('v_lshrrev_b32 v1, 6, v0')
    k('v_readfirstlane_b32 s3, v1')
    if gsrc is None:
        k('s_and_b32 s10, s98, 7')
    else:
        k('s_mov_b32 s10, %s' % gsrc)
    k('''s_andn2_b32 s2, s2, 7
    s_or_b32 s2, s2, s10
    s_lshl_b32 s8, s98, 3
    s_add_u32 s8, s8, s10
    s_lshl_b32 s8, s8, 10
    s_add_u32 s8, s8, 0x%x
    s_lshl_b32 s10, s10, 10
    s_add_u32 s10, s10, 0x%x
    s_mov_b32 s100, 0
    s_mov_b32 s6, 0x%x
    s_mov_b32 s7, 0x00020000
    s_lshr_b32 s11, s2, 3
    s_lshl_b32 s11, 1, s11
    v_mov_b32 v252, s11
    v_mov_b32 v253, 1''' % (WS_FL, WS_FL + GST, WS_SIZE))
    if FAKE == 'drop':
        k('s_and_b32 s11, s2, 0x78')
        k('s_cmp_eq_u32 s11, 0x28')
        k('s_cbranch_scc1 KF_done')
    if P2V:
        k('s_mov_b32 s9, s10')
    else:
        k('s_waitcnt lgkmcnt(0)')
        k('s_cmp_lg_u32 s3, 0')
        k('s_cbranch_scc1 J_P2')
        k('s_mov_b64 exec, 1')
        k('buffer_atomic_or v252, off, s[4:7], s8 sc0')
        k('buffer_store_dword v253, off, s[4:7], s10 sc1')
        k('s_mov_b64 exec, -1')
    phase2(k)
    k('s_cmp_ge_u32 s3, 4')
    k('s_cbranch_scc1 J_LD3')
    k.label('J_P3')
    for _ in gemm(k, True):
        pass
    g4 = p4_comp(k)
    k('s_cmp_lg_u32 s100, 0')
    k('s_cbranch_scc0 P3_fast')
    if RED == 2:
        k.hst()
    setflag(k, 40, 4)
    k('s_branch J_SLOW_next')
    k.label('P3_fast')
    k('s_mov_b32 s41, s40')
    next(g4)
    k('s_cmp_lg_u32 s100, 0')
    k('s_cbranch_scc1 P4_go')
    setflag(k, 41, 4)
    k.ts(7)
    if RED == 2:
        k.hst()
    k.label('P4_go')
    next(g4)
    g5 = gemm(k, False)
    k('s_cmp_lg_u32 s100, 0')
    k('s_cbranch_scc0 J_P5')
    setflag(k, 40, 4)
    k('s_branch J_SLOW_next')
    k.label('J_P5')
    next(g5)
    k('s_cmp_lg_u32 s100, 0')
    k('s_cbranch_scc1 P5_go')
    setflag(k, 40, 4)
    k.ts(10)
    k.label('P5_go')
    k('v_mov_b32 v5, 0x%x' % DEC)
    k('s_barrier')
    k('ds_read_b32 v4, v5 offset:4')
    k('s_waitcnt lgkmcnt(0)')
    k('v_readfirstlane_b32 s96, v4')
    next(g5)
    k.ts(13)
    k('s_cmp_lg_u32 s100, 0')
    k('s_cbranch_scc1 J_SLOW_next')
    k('s_cmp_lg_u32 s96, 0')
    k('s_cbranch_scc1 J_SLOW_end')
    prof_end(k)
    k.label('KF_done')
    k('s_endpgm')
    k.label('J_LD3')
    k('v_and_b32 v1, 63, v0')
    if P2V == 2:
        k('''s_cmp_lt_u32 s3, 6
        s_cselect_b32 s10, 32, 40
        s_load_dwordx2 s[12:13], s[0:1], s10
        s_mov_b32 s14, 0x%x''' % WSZ)
        p4_bsetup(k, 8, 4, 5, 23, 24)

        def mid():
            k('s_waitcnt lgkmcnt(0)')
            for ks in range(3):
                p4_bstage(k, ks, 8, 23, 24, 12)
        cs_sum(k, mid, 12)
    else:
        cs_sum(k)
    if PRE and NPF3:
        l2pf(k, NPF3, 40, NPF3)
    k('s_waitcnt lgkmcnt(0)')
    if ENV('TS3'):
        k.ts2(2)
    k('s_barrier')
    k.ts(5)
    p4_loader(k)
    slow(k)
    for f in OOL:
        f()
    k.label('KF_END')
    k('s_endpgm')
    return k, dict(vgpr=256, agpr=0, lds=LDS_SIZE, grid=256, block=512)
```
